```python
import torch

def _softmax(x, axis=-1):
    return torch.softmax(x, dim=axis)
def _gelu(x):
    return torch.nn.functional.gelu(x, approximate="tanh")
def _silu(x):
    return torch.nn.functional.silu(x)
def _sigmoid(x):
    return torch.sigmoid(x)
def _layernorm(x, axis=-1, eps=1e-5):
    m = x.mean(dim=axis, keepdim=True)
    v = x.var(dim=axis, keepdim=True, unbiased=False)
    return (x - m) / torch.sqrt(v + eps)
def _scatter_add(tgt, idx, src, axis=0):
    return tgt.clone().index_add_(axis, idx, src)
def _segment_sum(src, seg, n):
    out = torch.zeros((n,) + src.shape[1:], dtype=src.dtype)
    return out.index_add_(0, seg, src)
def _pad(x, pw):
    flat = tuple(v for pair in reversed(pw) for v in pair)
    return torch.nn.functional.pad(x, flat)

kernel_name = 'parallel_sum__ssm_conv_s4__dense_activation_mish__prompt'

def setup_inputs():

    _w = (lambda a: (lambda t: t.to(torch.bfloat16) if t.is_floating_point() else t)(torch.as_tensor(a)))
    def _A_setup():
        B, L, D, N = 1, 2048, 640, 192
        A_re = -(lambda _x: torch.exp(torch.as_tensor(_x)))((lambda *s: torch.randn(*s, dtype=torch.bfloat16) * 3.2)(D, N))
        A_im = torch.pi * (lambda *s: torch.randn(*s, dtype=torch.bfloat16) * 0.05)(D, N)
        B_re = (lambda *s: torch.randn(*s, dtype=torch.bfloat16) * 0.1)(D, N)
        B_im = (lambda *s: torch.randn(*s, dtype=torch.bfloat16) * 0.1)(D, N)
        C_re = (lambda *s: torch.randn(*s, dtype=torch.bfloat16) * 0.1)(D, N)
        C_im = (lambda *s: torch.randn(*s, dtype=torch.bfloat16) * 0.1)(D, N)
        log_dt = (lambda *s: torch.randn(*s, dtype=torch.bfloat16) * 0.05)(D) * 0.5 - 4.0
        Dskip = (lambda *s: torch.randn(*s, dtype=torch.bfloat16) * 0.05)(D)
        return {
            "u": _w((lambda *s: torch.randn(*s, dtype=torch.bfloat16) * 0.05)(B, L, D)),
            "A_re": _w(A_re),
            "A_im": _w(A_im),
            "B_re": _w(B_re),
            "B_im": _w(B_im),
            "C_re": _w(C_re),
            "C_im": _w(C_im),
            "log_dt": _w(log_dt),
            "Dskip": _w(Dskip),
        }
    _A_in = _A_setup()

    def _B_setup():
        B, S, D, F = 1, 2048, 640, 1536
        return {
            "x": _w((lambda *s: torch.randn(*s, dtype=torch.bfloat16) * 0.05)(B, S, D)),
            "w1": _w((lambda *s: torch.randn(*s, dtype=torch.bfloat16) * 0.8)(D, F) * (D ** -0.5)),
            "b1": _w((lambda *s: torch.randn(*s, dtype=torch.bfloat16) * 0.4)(F)),
            "w2": _w((lambda *s: torch.randn(*s, dtype=torch.bfloat16) * 0.2)(F, D) * (F ** -0.5)),
        }
    _B_in = _B_setup()

    return {
        "A_u": _A_in["u"],
        "A_A_re": _A_in["A_re"],
        "A_A_im": _A_in["A_im"],
        "A_B_re": _A_in["B_re"],
        "A_B_im": _A_in["B_im"],
        "A_C_re": _A_in["C_re"],
        "A_C_im": _A_in["C_im"],
        "A_log_dt": _A_in["log_dt"],
        "A_Dskip": _A_in["Dskip"],
        "B_x": _B_in["x"],
        "B_w1": _B_in["w1"],
        "B_b1": _B_in["b1"],
        "B_w2": _B_in["w2"],
    }

def reference(A_u, A_A_re, A_A_im, A_B_re, A_B_im, A_C_re, A_C_im, A_log_dt, A_Dskip, B_x, B_w1, B_b1, B_w2):
    def _A_ref(u, A_re, A_im, B_re, B_im, C_re, C_im, log_dt, Dskip):
        Bsz, L, D = u.shape
        dt = torch.exp(log_dt)[:, None]
        A = A_re + 1j * A_im
        Bc = B_re + 1j * B_im
        Cc = C_re + 1j * C_im
        logdA = dt * A
        dB = dt * Bc
        l = (lambda x, dt: x.to(dt))(torch.arange(L), A_re.dtype)
        P = torch.exp(logdA[:, :, None] * l[None, None, :])
        K = torch.einsum("dn,dnl,dn->dl", Cc, P, dB).real
        L2 = 2 * L
        Kp = _pad(K, ((0, 0), (0, L)))
        up = (lambda x, *d: x.permute(*d))(u, 0, 2, 1)
        up = _pad(up, ((0, 0), (0, 0), (0, L)))
        Kf = (lambda x, axes=(-2,-1): torch.fft.rfft2(x.float(), dim=axes))(Kp[:, None, :], axes=(-2, -1))
        Uf = (lambda x, axes=(-2,-1): torch.fft.rfft2(x.float(), dim=axes))(up[:, :, None, :], axes=(-2, -1))
        Yf = Uf * Kf[None, :, :, :]
        y = (lambda x, s, axes=(-2,-1): torch.fft.irfft2(x, s=s, dim=axes).to(torch.bfloat16))(Yf, (1, L2), axes=(-2, -1))[:, :, 0, :L]
        y = (lambda x, *d: x.permute(*d))(y, 0, 2, 1) + u * Dskip[None, None, :]
        return y

    def _B_ref(x, w1, b1, w2):
        h = torch.einsum("bsd,df->bsf", x, w1) + b1
        sp = torch.log1p(torch.exp(-torch.abs(h))) + torch.where(h > 0, h, torch.zeros_like(h))
        act = h * torch.tanh(sp)
        return torch.einsum("bsf,fd->bsd", act, w2)

    x = A_u
    xn = _layernorm(x, axis=-1)
    return x + _A_ref(xn, A_A_re, A_A_im, A_B_re, A_B_im, A_C_re, A_C_im, A_log_dt, A_Dskip) + _B_ref(xn, B_w1, B_b1, B_w2)
```

```python
import re

TRANS = ("v_exp_f32","v_log_f32","v_rcp_f32","v_rsq_f32","v_sqrt_f32","v_sin_f32","v_cos_f32")

def regs_of(tok):
    tok = tok.strip()
    neg = tok.startswith("-")
    if neg: tok = tok[1:]
    m = re.fullmatch(r"abs\((.*)\)|\|(.*)\|", tok)
    if m: tok = m.group(1) or m.group(2)
    m = re.fullmatch(r"([vsa])(\d+)", tok)
    if m: return [(m.group(1), int(m.group(2)))]
    m = re.fullmatch(r"([vsa])\[(\d+):(\d+)\]", tok)
    if m: return [(m.group(1), i) for i in range(int(m.group(2)), int(m.group(3))+1)]
    if tok == "vcc": return [("s",106),("s",107)]
    if tok == "vcc_lo": return [("s",106)]
    if tok == "vcc_hi": return [("s",107)]
    if tok in ("exec","exec_lo","exec_hi"): return [("x",0),("x",1)]
    if tok == "m0": return [("m",0)]
    return []

class Ins:
    __slots__=("text","op","kind","w","r","passes","dpp","srcC","srcAB","storedata","wide","states","label","target","lds_dma","mask_r")
    def __init__(self, text):
        self.text = text
        t = text.split(";")[0].strip()
        self.label=None; self.target=None
        self.w=set(); self.r=set(); self.passes=0; self.dpp=False; self.srcC=set(); self.srcAB=set()
        self.storedata=set(); self.wide=False; self.states=1; self.lds_dma=False; self.mask_r=set()
        if t.endswith(":"):
            self.op="label"; self.kind="label"; self.label=t[:-1]; self.states=0; return
        if t.startswith("."):
            self.op="dir"; self.kind="dir"; self.states=0; return
        parts = t.split(None,1)
        op = parts[0]; self.op=op
        rest = parts[1] if len(parts)>1 else ""
        ops=[]; cur=""; depth=0
        for ch in rest:
            if ch in "[(": depth+=1
            if ch in "])": depth-=1
            if ch=="," and depth==0: ops.append(cur); cur=""
            else: cur+=ch
        if cur.strip(): ops.append(cur)
        mods=""
        if ops:
            lastp = ops[-1].strip().split(None,1)
            ops[-1]=lastp[0]
            if len(lastp)>1: mods=lastp[1]
        ops=[o.strip() for o in ops]
        R=lambda i: regs_of(ops[i]) if i<len(ops) else []
        if op.startswith("v_mfma"):
            self.kind="mfma"
            self.passes = 8 if "32x32x16" in op else 4
            self.w=set(R(0)); self.srcAB=set(R(1))|set(R(2)); self.srcC=set(R(3)); self.r=self.srcAB|self.srcC
        elif op.startswith("v_"):
            self.kind="trans" if op.replace("_e32","").replace("_e64","") in TRANS else "valu"
            self.dpp = "_dpp" in op or "row_" in mods or "quad_perm" in mods or "wave_" in mods
            if op.startswith("v_cmp"):
                self.w=set(R(0));
                for i in range(1,len(ops)): self.r|=set(R(i))
            elif op.startswith("v_readlane") or op.startswith("v_readfirstlane"):
                self.kind="rdlane"; self.w=set(R(0));
                for i in range(1,len(ops)): self.r|=set(R(i))
            elif op.startswith("v_permlane"):
                self.kind="permlane"; self.w=set(R(0))|set(R(1)); self.r=set(self.w)
            elif op.startswith("v_add_co") or op.startswith("v_sub_co") or op.startswith("v_addc_co"):
                self.w=set(R(0))|set(R(1))
                for i in range(2,len(ops)): self.r|=set(R(i))
            else:
                self.w=set(R(0))
                for i in range(1,len(ops)): self.r|=set(R(i))
                if op.startswith("v_fmac") or op.startswith("v_dot2c") or op.startswith("v_writelane") or self.dpp: self.r|=self.w
        elif op.startswith("ds_"):
            self.kind="ds"
            if "read" in op or "bpermute" in op or "permute" in op or "swizzle" in op:
                self.w=set(R(0))
                for i in range(1,len(ops)): self.r|=set(R(i))
                if "d16" in op: self.r|=self.w
            else:
                for i in range(len(ops)): self.r|=set(R(i))
            if "addtid" in op: self.lds_dma=True
        elif op.startswith("buffer_") or op.startswith("global_"):
            self.kind="vmem"
            islds = re.search(r"\blds\b", mods) is not None or "_lds_" in op
            if islds:
                self.lds_dma=True
                for i in range(len(ops)): self.r|=set(R(i))
            elif "load" in op:
                self.w=set(R(0))
                for i in range(1,len(ops)): self.r|=set(R(i))
            else:
                for i in range(len(ops)): self.r|=set(R(i))
                di = 0 if op.startswith("buffer_") else 1
                self.storedata=set(R(di)); self.wide = ("x4" in op or "x3" in op)
                if "atomic" in op and "sc0" in mods: self.w=set(R(di))
        elif op.startswith("s_load") or op.startswith("s_memtime") or op.startswith("s_memrealtime") or op.startswith("s_buffer_load"):
            self.kind="smem"; self.w=set(R(0))
            for i in range(1,len(ops)): self.r|=set(R(i))
        elif op=="s_nop":
            self.kind="nop"; self.states=int(ops[0],0)+1
        elif op.startswith("s_cbranch") or op=="s_branch":
            self.kind="branch"; self.target=ops[0]
        elif op in ("s_waitcnt","s_barrier","s_endpgm","s_setprio","s_sleep"):
            self.kind="misc"
        elif op.startswith("s_cmp") or op.startswith("s_bitcmp"):
            self.kind="salu"
            for i in range(len(ops)): self.r|=set(R(i))
        elif op.startswith("s_"):
            self.kind="salu"; self.w=set(R(0))
            for i in range(1,len(ops)): self.r|=set(R(i))
            if "saveexec" in op: self.w|={("x",0),("x",1)}
        else:
            raise ValueError("unknown instr: "+text)

def required(p, c):
    need=0
    pv = p.kind in ("valu","trans","rdlane","permlane")
    cv = c.kind in ("valu","trans","rdlane","permlane")
    pw_v = {x for x in p.w if x[0] in "va"}
    pw_s = {x for x in p.w if x[0]=="s"}
    if pv:
        if c.kind=="mfma" and pw_v & c.r: need=max(need,2)
        if p.kind=="trans" and c.kind!="trans" and pw_v & (c.r|c.w): need=max(need,1)
        if p.kind=="trans" and c.kind=="trans" and pw_v & c.r: need=max(need,1)
        if pw_s & c.r:
            if c.kind=="rdlane" or c.op.startswith("v_writelane"): need=max(need,4)
            elif cv: need=max(need,2)
            elif c.kind=="vmem": need=max(need,5)
            elif c.kind in ("salu","smem","branch"): need=max(need,1)
        if pw_s & {("s",106),("s",107)} and c.kind=="branch" and "vcc" in c.op: need=max(need,1)
        if c.kind=="rdlane" and pw_v & c.r: need=max(need,1)
        if c.dpp and pw_v & c.r: need=max(need,2)
        if c.kind=="permlane" and pw_v & c.r: need=max(need,2)
    if p.kind=="mfma":
        big = {4:8, 8:12}[p.passes]
        if c.kind=="mfma":
            if p.w & c.srcAB: need=max(need,big)
            if p.w & c.srcC:
                if c.srcC==p.w and c.passes==p.passes: pass
                else: need=max(need,{4:6,8:10}[p.passes])
            elif p.w & c.w: need=max(need,{4:6,8:10}[p.passes])
        elif cv or c.kind in ("ds","vmem"):
            if p.w & (c.r|c.w): need=max(need,big)
            if cv and p.srcC & c.w: need=max(need,{4:3,8:7}[p.passes])
    if p.kind=="salu" and ("m",0) in p.w and c.lds_dma: need=max(need,1)
    if p.kind=="vmem" and p.wide and p.storedata & c.w:
        need=max(need, 2 if cv else 1)
    return need

class Asm:
    def __init__(self):
        self.ins=[]
        self.vm=[]
        self.lg=[]
        self._lab=0
        self.done={}
    def __call__(self, text):
        for line in text.strip("\n").split("\n"):
            line=line.strip()
            if not line or line.startswith(";"): continue
            self.ins.append(Ins(line))
    def label(self, stem="L"):
        self._lab+=1; return f"{stem}_{self._lab}"
    def vmem(self, text, tag=None):
        self(text); self.vm.append(tag)
    def ds(self, text, tag=None):
        self(text); self.lg.append(tag)
    def _count(self, q, tags):
        idx=-1
        for i,t in enumerate(q):
            if t in tags: idx=i
        if idx<0: return None
        n=len(q)-1-idx
        for t in q[:idx+1]: self.done[t]=self.done.get(t,0)+1
        del q[:idx+1]
        return n
    def wait(self, vm=(), lg=()):
        s=""
        if vm=="all":
            for t in self.vm: self.done[t]=self.done.get(t,0)+1
            self.vm.clear(); s+=" vmcnt(0)"
        elif vm:
            n=self._count(self.vm, set(vm))
            if n is not None:
                assert n<=63
                s+=f" vmcnt({n})"
        if lg=="all": self.lg.clear(); s+=" lgkmcnt(0)"
        elif lg:
            n=self._count(self.lg, set(lg))
            if n is not None:
                assert n<=15, n
                s+=f" lgkmcnt({n})"
        if s: self("s_waitcnt"+s)
    def finalize(self):
        out=[]
        WIN=24
        def pad_for(hist, c):
            dist=0; need=0
            for p in reversed(hist[-WIN:]):
                r=required(p,c)
                if r>dist: need=max(need, r-dist)
                dist+=p.states
                if dist>=20: break
            return need
        for c in self.ins:
            if c.kind not in ("label","dir"):
                n=pad_for(out,c)
                while n>0:
                    k=min(n,16); out.append(Ins(f"s_nop {k-1}")); n-=k
            out.append(c)
        labels={i.label:k for k,i in enumerate(out) if i.kind=="label"}
        k=0
        res=[]
        for k,c in enumerate(out):
            if c.kind=="branch" and c.target in labels:
                hist=[x for x in out[max(0,k-WIN):k+1]]
                tgt=out[labels[c.target]:labels[c.target]+WIN]
                worst=0
                h=list(hist)
                for t in tgt:
                    if t.kind in ("label","dir"): continue
                    dist=0
                    for p in reversed(h):
                        if p in hist:
                            r=required(p,t)
                            if r>dist: worst=max(worst,r-dist)
                        dist+=p.states
                        if dist>=20: break
                    h.append(t)
                    if t.kind=="branch" and t.op=="s_branch": break
                while worst>0:
                    kk=min(worst,16); res.append(Ins(f"s_nop {kk-1}")); worst-=kk
            res.append(c)
        return "\n".join(("" if i.kind in("label",) else "  ")+i.text for i in res)+"\n"
```

```python
import sys, os
sys.path.insert(0, os.path.dirname(os.path.abspath(__file__)))
from asmlib import Asm

KN = "parallel_sum__ssm_conv_s4__dense_activation_mish__prompt_kernel"

FL_AUX = 0x1000
FL_ACT = 0x2000
FL_Y   = 0x3000
STATS  = 0x8000
CSUM   = 0x10000
XNT    = 0x100000
AT     = 0x400000
W2P    = 0x700000
ACT    = 0xA00000
WS_SIZE= 0x1000000
LOG2E = 0x3FB8AA3B
SPIN_MAX = 200000
ACT_DELAY = 3

P = dict(x=16, Are=18, Aim=20, Bre=22, Bim=24, Cre=26, Cim=28, ldt=30, D=32, w1=36, b1=38, w2=40, out=42, dbg=44, ws=46)
def sp(n): return f"s[{P[n]}:{P[n]+1}]"
SX, SW1, SWS, S4 = "s[4:7]", "s[8:11]", "s[12:15]", "s[48:51]"
sW, sTAG = "s3", "s52"

def v(i, n=1): return f"v{i}" if n == 1 else f"v[{i}:{i+n-1}]"

def srd(a, base, ptr, size):
    a(f"""s_mov_b32 s{base}, s{P[ptr]}
    s_mov_b32 s{base+1}, s{P[ptr]+1}
    s_mov_b32 s{base+2}, {size}
    s_mov_b32 s{base+3}, 0x20000""")

def spin(a, load, cmp, scnt="s60"):
    L = a.label("Lspin"); Lok = a.label("Lok")
    a(cmp)
    a(f"s_cbranch_scc1 {Lok}")
    a(f"s_mov_b32 {scnt}, {SPIN_MAX}")
    a(f"{L}:")
    a("s_sleep 1")
    a(load)
    a("s_waitcnt vmcnt(0)")
    a(cmp)
    a(f"s_cbranch_scc1 {Lok}")
    a(f"s_sub_u32 {scnt}, {scnt}, 1")
    a(f"s_cmp_lg_u32 {scnt}, 0")
    a(f"s_cbranch_scc1 {L}")
    a(f"{Lok}:")

def cmp4(r):
    return f"""v_cmp_ne_u32 s[62:63], {sTAG}, v{r}
    v_cmp_ne_u32 s[64:65], {sTAG}, v{r+1}
    v_cmp_ne_u32 s[66:67], {sTAG}, v{r+2}
    v_cmp_ne_u32 vcc, {sTAG}, v{r+3}
    s_or_b64 s[62:63], s[62:63], s[64:65]
    s_or_b64 s[66:67], s[66:67], vcc
    s_or_b64 s[62:63], s[62:63], s[66:67]
    s_cmp_eq_u64 s[62:63], 0"""
def cmp1(r):
    return f"""v_cmp_ne_u32 vcc, {sTAG}, v{r}
    s_cmp_eq_u64 vcc, 0"""

def prologue(a):
    a(f"""s_cmp_ge_u32 s2, 512
    s_cbranch_scc1 Lend
    s_load_dwordx16 s[16:31], s[0:1], 0
    s_load_dwordx16 s[32:47], s[0:1], 64
    v_lshrrev_b32 v1, 6, v0
    v_and_b32 v0, 63, v0
    v_readfirstlane_b32 {sW}, v1
    s_waitcnt lgkmcnt(0)
    s_load_dword s53, {sp('ws')}, 0""")
    srd(a, 4, 'x', 2621440)
    srd(a, 8, 'w1', 1966080)
    srd(a, 12, 'ws', WS_SIZE)
    a("""s_cmp_ge_u32 s2, 256
    s_cbranch_scc1 Lssm""")

def make_tag(a):
    a(f"""s_waitcnt lgkmcnt(0)
    s_mul_i32 {sTAG}, s53, 0x9E3779B1
    s_add_u32 {sTAG}, {sTAG}, 0x7F4A7C15""")

def gemm(a):
    vX0, vX1, vW0, vW1 = 1, 2, 3, 4
    xr = [5, 6, 7, 8]
    wrl, wrh = 9, 10
    vAS = 11
    c1, c2, c3 = 12, 13, 14
    vT = 15
    EXT = 16
    TMP = 22
    WF = 40
    ACC = 64
    XF = 96
    sRB, sFP, sTH, sFH = "s54", "s55", "s56", "s57"
    sM, sSO, sAS, sT0 = "s58", "s59", "s61", "s68"
    srd(a, 48, 'out', 2621440)
    a(f"""s_setprio 2
    s_and_b32 s68, s2, 7
    s_lshr_b32 s69, s2, 3
    s_lshr_b32 {sRB}, s68, 1
    s_lshl_b32 {sRB}, {sRB}, 3
    s_and_b32 s70, s69, 7
    s_add_u32 {sRB}, {sRB}, s70
    s_and_b32 {sFP}, s68, 1
    s_lshl_b32 {sFP}, {sFP}, 2
    s_lshr_b32 s70, s69, 3
    s_add_u32 {sFP}, {sFP}, s70
    s_and_b32 {sTH}, {sW}, 1
    s_lshr_b32 {sFH}, {sW}, 1
    s_lshl_b32 {sM}, {sW}, 11""")
    a(f"""v_lshrrev_b32 v22, 3, v0
    s_lshl_b32 s70, {sW}, 4
    v_add_u32 v22, s70, v22
    v_lshrrev_b32 v23, 4, v0
    v_and_b32 v24, 7, v0
    v_xor_b32 v25, v24, v23
    s_lshl_b32 s71, {sRB}, 6
    v_add_u32 v26, s71, v22
    v_mul_u32_u24 v26, 0x500, v26
    v_lshl_add_u32 v{vX0}, v25, 4, v26
    v_xor_b32 v25, 4, v25
    v_lshl_add_u32 v{vX1}, v25, 4, v26
    v_add_u32 v{vX1}, {8*1280-1024}, v{vX1}
    v_and_b32 v23, 1, v23
    v_lshlrev_b32 v23, 2, v23
    v_xor_b32 v25, v24, v23
    v_mul_u32_u24 v26, 0xc00, v22
    v_lshl_add_u32 v{vW0}, v25, 4, v26
    s_mul_i32 s70, {sFP}, 384
    v_add_u32 v{vW0}, s70, v{vW0}
    v_add_u32 v{vW1}, {8*3072-1024}, v{vW0}""")

    def chunk_info(c):
        if c < 20:
            return ('X', 0, c//2) if c % 2 == 0 else ('W', 0, c//2)
        return ('W', 1 + (c-20)//10, (c-20) % 10)
    def dma_chunk(c):
        kind, s, kc = chunk_info(c)
        slot = c % 10
        a(f"s_add_u32 m0, {sM}, {slot*8192}")
        if kind == 'X':
            a(f"s_movk_i32 {sSO}, {kc*128}")
            a.vmem(f"buffer_load_dwordx4 v{vX0}, {SX}, {sSO} offen lds", ('c', c))
            a.vmem(f"buffer_load_dwordx4 v{vX1}, {SX}, {sSO} offen offset:1024 lds", ('c', c))
        else:
            a(f"s_mov_b32 {sSO}, {kc*196608 + s*128}")
            a.vmem(f"buffer_load_dwordx4 v{vW0}, {SW1}, {sSO} offen lds", ('c', c))
            a.vmem(f"buffer_load_dwordx4 v{vW1}, {SW1}, {sSO} offen offset:1024 lds", ('c', c))
    for c in range(10): dma_chunk(c)

    a(f"""v_and_b32 v22, 31, v0
    v_lshrrev_b32 v23, 5, v0
    v_lshrrev_b32 v24, 1, v22
    v_and_b32 v24, 7, v24
    s_lshl_b32 s70, {sTH}, 12
    v_lshl_add_u32 v25, v22, 7, s70""")
    for j in range(4):
        a(f"""v_add_u32 v26, {2*j}, v23
        v_xor_b32 v26, v26, v24
        v_lshl_add_u32 v{xr[j]}, v26, 4, v25""")
    a(f"""v_lshrrev_b32 v26, 4, v22
    s_lshl_b32 s70, {sTH}, 1
    v_add_u32 v26, s70, v26
    v_mul_u32_u24 v26, 0xc000, v26
    v_lshl_add_u32 v26, v23, 8, v26
    v_and_b32 v27, 15, v0
    v_lshl_add_u32 v{vAS}, v27, 4, v26""")
    a(f"""v_lshrrev_b32 v24, 2, v27
    v_and_b32 v25, 3, v0
    v_lshrrev_b32 v26, 4, v0
    v_and_b32 v26, 1, v26
    v_lshlrev_b32 v26, 1, v26
    v_lshrrev_b32 v28, 1, v25
    v_add_u32 v26, v26, v28
    s_lshl_b32 s70, {sFH}, 2
    v_add_u32 v26, s70, v26
    v_lshrrev_b32 v28, 1, v24
    v_lshlrev_b32 v28, 2, v28
    v_xor_b32 v26, v26, v28
    v_lshl_add_u32 v28, v23, 3, v24
    v_lshlrev_b32 v28, 7, v28
    v_lshl_add_u32 v28, v26, 4, v28
    v_and_b32 v25, 1, v25
    v_lshl_add_u32 v{wrl}, v25, 3, v28
    v_add_u32 v{wrh}, 0x10000, v{wrl}
    v_sub_u32 v{vT}, v23, 1
    v_mov_b32 v{EXT}, 0
    v_mov_b32 v{EXT+1}, 0""".replace(f"v_sub_u32 v{vT}, v23, 1", f"v_add_u32 v{vT}, -1, v23"))
    a(f"""s_mul_i32 {sAS}, {sRB}, 192
    s_mul_i32 s70, {sFP}, 6
    s_add_u32 {sAS}, {sAS}, s70
    s_add_u32 {sAS}, {sAS}, {sFH}
    s_lshl_b32 {sAS}, {sAS}, 10
    s_add_u32 {sAS}, {sAS}, {ACT}""")
    make_tag(a)

    wf_next = [0]
    def wfrag_alloc():
        r = WF + 4*(wf_next[0] % 6); wf_next[0] += 1; return r
    pend = []

    def read_w(c, j):
        slot = c % 10
        r = wfrag_alloc()
        base, off = (wrl, slot*8192) if slot < 8 else (wrh, (slot-8)*8192)
        a.ds(f"ds_read_b64_tr_b16 {v(r,2)}, v{base} offset:{off + 128*16*j}", ('w', c, j))
        a.ds(f"ds_read_b64_tr_b16 {v(r+2,2)}, v{base} offset:{off + 128*(16*j+4)}", ('w', c, j))
        return r
    def mfma1(acc, wfr, xfr, first):
        a(f"v_mfma_f32_32x32x16_bf16 {v(acc,16)}, {v(wfr,4)}, {v(xfr,4)}, {'0' if first else v(acc,16)}")

    side = []
    def run_side(n):
        for _ in range(n):
            if side: side.pop(0)()

    def mish_items(s):
        acc = ACC + 16*(s % 2)
        items = []
        OUT = TMP + 4
        for pr in range(8):
            def f(pr=pr):
                r0, r1 = acc + 2*pr, acc + 2*pr + 1
                t0, t1, t2, t3 = TMP, TMP+1, TMP+2, TMP+3
                a(f"""v_mul_f32 v{t0}, v{c1}, v{r0}
                v_mul_f32 v{t1}, v{c1}, v{r1}
                v_exp_f32 v{t0}, v{t0}
                v_exp_f32 v{t1}, v{t1}
                v_add_f32 v{t2}, 2.0, v{t0}
                v_add_f32 v{t3}, 2.0, v{t1}
                v_fma_f32 v{t0}, v{t0}, v{t2}, 2.0
                v_fma_f32 v{t1}, v{t1}, v{t3}, 2.0
                v_rcp_f32 v{t0}, v{t0}
                v_rcp_f32 v{t1}, v{t1}
                v_fma_f32 v{t0}, v{t0}, v{c2}, v{c3}
                v_fma_f32 v{t1}, v{t1}, v{c2}, v{c3}
                v_mul_f32 v{t0}, v{t0}, v{r0}
                v_mul_f32 v{t1}, v{t1}, v{r1}
                v_cvt_pk_bf16_f32 v{OUT+pr}, v{t0}, v{t1}""")
                if pr % 4 == 3:
                    gp = pr // 4
                    if gp == 0: a(f"s_add_u32 {sT0}, {sAS}, {2048*s}")
                    a.vmem(f"buffer_store_dwordx4 {v(OUT+4*gp,4)}, v{vAS}, {SWS}, {sT0} offen offset:{512*gp} sc1", ('act', s))
            items.append(f)
        return items

    EQ = TMP + 12
    A0, A1 = TMP + 16, TMP + 17
    def ext_load(s):
        def f():
            a(f"""s_mul_i32 s70, {sFP}, 192
            s_lshl_b32 s71, {sFH}, 5
            s_add_u32 s70, s70, s71
            s_add_u32 s70, s70, {64*s}
            v_and_b32 v{A0}, 31, v0
            v_add_u32 v{A0}, s70, v{A0}
            v_lshlrev_b32 v{A1}, 4, v{A0}
            v_lshlrev_b32 v{A0}, 1, v{A0}
            v_mov_b32 v{EXT+3}, 0
            s_mov_b32 s70, {CSUM}""")
            a.vmem(f"buffer_load_dwordx4 {v(EQ,4)}, v{A1}, {SWS}, s70 offen sc1", ('ext', s))
            a.vmem(f"global_load_short_d16_hi v{EXT+3}, v{A0}, {sp('b1')}", ('ext', s))
        return f
    def ext_build(s):
        q = EQ
        a.wait(vm=[('ext', s)])
        a(f"""v_add_f32 v{q}, v{q}, v{q+1}
        v_add_f32 v{q+2}, v{q+2}, v{q+3}
        v_add_f32 v{q}, v{q}, v{q+2}
        v_and_b32 v{q+1}, 0xffff0000, v{q}
        v_sub_f32 v{q}, v{q}, v{q+1}
        v_and_b32 v{q+2}, 0xffff0000, v{q}
        v_sub_f32 v{q}, v{q}, v{q+2}
        v_lshrrev_b32 v{q+1}, 16, v{q+1}
        v_lshrrev_b32 v{q}, 16, v{q}
        v_or_b32 v{q+1}, v{q+1}, v{q+2}
        v_or_b32 v{q}, v{q}, v{EXT+3}
        v_and_b32 v{EXT+2}, v{vT}, v{q+1}
        v_and_b32 v{EXT+3}, v{vT}, v{q}""")
    def ext_mfma(s):
        acc = ACC + 16*(s % 2)
        a(f"v_mfma_f32_32x32x16_bf16 {v(acc,16)}, {v(EXT,4)}, {v(EXT+2,4)}, {v(acc,16)}")

    g2 = {}
    G2A = XF
    NA = 6
    G2W = XF + 48
    G2ACC = XF + 96
    G2X = XF + 136
    G2M = XF + 146
    vA0, vA1, vD2, w2l, w2h, vO, vPoll = G2M, G2M+1, G2M+2, G2M+3, G2M+4, G2M+5, G2M+6
    vA0, vA1, vD2, w2l, w2h, vO = vX0, vX1, xr[0], xr[1], xr[2], xr[3]
    sA2, sW2, sM2 = "s72", "s73", "s74"
    def g2_setup():
        a(f"""v_lshlrev_b32 v{vA0}, 4, v0
        s_mul_i32 s70, {sTH}, 98304
        s_lshl_b32 s71, {sFH}, 10
        s_add_u32 s70, s70, s71
        s_mul_i32 {sM2}, {sW}, 2560
        v_add_u32 v{vD2}, {sM2}, v{vA0}
        v_add_u32 v{vA0}, s70, v{vA0}
        v_add_u32 v{vA1}, 49152, v{vA0}
        s_mul_i32 {sA2}, {sRB}, {192*1024}
        s_add_u32 {sA2}, {sA2}, {ACT}
        s_mul_i32 {sW2}, {sFP}, 245760
        s_add_u32 {sW2}, {sW2}, {W2P}
        v_and_b32 v{TMP}, 15, v0
        v_lshrrev_b32 v{TMP+1}, 4, v0
        v_lshrrev_b32 v{TMP+2}, 1, v{TMP+1}
        v_lshlrev_b32 v{TMP+2}, 4, v{TMP+2}
        v_and_b32 v{TMP+3}, 1, v{TMP+1}
        v_lshl_add_u32 v{TMP+2}, v{TMP+3}, 2, v{TMP+2}
        v_lshrrev_b32 v{TMP+3}, 2, v{TMP}
        v_add_u32 v{TMP+2}, v{TMP+2}, v{TMP+3}
        s_lshl_b32 s70, {sFH}, 5
        v_add_u32 v{TMP+2}, s70, v{TMP+2}
        v_mul_u32_u24 v{TMP+2}, 160, v{TMP+2}
        v_and_b32 v{TMP+3}, 3, v0
        v_lshl_add_u32 v{w2l}, v{TMP+3}, 3, v{TMP+2}
        v_add_u32 v{w2h}, 71680, v{w2l}
        s_lshl_b32 s70, {sTH}, 1
        s_add_u32 s70, s70, {sFH}
        s_lshl_b32 s70, s70, 4
        s_lshl_b32 s71, {sRB}, 6
        s_add_u32 s70, s70, s71
        v_add_u32 v{TMP}, s70, v{TMP}
        v_mul_u32_u24 v{TMP}, 0x500, v{TMP}
        v_lshl_add_u32 v{TMP}, v{TMP+1}, 3, v{TMP}
        s_mul_i32 s70, {sFP}, 160
        v_add_u32 v{vO}, s70, v{TMP}""")
    def st_sp(sg): return sg // 8, sg % 8
    def dma_w2(sg):
        s2, p = st_sp(sg)
        a(f"""s_add_u32 m0, {sM2}, {(sg % 8)*10240}
        s_add_u32 {sSO}, {sW2}, {(192*p + 64*s2)*160}""")
        a.vmem(f"buffer_load_dwordx4 v{vD2}, {SWS}, {sSO} offen sc1 lds", ('d2', sg))
        a.vmem(f"buffer_load_dwordx4 v{vD2}, {SWS}, {sSO} offen offset:1024 sc1 lds", ('d2', sg))
        a("s_mov_b64 exec, 0xffffffff")
        a.vmem(f"buffer_load_dwordx4 v{vD2}, {SWS}, {sSO} offen offset:2048 sc1 lds", ('d2', sg))
        a("s_mov_b64 exec, -1")
    def load_act(sg):
        s2, p = st_sp(sg)
        r = G2A + 8*(sg % NA)
        a(f"s_add_u32 {sT0}, {sA2}, {(6*p + 2*s2)*1024}")
        a.vmem(f"buffer_load_dwordx4 {v(r,4)}, v{vA0}, {SWS}, {sT0} offen sc1", ('a2', sg))
        a.vmem(f"buffer_load_dwordx4 {v(r+4,4)}, v{vA1}, {SWS}, {sT0} offen sc1", ('a2', sg))
    PV = TMP + 4
    def pregs(s2): return (XF, XF+1) if s2 == 0 else (G2M + 2*s2, G2M + 2*s2 + 1)
    def poll_act_issue(s2):
        pv, pa = pregs(s2)
        a(f"""v_and_b32 v{pa}, 7, v0
        v_lshlrev_b32 v{pa}, 2, v{pa}
        s_mul_i32 s{78+s2}, {sRB}, 96
        s_add_u32 s{78+s2}, s{78+s2}, {FL_ACT + 32*s2}""")
        a.vmem(f"buffer_load_dword v{pv}, v{pa}, {SWS}, s{78+s2} offen sc1", ('pa', s2))
    def poll_act_check(s2):
        pv, pa = pregs(s2)
        a.wait(vm=[('pa', s2)])
        spin(a, f"buffer_load_dword v{pv}, v{pa}, {SWS}, s{78+s2} offen sc1", cmp1(pv))
    def flag_act(s):
        a(f"""s_mul_i32 s70, {sRB}, 96
        s_lshl_b32 s71, {sFP}, 2
        s_add_u32 s70, s70, s71
        s_add_u32 s70, s70, {FL_ACT + 32*s}
        v_mov_b32 v{A0}, {sTAG}
        v_mov_b32 v{A1}, 0
        s_mov_b64 exec, 1""")
        a.vmem(f"buffer_store_dword v{A0}, v{A1}, {SWS}, s70 offen sc1", ('fl', s))
        a("s_mov_b64 exec, -1")
    flagged = set()
    act_age = {}
    def pre_barrier(tags):
        tags = list(tags)
        for ss in range(3):
            if ss in flagged: continue
            n = a.vm.count(('act', ss)) + a.done.get(('act', ss), 0)
            if n == 2:
                act_age[ss] = act_age.get(ss, 0) + 1
                if act_age[ss] >= ACT_DELAY: tags.append(('act', ss))
        a.wait(vm=tags, lg="all")
        a("s_barrier")
        for ss in range(3):
            if ss not in flagged and a.done.get(('act', ss), 0) == 2:
                flag_act(ss); flagged.add(ss)

    steps = [(s, kc) for s in range(3) for kc in range(10)]
    next_dma = 10
    w2_issued = 0
    act_issued = 0
    pending_flag = None
    for si, (s, kc) in enumerate(steps):
        cw = 2*kc + 1 if s == 0 else 10 + 10*s + kc
        pre_barrier([('c', cw)])
        if si >= 1:
            nrel = 2 if (s == 0 or (s == 1 and kc == 0)) else 1
            for _ in range(nrel):
                if next_dma < 40: dma_chunk(next_dma); next_dma += 1
        if s == 2 and kc >= 2:
            while w2_issued < 8 and -(-10240*(w2_issued+1)//8192) <= kc:
                dma_w2(w2_issued); w2_issued += 1
        prev = pend; pend = []
        acc = ACC + 16*(s % 2)
        xf = XF + 16*kc
        hi = (s == 0 and (2*kc) % 10 == 8)
        if hi:
            for j in range(4): a(f"v_add_u32 v{xr[j]}, 0x10000, v{xr[j]}")
        def rd_x(j):
            slot = (2*kc) % 10
            off = slot*8192 if slot < 8 else (slot-8)*8192
            a.ds(f"ds_read_b128 {v(xf+4*j,4)}, v{xr[j]} offset:{off}", ('x', kc, j))
        for j in range(4):
            if j >= 2 and prev:
                mfma1(*prev.pop(0))
            r = read_w(cw, j)
            if s == 0: rd_x(j)
            pend.append((acc, r, xf + 4*j, kc == 0 and j == 0))
            if j < 2: run_side(1)
        if hi:
            for j in range(4): a(f"v_add_u32 v{xr[j]}, 0xffff0000, v{xr[j]}")
        while prev:
            mfma1(*prev.pop(0)); run_side(1)
        if kc == 0 and s >= 1:
            ext_mfma(s-1)
            side.extend(mish_items(s-1))
            if s < 3: side.append(ext_load(s))
        if s == 0 and kc == 5:
            a(f"""v_lshlrev_b32 v{PV+4}, 4, v0
            s_movk_i32 s75, {FL_AUX}""")
            a.vmem(f"buffer_load_dwordx4 {v(PV,4)}, v{PV+4}, {SWS}, s75 offen sc1", 'paux')
        if s == 0 and kc == 8:
            a.wait(vm=['paux'])
            spin(a, f"buffer_load_dwordx4 {v(PV,4)}, v{PV+4}, {SWS}, s75 offen sc1", cmp4(PV))
            a(f"""v_and_b32 v{A0}, 31, v0
            s_lshl_b32 s70, {sRB}, 6
            s_lshl_b32 s71, {sTH}, 5
            s_add_u32 s70, s70, s71
            v_add_u32 v{A0}, s70, v{A0}
            v_lshlrev_b32 v{A0}, 3, v{A0}
            s_mov_b32 s70, {STATS}""")
            a.vmem(f"buffer_load_dwordx2 {v(EXT+4,2)}, v{A0}, {SWS}, s70 offen sc1", ('ext', 0))
            ext_load(0)()
        if s == 0 and kc == 9:
            pass
        if (s, kc) == (0, 9) or (s >= 1 and kc == 9):
            def fin(s=s):
                ext_build(s)
                if s == 0:
                    a(f"""v_and_b32 v{c3}, 0xffff0000, v{EXT+5}
                    v_rcp_f32 v{c3}, v{c3}
                    v_mul_f32 v{c1}, {LOG2E}, v{c3}
                    v_mul_f32 v{c2}, -2.0, v{c3}""")
            run_side(100)
            fin()
        if s == 1 and kc == 1: g2_setup()
        if s == 2 and kc == 3: poll_act_issue(0)
        if s == 2 and kc == 6:
            poll_act_check(0)
        if s == 2 and kc >= 6:
            n = {6: 2, 7: 4, 8: 6, 9: 6}[kc]
            while act_issued < n: load_act(act_issued); act_issued += 1

    a2pend = []
    first_tail = True
    for sg in range(24):
        s2, p = st_sp(sg)
        pre_barrier([('d2', sg), ('a2', sg)])
        if sg == 0:
            while w2_issued < 8: dma_w2(w2_issued); w2_issued += 1
        elif w2_issued < 24:
            dma_w2(w2_issued); w2_issued += 1
        wb = G2W + 20*(sg % 2)
        slot = sg % 8
        base, off = (w2l, slot*10240) if slot < 7 else (w2h, 0)
        prev = a2pend; a2pend = []
        if sg == 0:
            for m in pend: mfma1(*m)
            pend = []
            ext_mfma(2)
            side.extend(mish_items(2))
        for dt in range(5):
            a.ds(f"ds_read_b64_tr_b16 {v(wb+4*dt,2)}, v{base} offset:{off + 32*dt}", ('w2', sg))
            a.ds(f"ds_read_b64_tr_b16 {v(wb+4*dt+2,2)}, v{base} offset:{off + 32*dt + 1280}", ('w2', sg))
            for _ in range(2):
                if prev: a(prev.pop(0))
            run_side(1)
        for dt in range(5):
            for tau in range(2):
                accr = G2ACC + 20*tau + 4*dt
                a2pend.append(f"v_mfma_f32_16x16x32_bf16 {v(accr,4)}, {v(wb+4*dt,4)}, {v(G2A+8*(sg%NA)+4*tau,4)}, {'0' if sg == 0 else v(accr,4)}")
        if sg >= 1 and act_issued < 24:
            if act_issued % 8 == 0:
                poll_act_check(act_issued // 8)
            load_act(act_issued); act_issued += 1
        if sg == 1: poll_act_issue(1)
        if sg == 9: poll_act_issue(2)
        if sg == 3:
            run_side(100)
            for dt in range(5):
                a.vmem(f"buffer_load_dwordx2 {v(G2X+2*dt,2)}, v{vO}, {SX}, 0 offen offset:{32*dt}", 'xfin')
        if sg == 18:
            PV = G2M + 6
            a(f"""v_and_b32 v{PV+1}, 31, v0
            v_lshlrev_b32 v{PV+1}, 2, v{PV+1}
            s_lshl_b32 s75, {sFP}, 7
            s_add_u32 s75, s75, {FL_Y}""")
            a.vmem(f"buffer_load_dword v{PV}, v{PV+1}, {SWS}, s75 offen sc1", 'py')
            a(f"""s_mul_i32 s70, {sW}, 160
            v_add_u32 v{TMP}, s70, v0
            v_lshrrev_b32 v{TMP+1}, 3, v{TMP}
            s_mul_i32 s70, {sFP}, 80
            v_add_u32 v{TMP+1}, s70, v{TMP+1}
            v_lshlrev_b32 v{TMP+1}, 12, v{TMP+1}
            v_and_b32 v{TMP}, 7, v{TMP}
            v_lshl_add_u32 v{TMP}, v{TMP}, 4, v{TMP+1}
            v_add_u32 v{TMP+1}, {32768-1024}, v{TMP}
            v_add_u32 v{TMP+2}, {65536-2048}, v{TMP}
            s_lshl_b32 s76, {sRB}, 7
            s_add_u32 s76, s76, {AT}""")
        def dma_at(tagit=True):
            f = a.vmem if tagit else (lambda t, g: a(t))
            a(f"s_mov_b32 m0, {sM2}")
            f(f"buffer_load_dwordx4 v{TMP}, {SWS}, s76 offen sc1 lds", 'at')
            f(f"buffer_load_dwordx4 v{TMP+1}, {SWS}, s76 offen offset:1024 sc1 lds", 'at')
            a("s_mov_b64 exec, 0xffffffff")
            f(f"buffer_load_dwordx4 v{TMP+2}, {SWS}, s76 offen offset:2048 sc1 lds", 'at')
            a("s_mov_b64 exec, -1")
        if sg == 21:
            a.wait(vm=['py'])
            a(cmp1(PV))
            a("s_cselect_b32 s77, 1, 0")
            dma_at()
    a.wait(lg="all")
    for m in a2pend: a(m)
    L = a.label("Lyok")
    a(f"""s_cmp_eq_u32 s77, 1
    s_cbranch_scc1 {L}
    s_waitcnt vmcnt(0)
    v_mov_b32 v{PV}, 0
    v_not_b32 v{PV}, {sTAG}""")
    spin(a, f"buffer_load_dword v{PV}, v{PV+1}, {SWS}, s75 offen sc1", cmp1(PV))
    dma_at(False)
    a(f"{L}:")
    Lk = a.label("Lk1"); Lj = a.label("Lkj")
    a(f"""s_mul_i32 s70, {sW}, 5120
    s_xor_b32 s71, {sW}, 2
    s_mul_i32 s71, s71, 5120
    v_lshlrev_b32 v{TMP+4}, 4, v0
    v_add_u32 v{TMP+5}, s71, v{TMP+4}
    v_add_u32 v{TMP+4}, s70, v{TMP+4}
    s_cmp_eq_u32 {sFH}, 1
    s_cbranch_scc1 {Lk}""")
    KEEP = G2W
    for dt in range(5): a(f"ds_write_b128 v{TMP+4}, {v(G2ACC+20+4*dt,4)} offset:{10240+1024*dt}")
    for k in range(20): a(f"v_mov_b32 v{KEEP+k}, v{G2ACC+k}")
    a(f"s_branch {Lj}\n{Lk}:")
    for dt in range(5): a(f"ds_write_b128 v{TMP+4}, {v(G2ACC+4*dt,4)} offset:{10240+1024*dt}")
    for k in range(20): a(f"v_mov_b32 v{KEEP+k}, v{G2ACC+20+k}")
    a(f"{Lj}:")
    a("s_waitcnt vmcnt(0) lgkmcnt(0)")
    a.vm.clear(); a.lg.clear()
    a("s_barrier")
    RX = G2A
    AV = G2A + 20
    for dt in range(5): a.ds(f"ds_read_b128 {v(RX+4*dt,4)}, v{TMP+5} offset:{10240+1024*dt}", ('rx', dt))
    a(f"""v_lshrrev_b32 v{TMP+6}, 2, v0
    v_lshlrev_b32 v{TMP+6}, 7, v{TMP+6}
    v_and_b32 v{TMP+7}, 3, v0
    v_lshl_add_u32 v{TMP+6}, v{TMP+7}, 3, v{TMP+6}
    s_lshl_b32 s70, {sTH}, 1
    s_add_u32 s70, s70, {sFH}
    s_lshl_b32 s70, s70, 5
    v_add_u32 v{TMP+6}, s70, v{TMP+6}""")
    for dt in range(5): a.ds(f"ds_read_b64_tr_b16 {v(AV+2*dt,2)}, v{TMP+6} offset:{2048*dt}", ('av', dt))
    T = G2ACC
    for dt in range(5):
        a.wait(lg=[('av', dt)] if dt == 0 else [('av', dt)])
        k = KEEP + 4*dt; r = RX + 4*dt
        xs = G2X + 2*dt; av = AV + 2*dt
        a(f"""v_add_f32 v{k}, v{k}, v{r}
        v_add_f32 v{k+1}, v{k+1}, v{r+1}
        v_add_f32 v{k+2}, v{k+2}, v{r+2}
        v_add_f32 v{k+3}, v{k+3}, v{r+3}
        v_cvt_pk_bf16_f32 v{k}, v{k}, v{k+1}
        v_cvt_pk_bf16_f32 v{k+2}, v{k+2}, v{k+3}
        v_lshlrev_b32 v{T}, 16, v{xs}
        v_and_b32 v{T+1}, 0xffff0000, v{xs}
        v_lshlrev_b32 v{T+2}, 16, v{xs+1}
        v_and_b32 v{T+3}, 0xffff0000, v{xs+1}
        v_lshlrev_b32 v{T+4}, 16, v{av}
        v_and_b32 v{T+5}, 0xffff0000, v{av}
        v_lshlrev_b32 v{T+6}, 16, v{av+1}
        v_and_b32 v{T+7}, 0xffff0000, v{av+1}
        v_add_f32 v{T}, v{T}, v{T+4}
        v_add_f32 v{T+1}, v{T+1}, v{T+5}
        v_add_f32 v{T+2}, v{T+2}, v{T+6}
        v_add_f32 v{T+3}, v{T+3}, v{T+7}
        v_cvt_pk_bf16_f32 v{T}, v{T}, v{T+1}
        v_cvt_pk_bf16_f32 v{T+2}, v{T+2}, v{T+3}
        v_lshlrev_b32 v{T+4}, 16, v{k}
        v_and_b32 v{T+5}, 0xffff0000, v{k}
        v_lshlrev_b32 v{T+6}, 16, v{k+2}
        v_and_b32 v{T+7}, 0xffff0000, v{k+2}
        v_and_b32 v{T+1}, 0xffff0000, v{T}
        v_lshlrev_b32 v{T}, 16, v{T}
        v_and_b32 v{T+3}, 0xffff0000, v{T+2}
        v_lshlrev_b32 v{T+2}, 16, v{T+2}
        v_add_f32 v{T}, v{T}, v{T+4}
        v_add_f32 v{T+1}, v{T+1}, v{T+5}
        v_add_f32 v{T+2}, v{T+2}, v{T+6}
        v_add_f32 v{T+3}, v{T+3}, v{T+7}
        v_cvt_pk_bf16_f32 v{k}, v{T}, v{T+1}
        v_cvt_pk_bf16_f32 v{k+1}, v{T+2}, v{T+3}
        buffer_store_dwordx2 {v(k,2)}, v{vO}, {S4}, 0 offen offset:{32*dt}""")
    a("s_endpgm")

KREG = 16640
UB   = 3*KREG
USTR = 9472
U0OFF = 4624
K1OFF = 4224
CVOFF = 8448 + 16
PAOFF = 8448

def ssm(a):
    sI, sCH = "s54", "s55"
    a(f"""Lssm:
    s_sub_u32 {sI}, s2, 256
    s_lshr_b32 s56, {sI}, 1
    s_mul_i32 s56, s56, 5
    s_and_b32 s57, {sI}, 1
    s_mul_i32 s58, s57, 3
    s_add_u32 s58, s58, s56
    s_add_u32 s59, s58, 1
    s_add_u32 s61, s56, 2
    s_cmp_eq_u32 {sW}, 3
    s_cbranch_scc1 Laux""")
    kgen(a)
    a("s_branch Lconv")
    aux(a)
    conv(a)

def kgen(a):
    sCH, sKB = "s55", "s68"
    a(f"""s_cmp_eq_u32 {sW}, 0
    s_cselect_b32 {sCH}, s58, s59
    s_cmp_eq_u32 {sW}, 2
    s_cselect_b32 {sCH}, s61, {sCH}
    s_mul_i32 {sKB}, {sW}, {KREG}
    s_mul_i32 s70, {sCH}, 384
    v_lshlrev_b32 v1, 1, v0
    v_add_u32 v1, s70, v1
    s_lshl_b32 s70, {sCH}, 1
    v_mov_b32 v2, s70""")
    PR = 8
    names = ['Are', 'Aim', 'Bre', 'Bim', 'Cre', 'Cim']
    for r in range(3, 3+1): a(f"v_mov_b32 v{r}, 0")
    for r in range(PR, PR+18): a(f"v_mov_b32 v{r}, 0")
    a.vmem(f"global_load_short_d16_hi v3, v2, {sp('ldt')}", 'ldt')
    for g in range(3):
        for k, n in enumerate(names):
            a.vmem(f"global_load_short_d16_hi v{PR+6*g+k}, v1, {sp(n)} offset:{128*g}", ('par', g))
    a(f"""v_mov_b32 v4, 0
    v_mov_b32 v5, 0
    s_mul_i32 s70, {sW}, {USTR}
    v_lshlrev_b32 v6, 3, v0
    v_add_u32 v6, s70, v6
    ds_write_b64 v6, v[4:5] offset:{UB}
    ds_write_b64 v6, v[4:5] offset:{UB+U0OFF}
    s_mov_b32 m0, {sKB}""")
    a(f"""v_and_b32 v6, 15, v0
    v_mul_u32_u24 v7, 288, v6
    v_lshrrev_b32 v4, 4, v0
    v_lshl_add_u32 v7, v4, 4, v7
    v_add_u32 v7, {sKB}, v7""")
    make_tag(a)
    a.wait(vm=['ldt'])
    a(f"""v_mul_f32 v4, {LOG2E}, v3
    s_mov_b32 s70, {LOG2E}
    v_fma_f32 v5, v3, s70, -v4
    v_fmac_f32 v5, 0x32A57060, v3
    v_exp_f32 v4, v4
    v_mul_f32 v5, 0x3F317218, v5
    v_fmac_f32 v4, v4, v5
    v_cvt_pk_bf16_f32 v4, v4, v4
    v_and_b32 v3, 0xffff0000, v4""")
    R = {r: 30 + 2*(r-1) for r in range(1, 8)}
    V = {b: 44 + 2*(b-1) for b in range(1, 16)}
    Wr, Pa, Pb = 74, 76, 78
    U = [80 + 2*i for i in range(8)]
    CVT = [96 + i for i in range(8)]
    zr, th = 104, 105
    FR = 112
    KACC = 176
    cv = [0]
    def p2(r): return f"v[{r}:{r+1}]"
    def cmuls(lst):
        for D, X, Y in lst:
            a(f"v_pk_mul_f32 {p2(D)}, {p2(X)}, {p2(Y)} op_sel:[0,0] op_sel_hi:[0,1]")
        for D, X, Y in lst:
            a(f"v_pk_fma_f32 {p2(D)}, {p2(X)}, {p2(Y)}, {p2(D)} op_sel:[1,1,0] op_sel_hi:[1,0,1] neg_lo:[1,0,0]")
    def emit(rows_regs, neg=False):
        ts = []
        for row, r in rows_regs:
            t = CVT[cv[0] % 8]; cv[0] += 1; ts.append((row, t))
            a(f"v_cvt_pk_bf16_f32 v{t}, v{r}, {'-' if neg else ''}v{r+1}")
        for row, t in ts:
            a.ds(f"ds_write_addtid_b32 v{t} offset:{288*row}", 'tw')
    for g in range(3):
        q = PR + 6*g
        a.wait(vm=[('par', g)])
        a(f"""v_mul_f32 v{zr}, v3, v{q}
        v_mul_f32 v{th}, v3, v{q+1}
        v_mul_f32 v{q+2}, v3, v{q+2}
        v_mul_f32 v{q+3}, v3, v{q+3}
        v_mul_f32 v{zr}, {LOG2E}, v{zr}
        v_mul_f32 v{th}, 0.15915494, v{th}""")
        dst = [(R[1], None), (V[1], 0x41000000), (Wr, 0x43000000)]
        for k, (d, mulc) in enumerate(dst):
            e, ph = U[k], U[k]+1
            if mulc is None:
                a(f"v_exp_f32 v{e}, v{zr}\nv_fract_f32 v{ph}, v{th}")
            else:
                a(f"v_mul_f32 v{e}, {mulc}, v{zr}\nv_mul_f32 v{ph}, {mulc}, v{th}\nv_exp_f32 v{e}, v{e}\nv_fract_f32 v{ph}, v{ph}")
        for k, (d, mulc) in enumerate(dst):
            a(f"v_cos_f32 v{d}, v{U[k]+1}\nv_sin_f32 v{d+1}, v{U[k]+1}")
        cmuls([(Pa, q+4, q+2)])
        for k, (d, mulc) in enumerate(dst):
            a(f"v_mul_f32 v{d}, v{d}, v{U[k]}\nv_mul_f32 v{d+1}, v{d+1}, v{U[k]}")
        if g > 0: a.wait(lg="all")
        a(f"v_mov_b32 v{CVT[7]}, 0x3f80")
        a.ds(f"ds_write_addtid_b32 v{CVT[7]} offset:{288*41}", 'tw')
        cmuls([(R[2], R[1], R[1]), (V[2], V[1], V[1]), (Pb, Pa, Wr)])
        emit([(0, Pa), (8, Pb)]); emit([(42, V[1]), (43, V[2])], neg=True)
        cmuls([(R[3], R[2], R[1]), (R[4], R[2], R[2]), (V[3], V[2], V[1]), (V[4], V[2], V[2]),
               (U[0], Pa, R[1]), (U[1], Pa, R[2]), (U[2], Pb, R[1]), (U[3], Pb, R[2])])
        emit([(1, U[0]), (2, U[1]), (9, U[2]), (10, U[3])]); emit([(44, V[3]), (45, V[4])], neg=True)
        cmuls([(R[5], R[4], R[1]), (R[6], R[4], R[2]), (R[7], R[4], R[3]),
               (V[5], V[4], V[1]), (V[6], V[4], V[2]), (V[7], V[4], V[3]), (V[8], V[4], V[4]),
               (U[0], Pa, R[3]), (U[1], Pa, R[4]), (U[2], Pb, R[3]), (U[3], Pb, R[4])])
        emit([(3, U[0]), (4, U[1]), (11, U[2]), (12, U[3])]); emit([(41+b, V[b]) for b in (5, 6, 7, 8)], neg=True)
        cmuls([(U[0], Pa, R[5]), (U[1], Pa, R[6]), (U[2], Pa, R[7]), (U[3], Pb, R[5]), (U[4], Pb, R[6]), (U[5], Pb, R[7])]
              + [(V[8+b], V[8], V[b]) for b in range(1, 8)])
        cmuls([(Pa, Pb, Wr)])
        emit([(5, U[0]), (6, U[1]), (7, U[2]), (13, U[3]), (14, U[4]), (15, U[5])])
        cmuls([(Pb, Pa, Wr), (U[0], Pa, R[2]), (U[1], Pa, R[4]), (U[2], Pa, R[6])])
        emit([(41+8+b, V[8+b]) for b in range(1, 8)], neg=True)
        emit([(16, Pa), (17, U[0]), (18, U[1]), (19, U[2])])
        cmuls([(Pa, Pb, Wr), (U[0], Pb, R[2]), (U[1], Pb, R[4]), (U[2], Pb, R[6])])
        emit([(20, Pb), (21, U[0]), (22, U[1]), (23, U[2])])
        cur, oth = Pa, Pb
        for p in range(4, 8):
            cmuls([(oth, cur, Wr), (U[p % 4], cur, R[4])])
            emit([(24 + 2*(p-4), cur), (25 + 2*(p-4), U[p % 4])])
            cur, oth = oth, cur
        W2 = U[6]; Pc, Pd = U[4], U[5]
        cmuls([(W2, Wr, Wr), (oth, cur, Wr)])
        pa, pb, pc, pd = cur, oth, Pc, Pd
        for p in range(8, 16, 2):
            lst = [(pc, pa, W2)]
            if p + 3 <= 16: lst.append((pd, pb, W2))
            cmuls(lst)
            emit([(32 + p-8, pa), (33 + p-8, pb)])
            pa, pb, pc, pd = pc, pd, pa, pb
        emit([(40, pa)])
        a.wait(lg="all")
        for ks in range(4):
            a.ds(f"ds_read_b128 {v(FR+16*ks+12,4)}, v7 offset:{288*41 + 64*ks}", ('fr', ks))
            for m in range(3):
                a.ds(f"ds_read_b128 {v(FR+16*ks+4*m,4)}, v7 offset:{288*16*m + 64*ks}", ('fr', ks))
        for ks in range(4):
            a.wait(lg=[('fr', ks)])
            for m in range(3):
                a(f"v_mfma_f32_16x16x32_bf16 {v(KACC+4*m,4)}, {v(FR+16*ks+4*m,4)}, {v(FR+16*ks+12,4)}, {'0' if g == 0 and ks == 0 else v(KACC+4*m,4)}")
    a(f"""v_lshrrev_b32 v4, 4, v0
    v_lshrrev_b32 v8, 1, v4
    v_and_b32 v9, 1, v4
    v_lshlrev_b32 v10, 8, v8
    v_lshl_add_u32 v10, v6, 4, v10
    v_lshl_add_u32 v10, v9, 3, v10
    v_add_u32 v10, {sKB}, v10""")
    a(f"""v_lshlrev_b32 v11, 7, v4
    v_add_u32 v11, 512, v11
    v_sub_u32 v12, 3, v8
    v_lshlrev_b32 v12, v12, v6
    v_add_u32 v11, v11, v12
    v_add_u32 v11, {sKB}, v11
    v_mul_u32_u24 v12, 60, v8
    v_add_u32 v12, 4, v12
    v_add_u32 v12, v11, v12
    v_lshlrev_b32 v13, 7, v4
    v_lshl_add_u32 v13, v6, 1, v13
    v_add_u32 v13, {sKB}, v13
    v_mov_b32 v14, 0
    v_mov_b32 v15, {sKB}""")
    for i in range(6): a(f"v_cvt_pk_bf16_f32 v{16+i}, v{KACC+2*i}, v{KACC+2*i+1}")
    a(f"""ds_write_b64 v10, v[16:17] offset:{CVOFF}
    ds_write_b32 v11, v18 offset:{CVOFF}
    ds_write_b32 v12, v19 offset:{CVOFF}
    ds_write_b16 v13, v20 offset:{CVOFF+1024}
    ds_write_b16_d16_hi v13, v20 offset:{CVOFF+1024+32}
    ds_write_b16 v13, v21 offset:{CVOFF+1024+64}
    ds_write_b16_d16_hi v13, v21 offset:{CVOFF+1024+96}
    ds_write_b32 v15, v14 offset:{CVOFF-4}""")
    a(f"""v_and_b32 v8, 31, v0
    v_lshl_add_u32 v9, v8, 4, {sKB}
    v_lshl_add_u32 v10, v8, 3, {sKB}
    v_min_u32 v11, 1, v8
    v_lshl_add_u32 v11, v11, 1, v10
    v_lshl_add_u32 v12, v0, 2, {sKB}
    v_lshl_add_u32 v13, v0, 1, {sKB}
    v_lshl_add_u32 v14, v0, 4, {sKB}
    v_mov_b32 v40, 0
    v_mov_b32 v41, 0
    v_mov_b32 v42, 0
    v_mov_b32 v43, 0
    s_waitcnt lgkmcnt(0)
    ds_read_b128 v[16:19], v9 offset:{CVOFF}
    ds_read_b32 v20, v9 offset:{CVOFF-4}
    ds_read_b64 v[22:23], v10 offset:{CVOFF+512}
    ds_read_b32 v24, v10 offset:{CVOFF+512+8}
    ds_read_u16 v25, v11 offset:{CVOFF+512-2}
    ds_read2_b32 v[26:27], v12 offset0:{(CVOFF+768)//4 % 256} offset1:{(CVOFF+768)//4 % 256 + 1}""".replace(
        f"ds_read2_b32 v[26:27], v12 offset0:{(CVOFF+768)//4 % 256} offset1:{(CVOFF+768)//4 % 256 + 1}",
        f"ds_read_b32 v26, v12 offset:{CVOFF+768}\nds_read_b32 v27, v12 offset:{CVOFF+768+4}"))
    a(f"""ds_read_u16_d16 v28, v13 offset:{CVOFF+1024}
    ds_read_u16_d16_hi v28, v13 offset:{CVOFF+1024+2}
    ds_read_u16_d16 v29, v13 offset:{CVOFF+1024+128}
    ds_read_u16_d16_hi v29, v13 offset:{CVOFF+1024+130}
    s_mov_b32 s70, 0xffff
    s_mov_b32 s71, 0x01000100
    s_mov_b32 s72, 0x03020302
    s_mov_b32 s73, 0x07060100
    s_mov_b32 s74, 0x01000100
    v_and_b32 v30, 1, v0
    v_mul_u32_u24 v31, 0x0202, v30
    v_lshlrev_b32 v30, 16, v31
    v_add_u32 v30, 0x01000302, v30
    v_add_u32 v31, 0x01000100, v31
    s_waitcnt lgkmcnt(0)""")
    a(f"""s_mov_b64 exec, 0xf
    ds_write_b128 v14, v[40:43]
    ds_write_b128 v14, v[40:43] offset:{K1OFF}
    s_mov_b64 exec, 0xffffffff""")
    a(f"""v_alignbit_b32 v32, v17, v17, 16
    v_alignbit_b32 v33, v16, v16, 16
    v_alignbit_b32 v34, v19, v19, 16
    v_alignbit_b32 v35, v18, v18, 16
    v_bfi_b32 v36, s70, v17, v16
    v_bfi_b32 v37, s70, v16, v20
    v_bfi_b32 v38, s70, v19, v18
    v_bfi_b32 v39, s70, v18, v17
    ds_write_b128 v9, v[32:35] offset:{K1OFF+64}
    ds_write_b128 v9, v[36:39] offset:64""")
    a(f"""v_bfi_b32 v44, s70, v23, v22
    v_perm_b32 v45, v22, v22, s71
    v_bfi_b32 v46, s70, v24, v23
    v_perm_b32 v47, v23, v23, s71
    v_alignbit_b32 v48, v22, v22, 16
    v_perm_b32 v49, v25, v22, 0x05040100
    v_alignbit_b32 v50, v23, v23, 16
    v_mov_b32 v51, v47""".replace("0x05040100", "s75").replace("v_bfi_b32 v44", "s_mov_b32 s75, 0x05040100\nv_bfi_b32 v44"))
    a(f"""ds_write_b128 v9, v[44:47] offset:{K1OFF+64+512}
    ds_write_b128 v9, v[48:51] offset:{64+512}
    s_mov_b64 exec, -1""")
    a(f"""v_alignbit_b32 v32, v26, v26, 16
    v_perm_b32 v33, v26, v26, s71
    v_perm_b32 v34, v27, v27, s71
    v_perm_b32 v35, v26, v26, s72
    v_mov_b32 v36, v33
    v_mov_b32 v37, v33
    v_bfi_b32 v38, s70, v27, v26
    v_mov_b32 v39, v35
    ds_write_b128 v14, v[32:35] offset:{K1OFF+64+1024}
    ds_write_b128 v14, v[36:39] offset:{64+1024}""")
    for k, src in enumerate((28, 29)):
        b = 44 if k == 0 else 52
        a(f"""v_perm_b32 v{b}, v{src}, v{src}, s71
        v_perm_b32 v{b+2}, v{src}, v{src}, s72
        v_perm_b32 v{b+3}, v{src}, v{src}, v30
        v_perm_b32 v{b+7}, v{src}, v{src}, v31
        v_mov_b32 v{b+1}, v{b}
        v_mov_b32 v{b+4}, v{b}
        v_mov_b32 v{b+5}, v{b}
        v_mov_b32 v{b+6}, v{b+2}
        ds_write_b128 v14, {v(b,4)} offset:{K1OFF+64+2048+1024*k}
        ds_write_b128 v14, {v(b+4,4)} offset:{64+2048+1024*k}""")
    a.vm.clear(); a.lg.clear()

def aux(a):
    sI = "s54"
    a("Laux:")
    srd(a, 48, 'w2', 1966080)
    X = 16
    E = 56
    CS = 136
    a(f"""s_mul_i32 s70, {sI}, {8*1280}
    v_lshlrev_b32 v1, 2, v0
    v_add_u32 v1, s70, v1
    v_add_u32 v2, {3*1280}, v1
    v_add_u32 v3, {6*1280}, v1""")
    for r in range(8):
        for j in range(5):
            a.vmem(f"buffer_load_dword v{X+5*r+j}, v{1+r//3}, {SX}, 0 offen offset:{(r%3)*1280+256*j}", ('ln', r))
    a(f"""s_cmp_ge_u32 {sI}, 96
    s_cbranch_scc1 Laux_nocs
    s_mul_i32 s70, {sI}, 2731
    s_lshr_b32 s70, s70, 16
    s_mul_i32 s71, s70, 24
    s_sub_u32 s71, {sI}, s71
    v_lshrrev_b32 v4, 3, v0
    v_mul_u32_u24 v4, 0xc00, v4
    v_and_b32 v5, 7, v0
    v_lshl_add_u32 v4, v5, 4, v4
    s_mul_i32 s72, s70, {160*3072}
    s_lshl_b32 s73, s71, 7
    s_add_u32 s72, s72, s73
    s_mov_b32 s77, s70
    s_mov_b32 s78, s71""")
    for n in range(20):
        a(f"buffer_load_dwordx4 {v(CS+4*n,4)}, v4, {SW1}, s72 offen")
        if n < 19: a(f"s_add_u32 s72, s72, 24576")
    a(f"""s_branch Laux_ln
    Laux_nocs:
    s_cmp_ge_u32 {sI}, 224
    s_cbranch_scc1 Laux_ln
    s_sub_u32 s70, {sI}, 96
    s_mul_i32 s71, s70, {12*1280}
    s_mul_i32 s79, s70, {12*160}
    s_add_u32 s79, s79, {W2P}
    v_mul_u32_u24 v4, 6554, v0
    v_lshrrev_b32 v4, 16, v4
    v_mul_u32_u24 v5, 10, v4
    v_sub_u32 v5, v0, v5
    v_mul_u32_u24 v4, 0x500, v4
    v_lshl_add_u32 v4, v5, 4, v4
    v_add_u32 v6, 64, v0
    v_mul_u32_u24 v7, 6554, v6
    v_lshrrev_b32 v7, 16, v7
    v_mul_u32_u24 v5, 10, v7
    v_sub_u32 v5, v6, v5
    v_mul_u32_u24 v7, 0x500, v7
    v_lshl_add_u32 v5, v5, 4, v7""")
    for c in range(8):
        a(f"buffer_load_dwordx4 {v(CS+8*c,4)}, v4, {S4}, s71 offen offset:{160*c}")
    a("s_mov_b32 exec_hi, 0x00ffffff")
    for c in range(8):
        a(f"buffer_load_dwordx4 {v(CS+8*c+4,4)}, v5, {S4}, s71 offen offset:{160*c}")
    a("""s_mov_b64 exec, -1
    Laux_ln:""")
    make_tag(a)
    SUM = 8
    a("s_mov_b32 s70, 0x3f803f80")
    a("s_waitcnt vmcnt(0)")
    a.vm.clear()
    for r in range(8):
        a(f"v_dot2_f32_bf16 v{SUM+r}, v{X+5*r}, s70, 0")
    for j in range(1, 5):
        for r in range(8):
            a(f"v_dot2_f32_bf16 v{SUM+r}, v{X+5*r+j}, s70, v{SUM+r}")
    def reduce8():
        for m in ("quad_perm:[1,0,3,2] row_mask:0xf", "quad_perm:[2,3,0,1] row_mask:0xf", "row_half_mirror row_mask:0xf",
                  "row_mirror row_mask:0xf", "row_bcast:15 row_mask:0xa", "row_bcast:31 row_mask:0xc"):
            for r in range(8):
                a(f"v_add_f32_dpp v{SUM+r}, v{SUM+r}, v{SUM+r} {m} bank_mask:0xf")
    dpp_steps = ("quad_perm:[1,0,3,2] row_mask:0xf", "quad_perm:[2,3,0,1] row_mask:0xf", "row_half_mirror row_mask:0xf",
                 "row_mirror row_mask:0xf", "row_bcast:15 row_mask:0xa", "row_bcast:31 row_mask:0xc")
    reduce8()
    INV640 = 0x3ACCCCCD
    for r in range(8): a(f"v_mul_f32 v{SUM+r}, {INV640}, v{SUM+r}")
    for r in range(8):
        for j in range(5):
            a(f"v_lshlrev_b32 v{E+10*r+2*j}, 16, v{X+5*r+j}\nv_and_b32 v{E+10*r+2*j+1}, 0xffff0000, v{X+5*r+j}")
    for r in range(8): a(f"v_readlane_b32 s{80+r}, v{SUM+r}, 63")
    for k in range(10):
        for r in range(8):
            a(f"v_subrev_f32 v{X+r}, s{80+r}, v{E+10*r+k}")
        for r in range(8):
            if k == 0: a(f"v_mul_f32 v{SUM+r}, v{X+r}, v{X+r}")
            else: a(f"v_fmac_f32 v{SUM+r}, v{X+r}, v{X+r}")
    reduce8()
    for r in range(8): a(f"v_readlane_b32 s{88+r}, v{SUM+r}, 63")
    a("v_mov_b32 v8, 0\nv_mov_b32 v9, 1.0")
    for r in range(8): a(f"v_writelane_b32 v8, s{80+r}, {r}")
    for r in range(8): a(f"v_writelane_b32 v9, s{88+r}, {r}")
    a(f"""v_cvt_pk_bf16_f32 v8, -v8, -v8
    v_mul_f32 v9, {INV640}, v9
    v_cvt_pk_bf16_f32 v9, v9, v9
    v_and_b32 v9, 0xffff0000, v9
    v_add_f32 v9, 0x3727C5AC, v9
    v_cvt_pk_bf16_f32 v9, v9, v9
    v_and_b32 v9, 0xffff0000, v9
    v_sqrt_f32 v9, v9
    v_cvt_pk_bf16_f32 v9, v9, v9
    v_and_b32 v10, 0xffff0000, v9
    v_rcp_f32 v11, v10
    s_mov_b32 s70, 0xffff
    v_bfi_b32 v9, s70, v8, v9
    v_and_b32 v10, 0xffff0000, v8
    v_lshlrev_b32 v12, 3, v0
    s_lshl_b32 s70, {sI}, 6
    s_add_u32 s70, s70, {STATS}
    s_mov_b64 exec, 0xff
    buffer_store_dwordx2 v[8:9], v12, {SWS}, s70 offen sc1
    s_mov_b64 exec, -1""")
    for r in range(8): a(f"v_readlane_b32 s{80+r}, v10, {r}")
    for r in range(8): a(f"v_readlane_b32 s{88+r}, v11, {r}")
    a(f"""s_cmp_ge_u32 {sI}, 96
    s_cbranch_scc1 Laux_nocs2
    v_and_b32 v8, 15, v0
    v_lshrrev_b32 v9, 1, v8
    v_and_b32 v10, 1, v8
    v_lshlrev_b32 v10, 4, v10
    v_mov_b32 v11, 0x3f80
    v_lshlrev_b32 v11, v10, v11""")
    for k in range(4):
        a(f"v_cmp_eq_u32 vcc, {k}, v9\nv_cndmask_b32 v{12+k}, 0, v11, vcc")
    for n in range(20):
        a(f"v_mfma_f32_16x16x32_bf16 v[4:7], v[12:15], {v(CS+4*n,4)}, {'0' if n == 0 else 'v[4:7]'}")
    for k in range(4):
        a(f"v_add_f32_dpp v{4+k}, v{4+k}, v{4+k} row_ror:8 row_mask:0xf bank_mask:0xf")
    a(f"""v_and_b32 v8, 7, v0
    v_lshrrev_b32 v9, 4, v0
    v_lshlrev_b32 v8, 7, v8
    v_lshl_add_u32 v8, v9, 6, v8
    s_lshl_b32 s72, s71, 10
    s_lshl_b32 s73, s70, 2
    s_add_u32 s72, s72, s73""".replace("s70", "s77").replace("s71", "s78"))
    a(f"""s_add_u32 s72, s72, {CSUM}
    s_mov_b64 exec, 0x00ff00ff""")
    for k in range(4):
        a(f"buffer_store_dword v{4+k}, v8, {SWS}, s72 offen offset:{16*k} sc1")
    a(f"""s_mov_b64 exec, -1
    s_branch Laux_ln2
    Laux_nocs2:
    s_cmp_ge_u32 {sI}, 224
    s_cbranch_scc1 Laux_ln2
    v_lshlrev_b32 v8, 4, v0""")
    for c in range(8):
        a(f"buffer_store_dwordx4 {v(CS+8*c,4)}, v8, {SWS}, s79 offen sc1")
        a("s_mov_b32 exec_hi, 0x00ffffff")
        a(f"buffer_store_dwordx4 {v(CS+8*c+4,4)}, v8, {SWS}, s79 offen offset:1024 sc1")
        a("s_mov_b32 exec_hi, -1")
        if c < 7: a("s_add_u32 s79, s79, 245760")
    a("Laux_ln2:")
    a(f"""v_lshlrev_b32 v8, 13, v0
    s_lshl_b32 s70, {sI}, 4
    s_add_u32 s70, s70, {XNT}""")
    for k in range(10):
        o = X + 4*(k % 4)
        t = X + 16
        for r in range(8): a(f"v_add_f32 v{t+r}, s{80+r}, v{E+10*r+k}")
        for r in range(4): a(f"v_cvt_pk_bf16_f32 v{t+8+r}, v{t+2*r}, v{t+2*r+1}")
        for r in range(4):
            a(f"v_lshlrev_b32 v{t+2*r}, 16, v{t+8+r}\nv_and_b32 v{t+2*r+1}, 0xffff0000, v{t+8+r}")
        for r in range(8): a(f"v_mul_f32 v{t+r}, s{88+r}, v{t+r}")
        for r in range(4): a(f"v_cvt_pk_bf16_f32 v{o+r}, v{t+2*r}, v{t+2*r+1}")
        a(f"s_add_u32 s71, s70, {(k//2)*128*4096 + (k%2)*4096}")
        a(f"buffer_store_dwordx4 {v(o,4)}, v8, {SWS}, s71 offen sc1")
    a(f"""s_waitcnt vmcnt(0)
    v_mov_b32 v4, {sTAG}
    v_mov_b32 v5, 0
    s_lshl_b32 s70, {sI}, 2
    s_add_u32 s70, s70, {FL_AUX}
    s_mov_b64 exec, 1
    buffer_store_dword v4, v5, {SWS}, s70 offen sc1
    s_mov_b64 exec, -1""")

def conv(a):
    sI = "s54"
    a("Lconv:")
    a(f"""v_lshlrev_b32 v8, 4, v0
    s_movk_i32 s75, {FL_AUX}
    buffer_load_dwordx4 v[4:7], v8, {SWS}, s75 offen sc1
    v_lshrrev_b32 v9, 4, v0
    v_and_b32 v9, 1, v9
    v_lshlrev_b32 v9, 1, v9
    v_xor_b32 v9, v0, v9
    v_lshlrev_b32 v9, 4, v9
    s_lshl_b32 s70, {sW}, 10
    v_add_u32 v9, s70, v9
    s_add_u32 s76, s70, {UB+512}
    s_waitcnt vmcnt(0)""")
    spin(a, f"buffer_load_dwordx4 v[4:7], v8, {SWS}, s75 offen sc1", cmp4(4))
    for c, sch in enumerate(("s58", "s59", "s61")):
        a(f"""s_lshl_b32 s70, {sch}, 12
        s_add_u32 s70, s70, {XNT}
        s_add_u32 m0, s76, {c*USTR}
        s_sub_u32 s71, s70, 4
        buffer_load_dwordx4 v9, {SWS}, s70 offen sc1 lds
        s_add_u32 m0, s76, {c*USTR+U0OFF}
        s_nop 0
        buffer_load_dwordx4 v9, {SWS}, s71 offen sc1 lds""")
    a(f"""s_cmp_eq_u32 {sW}, 0
    s_cselect_b32 s55, s58, s59
    s_cmp_eq_u32 {sW}, 3
    s_cselect_b32 s55, s61, s55
    s_lshl_b32 s70, s55, 1
    v_mov_b32 v10, s70
    v_mov_b32 v3, 0
    global_load_short_d16_hi v3, v10, {sp('D')}""")
    a(f"""v_and_b32 v10, 15, v0
    v_lshrrev_b32 v11, 4, v0
    v_and_b32 v12, 1, v0
    v_lshrrev_b32 v13, 1, v10
    v_mul_u32_u24 v14, {K1OFF}, v12
    v_sub_u32 v15, v13, v11
    v_lshl_add_u32 v14, v15, 3, v14
    v_add_u32 v14, 32, v14
    v_xor_b32 v15, 1, v12
    v_mul_u32_u24 v15, {U0OFF}, v15
    v_lshl_add_u32 v15, v11, 3, v15
    v_add_u32 v15, {UB}, v15
    v_add_u32 v13, 8, v13
    v_mov_b32 v4, 0
    s_waitcnt vmcnt(0)""")
    a(f"""s_cmp_lg_u32 {sW}, 0
    s_cbranch_scc1 Lcv_nofix
    v_mov_b32 v5, {UB+U0OFF+512}
    ds_write_b32 v5, v4
    ds_write_b32 v5, v4 offset:{USTR}
    ds_write_b32 v5, v4 offset:{2*USTR}
    Lcv_nofix:
    s_waitcnt lgkmcnt(0)
    s_barrier""")
    a(f"""s_lshr_b32 s62, {sW}, 1
    s_mov_b32 s63, 0x07020500
    s_lshl_b32 s70, {sW}, 3
    s_lshr_b32 s63, s63, s70
    s_and_b32 s63, s63, 0xff
    s_mov_b32 s64, 0x01050305
    s_lshr_b32 s64, s64, s70
    s_and_b32 s64, s64, 0xff
    s_mov_b32 s65, 0""")
    AF, BF, YA = 32, 64, 96
    vA, vB0, vB1 = 16, 17, 18
    def unit_addr():
        a(f"""s_mul_i32 s70, s62, {KREG}
        s_lshl_b32 s71, s63, 6
        s_add_u32 s70, s70, s71
        v_add_u32 v{vA}, s70, v14
        v_subrev_u32 v19, s63, v13
        v_lshlrev_b32 v20, 3, v19
        v_and_b32 v20, 32, v20
        v_lshl_add_u32 v19, v19, 6, v15
        s_mul_i32 s70, s62, {USTR}
        v_add_u32 v19, s70, v19
        v_add_u32 v{vB0}, v19, v20
        v_xor_b32 v20, 32, v20
        v_add_u32 v{vB1}, v19, v20""")
    def unit(J):
        mx = max(J)
        todo = [(j, p) for j in J for p in range(j+1)]
        def rd(k):
            a.ds(f"ds_read_b64 {v(AF+4*k,2)}, v{vA} offset:{512*k+32}", ('f', k))
            a.ds(f"ds_read_b64 {v(AF+4*k+2,2)}, v{vA} offset:{512*k}", ('f', k))
            a.ds(f"ds_read_b64 {v(BF+4*k,2)}, v{vB0} offset:{512*k}", ('f', k))
            a.ds(f"ds_read_b64 {v(BF+4*k+2,2)}, v{vB1} offset:{512*k}", ('f', k))
        for k in range(min(3, mx+1)): rd(k)
        for k in range(mx+1):
            a.wait(lg=[('f', k)])
            if k + 3 <= mx: rd(k+3)
            now = [(j, p) for (j, p) in todo if max(p, j-p) == k]
            for j, p in now:
                a(f"v_mfma_f32_16x16x32_bf16 {v(YA+4*j,4)}, {v(AF+4*p,4)}, {v(BF+4*(j-p),4)}, {v(YA+4*j,4)}")
    a("Lcv_pass:")
    for r in range(32): a(f"v_mov_b32 v{YA+r}, 0")
    a("Lcv_full:")
    unit_addr()
    unit(range(8))
    a(f"""s_add_u32 s63, s63, 1
    s_sub_u32 s64, s64, 1
    s_cmp_lg_u32 s64, 0
    s_cbranch_scc1 Lcv_full
    s_and_b32 s70, {sW}, 1
    s_cmp_eq_u32 s70, 0
    s_cbranch_scc1 Lcv_bar""")
    a(f"""s_lshr_b32 s70, {sW}, 1
    s_lshl_b32 s70, s70, 1
    s_add_u32 s70, s70, s65
    s_mul_i32 s70, s70, {KREG}
    v_lshlrev_b32 v19, 4, v0
    v_add_u32 v19, s70, v19""")
    for j in range(8): a(f"ds_write_b128 v19, {v(YA+4*j,4)} offset:{PAOFF+1024*j}")
    a(f"""s_cmp_eq_u32 s65, 1
    s_cbranch_scc1 Lcv_bar
    s_mov_b32 s65, 1
    s_mov_b32 s63, 0
    s_cmp_eq_u32 {sW}, 3
    s_cbranch_scc1 Lcv_half
    s_mov_b32 s62, 1
    s_mov_b32 s64, 2
    s_branch Lcv_pass
    Lcv_half:
    s_mov_b32 s62, 2""")
    for r in range(32): a(f"v_mov_b32 v{YA+r}, 0")
    a("""s_cmp_eq_u32 s57, 1
    s_cbranch_scc1 Lcv_h1
    Lcv_h0:""")
    unit_addr(); unit([7, 5, 2, 0])
    a("""s_add_u32 s63, s63, 1
    s_cmp_lg_u32 s63, 8
    s_cbranch_scc1 Lcv_h0
    s_branch Lcv_bar
    Lcv_h1:""")
    unit_addr(); unit([6, 4, 3, 1])
    a("""s_add_u32 s63, s63, 1
    s_cmp_lg_u32 s63, 8
    s_cbranch_scc1 Lcv_h1
    Lcv_bar:
    s_waitcnt lgkmcnt(0)
    s_barrier""")
    a(f"""s_cmp_eq_u32 {sW}, 1
    s_cbranch_scc1 Lcv_w1
    s_cmp_eq_u32 {sW}, 3
    s_cbranch_scc1 Lcv_stage
    s_lshr_b32 s62, {sW}, 1
    s_mul_i32 s70, s62, {KREG}
    v_lshlrev_b32 v19, 4, v0
    v_add_u32 v19, s70, v19""")
    for j in range(8): a.ds(f"ds_read_b128 {v(AF+4*j,4)}, v19 offset:{PAOFF+1024*j}", ('p', j))
    for j in range(8):
        a.wait(lg=[('p', j)])
        for k in range(4): a(f"v_add_f32 v{YA+4*j+k}, v{YA+4*j+k}, v{AF+4*j+k}")
    a(f"""s_cmp_eq_u32 {sW}, 0
    s_cbranch_scc1 Lcv_stage""")
    for j in range(8): a.ds(f"ds_read_b128 {v(AF+4*j,4)}, v19 offset:{KREG+PAOFF+1024*j}", ('p', j))
    for j in range(8):
        a.wait(lg=[('p', j)])
        for k in range(4): a(f"v_add_f32 v{YA+4*j+k}, v{YA+4*j+k}, v{AF+4*j+k}")
    a("Lcv_stage:")
    a(f"""s_mul_i32 s70, s62, {KREG}
    v_lshrrev_b32 v19, 1, v10
    v_lshlrev_b32 v19, 6, v19
    v_lshl_add_u32 v19, v11, 4, v19
    v_lshl_add_u32 v19, v12, 2, v19
    v_add_u32 v19, s70, v19""")
    for j in range(8):
        a(f"""v_cvt_pk_bf16_f32 v{AF+2*j}, v{YA+4*j}, v{YA+4*j+1}
        v_cvt_pk_bf16_f32 v{AF+2*j+1}, v{YA+4*j+2}, v{YA+4*j+3}
        ds_write_b32 v19, v{AF+2*j} offset:{512*j}
        ds_write_b32 v19, v{AF+2*j+1} offset:{512*j+8}""")
    a(f"""v_lshlrev_b32 v20, 4, v0
    v_and_b32 v21, 0x1f0, v20
    v_lshrrev_b32 v22, 5, v0
    s_mov_b32 s64, 4
    s_mov_b32 s66, 0x03020100
    s_mov_b32 s67, 0x07060504
    s_cmp_lg_u32 {sW}, 3
    s_cbranch_scc1 Lcv_lin0
    s_mov_b32 s64, 2
    s_cmp_eq_u32 s57, 1
    s_cselect_b32 s66, 0x06040301, 0x07050200
    Lcv_lin0:
    s_lshl_b32 s72, s55, 12
    s_add_u32 s72, s72, {AT}
    s_mul_i32 s73, s62, {USTR}
    s_add_u32 s73, s73, {UB+512}
    s_waitcnt lgkmcnt(0)
    Lcv_lin:
    s_and_b32 s70, s66, 0xff
    s_lshr_b32 s71, s66, 8
    s_and_b32 s71, s71, 0xff
    s_sub_u32 s71, s71, s70
    v_mul_u32_u24 v23, s71, v22
    v_add_u32 v23, s70, v23
    v_lshl_add_u32 v23, v23, 9, v21
    s_mul_i32 s70, s62, {KREG}
    v_add_u32 v24, s70, v23
    v_lshrrev_b32 v25, 3, v23
    v_and_b32 v25, 32, v25
    v_xor_b32 v25, v25, v23
    v_add_u32 v25, s73, v25
    ds_read_b128 v[32:35], v24
    ds_read_b128 v[36:39], v25
    s_lshr_b64 s[66:67], s[66:67], 16
    s_waitcnt lgkmcnt(0)""")
    for k in range(4):
        y, u = 32+k, 36+k
        a(f"""v_lshlrev_b32 v40, 16, v{u}
        v_and_b32 v41, 0xffff0000, v{u}
        v_mul_f32 v40, v3, v40
        v_mul_f32 v41, v3, v41
        v_cvt_pk_bf16_f32 v40, v40, v41
        v_lshlrev_b32 v42, 16, v{y}
        v_and_b32 v43, 0xffff0000, v{y}
        v_and_b32 v41, 0xffff0000, v40
        v_lshlrev_b32 v40, 16, v40
        v_add_f32 v40, v40, v42
        v_add_f32 v41, v41, v43
        v_cvt_pk_bf16_f32 v{44+k}, v40, v41""")
    a(f"""buffer_store_dwordx4 v[44:47], v23, {SWS}, s72 offen sc1
    s_sub_u32 s64, s64, 1
    s_cmp_lg_u32 s64, 0
    s_cbranch_scc1 Lcv_lin
    s_waitcnt vmcnt(0)
    s_barrier
    s_cmp_lg_u32 {sW}, 0
    s_cbranch_scc1 Lend
    v_mov_b32 v4, {sTAG}
    v_mov_b32 v5, 0
    s_lshl_b32 s70, {sI}, 2
    s_add_u32 s70, s70, {FL_Y}
    s_mov_b64 exec, 1
    buffer_store_dword v4, v5, {SWS}, s70 offen sc1
    s_endpgm
    Lcv_w1:
    s_barrier
    s_cmp_lg_u32 {sI}, 0
    s_cbranch_scc1 Lend""")
    a(f"""v_lshrrev_b32 v8, 1, v0
    v_mul_u32_u24 v8, 96, v8
    v_and_b32 v9, 1, v0
    v_lshl_add_u32 v8, v9, 4, v8
    s_movk_i32 s75, {FL_ACT}
    buffer_load_dwordx4 v[4:7], v8, {SWS}, s75 offen sc1
    s_waitcnt vmcnt(0)""")
    spin(a, f"buffer_load_dwordx4 v[4:7], v8, {SWS}, s75 offen sc1", cmp4(4))
    a(f"""v_lshlrev_b32 v8, 4, v0
    s_movk_i32 s75, {FL_Y}
    buffer_load_dwordx4 v[4:7], v8, {SWS}, s75 offen sc1
    s_waitcnt vmcnt(0)""")
    spin(a, f"buffer_load_dwordx4 v[4:7], v8, {SWS}, s75 offen sc1", cmp4(4))
    a(f"""v_mov_b32 v4, {sTAG}
    v_mov_b32 v5, 0
    s_mov_b64 exec, 1
    buffer_store_dword v4, v5, {SWS}, 0 offen sc1
    s_endpgm""")

HEADER = open(os.path.join(os.path.dirname(os.path.abspath(__file__)), "..", "cdna_kernels",
              "parallel_sum__ssm_conv_s4__dense_activation_mish__prompt.s.ref")).read().split("; Override")[0]

def build():
    a = Asm()
    prologue(a)
    gemm(a)
    a.vm.clear(); a.lg.clear()
    ssm(a)
    a("Lend:\ns_endpgm")
    body = a.finalize()
    return f"""{HEADER}; @launch grid=(512,1,1) block=(256,1,1) lds=81920
.amdgcn_target "amdgcn-amd-amdhsa--gfx950"
.text
.globl {KN}
.p2align 8
.type {KN},@function
{KN}:
{body}.section .rodata,"a"
.p2align 6
.amdhsa_kernel {KN}
  .amdhsa_next_free_vgpr 256
  .amdhsa_next_free_sgpr 102
  .amdhsa_accum_offset 256
  .amdhsa_group_segment_fixed_size 0
  .amdhsa_kernarg_size 128
  .amdhsa_user_sgpr_count 2
  .amdhsa_user_sgpr_kernarg_segment_ptr 1
  .amdhsa_system_sgpr_workgroup_id_x 1
.end_amdhsa_kernel
"""

if __name__ == "__main__":
    out = sys.argv[1] if len(sys.argv) > 1 else "k.s"
    open(out, "w").write(build())
    print("wrote", out)
```

```python
import re

TRANS = ("v_exp_f32","v_log_f32","v_rcp_f32","v_rsq_f32","v_sqrt_f32","v_sin_f32","v_cos_f32")

def regs_of(tok):
    tok = tok.strip()
    neg = tok.startswith("-")
    if neg: tok = tok[1:]
    m = re.fullmatch(r"abs\((.*)\)|\|(.*)\|", tok)
    if m: tok = m.group(1) or m.group(2)
    m = re.fullmatch(r"([vsa])(\d+)", tok)
    if m: return [(m.group(1), int(m.group(2)))]
    m = re.fullmatch(r"([vsa])\[(\d+):(\d+)\]", tok)
    if m: return [(m.group(1), i) for i in range(int(m.group(2)), int(m.group(3))+1)]
    if tok == "vcc": return [("s",106),("s",107)]
    if tok == "vcc_lo": return [("s",106)]
    if tok == "vcc_hi": return [("s",107)]
    if tok in ("exec","exec_lo","exec_hi"): return [("x",0),("x",1)]
    if tok == "m0": return [("m",0)]
    return []

class Ins:
    __slots__=("text","op","kind","w","r","passes","dpp","srcC","srcAB","storedata","wide","states","label","target","lds_dma","mask_r")
    def __init__(self, text):
        self.text = text
        t = text.split(";")[0].strip()
        self.label=None; self.target=None
        self.w=set(); self.r=set(); self.passes=0; self.dpp=False; self.srcC=set(); self.srcAB=set()
        self.storedata=set(); self.wide=False; self.states=1; self.lds_dma=False; self.mask_r=set()
        if t.endswith(":"):
            self.op="label"; self.kind="label"; self.label=t[:-1]; self.states=0; return
        if t.startswith("."):
            self.op="dir"; self.kind="dir"; self.states=0; return
        parts = t.split(None,1)
        op = parts[0]; self.op=op
        rest = parts[1] if len(parts)>1 else ""
        ops=[]; cur=""; depth=0
        for ch in rest:
            if ch in "[(": depth+=1
            if ch in "])": depth-=1
            if ch=="," and depth==0: ops.append(cur); cur=""
            else: cur+=ch
        if cur.strip(): ops.append(cur)
        mods=""
        if ops:
            lastp = ops[-1].strip().split(None,1)
            ops[-1]=lastp[0]
            if len(lastp)>1: mods=lastp[1]
        ops=[o.strip() for o in ops]
        R=lambda i: regs_of(ops[i]) if i<len(ops) else []
        if op.startswith("v_mfma"):
            self.kind="mfma"
            self.passes = 8 if "32x32x16" in op else 4
            self.w=set(R(0)); self.srcAB=set(R(1))|set(R(2)); self.srcC=set(R(3)); self.r=self.srcAB|self.srcC
        elif op.startswith("v_"):
            self.kind="trans" if op.replace("_e32","").replace("_e64","") in TRANS else "valu"
            self.dpp = "_dpp" in op or "row_" in mods or "quad_perm" in mods or "wave_" in mods
            if op.startswith("v_cmp"):
                self.w=set(R(0));
                for i in range(1,len(ops)): self.r|=set(R(i))
            elif op.startswith("v_readlane") or op.startswith("v_readfirstlane"):
                self.kind="rdlane"; self.w=set(R(0));
                for i in range(1,len(ops)): self.r|=set(R(i))
            elif op.startswith("v_permlane"):
                self.kind="permlane"; self.w=set(R(0))|set(R(1)); self.r=set(self.w)
            elif op.startswith("v_add_co") or op.startswith("v_sub_co") or op.startswith("v_addc_co"):
                self.w=set(R(0))|set(R(1))
                for i in range(2,len(ops)): self.r|=set(R(i))
            else:
                self.w=set(R(0))
                for i in range(1,len(ops)): self.r|=set(R(i))
                if op.startswith("v_fmac") or op.startswith("v_dot2c") or op.startswith("v_writelane") or self.dpp: self.r|=self.w
        elif op.startswith("ds_"):
            self.kind="ds"
            if "read" in op or "bpermute" in op or "permute" in op or "swizzle" in op:
                self.w=set(R(0))
                for i in range(1,len(ops)): self.r|=set(R(i))
                if "d16" in op: self.r|=self.w
            else:
                for i in range(len(ops)): self.r|=set(R(i))
            if "addtid" in op: self.lds_dma=True
        elif op.startswith("buffer_") or op.startswith("global_"):
            self.kind="vmem"
            islds = re.search(r"\blds\b", mods) is not None or "_lds_" in op
            if islds:
                self.lds_dma=True
                for i in range(len(ops)): self.r|=set(R(i))
            elif "load" in op:
                self.w=set(R(0))
                for i in range(1,len(ops)): self.r|=set(R(i))
            else:
                for i in range(len(ops)): self.r|=set(R(i))
                di = 0 if op.startswith("buffer_") else 1
                self.storedata=set(R(di)); self.wide = ("x4" in op or "x3" in op)
                if "atomic" in op and "sc0" in mods: self.w=set(R(di))
        elif op.startswith("s_load") or op.startswith("s_memtime") or op.startswith("s_memrealtime") or op.startswith("s_buffer_load"):
            self.kind="smem"; self.w=set(R(0))
            for i in range(1,len(ops)): self.r|=set(R(i))
        elif op=="s_nop":
            self.kind="nop"; self.states=int(ops[0],0)+1
        elif op.startswith("s_cbranch") or op=="s_branch":
            self.kind="branch"; self.target=ops[0]
        elif op in ("s_waitcnt","s_barrier","s_endpgm","s_setprio","s_sleep"):
            self.kind="misc"
        elif op.startswith("s_cmp") or op.startswith("s_bitcmp"):
            self.kind="salu"
            for i in range(len(ops)): self.r|=set(R(i))
        elif op.startswith("s_"):
            self.kind="salu"; self.w=set(R(0))
            for i in range(1,len(ops)): self.r|=set(R(i))
            if "saveexec" in op: self.w|={("x",0),("x",1)}
        else:
            raise ValueError("unknown instr: "+text)

def required(p, c):
    need=0
    pv = p.kind in ("valu","trans","rdlane","permlane")
    cv = c.kind in ("valu","trans","rdlane","permlane")
    pw_v = {x for x in p.w if x[0] in "va"}
    pw_s = {x for x in p.w if x[0]=="s"}
    if pv:
        if c.kind=="mfma" and pw_v & c.r: need=max(need,2)
        if p.kind=="trans" and c.kind!="trans" and pw_v & (c.r|c.w): need=max(need,1)
        if p.kind=="trans" and c.kind=="trans" and pw_v & c.r: need=max(need,1)
        if pw_s & c.r:
            if c.kind=="rdlane" or c.op.startswith("v_writelane"): need=max(need,4)
            elif cv: need=max(need,2)
            elif c.kind=="vmem": need=max(need,5)
            elif c.kind in ("salu","smem","branch"): need=max(need,1)
        if pw_s & {("s",106),("s",107)} and c.kind=="branch" and "vcc" in c.op: need=max(need,1)
        if c.kind=="rdlane" and pw_v & c.r: need=max(need,1)
        if c.dpp and pw_v & c.r: need=max(need,2)
        if c.kind=="permlane" and pw_v & c.r: need=max(need,2)
    if p.kind=="mfma":
        big = {4:8, 8:12}[p.passes]
        if c.kind=="mfma":
            if p.w & c.srcAB: need=max(need,big)
            if p.w & c.srcC:
                if c.srcC==p.w and c.passes==p.passes: pass
                else: need=max(need,{4:6,8:10}[p.passes])
            elif p.w & c.w: need=max(need,{4:6,8:10}[p.passes])
        elif cv or c.kind in ("ds","vmem"):
            if p.w & (c.r|c.w): need=max(need,big)
            if cv and p.srcC & c.w: need=max(need,{4:3,8:7}[p.passes])
    if p.op.startswith("v_dot2"):
        if c.op==p.op and not (pw_v & (c.r - c.w)): pass
        elif pw_v & (c.r|c.w): need=max(need,3)
    if p.kind=="salu" and ("m",0) in p.w and c.lds_dma: need=max(need,1)
    if p.kind=="vmem" and p.wide and p.storedata & c.w:
        need=max(need, 2 if cv else 1)
    return need

class Asm:
    def __init__(self):
        self.ins=[]
        self.vm=[]
        self.lg=[]
        self._lab=0
        self.done={}
    def __call__(self, text):
        for line in text.strip("\n").split("\n"):
            line=line.strip()
            if not line or line.startswith(";"): continue
            self.ins.append(Ins(line))
    def label(self, stem="L"):
        self._lab+=1; return f"{stem}_{self._lab}"
    def vmem(self, text, tag=None):
        self(text); self.vm.append(tag)
    def ds(self, text, tag=None):
        self(text); self.lg.append(tag)
    def _count(self, q, tags):
        idx=-1
        for i,t in enumerate(q):
            if t in tags: idx=i
        if idx<0: return None
        n=sum(1 for t in q[idx+1:] if not (isinstance(t,tuple) and t and t[0]=='VIRT'))
        for t in q[:idx+1]: self.done[t]=self.done.get(t,0)+1
        del q[:idx+1]
        return n
    def wait(self, vm=(), lg=()):
        s=""
        if vm=="all":
            for t in self.vm: self.done[t]=self.done.get(t,0)+1
            self.vm.clear(); s+=" vmcnt(0)"
        elif vm:
            n=self._count(self.vm, set(vm))
            if n is not None:
                s+=f" vmcnt({min(n,62)})"
        if lg=="all": self.lg.clear(); s+=" lgkmcnt(0)"
        elif lg:
            n=self._count(self.lg, set(lg))
            if n is not None:
                s+=f" lgkmcnt({min(n,14)})"
        if s: self("s_waitcnt"+s)
    def finalize(self):
        out=[]
        WIN=24
        def pad_for(hist, c):
            dist=0; need=0
            for p in reversed(hist[-WIN:]):
                r=required(p,c)
                if r>dist: need=max(need, r-dist)
                dist+=p.states
                if dist>=20: break
            return need
        for c in self.ins:
            if c.kind not in ("label","dir"):
                n=pad_for(out,c)
                while n>0:
                    k=min(n,16); out.append(Ins(f"s_nop {k-1}")); n-=k
            out.append(c)
        labels={i.label:k for k,i in enumerate(out) if i.kind=="label"}
        k=0
        res=[]
        for k,c in enumerate(out):
            if c.kind=="branch" and c.target in labels:
                hist=[x for x in out[max(0,k-WIN):k+1]]
                tgt=out[labels[c.target]:labels[c.target]+WIN]
                worst=0
                h=list(hist)
                for t in tgt:
                    if t.kind in ("label","dir"): continue
                    dist=0
                    for p in reversed(h):
                        if p in hist:
                            r=required(p,t)
                            if r>dist: worst=max(worst,r-dist)
                        dist+=p.states
                        if dist>=20: break
                    h.append(t)
                    if t.kind=="branch" and t.op=="s_branch": break
                while worst>0:
                    kk=min(worst,16); res.append(Ins(f"s_nop {kk-1}")); worst-=kk
            res.append(c)
        return "\n".join(("" if i.kind in("label",) else "  ")+i.text for i in res)+"\n"
```

```python
import sys, os
sys.path.insert(0, os.path.dirname(os.path.abspath(__file__)))
from asmlib import Asm

KN = "parallel_sum__ssm_conv_s4__dense_activation_mish__prompt_kernel"

FL_S   = 0x0000 + 0x8000
FL_Y   = 0x10000
FL_ACT = 0x18000
STATS  = 0x30000
CSUM   = 0x34000
FL_C   = 0x70000
FL_AUX = 0x48000 + 0x20000
GO     = 0x1000
XNT    = 0x100000
AT     = 0x400000
W2P    = 0x700000
ACT    = 0xA00000
WS_SIZE= 0x1000000
LOG2E = 0x3FB8AA3B
SPIN_MAX = int(os.environ.get('SPIN_MAX', '20000'))
ACT_DELAY = int(os.environ.get('ACT_DELAY', '2'))
DIAG = int(os.environ.get("DIAG", "0"))
EXP = os.environ.get("EXP", "")
STAMP = 0x40000
TLB = int(os.environ.get('TLB', '1'))
S1 = int(os.environ.get('S1', '4'))
C0 = int(os.environ.get('C0', '6'))
C1 = int(os.environ.get('C1', '2'))
C2 = int(os.environ.get('C2', '9'))
TOUCH = int(os.environ.get('TOUCH', '1'))
GAP = int(os.environ.get('GAP', '2'))

P = dict(x=16, Are=18, Aim=20, Bre=22, Bim=24, Cre=26, Cim=28, ldt=30, D=32, w1=36, b1=38, w2=40, out=42, dbg=44, ws=46)
def sp(n): return f"s[{P[n]}:{P[n]+1}]"
SX, SW1, SWS, S4 = "s[4:7]", "s[8:11]", "s[12:15]", "s[48:51]"
sW, sTAG = "s3", "s52"

_st = {"n": 0}
def stamp(a, name=None, wait=False):
    if not DIAG: return
    k = _st["n"]; _st["n"] += 1
    assert k < 10, k
    a(f"{'s_memtime' if os.environ.get('CYC') else 's_memrealtime'} s[{82+2*k}:{83+2*k}]")
    if wait: a("s_waitcnt lgkmcnt(0)")
def stamp_reset(n=0): _st["n"] = n
def stamp_flush(a, tmp):
    if not DIAG: return
    a("s_waitcnt lgkmcnt(0)")
    a(f"s_lshl_b32 s80, s2, 2\ns_add_u32 s80, s80, {sW}\ns_lshl_b32 s80, s80, 6\ns_add_u32 s80, s80, {STAMP}\nv_mov_b32 v{tmp+1}, 0\ns_mov_b64 exec, 1")
    for k in range(10):
        a(f"v_mov_b32 v{tmp}, s{82+2*k}\nbuffer_store_dword v{tmp}, v{tmp+1}, {SWS}, s80 offen offset:{4*k}\ns_nop 1")
    a("s_mov_b64 exec, -1")

def v(i, n=1): return f"v{i}" if n == 1 else f"v[{i}:{i+n-1}]"

def srd(a, base, ptr, size):
    a(f"""s_mov_b32 s{base}, s{P[ptr]}
    s_mov_b32 s{base+1}, s{P[ptr]+1}
    s_mov_b32 s{base+2}, {size}
    s_mov_b32 s{base+3}, 0x20000""")

def spin(a, load, cmp, scnt="s60", slp=4):
    L = a.label("Lspin"); Lok = a.label("Lok")
    a(cmp)
    a(f"s_cbranch_scc1 {Lok}")
    a(f"s_mov_b32 {scnt}, {SPIN_MAX}")
    a(f"{L}:")
    a(f"s_sleep {slp}")
    a(load)
    a("s_waitcnt vmcnt(0)")
    a(cmp)
    a(f"s_cbranch_scc1 {Lok}")
    a(f"s_sub_u32 {scnt}, {scnt}, 1")
    a(f"s_cmp_lg_u32 {scnt}, 0")
    a(f"s_cbranch_scc1 {L}")
    a(f"{Lok}:")

def cmpn(regs):
    dst = ["vcc", "s[62:63]", "s[64:65]", "s[66:67]"][:len(regs)]
    t = "\n".join(f"v_cmp_ne_u32 {d}, {sTAG}, v{r}" for d, r in reversed(list(zip(dst, regs))))
    for d in dst[1:]: t += f"\ns_or_b64 vcc, vcc, {d}"
    return t + "\ns_cmp_eq_u64 vcc, 0"

def poll256_issue(a, base, stride, r=4, s0=72):
    a(f"v_mul_u32_u24 v{r+4}, {stride}, v0")
    for n in range(4): a(f"s_mov_b32 s{s0+n}, {base + 64*stride*n}")
    ld = "\n".join(f"buffer_load_dword v{r+n}, v{r+4}, {SWS}, s{s0+n} offen sc1" for n in range(4))
    a(ld)
    return ld
def poll256(a, base, stride, slp=4, r=4):
    ld = poll256_issue(a, base, stride, r)
    a("s_waitcnt vmcnt(0)")
    spin(a, ld, cmpn([r, r+1, r+2, r+3]), slp=slp)

def go_issue(a, r, s="s75"):
    a(f"""v_mov_b32 v{r+1}, 0
    s_and_b32 {s}, s2, 7
    s_lshl_b32 {s}, {s}, 7
    s_add_u32 {s}, {s}, {GO}""")
    return f"buffer_load_dword v{r}, v{r+1}, {SWS}, {s} offen sc1"
def go_wait(a, r):
    ld = go_issue(a, r)
    a(ld); a("s_waitcnt vmcnt(0)")
    spin(a, ld, cmpn([r]), slp=3)

def flag_store(a, soff, t0, t1, track=None):
    a(f"""v_mov_b32 v{t0}, {sTAG}
    v_mov_b32 v{t1}, 0
    s_mov_b64 exec, 1""")
    txt = f"buffer_store_dword v{t0}, v{t1}, {SWS}, {soff} offen sc1"
    if track is not None: a.vmem(txt, track)
    else: a(txt)
    a("s_mov_b64 exec, -1")

def prologue(a):
    a(f"""s_cmp_ge_u32 s2, 512
    s_cbranch_scc1 Lend
    s_load_dwordx16 s[16:31], s[0:1], 0
    s_load_dwordx16 s[32:47], s[0:1], 64""")
    if DIAG:
        for k in range(82, 102): a(f"s_mov_b32 s{k}, 0")
    stamp(a, "start")
    a(f"""v_lshrrev_b32 v1, 6, v0
    v_and_b32 v0, 63, v0
    v_readfirstlane_b32 {sW}, v1
    s_waitcnt lgkmcnt(0)
    s_load_dword s53, {sp('ws')}, 0""")
    srd(a, 4, 'x', 2621440)
    srd(a, 8, 'w1', 1966080)
    srd(a, 12, 'ws', WS_SIZE)
    a("""s_cmp_lt_u32 s2, 256
    s_cbranch_scc1 Lssm""")

def make_tag(a):
    a(f"""s_waitcnt lgkmcnt(0)
    s_mul_i32 {sTAG}, s53, 0x9E3779B1
    s_add_u32 {sTAG}, {sTAG}, 0x7F4A7C15""")

def gemm(a):
    vX0, vX1, vW0, vW1 = 1, 2, 3, 4
    xr = [5, 6, 7, 8]
    wrl, wrh = 9, 10
    vAS = 11
    c1, c2, c3 = 12, 13, 14
    vT = 15
    EXT = 16
    T = [22, 23, 24, 25]
    OUT = 26
    EQ = 34
    A0, A1 = 38, 39
    SUMA = 22
    def accof(s): return ACC + 16*((s+1) % 2)
    WF = 40
    ACC = 64
    XF = 96
    sRB, sFP, sTH, sFH = "s54", "s55", "s56", "s57"
    sM, sSO, sAS, sT0 = "s58", "s59", "s61", "s68"
    if EXP == "nogemm": a("s_endpgm")
    a(f"""s_setprio {os.environ.get('PG','2')}
    s_and_b32 s68, s2, 7
    s_lshr_b32 s69, s2, 3
    s_and_b32 s69, s69, 31
    s_lshr_b32 {sRB}, s68, 1
    s_lshl_b32 {sRB}, {sRB}, 3
    s_and_b32 s70, s69, 7
    s_add_u32 {sRB}, {sRB}, s70
    s_and_b32 {sFP}, s68, 1
    s_lshl_b32 {sFP}, {sFP}, 2
    s_lshr_b32 s70, s69, 3
    s_add_u32 {sFP}, {sFP}, s70
    s_lshl_b32 {sM}, {sW}, 11
    v_lshrrev_b32 v22, 3, v0
    s_lshl_b32 s70, {sW}, 4
    v_add_u32 v22, s70, v22
    v_lshrrev_b32 v23, 4, v0
    v_and_b32 v24, 7, v0
    v_xor_b32 v25, v24, v23
    s_lshl_b32 s71, {sRB}, 6
    v_add_u32 v26, s71, v22
    v_mul_u32_u24 v26, 0x500, v26
    v_lshl_add_u32 v{vX0}, v25, 4, v26
    v_xor_b32 v25, 4, v25
    v_lshl_add_u32 v{vX1}, v25, 4, v26
    v_add_u32 v{vX1}, {8*1280-1024}, v{vX1}
    v_and_b32 v23, 1, v23
    v_lshlrev_b32 v23, 2, v23
    v_xor_b32 v25, v24, v23
    v_mul_u32_u24 v26, 0xc00, v22
    v_lshl_add_u32 v{vW0}, v25, 4, v26
    s_mul_i32 s70, {sFP}, 384
    v_add_u32 v{vW0}, s70, v{vW0}
    v_add_u32 v{vW1}, {8*3072-1024}, v{vW0}""")

    def chunk_info(c):
        if c < 20:
            return ('X', 0, c//2) if c % 2 == 0 else ('W', 0, c//2)
        return ('W', 1 + (c-20)//10, (c-20) % 10)
    def dma_half(c, h):
        kind, s, kc = chunk_info(c)
        slot = c % 10
        if h == 0:
            a(f"s_add_u32 m0, {sM}, {slot*8192}")
            a(f"s_movk_i32 {sSO}, {kc*128}" if kind == 'X' else f"s_mov_b32 {sSO}, {kc*196608 + s*128}")
        r, sr = ((vX0, vX1)[h], SX) if kind == 'X' else ((vW0, vW1)[h], SW1)
        a.vmem(f"buffer_load_dwordx4 v{r}, {sr}, {sSO} offen {'offset:1024 ' if h else ''}lds", ('c', c))
    for c in range(10): dma_half(c, 0); dma_half(c, 1)

    srd(a, 48, 'out', 2621440)
    a(f"""s_and_b32 {sTH}, {sW}, 1
    s_lshr_b32 {sFH}, {sW}, 1
    v_and_b32 v22, 31, v0
    v_lshrrev_b32 v23, 5, v0
    v_lshrrev_b32 v24, 1, v22
    v_and_b32 v24, 7, v24
    s_lshl_b32 s70, {sTH}, 12
    v_lshl_add_u32 v25, v22, 7, s70""")
    for j in range(4):
        a(f"""v_add_u32 v26, {2*j}, v23
        v_xor_b32 v26, v26, v24
        v_lshl_add_u32 v{xr[j]}, v26, 4, v25""")
    a(f"""v_lshrrev_b32 v26, 4, v22
    s_lshl_b32 s70, {sTH}, 1
    v_add_u32 v26, s70, v26
    v_mul_u32_u24 v26, 0xc000, v26
    v_lshl_add_u32 v26, v23, 8, v26
    v_and_b32 v27, 15, v0
    v_lshl_add_u32 v{vAS}, v27, 4, v26
    v_lshrrev_b32 v24, 2, v27
    v_and_b32 v25, 3, v0
    v_lshrrev_b32 v26, 4, v0
    v_and_b32 v26, 1, v26
    v_lshlrev_b32 v26, 1, v26
    v_lshrrev_b32 v28, 1, v25
    v_add_u32 v26, v26, v28
    s_lshl_b32 s70, {sFH}, 2
    v_add_u32 v26, s70, v26
    v_lshrrev_b32 v28, 1, v24
    v_lshlrev_b32 v28, 2, v28
    v_xor_b32 v26, v26, v28
    v_lshl_add_u32 v28, v23, 3, v24
    v_lshlrev_b32 v28, 7, v28
    v_lshl_add_u32 v28, v26, 4, v28
    v_and_b32 v25, 1, v25
    v_lshl_add_u32 v{wrl}, v25, 3, v28
    v_add_u32 v{wrh}, 0x10000, v{wrl}
    v_add_u32 v{vT}, -1, v23
    s_mul_i32 {sAS}, {sRB}, 192
    s_mul_i32 s70, {sFP}, 6
    s_add_u32 {sAS}, {sAS}, s70
    s_add_u32 {sAS}, {sAS}, {sFH}
    s_lshl_b32 {sAS}, {sAS}, 10
    s_add_u32 {sAS}, {sAS}, {ACT}
    s_mul_i32 s81, {sRB}, 3072
    s_lshl_b32 s71, {sFP}, 7
    s_add_u32 s81, s81, s71
    s_add_u32 s81, s81, {FL_ACT}""")
    a(f"""v_mov_b32 v{EXT}, 0
    v_mov_b32 v{EXT+1}, 0
    v_add_u32 v24, -8, v0
    v_lshrrev_b32 v25, 2, v24
    v_and_b32 v24, 3, v24
    s_and_b32 s70, {sFP}, 3
    s_mul_i32 s70, s70, 3
    v_add_u32 v25, s70, v25
    v_lshlrev_b32 v25, 3, v25
    v_lshl_add_u32 v25, v24, 1, v25
    s_lshr_b32 s70, {sFP}, 2
    v_add_u32 v25, s70, v25
    v_and_b32 v24, 7, v0
    s_and_b32 s70, {sRB}, 3
    s_lshl_b32 s70, s70, 6
    s_lshr_b32 s71, {sRB}, 2
    s_add_u32 s70, s70, s71
    v_lshl_add_u32 v24, v24, 3, s70
    v_add_u32 v26, -8, v0
    v_cmp_gt_u32 vcc, 12, v26
    v_cndmask_b32 v24, v24, v25, vcc
    v_lshlrev_b32 v{EQ}, 7, v24
    s_mul_i32 s70, {sFP}, 192
    s_lshl_b32 s71, {sFH}, 5
    s_add_u32 s70, s70, s71
    v_add_u32 v24, s70, v22
    v_lshlrev_b32 v{EQ+1}, 2, v24
    v_lshlrev_b32 v{EQ+2}, 1, v24
    s_lshl_b32 s70, {sRB}, 6
    s_lshl_b32 s71, {sTH}, 5
    s_add_u32 s70, s70, s71
    v_add_u32 v24, s70, v22
    v_lshlrev_b32 v{EQ+3}, 2, v24""")
    make_tag(a)

    wf_next = [0]
    def wfrag_alloc():
        r = WF + 4*(wf_next[0] % 6); wf_next[0] += 1; return r
    def read_w(c, j):
        slot = c % 10
        r = wfrag_alloc()
        base, off = (wrl, slot*8192) if slot < 8 else (wrh, (slot-8)*8192)
        a.ds(f"ds_read_b64_tr_b16 {v(r,2)}, v{base} offset:{off + 128*16*j}", ('w', c, j))
        a.ds(f"ds_read_b64_tr_b16 {v(r+2,2)}, v{base} offset:{off + 128*(16*j+4)}", ('w', c, j))
        return r
    def mfma1(acc, wfr, xfr, first):
        a(f"v_mfma_f32_32x32x16_bf16 {v(acc,16)}, {v(wfr,4)}, {v(xfr,4)}, {'0' if first else v(acc,16)}")

    side = []
    def run_side(n):
        for _ in range(n):
            if side: side.pop(0)()

    def mish_items(s):
        acc = accof(s)
        items = []
        for qd in range(4):
            R = [acc + 4*qd + k for k in range(4)]
            def f1(R=R):
                for k in range(4): a(f"v_mul_f32 v{T[k]}, v{c1}, v{R[k]}")
                for k in range(4): a(f"v_exp_f32 v{T[k]}, v{T[k]}")
                for k in range(4): a(f"v_add_f32 v{T[k]}, 1.0, v{T[k]}")
                for k in range(4): a(f"v_fma_f32 v{T[k]}, v{T[k]}, v{T[k]}, 1.0")
            def f2(R=R, qd=qd):
                for k in range(4): a(f"v_rcp_f32 v{T[k]}, v{T[k]}")
                for k in range(4): a(f"v_fma_f32 v{T[k]}, v{T[k]}, v{c2}, v{c3}")
                for k in range(4): a(f"v_mul_f32 v{T[k]}, v{T[k]}, v{R[k]}")
                a(f"v_cvt_pk_bf16_f32 v{OUT+2*qd}, v{T[0]}, v{T[1]}\nv_cvt_pk_bf16_f32 v{OUT+2*qd+1}, v{T[2]}, v{T[3]}")
                if qd % 2 == 1:
                    gp = qd // 2
                    a(f"s_add_u32 {sT0}, {sAS}, {2048*s}")
                    a.vmem(f"buffer_store_dwordx4 {v(OUT+4*gp,4)}, v{vAS}, {SWS}, {sT0} offen offset:{512*gp} sc1", ('act', s))
            items += [f1, f2]
        return items

    SPLIT = ("v_and_b32 v{q1}, 0xffff0000, v{q}", "v_sub_f32 v{q}, v{q}, v{q1}", "v_and_b32 v{q2}, 0xffff0000, v{q}",
             "v_sub_f32 v{q}, v{q}, v{q2}", "v_lshrrev_b32 v{q1}, 16, v{q1}", "v_lshrrev_b32 v{q}, 16, v{q}",
             "v_or_b32 v{q1}, v{q1}, v{q2}", "v_or_b32 v{q}, v{q}, v{b}", "v_and_b32 v{d0}, v{m}, v{q1}", "v_and_b32 v{d1}, v{m}, v{q}")
    SUM4 = ("v_add_f32 v{q}, v{q}, v{q1}", "v_add_f32 v{q2}, v{q2}, v{q3}", "v_add_f32 v{q}, v{q}, v{q2}")
    def ext_load():
        a(f"""v_mov_b32 v{EXT+3}, 0
        v_mov_b32 v{A0}, 0
        v_mov_b32 v{A1}, 0
        s_mov_b32 s70, {STATS}""")
        a.vmem(f"buffer_load_dword v{EXT+5}, v{EQ+3}, {SWS}, s70 offen sc1", 'ext')
        for k in range(4):
            a(f"s_mov_b32 s70, {CSUM + 6144*k}")
            for s in range(3):
                a.vmem(f"buffer_load_dword v{22+4*s+k}, v{EQ+1}, {SWS}, s70 offen offset:{256*s} sc1", 'ext')
        for s, r in enumerate((EXT+3, A0, A1)):
            a.vmem(f"global_load_short_d16_hi v{r}, v{EQ+2}, {sp('b1')} offset:{128*s}", 'ext')
    def ext_build():
        a.wait(vm=['ext'])
        B = [EXT+3, A0, A1]; D = [(EXT+2, EXT+3), (EQ, EQ+1), (EQ+2, EQ+3)]
        for tmpl in SUM4 + SPLIT:
            for s in range(3):
                q = 22 + 4*s
                a(tmpl.format(q=q, q1=q+1, q2=q+2, q3=q+3, b=B[s], d0=D[s][0], d1=D[s][1], m=vT))
        a(f"""v_and_b32 v{c3}, 0xffff0000, v{EXT+5}
        s_mov_b32 s70, 0x01000100
        v_perm_b32 v{EXT+4}, v{EXT+5}, v{EXT+5}, s70
        v_rcp_f32 v{c3}, v{c3}
        v_mul_f32 v{c1}, {LOG2E}, v{c3}
        v_mul_f32 v{c2}, -2.0, v{c3}""")
    def ext_mfma(s):
        acc = accof(s)
        if s: a(f"v_mov_b32 v{EXT+2}, v{EQ+2*s-2}\nv_mov_b32 v{EXT+3}, v{EQ+2*s-1}")
        a(f"v_mfma_f32_32x32x16_bf16 {v(acc,16)}, {v(EXT,4)}, {v(EXT+2,4)}, {v(acc,16)}")

    G2A = XF; NA = 12
    G2W = XF + 96
    G2ACC = WF
    G2X = XF + 136
    G2M = XF + 146
    vA0, vA1, vD2, w2l, w2h, vO = vX0, vX1, xr[0], xr[1], xr[2], xr[3]
    sA2, sW2, sM2 = "s72", "s73", "s74"
    def g2_setup_a():
        a(f"""v_lshlrev_b32 v{vA0}, 4, v0
        s_lshl_b32 s70, {sTH}, 1
        s_add_u32 s71, s70, {sFH}
        s_mul_i32 s71, s71, 49152
        s_xor_b32 s76, {sFH}, 1
        s_add_u32 s70, s70, s76
        s_mul_i32 s70, s70, 49152
        s_lshl_b32 s76, {sFH}, 10
        s_add_u32 s70, s70, s76
        s_add_u32 s71, s71, s76
        s_mul_i32 {sM2}, {sW}, 2560
        v_add_u32 v{vD2}, {sM2}, v{vA0}
        v_add_u32 v{vA1}, s70, v{vA0}
        v_add_u32 v{vA0}, s71, v{vA0}
        s_mul_i32 {sA2}, {sRB}, {192*1024}
        s_add_u32 {sA2}, {sA2}, {ACT}
        s_mul_i32 {sW2}, {sFP}, 245760
        s_add_u32 {sW2}, {sW2}, {W2P}""")
    def g2_setup_b():
        t0, t1 = A0, A1
        a(f"""v_lshrrev_b32 v{t0}, 5, v0
        v_lshlrev_b32 v{t0}, 4, v{t0}
        v_lshrrev_b32 v{t1}, 2, v0
        v_and_b32 v{t1}, 7, v{t1}
        v_add_u32 v{t0}, v{t0}, v{t1}
        s_lshl_b32 s70, {sFH}, 5
        v_add_u32 v{t0}, s70, v{t0}
        v_mul_u32_u24 v{t0}, 160, v{t0}
        v_and_b32 v{t1}, 3, v0
        v_lshl_add_u32 v{w2l}, v{t1}, 3, v{t0}
        v_add_u32 v{w2h}, 71680, v{w2l}
        s_lshl_b32 s70, {sTH}, 1
        s_add_u32 s70, s70, {sFH}
        s_lshl_b32 s70, s70, 4
        s_lshl_b32 s71, {sRB}, 6
        s_add_u32 s70, s70, s71
        v_and_b32 v{t0}, 15, v0
        v_add_u32 v{t0}, s70, v{t0}
        v_mul_u32_u24 v{t0}, 0x500, v{t0}
        v_lshrrev_b32 v{t1}, 4, v0
        v_lshl_add_u32 v{t0}, v{t1}, 3, v{t0}
        s_mul_i32 s70, {sFP}, 160
        v_add_u32 v{vO}, s70, v{t0}""")
    def st_sp(sg): return sg // 8, sg % 8
    def dma_w2_piece(sg, h):
        s2, p = st_sp(sg)
        if h == 0:
            a(f"""s_add_u32 m0, {sM2}, {(sg % 8)*10240}
            s_add_u32 {sSO}, {sW2}, {(192*p + 64*s2)*160}""")
        if h == 2: a("s_mov_b64 exec, 0xffffffff")
        a.vmem(f"buffer_load_dwordx4 v{vD2}, {SWS}, {sSO} offen offset:{1024*h} sc1 lds", ('d2', sg))
        if h == 2: a("s_mov_b64 exec, -1")
    def load_act(sg):
        s2, p = st_sp(sg)
        r = G2A + 8*(sg % NA)
        a(f"s_add_u32 {sT0}, {sA2}, {(6*p + 2*s2)*1024}")
        a.vmem(f"buffer_load_dwordx4 {v(r,4)}, v{vA0}, {SWS}, {sT0} offen sc1", ('a2', sg))
        a.vmem(f"buffer_load_dwordx4 {v(r+4,4)}, v{vA1}, {SWS}, {sT0} offen sc1", ('a2', sg))
    def pregs(s2): return [(XF, XF+1), (XF+94, XF+95), (G2M+4, G2M+5)][s2]
    def pa_ld(s2):
        pv, pa = pregs(s2)
        return f"buffer_load_dword v{pv}, v{pa}, {SWS}, s{78+s2} offen sc1"
    def poll_act_issue(s2):
        pv, pa = pregs(s2)
        a(f"""v_and_b32 v{pa}, 7, v0
        v_lshlrev_b32 v{pa}, 7, v{pa}
        s_mul_i32 s{78+s2}, {sRB}, 3072
        s_add_u32 s{78+s2}, s{78+s2}, {FL_ACT + 1024*s2}""")
        w0_issue(pa_ld(s2), ('pa', s2))
    def poll_act_check(s2):
        w0_check(pa_ld(s2), [pregs(s2)[0]], ('pa', s2))
    def w0_issue(ld, tag):
        L = a.label("Lw0")
        a(f"s_cmp_lg_u32 {sW}, 0\ns_cbranch_scc1 {L}")
        a(ld)
        a(f"{L}:")
        a.vm.append(('VIRT', tag))
    def w0_check(ld, regs, tag):
        L = a.label("Lw0")
        a(f"s_cmp_lg_u32 {sW}, 0\ns_cbranch_scc1 {L}")
        q = list(a.vm); d = dict(a.done)
        a.wait(vm=[('VIRT', tag)])
        a.vm[:] = [t for t in q if t != ('VIRT', tag)]; a.done.clear(); a.done.update(d)
        spin(a, ld, cmpn(regs))
        a(f"{L}:")
    flagged = set(); act_age = {}
    def pre_barrier(tags, lg="all"):
        tags = list(tags)
        for ss in range(3):
            if ss in flagged: continue
            if a.vm.count(('act', ss)) + a.done.get(('act', ss), 0) == 2:
                act_age[ss] = act_age.get(ss, 0) + 1
                if act_age[ss] >= ACT_DELAY: tags.append(('act', ss))
        a.wait(vm=tags, lg=lg)
        a("s_barrier")
        for ss in range(3):
            if ss not in flagged and a.done.get(('act', ss), 0) == 2:
                a(f"s_add_u32 s70, s81, {1024*ss}")
                flag_store(a, "s70", A0, A1, ('fl', ss)); flagged.add(ss)

    steps = [(s, kc) for s in range(3) for kc in range(10)]
    next_dma = 10; w2_issued = 0; act_issued = 0
    pend = []
    for si, (s, kc) in enumerate(steps):
        cw = 2*kc + 1 if s == 0 else 10 + 10*s + kc
        pre_barrier([('c', cw)], lg=())
        if (DIAG == 1 and (s, kc) in ((0, 0), (1, 0), (1, 4), (2, 0))) or (DIAG == 2 and s == 1 and kc < 9) or (DIAG == 3 and s == 2 and kc != 0) or (DIAG == 5 and s == 0 and kc < 9): stamp(a, f'g1 {s},{kc}', True)
        dq = []
        if si >= 2:
            nrel = 2 if (s == 0 or (s == 1 and kc <= 1)) else 1
            for _ in range(nrel):
                if next_dma < 40:
                    dq += [(dma_half, next_dma, 0), (dma_half, next_dma, 1)]; next_dma += 1
        if s == 2 and kc >= 4:
            while w2_issued < 8 and -(-10240*(w2_issued+1)//8192) <= kc - 1:
                dq += [(dma_w2_piece, w2_issued, h) for h in range(3)]; w2_issued += 1
        def dma_some(n):
            for _ in range(n):
                if dq:
                    f, x1, x2 = dq.pop(0); f(x1, x2)
        prev = pend; pend = []
        acc = accof(s)
        xf = XF + 16*kc
        hi = (s == 0 and (2*kc) % 10 == 8)
        if hi:
            for j in range(4): a(f"v_add_u32 v{xr[j]}, 0x10000, v{xr[j]}")
        def rd(j):
            r = read_w(cw, j)
            if s == 0:
                slot = (2*kc) % 10
                off = slot*8192 if slot < 8 else (slot-8)*8192
                a.ds(f"ds_read_b128 {v(xf+4*j,4)}, v{xr[j]} offset:{off}", ('w', cw, j))
            pend.append((acc, r, xf + 4*j, kc == 0 and j == 0, ('w', cw, j)))
        def mf():
            if prev:
                m = prev.pop(0); a.wait(lg=[m[4]]); mfma1(*m[:4])
        per = -(-len(dq)//4)
        rd(0); rd(1)
        mf(); dma_some(per)
        mf(); rd(2); rd(3); dma_some(per)
        if hi:
            for j in range(4): a(f"v_add_u32 v{xr[j]}, 0xffff0000, v{xr[j]}")
        run_side(1)
        mf(); dma_some(per)
        run_side(2)
        mf(); dma_some(per)
        lds_ = f"buffer_load_dword v{A0}, v{EQ}, {SWS}, s75 offen sc1"
        ldw = f"v_lshlrev_b32 v24, 7, v0\nbuffer_load_dword v22, v24, {SWS}, s76 offen sc1\nbuffer_load_dword v23, v24, {SWS}, s77 offen sc1"
        ldw2 = ldw.replace("v24", f"v{XF+2}").replace("v22", f"v{XF+3}").replace("v23", f"v{XF+4}")
        if (s, kc) == (1, 0): g2_setup_a(); g2_setup_b()
        if (s, kc) == (1, S1-2):
            a(f"s_mov_b32 s75, {FL_S}")
            w0_issue(lds_, 'ps')
        if (s, kc) == (1, S1): w0_check(lds_, [A0], 'ps')
        if (s, kc) == (1, S1+1): ext_load()
        if (s, kc) == (1, S1+3):
            ext_build(); ext_mfma(0); side.extend(mish_items(0))
        if (s, kc) == (2, 0):
            run_side(100); ext_mfma(1); side.extend(mish_items(1))
        if (s, kc) == (2, 1):
            a(f"""s_mov_b32 s76, {FL_AUX + 96*128}
            s_mov_b32 s77, {FL_AUX + 160*128}""")
            w0_issue(ldw2, 'pw')
        if (s, kc) == (2, 3): w0_check(ldw2, [XF+3, XF+4], 'pw')
        if (s, kc) == (2, C0-2): poll_act_issue(0)
        if (s, kc) == (2, C0): poll_act_check(0)
        if s == 2 and kc > C0:
            n = min(8, 3*(kc-C0))
            while act_issued < n: load_act(act_issued); act_issued += 1

    a2pend = []
    XA = G2M + 8 - 10 + 10
    for sg in range(24):
        pre_barrier([('d2', sg), ('a2', sg)])
        if (DIAG == 1 and sg in (0, 8, 16, 23)) or (DIAG == 4 and sg < 9): stamp(a, f'g2 {sg}')
        dq = []
        if sg == 0:
            while w2_issued < 8:
                dq += [(w2_issued, h) for h in range(3)]; w2_issued += 1
        elif w2_issued < 24:
            dq += [(w2_issued, h) for h in range(3)]; w2_issued += 1
        wb = G2W + 20*(sg % 2)
        slot = sg % 8
        base, off = (w2l, slot*10240) if slot < 7 else (w2h, 0)
        prev = a2pend; a2pend = []
        if sg == 0:
            run_side(100)
            for m in pend:
                mfma1(*m[:4])
                if dq: dma_w2_piece(*dq.pop(0))
            pend = []
            ext_mfma(2)
            side.extend(mish_items(2))
        for dt in range(5):
            a.ds(f"ds_read_b64_tr_b16 {v(wb+4*dt,2)}, v{base} offset:{off + 32*dt}", ('w2', sg))
            a.ds(f"ds_read_b64_tr_b16 {v(wb+4*dt+2,2)}, v{base} offset:{off + 32*dt + 1280}", ('w2', sg))
            for _ in range(2):
                if prev: a(prev.pop(0))
            if dq: dma_w2_piece(*dq.pop(0))
            if dt in (0, 1, 2, 3): run_side(1)
        while dq: dma_w2_piece(*dq.pop(0))
        for dt in range(5):
            for tau in range(2):
                accr = G2ACC + 20*tau + 4*dt
                a2pend.append(f"v_mfma_f32_16x16x32_bf16 {v(accr,4)}, {v(wb+4*dt,4)}, {v(G2A+8*(sg%NA)+4*tau,4)}, {'0' if sg == 0 else v(accr,4)}")
        if sg >= 1:
            lim = min(sg + NA, 8 if sg <= C1 else 16 if sg <= C2 else 24, act_issued + 2)
            while act_issued < lim: load_act(act_issued); act_issued += 1
        if sg == C1 - 2: poll_act_issue(1)
        if sg == C1: poll_act_check(1)
        if sg == C2 - 2: poll_act_issue(2)
        if sg == C2: poll_act_check(2)
        if sg == 4:
            for dt in range(5):
                a.vmem(f"buffer_load_dwordx2 {v(G2X+2*dt,2)}, v{vO}, {SX}, 0 offen offset:{32*dt}", 'xfin')
        PV = G2M + 6
        ypoll = f"buffer_load_dword v{PV}, v{PV+1}, {SWS}, s75 offen sc1"
        if sg == 17:
            a(f"""v_and_b32 v{PV+1}, 31, v0
            v_lshlrev_b32 v{PV+1}, 7, v{PV+1}
            s_lshl_b32 s75, {sFP}, 12
            s_add_u32 s75, s75, {FL_Y}
            s_mul_i32 s70, {sW}, 160
            v_add_u32 v22, s70, v0
            v_lshrrev_b32 v23, 3, v22
            s_mul_i32 s70, {sFP}, 80
            v_add_u32 v23, s70, v23
            v_lshlrev_b32 v23, 12, v23
            v_and_b32 v22, 7, v22
            v_lshl_add_u32 v22, v22, 4, v23
            v_add_u32 v23, {32768-1024}, v22
            v_add_u32 v24, {65536-2048}, v22
            s_lshl_b32 s76, {sRB}, 7
            s_add_u32 s76, s76, {AT}
            v_lshrrev_b32 v25, 2, v0
            v_lshlrev_b32 v25, 7, v25
            v_and_b32 v26, 3, v0
            v_lshl_add_u32 v25, v26, 3, v25
            s_lshl_b32 s70, {sTH}, 1
            s_add_u32 s70, s70, {sFH}
            s_lshl_b32 s70, s70, 5
            v_add_u32 v25, s70, v25
            s_mul_i32 s70, {sW}, 5120
            s_xor_b32 s71, {sW}, 2
            s_mul_i32 s71, s71, 5120
            v_lshlrev_b32 v26, 4, v0
            v_add_u32 v27, s71, v26
            v_add_u32 v26, s70, v26""")
        if sg == 19: a.vmem(ypoll, 'py')
        def dma_at(tagit=True):
            f = a.vmem if tagit else (lambda t, g: a(t))
            a(f"s_mov_b32 m0, {sM2}")
            f(f"buffer_load_dwordx4 v22, {SWS}, s76 offen sc1 lds", 'at')
            f(f"buffer_load_dwordx4 v23, {SWS}, s76 offen offset:1024 sc1 lds", 'at')
            a("s_mov_b64 exec, 0xffffffff")
            f(f"buffer_load_dwordx4 v24, {SWS}, s76 offen offset:2048 sc1 lds", 'at')
            a("s_mov_b64 exec, -1")
        if sg == 21:
            a.wait(vm=['py'])
            a(cmpn([PV]))
            a("s_cselect_b32 s77, 1, 0")
            dma_at()
    a.wait(lg="all")
    for m in [m for i, m in enumerate(a2pend) if i % 2 == 1]: a(m)
    for m in [m for i, m in enumerate(a2pend) if i % 2 == 0]: a(m)
    for dt in range(5): a(f"ds_write_b128 v26, {v(G2ACC+20+4*dt,4)} offset:{10240+1024*dt}")
    L = a.label("Lyok")
    a(f"""s_cmp_eq_u32 s77, 1
    s_cbranch_scc1 {L}
    s_waitcnt vmcnt(0)
    v_not_b32 v{PV}, {sTAG}""")
    spin(a, ypoll, cmpn([PV]))
    dma_at(False)
    a(f"{L}:")
    a("s_waitcnt vmcnt(0) lgkmcnt(0)")
    a.vm.clear(); a.lg.clear()
    a("s_barrier")
    RX = G2A; AV = G2A + 20; TT = G2W
    for dt in range(5): a.ds(f"ds_read_b64_tr_b16 {v(AV+2*dt,2)}, v25 offset:{2048*dt}", ('av', dt))
    for dt in range(5): a.ds(f"ds_read_b128 {v(RX+4*dt,4)}, v27 offset:{10240+1024*dt}", ('rx', dt))
    def unp(d, s): return f"v_lshlrev_b32 v{d}, 16, v{s}\nv_and_b32 v{d+1}, 0xffff0000, v{s}"
    for dt in range(5):
        t = TT + 8*dt
        a(unp(t, G2X+2*dt)); a(unp(t+2, G2X+2*dt+1))
    for dt in range(5):
        t = TT + 8*dt; av = AV + 2*dt
        a.wait(lg=[('av', dt)])
        a(unp(t+4, av)); a(unp(t+6, av+1))
        a(f"""v_pk_add_f32 {v(t,2)}, {v(t,2)}, {v(t+4,2)}
        v_pk_add_f32 {v(t+2,2)}, {v(t+2,2)}, {v(t+6,2)}
        v_cvt_pk_bf16_f32 v{t+4}, v{t}, v{t+1}
        v_cvt_pk_bf16_f32 v{t+5}, v{t+2}, v{t+3}""")
        a(unp(t, t+4)); a(unp(t+2, t+5))
    for dt in range(5):
        t = TT + 8*dt; k = G2ACC + 4*dt; r = RX + 4*dt
        a.wait(lg=[('rx', dt)])
        a(f"""v_pk_add_f32 {v(k,2)}, {v(k,2)}, {v(r,2)}
        v_pk_add_f32 {v(k+2,2)}, {v(k+2,2)}, {v(r+2,2)}
        v_cvt_pk_bf16_f32 v{r}, v{k}, v{k+1}
        v_cvt_pk_bf16_f32 v{r+1}, v{k+2}, v{k+3}""")
        a(unp(k, r)); a(unp(k+2, r+1))
        a(f"""v_pk_add_f32 {v(t,2)}, {v(t,2)}, {v(k,2)}
        v_pk_add_f32 {v(t+2,2)}, {v(t+2,2)}, {v(k+2,2)}
        v_cvt_pk_bf16_f32 v{t+4}, v{t}, v{t+1}
        v_cvt_pk_bf16_f32 v{t+5}, v{t+2}, v{t+3}
        buffer_store_dwordx2 {v(t+4,2)}, v{vO}, {S4}, 0 offen offset:{32*dt}""")
    if DIAG: a("s_waitcnt vmcnt(0)")
    if DIAG == 1: stamp(a, 'end')
    stamp_flush(a, 22)
    a("s_endpgm")

UPAD = 448
UCS  = 4640
USTR = 4*UCS
KB0  = 3*USTR
K1OFF = 4224
KSTR = 2*K1OFF
CVOFF = 16
UIN = 200
def u_issue(a):
    a(f"""v_lshlrev_b32 v224, 4, v0
    s_lshl_b32 s70, {sW}, 10
    v_add_u32 v224, s70, v224
    v_lshlrev_b32 v225, 1, v224
    s_mov_b32 s70, {STATS}
    buffer_load_dwordx4 {v(UIN,4)}, v225, {SWS}, s70 offen sc1
    buffer_load_dwordx4 {v(UIN+4,4)}, v225, {SWS}, s70 offen offset:16 sc1""")
    for c, sch in enumerate(("s58", "s59", "s61")):
        a(f"""s_lshl_b32 s70, {sch}, 12
        s_add_u32 s70, s70, {XNT}
        buffer_load_dwordx4 {v(UIN+8+4*c,4)}, v224, {SWS}, s70 offen sc1""")

def ssm(a):
    sI = "s54"
    a(f"""Lssm:
    s_setprio {os.environ.get('PS','0')}
    s_mov_b32 {sI}, s2
    s_lshr_b32 s56, {sI}, 1
    s_mul_i32 s56, s56, 5
    s_and_b32 s57, {sI}, 1
    s_mul_i32 s58, s57, 3
    s_add_u32 s58, s58, s56
    s_add_u32 s59, s58, 1
    s_add_u32 s61, s56, 2""")
    for c, sch in enumerate(("s58", "s59", "s61")):
        a(f"""s_lshl_b32 s70, {sch}, 1
        v_mov_b32 v10, s70
        v_mov_b32 v{253+c}, 0
        global_load_short_d16_hi v{253+c}, v10, {sp('D')}""")
    a(f"""s_cmp_eq_u32 {sW}, 3
    s_cbranch_scc1 Laux""")
    kgen(a)
    a("s_branch Lconv")
    aux(a)
    conv(a)

def kgen(a):
    sCH, sKB = "s55", "s68"
    a(f"""s_cmp_eq_u32 {sW}, 0
    s_cselect_b32 {sCH}, s58, s59
    s_cmp_eq_u32 {sW}, 2
    s_cselect_b32 {sCH}, s61, {sCH}
    s_mul_i32 {sKB}, {sW}, {USTR}
    s_mul_i32 s70, {sCH}, 384
    v_lshlrev_b32 v1, 1, v0
    v_add_u32 v1, s70, v1
    s_lshl_b32 s70, {sCH}, 1
    v_mov_b32 v2, s70""")
    PR = 8
    names = ['Are', 'Aim', 'Bre', 'Bim', 'Cre', 'Cim']
    a("v_mov_b32 v3, 0")
    for r in range(PR, PR+18): a(f"v_mov_b32 v{r}, 0")
    TLBW = TLB
    a.vmem(f"global_load_short_d16_hi v3, v2, {sp('ldt')}", 'ldt')
    for g in range(3):
        for k, n in enumerate(names):
            a.vmem(f"global_load_short_d16_hi v{PR+6*g+k}, v1, {sp(n)} offset:{128*g}", ('par', g))
    a(f"""    s_mov_b32 m0, {sKB}
    v_and_b32 v6, 15, v0
    v_mul_u32_u24 v7, 288, v6
    v_lshrrev_b32 v4, 4, v0
    v_lshl_add_u32 v7, v4, 4, v7
    v_add_u32 v7, {sKB}, v7""")
    if TLB:
        a(f"""v_and_b32 v26, 7, v0
        v_lshlrev_b32 v26, 21, v26
        v_mov_b32 v27, 0
        s_mov_b64 exec, 0xff""")
        a.vmem(f"buffer_load_dword v28, v26, {SWS}, 0 offen offset:512", 'touch')
        a("s_mov_b64 exec, 1")
        for n in ('w2', 'out', 'b1'): a.vmem(f"global_load_dword v29, v27, {sp(n)}", 'touch')
        a("s_mov_b64 exec, -1")
    if TOUCH:
        a(f"""s_mul_i32 s70, {sW}, 80
        v_add_u32 v26, s70, v0
        v_add_u32 v27, 64, v26
        s_add_u32 s70, s70, 79
        v_min_u32 v27, s70, v27
        s_lshr_b32 s71, s2, 3
        s_mul_i32 s71, s71, {20*3072}
        s_and_b32 s70, s2, 1
        s_mul_i32 s70, s70, 1536
        s_add_u32 s71, s71, s70""")
        for r in (26, 27):
            a(f"""v_mul_u32_u24 v28, 5462, v{r}
            v_lshrrev_b32 v28, 16, v28
            v_mul_u32_u24 v29, 12, v28
            v_sub_u32 v29, v{r}, v29
            v_mul_u32_u24 v28, 0xc00, v28
            v_lshl_add_u32 v28, v29, 7, v28""")
            a.vmem(f"buffer_load_dword v{r}, v28, {SW1}, s71 offen", 'touch')
    make_tag(a)
    stamp_reset(1)
    a.wait(vm=['ldt'])
    stamp(a, 'ldt', True)
    a(f"""v_mul_f32 v4, {LOG2E}, v3
    s_mov_b32 s70, {LOG2E}
    v_fma_f32 v5, v3, s70, -v4
    v_fmac_f32 v5, 0x32A57060, v3
    v_exp_f32 v4, v4
    v_mul_f32 v5, 0x3F317218, v5
    v_fmac_f32 v4, v4, v5
    v_cvt_pk_bf16_f32 v4, v4, v4
    v_and_b32 v3, 0xffff0000, v4""")
    R = {r: 30 + 2*(r-1) for r in range(1, 8)}
    V = {b: 44 + 2*(b-1) for b in range(1, 16)}
    Wr, Pa, Pb = 74, 76, 78
    U = [80 + 2*i for i in range(8)]
    CVT = [96 + i for i in range(8)]
    zr, th = 104, 105
    FR = 112
    KACC = 176
    cv = [0]
    def p2(r): return f"v[{r}:{r+1}]"
    def cmuls(lst):
        for D, X, Y in lst:
            a(f"v_pk_mul_f32 {p2(D)}, {p2(X)}, {p2(Y)} op_sel:[0,0] op_sel_hi:[0,1]")
        for D, X, Y in lst:
            a(f"v_pk_fma_f32 {p2(D)}, {p2(X)}, {p2(Y)}, {p2(D)} op_sel:[1,1,0] op_sel_hi:[1,0,1] neg_lo:[1,0,0]")
    def emit(rows_regs, neg=False):
        ts = []
        for row, r in rows_regs:
            t = CVT[cv[0] % 8]; cv[0] += 1; ts.append((row, t))
            a(f"v_cvt_pk_bf16_f32 v{t}, v{r}, {'-' if neg else ''}v{r+1}")
        for row, t in ts:
            a(f"ds_write_addtid_b32 v{t} offset:{288*row}")
    for r in range(12): a(f"v_mov_b32 v{KACC+r}, 0")
    a.wait(vm=[('par', 2)])
    a("s_mov_b32 s69, 3\nLkg:")
    a.vm.clear()
    q = PR
    a(f"""v_mul_f32 v{zr}, v3, v{q}
    v_mul_f32 v{th}, v3, v{q+1}
    v_mul_f32 v{q+2}, v3, v{q+2}
    v_mul_f32 v{q+3}, v3, v{q+3}
    v_mul_f32 v{zr}, {LOG2E}, v{zr}
    v_mul_f32 v{th}, 0.15915494, v{th}""")
    dst = [(R[1], None), (V[1], 0x41000000), (Wr, 0x43000000)]
    for k, (d, mulc) in enumerate(dst):
        e, ph = U[k], U[k]+1
        if mulc is None:
            a(f"v_exp_f32 v{e}, v{zr}\nv_fract_f32 v{ph}, v{th}")
        else:
            a(f"v_mul_f32 v{e}, {mulc}, v{zr}\nv_mul_f32 v{ph}, {mulc}, v{th}\nv_exp_f32 v{e}, v{e}\nv_fract_f32 v{ph}, v{ph}")
    for k, (d, mulc) in enumerate(dst):
        a(f"v_cos_f32 v{d}, v{U[k]+1}\nv_sin_f32 v{d+1}, v{U[k]+1}")
    cmuls([(Pa, q+4, q+2)])
    for k, (d, mulc) in enumerate(dst):
        a(f"v_mul_f32 v{d}, v{d}, v{U[k]}\nv_mul_f32 v{d+1}, v{d+1}, v{U[k]}")
    for k in range(0, 12, 2): a(f"v_pk_mul_f32 {p2(q+k)}, {p2(q+6+k)}, 1.0 op_sel_hi:[1,0]")
    a(f"v_mov_b32 v{CVT[7]}, 0x3f80")
    a(f"ds_write_addtid_b32 v{CVT[7]} offset:{288*41}")
    cmuls([(R[2], R[1], R[1]), (V[2], V[1], V[1]), (Pb, Pa, Wr)])
    emit([(0, Pa), (8, Pb)]); emit([(42, V[1]), (43, V[2])], neg=True)
    cmuls([(R[3], R[2], R[1]), (R[4], R[2], R[2]), (V[3], V[2], V[1]), (V[4], V[2], V[2]),
           (U[0], Pa, R[1]), (U[1], Pa, R[2]), (U[2], Pb, R[1]), (U[3], Pb, R[2])])
    emit([(1, U[0]), (2, U[1]), (9, U[2]), (10, U[3])]); emit([(44, V[3]), (45, V[4])], neg=True)
    cmuls([(R[5], R[4], R[1]), (R[6], R[4], R[2]), (R[7], R[4], R[3]),
           (V[5], V[4], V[1]), (V[6], V[4], V[2]), (V[7], V[4], V[3]), (V[8], V[4], V[4]),
           (U[0], Pa, R[3]), (U[1], Pa, R[4]), (U[2], Pb, R[3]), (U[3], Pb, R[4])])
    emit([(3, U[0]), (4, U[1]), (11, U[2]), (12, U[3])]); emit([(41+b, V[b]) for b in (5, 6, 7, 8)], neg=True)
    cmuls([(U[0], Pa, R[5]), (U[1], Pa, R[6]), (U[2], Pa, R[7]), (U[3], Pb, R[5]), (U[4], Pb, R[6]), (U[5], Pb, R[7])]
          + [(V[8+b], V[8], V[b]) for b in range(1, 8)] + [(U[6], Wr, Wr), (U[7], Pb, Wr)])
    W2, P2 = U[6], U[7]
    emit([(5, U[0]), (6, U[1]), (7, U[2]), (13, U[3]), (14, U[4]), (15, U[5])])
    cmuls([(Pa, Pb, W2), (U[0], P2, R[2]), (U[1], P2, R[4]), (U[2], P2, R[6])])
    cmuls([(Pb, P2, W2)])
    emit([(41+8+b, V[8+b]) for b in range(1, 8)], neg=True)
    emit([(16, P2), (17, U[0]), (18, U[1]), (19, U[2])])
    Pc, Pd = V[9], V[10]
    cmuls([(Pc, Pa, W2), (Pd, Pb, W2), (U[0], Pa, R[2]), (U[1], Pa, R[4]), (U[2], Pa, R[6]), (U[3], Pb, R[4])])
    emit([(20, Pa), (21, U[0]), (22, U[1]), (23, U[2]), (24, Pb), (25, U[3])])
    cmuls([(Pa, Pc, W2), (Pb, Pd, W2), (U[0], Pc, R[4]), (U[1], Pd, R[4])])
    emit([(26, Pc), (27, U[0]), (28, Pd), (29, U[1])])
    cmuls([(Pc, Pa, W2), (Pd, Pb, W2), (U[0], Pa, R[4]), (V[11], W2, W2)])
    emit([(30, Pa), (31, U[0]), (32, Pb)])
    W4 = V[11]
    cmuls([(Pa, Pc, W2), (U[0], Pb, W4), (U[1], Pc, W4), (U[2], Pd, W4)])
    emit([(33, Pc), (34, Pd)])
    cmuls([(U[3], Pa, W4), (U[4], U[0], W4)])
    emit([(35, Pa), (36, U[0]), (37, U[1]), (38, U[2])])
    emit([(39, U[3]), (40, U[4])])
    a("s_waitcnt lgkmcnt(0)")
    for ks in range(4):
        a.ds(f"ds_read_b128 {v(FR+16*ks+12,4)}, v7 offset:{288*41 + 64*ks}", ('fr', ks))
        for m in range(3):
            a.ds(f"ds_read_b128 {v(FR+16*ks+4*m,4)}, v7 offset:{288*16*m + 64*ks}", ('fr', ks))
    for ks in range(4):
        a.wait(lg=[('fr', ks)])
        for m in range(3):
            a(f"v_mfma_f32_16x16x32_bf16 {v(KACC+4*m,4)}, {v(FR+16*ks+4*m,4)}, {v(FR+16*ks+12,4)}, {v(KACC+4*m,4)}")
    a("""s_sub_u32 s69, s69, 1
    s_cmp_lg_u32 s69, 0
    s_cbranch_scc1 Lkg""")
    stamp(a, 'tables', True)
    go_wait(a, 20)
    u_issue(a)
    stamp(a, 'aux seen', True)
    a(f"""v_lshrrev_b32 v4, 4, v0
    v_lshrrev_b32 v8, 1, v4
    v_and_b32 v9, 1, v4
    v_lshlrev_b32 v10, 8, v8
    v_lshl_add_u32 v10, v6, 4, v10
    v_lshl_add_u32 v10, v9, 3, v10
    v_add_u32 v10, {sKB}, v10
    v_lshlrev_b32 v11, 7, v4
    v_add_u32 v11, 512, v11
    v_sub_u32 v12, 3, v8
    v_lshlrev_b32 v12, v12, v6
    v_add_u32 v11, v11, v12
    v_add_u32 v11, {sKB}, v11
    v_mul_u32_u24 v12, 60, v8
    v_add_u32 v12, 4, v12
    v_add_u32 v12, v11, v12
    v_lshlrev_b32 v13, 7, v4
    v_lshl_add_u32 v13, v6, 1, v13
    v_add_u32 v13, {sKB}, v13
    v_mov_b32 v14, 0
    v_mov_b32 v15, {sKB}""")
    for i in range(6): a(f"v_cvt_pk_bf16_f32 v{16+i}, v{KACC+2*i}, v{KACC+2*i+1}")
    a(f"""ds_write_b64 v10, v[16:17] offset:{CVOFF}
    ds_write_b32 v11, v18 offset:{CVOFF}
    ds_write_b32 v12, v19 offset:{CVOFF}
    ds_write_b16 v13, v20 offset:{CVOFF+1024}
    ds_write_b16_d16_hi v13, v20 offset:{CVOFF+1024+32}
    ds_write_b16 v13, v21 offset:{CVOFF+1024+64}
    ds_write_b16_d16_hi v13, v21 offset:{CVOFF+1024+96}
    ds_write_b32 v15, v14 offset:{CVOFF-4}
    v_and_b32 v8, 31, v0
    v_lshl_add_u32 v9, v8, 4, {sKB}
    v_lshl_add_u32 v10, v8, 3, {sKB}
    v_min_u32 v11, 1, v8
    v_lshl_add_u32 v11, v11, 1, v10
    v_lshl_add_u32 v12, v0, 2, {sKB}
    v_lshl_add_u32 v13, v0, 1, {sKB}
    s_mul_i32 s69, {sW}, {KSTR}
    s_add_u32 s69, s69, {KB0}
    v_lshl_add_u32 v14, v0, 4, s69
    v_mov_b32 v40, 0
    v_mov_b32 v41, 0
    v_mov_b32 v42, 0
    v_mov_b32 v43, 0
    s_waitcnt lgkmcnt(0)
    ds_read_b128 v[16:19], v9 offset:{CVOFF}
    ds_read_b32 v20, v9 offset:{CVOFF-4}
    ds_read_b64 v[22:23], v10 offset:{CVOFF+512}
    ds_read_b32 v24, v10 offset:{CVOFF+512+8}
    ds_read_u16 v25, v11 offset:{CVOFF+512-2}
    ds_read_b32 v26, v12 offset:{CVOFF+768}
    ds_read_b32 v27, v12 offset:{CVOFF+768+4}
    ds_read_u16 v28, v13 offset:{CVOFF+1024}
    ds_read_u16 v60, v13 offset:{CVOFF+1024+2}
    ds_read_u16 v29, v13 offset:{CVOFF+1024+128}
    ds_read_u16 v61, v13 offset:{CVOFF+1024+130}
    s_mov_b32 s70, 0xffff
    s_mov_b32 s71, 0x01000100
    s_mov_b32 s72, 0x03020302
    s_mov_b32 s75, 0x05040100
    v_and_b32 v30, 1, v0
    v_mul_u32_u24 v31, 0x0404, v30
    v_lshlrev_b32 v30, 16, v31
    v_add_u32 v30, 0x01000504, v30
    v_add_u32 v31, 0x01000100, v31
    s_mov_b64 exec, 0xff
    ds_write_b128 v14, v[40:43]
    ds_write_b128 v14, v[40:43] offset:{K1OFF}
    s_mov_b64 exec, 0xffffffff
    s_waitcnt lgkmcnt(2)
    v_alignbit_b32 v32, v19, v19, 16
    v_alignbit_b32 v33, v18, v18, 16
    v_alignbit_b32 v34, v17, v17, 16
    v_alignbit_b32 v35, v16, v16, 16
    v_bfi_b32 v36, s70, v19, v18
    v_bfi_b32 v37, s70, v18, v17
    v_bfi_b32 v38, s70, v17, v16
    v_bfi_b32 v39, s70, v16, v20
    ds_write_b128 v14, v[32:35] offset:{K1OFF+128}
    ds_write_b128 v14, v[36:39] offset:128
    v_bfi_b32 v44, s70, v24, v23
    v_perm_b32 v45, v23, v23, s71
    v_bfi_b32 v46, s70, v23, v22
    v_perm_b32 v47, v22, v22, s71
    v_alignbit_b32 v48, v23, v23, 16
    v_mov_b32 v49, v45
    v_alignbit_b32 v50, v22, v22, 16
    v_perm_b32 v51, v25, v22, s75
    ds_write_b128 v14, v[44:47] offset:{K1OFF+128+512}
    ds_write_b128 v14, v[48:51] offset:{128+512}
    s_mov_b64 exec, -1
    v_perm_b32 v64, v27, v27, s71
    v_perm_b32 v65, v26, v26, s72
    v_alignbit_b32 v66, v26, v26, 16
    v_perm_b32 v67, v26, v26, s71
    v_bfi_b32 v68, s70, v27, v26
    v_mov_b32 v69, v65
    v_mov_b32 v70, v67
    v_mov_b32 v71, v67
    ds_write_b128 v14, v[64:67] offset:{K1OFF+128+1024}
    ds_write_b128 v14, v[68:71] offset:{128+1024}""")
    for k, src in enumerate((28, 29)):
        b = 72 + 8*k; s1 = 60 + k
        a(f"""v_perm_b32 v{b}, v{s1}, v{s1}, s71
        v_perm_b32 v{b+1}, v{s1}, v{src}, v30
        v_perm_b32 v{b+2}, v{src}, v{src}, s71
        v_perm_b32 v{b+5}, v{s1}, v{src}, v31
        v_mov_b32 v{b+3}, v{b+2}
        v_mov_b32 v{b+4}, v{b}
        v_mov_b32 v{b+6}, v{b+2}
        v_mov_b32 v{b+7}, v{b+2}
        ds_write_b128 v14, {v(b,4)} offset:{K1OFF+128+2048+1024*k}
        ds_write_b128 v14, {v(b+4,4)} offset:{128+2048+1024*k}""")
    a.vm.clear(); a.lg.clear()

def aux(a):
    sI = "s54"
    sX8, sJ = "s55", "s56"
    a("Laux:")
    X = 16
    TB = 56
    TB2 = 196
    TM = 96
    CS = 116
    TP = 228
    def blk_addr(sidx, sld, sst):
        a(f"""s_mul_i32 s70, {sidx}, 6554
        s_lshr_b32 s70, s70, 16
        s_mul_i32 s71, s70, 10
        s_sub_u32 s71, {sidx}, s71
        s_lshr_b32 s72, {sX8}, 1
        s_lshl_b32 s72, s72, 3
        s_add_u32 s70, s70, s72
        s_mul_i32 {sld}, s70, {64*1280}
        s_lshl_b32 s72, s71, 7
        s_add_u32 {sld}, {sld}, s72
        s_lshl_b32 {sst}, s71, 18
        s_lshl_b32 s72, s70, 7
        s_add_u32 {sst}, {sst}, s72
        s_add_u32 {sst}, {sst}, {XNT}""")
    def blk_load(base, sld):
        for r in range(8):
            a(f"buffer_load_dwordx4 {v(base+4*r,4)}, v{(2,3,6)[r//3]}, {SX}, {sld} offen offset:{(r%3)*1280}")
    def blk_store(base, sst):
        for c in range(8):
            o = TP + 4*(c % 6)
            for k in range(4):
                a(f"v_perm_b32 v{o+k}, v{base+4*(2*k+1)+c//2}, v{base+4*(2*k)+c//2}, {'s75' if c % 2 else 's74'}")
            a(f"buffer_store_dwordx4 {v(o,4)}, v7, {SWS}, {sst} offen sc1")
            if c < 7: a(f"s_add_u32 {sst}, {sst}, 4096")
    a(f"""s_and_b32 {sX8}, {sI}, 7
    s_lshr_b32 {sJ}, {sI}, 3
    s_setprio {os.environ.get('PA','1')}
    s_lshr_b32 s81, 0xfff, {sJ}
    s_and_b32 s81, s81, 1
    v_lshrrev_b32 v4, 3, v0
    v_and_b32 v5, 7, v0""")
    a(f"""s_cmp_eq_u32 s81, 0
    s_cbranch_scc1 Laux_nocs
    s_lshr_b32 s77, {sX8}, 1
    s_and_b32 s78, {sX8}, 1
    s_mul_i32 s78, s78, 12
    s_add_u32 s78, s78, {sJ}
    v_mul_u32_u24 v8, 0xc00, v4
    v_lshl_add_u32 v8, v5, 4, v8
    s_mul_i32 s72, s77, {160*3072}
    s_lshl_b32 s73, s78, 7
    s_add_u32 s72, s72, s73""")
    for n in range(20):
        a(f"buffer_load_dwordx4 {v(CS+4*n,4)}, v8, {SW1}, s72 offen")
        if n < 19: a(f"s_add_u32 s72, s72, 24576")
    a(f"""Laux_nocs:
    s_lshl_b32 s68, {sX8}, 8
    s_lshl_b32 s70, {sJ}, 3
    s_add_u32 s68, s68, s70
    s_mul_i32 s70, s68, 1280
    v_mul_u32_u24 v1, 0x500, v4
    v_lshl_add_u32 v1, v5, 4, v1""")
    for n in range(10):
        a(f"buffer_load_dwordx4 {v(X+4*n,4)}, v1, {SX}, s70 offen offset:{128*n}")
    a(f"""s_and_b32 s69, {sX8}, 1
    s_mul_i32 s69, s69, 40
    s_add_u32 s69, s69, {sJ}
    v_mul_u32_u24 v2, {8*1280}, v5
    v_lshl_add_u32 v2, v4, 4, v2
    v_add_u32 v3, {3*1280}, v2
    v_add_u32 v6, {6*1280}, v2
    v_lshlrev_b32 v7, 15, v4
    v_lshl_add_u32 v7, v5, 4, v7""")
    blk_addr("s69", "s73", "s79")
    blk_load(TB, "s73")
    a(f"""s_cmp_lt_u32 {sJ}, 24
    s_cbranch_scc1 Laux_b1
    s_add_u32 s69, s69, 8""")
    blk_addr("s69", "s73", "s80")
    blk_load(TB2, "s73")
    a("Laux_b1:")
    if TOUCH:
        a(f"""s_getpc_b64 s[62:63]
        Lpc:
        s_sub_u32 s62, s62, Lpc-{KN}
        s_subb_u32 s63, s63, 0
        v_min_u32 v8, 9, v0
        s_mul_i32 s70, {sJ}, 10
        v_add_u32 v8, s70, v8
        v_lshlrev_b32 v8, 7, v8
        v_min_u32 v8, Lend-{KN}, v8
        s_mov_b64 exec, 0x3ff
        global_load_dword v252, v8, s[62:63]
        s_mov_b64 exec, -1""")
    srd(a, 48, 'w2', 1966080)
    make_tag(a)
    a(f"""s_mov_b32 s74, 0x05040100
    s_mov_b32 s75, 0x07060302
    s_mov_b32 s70, 0x3f803f80
    v_and_b32 v8, 15, v0
    v_lshrrev_b32 v9, 1, v8
    v_and_b32 v10, 1, v8
    v_lshlrev_b32 v10, 4, v10
    v_mov_b32 v11, 0x3f80
    v_lshlrev_b32 v11, v10, v11""")
    for k in range(4):
        a(f"v_cmp_eq_u32 vcc, {k}, v9\nv_cndmask_b32 v{88+k}, 0, v11, vcc")
    a(f"""s_lshl_b32 s76, {sI}, 7
    s_cmp_eq_u32 s81, 0
    s_cbranch_scc1 Laux_nocs1
    s_waitcnt vmcnt({18+TOUCH})""")
    for n in range(20):
        a(f"v_mfma_f32_16x16x32_bf16 v[112:115], v[88:91], {v(CS+4*n,4)}, {'0' if n == 0 else 'v[112:115]'}")
    for k in range(4):
        a(f"v_add_f32_dpp v{112+k}, v{112+k}, v{112+k} row_ror:8 row_mask:0xf bank_mask:0xf")
    a(f"""v_lshrrev_b32 v9, 4, v0
    v_lshlrev_b32 v8, 5, v5
    v_lshl_add_u32 v8, v9, 4, v8
    s_lshl_b32 s72, s78, 8
    s_mul_i32 s73, s77, 6144
    s_add_u32 s72, s72, s73
    s_add_u32 s72, s72, {CSUM}
    s_mov_b64 exec, 0x00ff00ff
    buffer_store_dwordx4 v[112:115], v8, {SWS}, s72 offen sc1
    s_mov_b64 exec, -1
    s_waitcnt vmcnt({9+TOUCH})
    s_branch Laux_w
    Laux_nocs1:
    s_waitcnt vmcnt({16+TOUCH})
    s_cmp_ge_u32 {sJ}, 24
    s_cbranch_scc1 Laux_w
    s_waitcnt vmcnt({8+TOUCH})
    Laux_w:""")
    stamp_reset(1); stamp(a, 'aux loads')
    for k in range(4): a(f"v_dot2_f32_bf16 v{8+k}, v{X+k}, s70, 0")
    for k in range(4): a(f"v_dot2_f32_bf16 v{12+k}, v{X+k}, v{X+k}, 0")
    for n in range(1, 10):
        for k in range(4): a(f"v_dot2_f32_bf16 v{8+k}, v{X+4*n+k}, s70, v{8+k}")
        for k in range(4): a(f"v_dot2_f32_bf16 v{12+k}, v{X+4*n+k}, v{X+4*n+k}, v{12+k}")
    INV640 = 0x3ACCCCCD
    def red8(rs):
        for t in ("v_add_f32 v{r}, v{r}, v{r1}", "v_add_f32 v{r2}, v{r2}, v{r3}", "v_add_f32 v{r}, v{r}, v{r2}",
                  "v_add_f32_dpp v{r}, v{r}, v{r} quad_perm:[1,0,3,2] row_mask:0xf bank_mask:0xf",
                  "v_add_f32_dpp v{r}, v{r}, v{r} quad_perm:[2,3,0,1] row_mask:0xf bank_mask:0xf",
                  "v_add_f32_dpp v{r}, v{r}, v{r} row_half_mirror row_mask:0xf bank_mask:0xf",
                  "v_mul_f32 v{r}, %d, v{r}" % INV640):
            for r in rs: a(t.format(r=r, r1=r+1, r2=r+2, r3=r+3))
    red8([8, 12])
    a("""v_mul_f32 v9, v8, v8
    v_sub_f32 v12, v12, v9
    v_mul_f32 v10, 0x41800000, v12
    v_sub_f32 v8, 0, v8
    v_cmp_nle_f32 vcc, v9, v10
    s_cbranch_vccz Laux_var
    v_mov_b32 v9, v8""")
    for n in range(10):
        t = TM + 8*(n % 2)
        for k in range(4):
            a(f"v_lshlrev_b32 v{t+2*k}, 16, v{X+4*n+k}\nv_and_b32 v{t+2*k+1}, 0xffff0000, v{X+4*n+k}")
        for k in range(4): a(f"v_pk_add_f32 {v(t+2*k,2)}, {v(t+2*k,2)}, v[8:9]")
        for k in range(4):
            if n == 0 and k < 2: a(f"v_pk_mul_f32 {v(12+2*k,2)}, {v(t+2*k,2)}, {v(t+2*k,2)}")
            else: a(f"v_pk_fma_f32 {v(12+2*(k%2),2)}, {v(t+2*k,2)}, {v(t+2*k,2)}, {v(12+2*(k%2),2)}")
    red8([12])
    a(f"""Laux_var:
    v_cvt_pk_bf16_f32 v9, v12, v12
    v_and_b32 v9, 0xffff0000, v9
    v_add_f32 v9, 0x3727C5AC, v9
    v_cvt_pk_bf16_f32 v9, v9, v9
    v_and_b32 v9, 0xffff0000, v9
    v_sqrt_f32 v9, v9
    v_cvt_pk_bf16_f32 v9, v8, v9
    v_lshlrev_b32 v12, 2, v4
    s_lshl_b32 s70, s68, 2
    s_add_u32 s70, s70, {STATS}
    s_waitcnt vmcnt({TOUCH})
    s_mov_b32 exec_lo, 0x01010101
    s_mov_b32 exec_hi, 0x01010101
    buffer_store_dword v9, v12, {SWS}, s70 offen sc1
    s_mov_b64 exec, -1""")
    TQ = 116
    for c in range(8):
        for k in range(4):
            a(f"v_perm_b32 v{TQ+4*c+k}, v{TB+4*(2*k+1)+c//2}, v{TB+4*(2*k)+c//2}, {'s75' if c % 2 else 's74'}")
    a(f"""s_add_u32 s70, s76, {FL_S}
    s_waitcnt vmcnt(0)""")
    flag_store(a, "s70", 8, 9)
    for c in range(8):
        a(f"buffer_store_dwordx4 {v(TQ+4*c,4)}, v7, {SWS}, s79 offen sc1")
        if c < 7: a(f"s_add_u32 s79, s79, 4096")
    a(f"""s_cmp_lt_u32 {sJ}, 24
    s_cbranch_scc1 Laux_b2""")
    blk_store(TB2, "s80")
    a(f"""Laux_b2:
    s_add_u32 s70, s76, {FL_C}
    s_waitcnt vmcnt(0)""")
    flag_store(a, "s70", 8, 9)
    stamp(a, 'stats flag')
    RP = 116
    a(f"""s_cmp_lt_u32 {sJ}, 12
    s_cbranch_scc1 Laux_go
    s_cmp_ge_u32 {sJ}, 28
    s_cbranch_scc1 Laux_agg
    s_lshl_b32 s70, {sX8}, 4
    s_add_u32 s70, s70, {sJ}
    s_sub_u32 s70, s70, 12
    s_mul_i32 s71, s70, {12*1280}
    s_mul_i32 s77, s70, {12*160}
    s_add_u32 s77, s77, {W2P}
    v_mul_u32_u24 v8, 6554, v0
    v_lshrrev_b32 v8, 16, v8
    v_mul_u32_u24 v9, 10, v8
    v_sub_u32 v9, v0, v9
    v_mul_u32_u24 v8, 0x500, v8
    v_lshl_add_u32 v8, v9, 4, v8
    v_add_u32 v10, 64, v0
    v_mul_u32_u24 v11, 6554, v10
    v_lshrrev_b32 v11, 16, v11
    v_mul_u32_u24 v9, 10, v11
    v_sub_u32 v9, v10, v9
    v_mul_u32_u24 v11, 0x500, v11
    v_lshl_add_u32 v9, v9, 4, v11""")
    for c in range(8):
        a(f"buffer_load_dwordx4 {v(RP+8*c,4)}, v8, {S4}, s71 offen offset:{160*c}")
    a("s_mov_b32 exec_hi, 0x00ffffff")
    for c in range(8):
        a(f"buffer_load_dwordx4 {v(RP+8*c+4,4)}, v9, {S4}, s71 offen offset:{160*c}")
    a("""s_mov_b64 exec, -1
    v_lshlrev_b32 v8, 4, v0
    s_waitcnt vmcnt(0)""")
    for c in range(8):
        a(f"buffer_store_dwordx4 {v(RP+8*c,4)}, v8, {SWS}, s77 offen sc1")
        a("s_mov_b32 exec_hi, 0x00ffffff")
        a(f"buffer_store_dwordx4 {v(RP+8*c+4,4)}, v8, {SWS}, s77 offen offset:1024 sc1")
        a("s_mov_b32 exec_hi, -1")
        if c < 7: a("s_add_u32 s77, s77, 245760")
    a(f"""s_add_u32 s70, s76, {FL_AUX}
    s_waitcnt vmcnt(0)""")
    flag_store(a, "s70", 8, 9)
    a(f"""s_branch Laux_go
    Laux_agg:
    s_cmp_lg_u32 {sJ}, 31
    s_cbranch_scc1 Laux_go""")
    poll256(a, FL_C, 128, r=20, slp=1)
    a(f"""s_lshl_b32 s70, {sX8}, 7
    s_add_u32 s70, s70, {GO}""")
    flag_store(a, "s70", 8, 9)
    a(f"Laux_go:\ns_setprio {os.environ.get('PS','0')}")
    go_wait(a, 20)
    u_issue(a)

def conv(a):
    sI = "s54"
    a("Lconv:")
    stamp_reset(4); stamp(a, 'Lconv', True)
    a(f"""v_and_b32 v10, 15, v0
    v_lshrrev_b32 v11, 4, v0
    v_and_b32 v12, 1, v0
    v_lshrrev_b32 v13, 1, v10
    v_mul_u32_u24 v14, {K1OFF}, v12
    v_sub_u32 v15, v13, v11
    v_lshl_add_u32 v14, v15, 4, v14
    v_add_u32 v14, {KB0+64}, v14
    v_and_b32 v12, 3, v0
    v_mul_u32_u24 v15, {UCS}, v12
    v_lshrrev_b32 v13, 2, v10
    v_lshl_add_u32 v15, v13, 7, v15
    v_lshl_add_u32 v15, v11, 4, v15
    v_add_u32 v15, {UPAD+48}, v15
    v_lshlrev_b32 v19, 7, v13
    v_lshl_add_u32 v19, v11, 5, v19
    v_lshl_add_u32 v19, v12, 2, v19
    v_mov_b32 v4, 0
    v_mov_b32 v5, 0
    v_lshlrev_b32 v6, 3, v0
    s_mul_i32 s70, {sW}, {UCS}
    v_add_u32 v6, s70, v6
    s_waitcnt lgkmcnt(0)
    s_barrier""")
    a("s_mov_b32 exec_hi, 0x00ffffff")
    for c in range(3): a(f"ds_write_b64 v6, v[4:5] offset:{c*USTR}")
    a("s_mov_b32 exec_hi, -1")
    NM, RS, UD = 44, 52, 226
    def unp(d, s): return f"v_lshlrev_b32 v{d}, 16, v{s}\nv_and_b32 v{d+1}, 0xffff0000, v{s}"
    a("s_waitcnt vmcnt(0)")
    for k in range(8): a(f"v_and_b32 v{RS+k}, 0xffff0000, v{UIN+k}")
    for k in range(8): a(f"v_rcp_f32 v{RS+k}, v{RS+k}\nv_lshlrev_b32 v{NM+k}, 16, v{UIN+k}")
    if TOUCH:
        a(f"""v_lshlrev_b32 v252, 7, v0
        s_mov_b32 s70, {FL_AUX + 96*128}
        s_mov_b32 s71, {FL_AUX + 160*128}
        s_cmp_lg_u32 {sW}, 0
        s_cbranch_scc1 Lcv_t0
        buffer_load_dword v250, v252, {SWS}, s70 offen sc1
        buffer_load_dword v251, v252, {SWS}, s71 offen sc1
        Lcv_t0:
        s_waitcnt lgkmcnt(0)
        s_barrier""")
    else: a("s_waitcnt vmcnt(0) lgkmcnt(0)\ns_barrier")
    for c in range(3):
        x = UIN + 8 + 4*c; t = 60; ud = UD + 8*c; o = c*USTR + UPAD
        for k in range(4): a(unp(t+2*k, x+k))
        for k in range(4): a(f"v_pk_add_f32 {v(t+2*k,2)}, {v(t+2*k,2)}, {v(NM+2*k,2)}")
        for k in range(4): a(f"v_cvt_pk_bf16_f32 v{x+k}, v{t+2*k}, v{t+2*k+1}")
        for k in range(4): a(unp(t+2*k, x+k))
        for k in range(4): a(f"v_pk_mul_f32 {v(t+2*k,2)}, {v(t+2*k,2)}, {v(RS+2*k,2)}")
        for k in range(4): a(f"v_cvt_pk_bf16_f32 v{x+k}, v{t+2*k}, v{t+2*k+1}")
        a(f"""v_cvt_pk_bf16_f32 v{68+2*c}, v{t+2}, v{t+3}
        v_cvt_pk_bf16_f32 v{69+2*c}, v{t+4}, v{t+5}
        ds_write_b128 v224, {v(x,4)} offset:{o+3*UCS-16}
        ds_write_b64 v224, {v(x,2)} offset:{o+UCS-8}
        ds_write_b64 v224, {v(x+2,2)} offset:{o+UCS}
        ds_write_b32 v224, v{x} offset:{o-4}
        ds_write_b64 v224, {v(68+2*c,2)} offset:{o}
        ds_write_b32 v224, v{x+3} offset:{o+8}
        ds_write_b32 v224, v{x} offset:{o+2*UCS-12}
        ds_write_b64 v224, {v(68+2*c,2)} offset:{o+2*UCS-8}
        ds_write_b32 v224, v{x+3} offset:{o+2*UCS}""")
    for c in range(3):
        x = UIN + 8 + 4*c; t = 60; ud = UD + 8*c
        for k in range(4): a(unp(t+2*k, x+k))
        for k in range(8): a(f"v_mul_f32 v{t+k}, v{253+c}, v{t+k}")
        for k in range(4): a(f"v_cvt_pk_bf16_f32 v{76+k}, v{t+2*k}, v{t+2*k+1}")
        for k in range(4): a(unp(ud+2*k, 76+k))
    if TOUCH:
        a(f"""s_cmp_lg_u32 {sW}, 0
        s_cbranch_scc1 Lcv_t2
        s_waitcnt vmcnt(0)""")
        a(cmpn([250, 251]))
        a(f"""s_cbranch_scc0 Lcv_t2
        s_and_b32 s70, {sI}, 1
        s_mul_i32 s70, s70, {4*245760}
        s_lshr_b32 s71, {sI}, 3
        s_mul_i32 s71, s71, 30720
        s_add_u32 s70, s70, s71
        s_add_u32 s70, s70, {W2P}""")
        for n in range(4):
            if n == 3: a("s_mov_b32 exec_hi, 0xffff")
            a(f"buffer_load_dword v{250+n%2}, v252, {SWS}, s70 offen sc1")
            if n < 3: a("s_add_u32 s70, s70, 8192")
        a("s_mov_b64 exec, -1\nLcv_t2:")
    a("""s_waitcnt lgkmcnt(0)
    s_barrier""")
    stamp(a, 'u ready', True)
    YA = 20
    FS = [44, 132]
    def loop(name, parts):
        ad = [(16, 17), (8, 9)]
        tiles = [(pi, j) for pi, (c, J) in enumerate(parts) for j in J]
        acc = {t: YA + 4*k for k, t in enumerate(tiles)}
        base = []; n = 0
        for c, J in parts:
            base.append(n); n += 2*(max(J)+1)
        def reads(fs):
            out = []
            for pi, (c, J) in enumerate(parts):
                for k in range(max(J)+1):
                    out.append(f"ds_read_b128 {v(FS[fs]+4*(base[pi]+2*k),4)}, v{ad[pi][0]} offset:{512*k}")
                    out.append(f"ds_read_b128 {v(FS[fs]+4*(base[pi]+2*k+1),4)}, v{ad[pi][1]} offset:{512*k}")
                out.append(f"v_add_u32 v{ad[pi][0]}, 64, v{ad[pi][0]}")
                out.append(f"v_add_u32 v{ad[pi][1]}, -64, v{ad[pi][1]}")
            return out
        def mfmas(fs):
            rem = {t: list(range(t[1]+1)) for t in tiles}
            todo = []; last = []
            while any(rem.values()):
                cand = [t for t in tiles if rem[t] and t not in last[-GAP:]] or [t for t in tiles if rem[t] and t not in last[-1:]] or [t for t in tiles if rem[t]]
                t = max(cand, key=lambda t: len(rem[t]))
                todo.append((t, rem[t].pop(0))); last.append(t)
            return [f"v_mfma_f32_16x16x32_bf16 {v(acc[t],4)}, {v(FS[fs]+4*(base[t[0]]+2*p),4)}, {v(FS[fs]+4*(base[t[0]]+2*(t[1]-p)+1),4)}, {v(acc[t],4)}" for t, p in todo]
        for pi, (c, J) in enumerate(parts):
            if isinstance(c, str):
                a(f"s_mul_i32 s70, {c}, {KSTR}\ns_mul_i32 s71, {c}, {USTR}\nv_add_u32 v{ad[pi][0]}, s70, v14\nv_add_u32 v{ad[pi][1]}, s71, v15")
            else:
                a(f"v_add_u32 v{ad[pi][0]}, {c*KSTR}, v14\nv_add_u32 v{ad[pi][1]}, {c*USTR}, v15")
        for t in reads(0): a(t)
        for r in range(4*len(tiles)): a(f"v_mov_b32 v{YA+r}, 0")
        a(f"s_mov_b32 s64, 4\n{name}:")
        for fs in (0, 1):
            a("s_waitcnt lgkmcnt(0)")
            fill = reads(1-fs); ms = mfmas(fs)
            n = len(ms) - 4; done = 0
            for i, m in enumerate(ms):
                a(m)
                want = min(len(fill), -(-len(fill)*(i+1)//n))
                while done < want: a(fill[done]); done += 1
        a(f"""s_sub_u32 s64, s64, 1
        s_cmp_lg_u32 s64, 0
        s_cbranch_scc1 {name}
        s_waitcnt lgkmcnt(0)
        s_barrier""")
        for pi, (c, J) in enumerate(parts):
            if isinstance(c, str): a(f"s_lshl_b32 s70, {c}, 12\nv_add_u32 v{ad[pi][0]}, s70, v19")
            for j in J:
                r = acc[(pi, j)]
                off = 512*j + (0 if isinstance(c, str) else 4096*c)
                adr = ad[pi][0] if isinstance(c, str) else 19
                a(f"""v_cvt_pk_bf16_f32 v{r}, v{r}, v{r+1}
                v_cvt_pk_bf16_f32 v{r+2}, v{r+2}, v{r+3}
                ds_write_b32 v{adr}, v{r} offset:{off}
                ds_write_b32 v{adr}, v{r+2} offset:{off+16}""")
    a(f"""s_lshr_b32 s62, {sW}, 1
    s_cmp_eq_u32 {sW}, 1
    s_cbranch_scc1 Lcv_w1
    s_cmp_eq_u32 {sW}, 3
    s_cbranch_scc1 Lcv_w3""")
    loop("Lcv_l0", [("s62", [7, 6, 5, 1])])
    a("s_branch Lcv_bar2\nLcv_w1:")
    loop("Lcv_l1", [(0, [4, 3, 2, 0]), (1, [4, 3])])
    a("s_branch Lcv_bar2\nLcv_w3:\ns_cmp_eq_u32 s57, 1\ns_cbranch_scc1 Lcv_w3b")
    loop("Lcv_l3a", [(1, [2, 0]), (2, [7, 5, 2, 0])])
    a("s_branch Lcv_bar2\nLcv_w3b:")
    loop("Lcv_l3b", [(1, [2, 0]), (2, [6, 4, 3, 1])])
    a(f"""Lcv_bar2:
    s_waitcnt lgkmcnt(0)
    s_barrier""")
    stamp(a, 'conv done', True)
    for c in range(3): a.ds(f"ds_read_b128 {v(32+4*c,4)}, v224 offset:{c*4096}", ('y', c))
    a(f"""s_lshr_b32 s70, {sW}, 1
    s_xor_b32 s70, s70, s57
    s_cmp_eq_u32 s70, 0
    s_cselect_b32 s66, -1, 0
    s_cselect_b32 s67, 0, -1""")
    for c, sch in enumerate(("s58", "s59", "s61")):
        a.wait(lg=[('y', c)])
        y = 32 + 4*c; t = 48 + 8*c; ud = UD + 8*c
        for k in range(4): a(unp(t+2*k, y+k))
        for k in range(4): a(f"v_pk_add_f32 {v(t+2*k,2)}, {v(t+2*k,2)}, {v(ud+2*k,2)}")
        for k in range(4): a(f"v_cvt_pk_bf16_f32 v{y+k}, v{t+2*k}, v{t+2*k+1}")
        a(f"""s_lshl_b32 s70, {sch}, 12
        s_add_u32 s70, s70, {AT}""")
        if c == 2: a("s_mov_b64 exec, s[66:67]")
        a(f"buffer_store_dwordx4 {v(y,4)}, v224, {SWS}, s70 offen sc1")
        if c == 2: a("s_mov_b64 exec, -1")
    a("s_waitcnt vmcnt(0)")
    stamp(a, 'y stored'); stamp_flush(a, 50)
    a(f"""s_barrier
    s_cmp_eq_u32 {sW}, 1
    s_cbranch_scc1 Lcv_ep
    s_cmp_lg_u32 {sW}, 0
    s_cbranch_scc1 Lend
    s_lshl_b32 s70, {sI}, 7
    s_add_u32 s70, s70, {FL_Y}""")
    flag_store(a, "s70", 4, 5)
    a(f"""s_endpgm
    Lcv_ep:
    s_cmp_lg_u32 {sI}, 0
    s_cbranch_scc1 Lend""")
    if EXP != "nogemm": poll256(a, FL_ACT, 384, slp=8)
    poll256(a, FL_Y, 128, slp=8)
    flag_store(a, "0", 4, 5)
    a("s_endpgm")

HEADER = open(os.path.join(os.path.dirname(os.path.abspath(__file__)), "..", "cdna_kernels",
              "parallel_sum__ssm_conv_s4__dense_activation_mish__prompt.s.ref")).read().split("; Override")[0]

def build():
    a = Asm()
    prologue(a)
    gemm(a)
    a.vm.clear(); a.lg.clear()
    ssm(a)
    a("Lend:\ns_endpgm")
    body = a.finalize()
    return f"""{HEADER}; @launch grid=(512,1,1) block=(256,1,1) lds=81920
.amdgcn_target "amdgcn-amd-amdhsa--gfx950"
.text
.globl {KN}
.p2align 8
.type {KN},@function
{KN}:
{body}.section .rodata,"a"
.p2align 6
.amdhsa_kernel {KN}
  .amdhsa_next_free_vgpr 256
  .amdhsa_next_free_sgpr 102
  .amdhsa_accum_offset 256
  .amdhsa_group_segment_fixed_size 0
  .amdhsa_kernarg_size 128
  .amdhsa_user_sgpr_count 2
  .amdhsa_user_sgpr_kernarg_segment_ptr 1
  .amdhsa_system_sgpr_workgroup_id_x 1
.end_amdhsa_kernel
"""

if __name__ == "__main__":
    out = sys.argv[1] if len(sys.argv) > 1 else "k.s"
    open(out, "w").write(build())
    print("wrote", out)
```

```python
import sys, os
sys.path.insert(0, os.path.dirname(os.path.abspath(__file__)))
from asmlib import Asm

KN = "parallel_sum__ssm_conv_s4__dense_activation_mish__prompt_kernel"

FL_S   = 0x0000 + 0x8000
FL_Y   = 0x10000
FL_ACT = 0x18000
STATS  = 0x30000
CSUM   = 0x34000
FL_C   = 0x70000
FL_AUX = 0x48000 + 0x20000
GO     = 0x1000
XNT    = 0x100000
AT     = 0x400000
W2P    = 0x700000
ACT    = 0xA00000
WS_SIZE= 0x1000000
LOG2E = 0x3FB8AA3B
SPIN_MAX = int(os.environ.get('SPIN_MAX', '20000'))
ACT_DELAY = int(os.environ.get('ACT_DELAY', '5'))
DIAG = int(os.environ.get("DIAG", "0"))
EXP = os.environ.get("EXP", "")
STAMP = 0x40000
ROT = int(os.environ.get('ROT', '1'))
TOUCHW1 = int(os.environ.get('TOUCHW1', '0'))
TOUCHW2 = int(os.environ.get('TOUCHW2', '1'))
TLB = int(os.environ.get('TLB', '1'))
S1 = int(os.environ.get('S1', '4'))
C0 = int(os.environ.get('C0', '6'))
C1 = int(os.environ.get('C1', '2'))
C2 = int(os.environ.get('C2', '9'))
TOUCH = int(os.environ.get('TOUCH', '1'))
GAP = int(os.environ.get('GAP', '2'))

P = dict(x=16, Are=18, Aim=20, Bre=22, Bim=24, Cre=26, Cim=28, ldt=30, D=32, w1=36, b1=38, w2=40, out=42, dbg=44, ws=46)
def sp(n): return f"s[{P[n]}:{P[n]+1}]"
SX, SW1, SWS, S4 = "s[4:7]", "s[8:11]", "s[12:15]", "s[48:51]"
sW, sTAG = "s3", "s52"

_st = {"n": 0}
def stamp(a, name=None, wait=False):
    if not DIAG: return
    k = _st["n"]; _st["n"] += 1
    assert k < 10, k
    a(f"{'s_memtime' if os.environ.get('CYC') else 's_memrealtime'} s[{82+2*k}:{83+2*k}]")
    if wait: a("s_waitcnt lgkmcnt(0)")
def stamp_reset(n=0): _st["n"] = n
def stamp_flush(a, tmp):
    if not DIAG: return
    a("s_waitcnt lgkmcnt(0)")
    a(f"s_lshl_b32 s80, s2, 2\ns_add_u32 s80, s80, {sW}\ns_lshl_b32 s80, s80, 6\ns_add_u32 s80, s80, {STAMP}\nv_mov_b32 v{tmp+1}, 0\ns_mov_b64 exec, 1")
    for k in range(10):
        a(f"v_mov_b32 v{tmp}, s{82+2*k}\nbuffer_store_dword v{tmp}, v{tmp+1}, {SWS}, s80 offen offset:{4*k}\ns_nop 1")
    a("s_mov_b64 exec, -1")

def v(i, n=1): return f"v{i}" if n == 1 else f"v[{i}:{i+n-1}]"

def srd(a, base, ptr, size):
    a(f"""s_mov_b32 s{base}, s{P[ptr]}
    s_mov_b32 s{base+1}, s{P[ptr]+1}
    s_mov_b32 s{base+2}, {size}
    s_mov_b32 s{base+3}, 0x20000""")

def spin(a, load, cmp, scnt="s60", slp=4):
    L = a.label("Lspin"); Lok = a.label("Lok")
    a(cmp)
    a(f"s_cbranch_scc1 {Lok}")
    a(f"s_mov_b32 {scnt}, {SPIN_MAX}")
    a(f"{L}:")
    a(f"s_sleep {slp}")
    a(load)
    a("s_waitcnt vmcnt(0)")
    a(cmp)
    a(f"s_cbranch_scc1 {Lok}")
    a(f"s_sub_u32 {scnt}, {scnt}, 1")
    a(f"s_cmp_lg_u32 {scnt}, 0")
    a(f"s_cbranch_scc1 {L}")
    a(f"{Lok}:")

def cmpn(regs):
    dst = ["vcc", "s[62:63]", "s[64:65]", "s[66:67]"][:len(regs)]
    t = "\n".join(f"v_cmp_ne_u32 {d}, {sTAG}, v{r}" for d, r in reversed(list(zip(dst, regs))))
    for d in dst[1:]: t += f"\ns_or_b64 vcc, vcc, {d}"
    return t + "\ns_cmp_eq_u64 vcc, 0"

def poll256_issue(a, base, stride, r=4, s0=72):
    a(f"v_mul_u32_u24 v{r+4}, {stride}, v0")
    for n in range(4): a(f"s_mov_b32 s{s0+n}, {base + 64*stride*n}")
    ld = "\n".join(f"buffer_load_dword v{r+n}, v{r+4}, {SWS}, s{s0+n} offen sc1" for n in range(4))
    a(ld)
    return ld
def poll256(a, base, stride, slp=4, r=4):
    ld = poll256_issue(a, base, stride, r)
    a("s_waitcnt vmcnt(0)")
    spin(a, ld, cmpn([r, r+1, r+2, r+3]), slp=slp)

def go_issue(a, r, s="s75"):
    a(f"""v_mov_b32 v{r+1}, 0
    s_and_b32 {s}, s2, 7
    s_lshl_b32 {s}, {s}, 7
    s_add_u32 {s}, {s}, {GO}""")
    return f"buffer_load_dword v{r}, v{r+1}, {SWS}, {s} offen sc1"
def go_wait(a, r):
    ld = go_issue(a, r)
    a(ld); a("s_waitcnt vmcnt(0)")
    spin(a, ld, cmpn([r]), slp=3)

def flag_store(a, soff, t0, t1, track=None):
    a(f"""v_mov_b32 v{t0}, {sTAG}
    v_mov_b32 v{t1}, 0
    s_mov_b64 exec, 1""")
    txt = f"buffer_store_dword v{t0}, v{t1}, {SWS}, {soff} offen sc1"
    if track is not None: a.vmem(txt, track)
    else: a(txt)
    a("s_mov_b64 exec, -1")

def prologue(a):
    a(f"""s_cmp_ge_u32 s2, 512
    s_cbranch_scc1 Lend
    s_load_dwordx16 s[16:31], s[0:1], 0
    s_load_dwordx16 s[32:47], s[0:1], 64""")
    if DIAG:
        for k in range(82, 102): a(f"s_mov_b32 s{k}, 0")
    stamp(a, "start")
    a(f"""v_lshrrev_b32 v1, 6, v0
    v_and_b32 v0, 63, v0
    v_readfirstlane_b32 {sW}, v1
    s_waitcnt lgkmcnt(0)
    s_load_dword s53, {sp('ws')}, 0""")
    srd(a, 4, 'x', 2621440)
    srd(a, 8, 'w1', 1966080)
    srd(a, 12, 'ws', WS_SIZE)
    a("""s_cmp_lt_u32 s2, 256
    s_cbranch_scc1 Lssm""")

def make_tag(a):
    a(f"""s_waitcnt lgkmcnt(0)
    s_mul_i32 {sTAG}, s53, 0x9E3779B1
    s_add_u32 {sTAG}, {sTAG}, 0x7F4A7C15""")

def gemm(a):
    vX0, vX1, vW0, vW1 = 1, 2, 3, 4
    xr = [5, 6, 7, 8]
    wrl, wrh = 9, 10
    vAS = 11
    c1, c2, c3 = 12, 13, 14
    vT = 15
    EXT = 16
    T = [22, 23, 24, 25]
    OUT = 26
    EQ = 34
    A0, A1 = 38, 39
    SUMA = 22
    def accof(s): return ACC + 16*((s+1) % 2)
    WF = 40
    ACC = 64
    XF = 96
    sRB, sFP, sTH, sFH = "s54", "s55", "s56", "s57"
    sM, sSO, sAS, sT0 = "s58", "s59", "s61", "s68"
    if EXP == "nogemm": a("s_endpgm")
    a(f"""s_setprio {os.environ.get('PG0','2')}
    s_and_b32 s68, s2, 7
    s_lshr_b32 s69, s2, 3
    s_and_b32 s69, s69, 31
    s_lshr_b32 {sRB}, s68, 1
    s_lshl_b32 {sRB}, {sRB}, 3
    s_and_b32 s70, s69, 7
    s_add_u32 {sRB}, {sRB}, s70
    s_and_b32 {sFP}, s68, 1
    s_lshl_b32 {sFP}, {sFP}, 2
    s_lshr_b32 s70, s69, 3
    s_add_u32 {sFP}, {sFP}, s70
    s_lshl_b32 {sM}, {sW}, 11
    v_lshrrev_b32 v22, 3, v0
    s_lshl_b32 s70, {sW}, 4
    v_add_u32 v22, s70, v22
    v_lshrrev_b32 v23, 4, v0
    v_and_b32 v24, 7, v0
    v_xor_b32 v25, v24, v23
    s_lshl_b32 s71, {sRB}, 6
    v_add_u32 v26, s71, v22
    v_mul_u32_u24 v26, 0x500, v26
    v_lshl_add_u32 v{vX0}, v25, 4, v26
    v_xor_b32 v25, 4, v25
    v_lshl_add_u32 v{vX1}, v25, 4, v26
    v_add_u32 v{vX1}, {8*1280-1024}, v{vX1}
    v_and_b32 v23, 1, v23
    v_lshlrev_b32 v23, 2, v23
    v_xor_b32 v25, v24, v23
    v_mul_u32_u24 v26, 0xc00, v22
    v_lshl_add_u32 v{vW0}, v25, 4, v26
    s_mul_i32 s70, {sFP}, 384
    v_add_u32 v{vW0}, s70, v{vW0}
    v_add_u32 v{vW1}, {8*3072-1024}, v{vW0}""")

    a(f"""s_and_b32 s70, {sRB}, 7
    s_and_b32 s71, {sFP}, 3
    s_mul_i32 s71, s71, {3*ROT}
    s_mul_i32 s70, s70, {ROT}
    s_add_u32 s70, s70, s71
    s_cmp_ge_u32 s70, 10
    s_cselect_b32 s71, 10, 0
    s_sub_u32 s70, s70, s71""")
    for kc in range(10):
        a(f"""s_lshl_b32 s{16+kc}, s70, 7
        s_mul_i32 s{26+kc}, s70, 196608""")
        if kc < 9: a("s_add_u32 s70, s70, 1\ns_cmp_eq_u32 s70, 10\ns_cselect_b32 s70, 0, s70")

    def chunk_info(c):
        if c < 20:
            return ('X', 0, c//2) if c % 2 == 0 else ('W', 0, c//2)
        return ('W', 1 + (c-20)//10, (c-20) % 10)
    def dma_half(c, h):
        kind, s, kc = chunk_info(c)
        slot = c % 10
        if h == 0:
            a(f"s_add_u32 m0, {sM}, {slot*8192}")
            if kind == 'W' and s > 0 and kc == 0: a(f"v_add_u32 v{vW0}, 128, v{vW0}\nv_add_u32 v{vW1}, 128, v{vW1}")
        r, sr, so = ((vX0, vX1)[h], SX, 16+kc) if kind == 'X' else ((vW0, vW1)[h], SW1, 26+kc)
        a.vmem(f"buffer_load_dwordx4 v{r}, {sr}, s{so} offen {'offset:1024 ' if h else ''}lds", ('c', c))
    for c in range(10): dma_half(c, 0); dma_half(c, 1)

    srd(a, 48, 'out', 2621440)
    a(f"""s_and_b32 {sTH}, {sW}, 1
    s_lshr_b32 {sFH}, {sW}, 1
    v_and_b32 v22, 31, v0
    v_lshrrev_b32 v23, 5, v0
    v_lshrrev_b32 v24, 1, v22
    v_and_b32 v24, 7, v24
    s_lshl_b32 s70, {sTH}, 12
    v_lshl_add_u32 v25, v22, 7, s70""")
    for j in range(4):
        a(f"""v_add_u32 v26, {2*j}, v23
        v_xor_b32 v26, v26, v24
        v_lshl_add_u32 v{xr[j]}, v26, 4, v25""")
    a(f"""v_lshrrev_b32 v26, 4, v22
    s_lshl_b32 s70, {sTH}, 1
    v_add_u32 v26, s70, v26
    v_mul_u32_u24 v26, 0xc000, v26
    v_lshl_add_u32 v26, v23, 8, v26
    v_and_b32 v27, 15, v0
    v_lshl_add_u32 v{vAS}, v27, 4, v26
    v_lshrrev_b32 v24, 2, v27
    v_and_b32 v25, 3, v0
    v_lshrrev_b32 v26, 4, v0
    v_and_b32 v26, 1, v26
    v_lshlrev_b32 v26, 1, v26
    v_lshrrev_b32 v28, 1, v25
    v_add_u32 v26, v26, v28
    s_lshl_b32 s70, {sFH}, 2
    v_add_u32 v26, s70, v26
    v_lshrrev_b32 v28, 1, v24
    v_lshlrev_b32 v28, 2, v28
    v_xor_b32 v26, v26, v28
    v_lshl_add_u32 v28, v23, 3, v24
    v_lshlrev_b32 v28, 7, v28
    v_lshl_add_u32 v28, v26, 4, v28
    v_and_b32 v25, 1, v25
    v_lshl_add_u32 v{wrl}, v25, 3, v28
    v_add_u32 v{wrh}, 0x10000, v{wrl}
    v_add_u32 v{vT}, -1, v23
    s_mul_i32 {sAS}, {sRB}, 192
    s_mul_i32 s70, {sFP}, 6
    s_add_u32 {sAS}, {sAS}, s70
    s_add_u32 {sAS}, {sAS}, {sFH}
    s_lshl_b32 {sAS}, {sAS}, 10
    s_add_u32 {sAS}, {sAS}, {ACT}
    s_mul_i32 s81, {sRB}, 3072
    s_lshl_b32 s71, {sFP}, 7
    s_add_u32 s81, s81, s71
    s_add_u32 s81, s81, {FL_ACT}""")
    a(f"""v_mov_b32 v{EXT}, 0
    v_mov_b32 v{EXT+1}, 0
    v_and_b32 v24, 7, v0
    v_lshrrev_b32 v25, 2, v24
    v_and_b32 v24, 3, v24
    s_and_b32 s70, {sFP}, 3
    s_mul_i32 s70, s70, 3
    s_add_u32 s70, s70, 1
    v_add_u32 v25, s70, v25
    v_lshlrev_b32 v25, 3, v25
    v_lshl_add_u32 v25, v24, 1, v25
    s_lshr_b32 s70, {sFP}, 2
    v_add_u32 v25, s70, v25
    v_lshlrev_b32 v{EQ}, 7, v25
    s_mul_i32 s70, {sFP}, 192
    s_lshl_b32 s71, {sFH}, 5
    s_add_u32 s70, s70, s71
    v_add_u32 v24, s70, v22
    v_lshlrev_b32 v{EQ+1}, 2, v24
    v_lshlrev_b32 v24, 1, v24
    v_mul_u32_u24 v25, 6144, v23
    v_add_u32 v{EQ+1}, v{EQ+1}, v25
    v_lshl_add_u32 v{EQ+2}, v23, 7, v24
    v_mov_b32 v{EXT+3}, 0
    s_mov_b32 s69, 0x3f803f80""")
    a.vmem(f"global_load_short_d16_hi v{EXT+3}, v24, {sp('b1')}", 'b10')
    for r in range(22, 34): a(f"v_mov_b32 v{r}, 0")
    make_tag(a)

    wf_next = [0]
    def wfrag_alloc():
        r = WF + 4*(wf_next[0] % 6); wf_next[0] += 1; return r
    def read_w(c, j):
        slot = c % 10
        r = wfrag_alloc()
        base, off = (wrl, slot*8192) if slot < 8 else (wrh, (slot-8)*8192)
        a.ds(f"ds_read_b64_tr_b16 {v(r,2)}, v{base} offset:{off + 128*16*j}", ('w', c, j))
        a.ds(f"ds_read_b64_tr_b16 {v(r+2,2)}, v{base} offset:{off + 128*(16*j+4)}", ('w', c, j))
        return r
    def mfma1(acc, wfr, xfr, first):
        a(f"v_mfma_f32_32x32x16_bf16 {v(acc,16)}, {v(wfr,4)}, {v(xfr,4)}, {'0' if first else v(acc,16)}")

    side = []
    def run_side(n):
        for _ in range(n):
            if side: side.pop(0)()

    def mish_items(s):
        acc = accof(s)
        items = []
        for qd in range(4):
            R = [acc + 4*qd + k for k in range(4)]
            def f1(R=R):
                for k in range(4): a(f"v_mul_f32 v{T[k]}, v{c1}, v{R[k]}")
                for k in range(4): a(f"v_exp_f32 v{T[k]}, v{T[k]}")
                for k in range(4): a(f"v_add_f32 v{T[k]}, 1.0, v{T[k]}")
                for k in range(4): a(f"v_fma_f32 v{T[k]}, v{T[k]}, v{T[k]}, 1.0")
            def f2(R=R, qd=qd):
                for k in range(4): a(f"v_rcp_f32 v{T[k]}, v{T[k]}")
                for k in range(4): a(f"v_fma_f32 v{T[k]}, v{T[k]}, v{c2}, v{c3}")
                for k in range(4): a(f"v_mul_f32 v{T[k]}, v{T[k]}, v{R[k]}")
                a(f"v_cvt_pk_bf16_f32 v{OUT+2*qd}, v{T[0]}, v{T[1]}\nv_cvt_pk_bf16_f32 v{OUT+2*qd+1}, v{T[2]}, v{T[3]}")
                if qd % 2 == 1:
                    gp = qd // 2
                    a(f"s_add_u32 {sT0}, {sAS}, {2048*s}")
                    a.vmem(f"buffer_store_dwordx4 {v(OUT+4*gp,4)}, v{vAS}, {SWS}, {sT0} offen offset:{512*gp} sc1", ('act', s))
            items += [f1, f2]
        return items

    SPLIT = ("v_and_b32 v{q1}, 0xffff0000, v{q}", "v_sub_f32 v{q}, v{q}, v{q1}", "v_and_b32 v{q2}, 0xffff0000, v{q}",
             "v_sub_f32 v{q}, v{q}, v{q2}", "v_lshrrev_b32 v{q1}, 16, v{q1}", "v_lshrrev_b32 v{q}, 16, v{q}",
             "v_or_b32 v{q1}, v{q1}, v{q2}", "v_or_b32 v{q}, v{q}, v{b}", "v_and_b32 v{d0}, v{m}, v{q1}", "v_and_b32 v{d1}, v{m}, v{q}")
    SUM4 = ("v_add_f32 v{q}, v{q}, v{q1}", "v_add_f32 v{q2}, v{q2}, v{q3}", "v_add_f32 v{q}, v{q}, v{q2}")
    def local_stats():
        a.wait(vm=['b10'])
        for tmpl in SUM4 + ("v_mov_b32 v{q1}, v{q}", "v_permlane32_swap_b32 v{q}, v{q1}", "v_add_f32 v{q}, v{q}, v{q1}"):
            for q in (22, 26, 30): a(tmpl.format(q=q, q1=q+1, q2=q+2, q3=q+3))
        INV640 = 0x3ACCCCCD
        L = a.label("Lvar")
        a(f"""v_mul_f32 v22, {INV640}, v22
        v_mul_f32 v26, {INV640}, v26
        v_mul_f32 v23, v22, v22
        v_sub_f32 v26, v26, v23
        v_mul_f32 v24, 0x41800000, v26
        v_sub_f32 v22, 0, v22
        v_cmp_nle_f32 vcc, v23, v24
        s_cbranch_vccz {L}
        v_mov_b32 v26, 0
        v_mov_b32 v27, 0""")
        for r in range(XF, XF+160):
            a(f"""v_lshlrev_b32 v24, 16, v{r}
            v_and_b32 v25, 0xffff0000, v{r}
            v_add_f32 v24, v24, v22
            v_add_f32 v25, v25, v22
            v_fmac_f32 v26, v24, v24
            v_fmac_f32 v27, v25, v25""")
        a(f"""v_add_f32 v26, v26, v27
        v_mov_b32 v27, v26
        v_permlane32_swap_b32 v26, v27
        v_add_f32 v26, v26, v27
        v_mul_f32 v26, {INV640}, v26
        {L}:
        v_cvt_pk_bf16_f32 v27, v26, v26
        v_cvt_pk_bf16_f32 v{EXT+4}, v22, v22
        v_and_b32 v27, 0xffff0000, v27
        v_add_f32 v27, 0x3727C5AC, v27
        v_cvt_pk_bf16_f32 v27, v27, v27
        v_and_b32 v27, 0xffff0000, v27
        v_sqrt_f32 v27, v27
        v_cvt_pk_bf16_f32 v{EXT+5}, v22, v27
        v_and_b32 v{c3}, 0xffff0000, v{EXT+5}
        v_rcp_f32 v{c3}, v{c3}""")
        for tmpl in SPLIT: a(tmpl.format(q=30, q1=31, q2=32, b=EXT+3, d0=EXT+2, d1=EXT+3, m=vT))
        a(f"""v_mul_f32 v{c1}, {LOG2E}, v{c3}
        v_mul_f32 v{c2}, -2.0, v{c3}""")
    def ext_items():
        def l0():
            a(f"v_mov_b32 v26, 0\ns_mov_b32 s70, {CSUM}\ns_mov_b32 s71, {CSUM+12288}")
            for s in (1, 2):
                a.vmem(f"buffer_load_dword v{20+2*s}, v{EQ+1}, {SWS}, s70 offen offset:{256*s} sc1", 'ext')
                a.vmem(f"buffer_load_dword v{21+2*s}, v{EQ+1}, {SWS}, s71 offen offset:{256*s} sc1", 'ext')
            a.vmem(f"global_load_short_d16_hi v26, v{EQ+2}, {sp('b1')} offset:128", 'ext')
        return [l0]
    def ext_build():
        a.wait(vm=['ext'])
        a(f"v_and_b32 v27, v{vT}, v26\nv_xor_b32 v28, v27, v26")
        for tmpl in ("v_add_f32 v{q}, v{q}, v{q1}", "v_and_b32 v{q1}, 0xffff0000, v{q}", "v_sub_f32 v{q}, v{q}, v{q1}", "v_and_b32 v{d0}, 0xffff0000, v{q}",
                     "v_sub_f32 v{q}, v{q}, v{d0}", "v_lshrrev_b32 v{q1}, 16, v{q1}", "v_lshrrev_b32 v{q}, 16, v{q}",
                     "v_or_b32 v{d0}, v{q1}, v{d0}", "v_or_b32 v{d1}, v{q}, v{b}"):
            for s in (1, 2):
                q = 20 + 2*s
                a(tmpl.format(q=q, q1=q+1, b=26+s, d0=EQ+2*s-2, d1=EQ+2*s-1))
    def ext_mfma(s):
        acc = accof(s)
        if s: a(f"v_mov_b32 v{EXT+2}, v{EQ+2*s-2}\nv_mov_b32 v{EXT+3}, v{EQ+2*s-1}")
        a(f"v_mfma_f32_32x32x16_bf16 {v(acc,16)}, {v(EXT,4)}, {v(EXT+2,4)}, {v(acc,16)}")

    G2A = XF; NA = 12
    G2W = XF + 96
    G2ACC = WF
    G2X = XF + 136
    G2M = XF + 146
    vA0, vA1, vD2, w2l, w2h, vO = vX0, vX1, xr[0], xr[1], xr[2], xr[3]
    sA2, sW2, sM2 = "s72", "s73", "s74"
    def g2_setup_a():
        a(f"""v_lshlrev_b32 v{vA0}, 4, v0
        s_lshl_b32 s70, {sTH}, 1
        s_add_u32 s71, s70, {sFH}
        s_mul_i32 s71, s71, 49152
        s_xor_b32 s76, {sFH}, 1
        s_add_u32 s70, s70, s76
        s_mul_i32 s70, s70, 49152
        s_lshl_b32 s76, {sFH}, 10
        s_add_u32 s70, s70, s76
        s_add_u32 s71, s71, s76
        s_mul_i32 {sM2}, {sW}, 2560
        v_add_u32 v{vD2}, {sM2}, v{vA0}
        v_add_u32 v{vA1}, s70, v{vA0}
        v_add_u32 v{vA0}, s71, v{vA0}
        s_mul_i32 {sA2}, {sRB}, {192*1024}
        s_add_u32 {sA2}, {sA2}, {ACT}
        s_mul_i32 {sW2}, {sFP}, 245760
        s_add_u32 {sW2}, {sW2}, {W2P}""")
    def g2_setup_b():
        t0, t1 = A0, A1
        a(f"""v_lshrrev_b32 v{t0}, 5, v0
        v_lshlrev_b32 v{t0}, 4, v{t0}
        v_lshrrev_b32 v{t1}, 2, v0
        v_and_b32 v{t1}, 7, v{t1}
        v_add_u32 v{t0}, v{t0}, v{t1}
        s_lshl_b32 s70, {sFH}, 5
        v_add_u32 v{t0}, s70, v{t0}
        v_mul_u32_u24 v{t0}, 160, v{t0}
        v_and_b32 v{t1}, 3, v0
        v_lshl_add_u32 v{w2l}, v{t1}, 3, v{t0}
        v_add_u32 v{w2h}, 71680, v{w2l}
        s_lshl_b32 s70, {sTH}, 1
        s_add_u32 s70, s70, {sFH}
        s_lshl_b32 s70, s70, 4
        s_lshl_b32 s71, {sRB}, 6
        s_add_u32 s70, s70, s71
        v_and_b32 v{t0}, 15, v0
        v_add_u32 v{t0}, s70, v{t0}
        v_mul_u32_u24 v{t0}, 0x500, v{t0}
        v_lshrrev_b32 v{t1}, 4, v0
        v_lshl_add_u32 v{t0}, v{t1}, 3, v{t0}
        s_mul_i32 s70, {sFP}, 160
        v_add_u32 v{vO}, s70, v{t0}""")
    def g2_setup_c():
        a(f"""s_and_b32 s70, {sFP}, 3
        s_lshl_b32 s70, s70, 1
        s_add_u32 s70, s70, {sRB}
        s_mul_i32 s70, s70, {ROT}""")
        for p in range(8):
            a(f"""s_and_b32 s70, s70, 7
            s_mul_i32 s71, s70, 6144
            s_add_u32 s{16+p}, s71, {sA2}
            s_mul_i32 s71, s70, 30720
            s_add_u32 s{26+p}, s71, {sW2}
            s_add_u32 s70, s70, 1""")
    def st_sp(sg): return sg // 8, sg % 8
    def dma_w2_piece(sg, h):
        s2, p = st_sp(sg)
        if h == 0:
            a(f"s_add_u32 m0, {sM2}, {(sg % 8)*10240}")
            if s2 > 0 and p == 0: a(f"v_add_u32 v{vD2}, 10240, v{vD2}")
        if h == 2: a("s_mov_b64 exec, 0xffffffff")
        a.vmem(f"buffer_load_dwordx4 v{vD2}, {SWS}, s{26+p} offen offset:{1024*h} {os.environ.get('W2SC','sc1')} lds", ('d2', sg))
        if h == 2: a("s_mov_b64 exec, -1")
    def load_act(sg):
        s2, p = st_sp(sg)
        r = G2A + 8*(sg % NA)
        if s2 > 0 and p == 0: a(f"v_add_u32 v{vA0}, 2048, v{vA0}\nv_add_u32 v{vA1}, 2048, v{vA1}")
        a.vmem(f"buffer_load_dwordx4 {v(r,4)}, v{vA0}, {SWS}, s{16+p} offen {os.environ.get('ASC','sc1')}", ('a2', sg))
        a.vmem(f"buffer_load_dwordx4 {v(r+4,4)}, v{vA1}, {SWS}, s{16+p} offen {os.environ.get('ASC','sc1')}", ('a2', sg))
    def pregs(s2): return [(XF, XF+1), (XF+94, XF+95), (G2M+4, G2M+5)][s2]
    def pa_ld(s2):
        pv, pa = pregs(s2)
        return f"buffer_load_dword v{pv}, v{pa}, {SWS}, s{78+s2} offen sc1"
    def poll_act_issue(s2):
        pv, pa = pregs(s2)
        a(f"""v_and_b32 v{pa}, 7, v0
        v_lshlrev_b32 v{pa}, 7, v{pa}
        s_mul_i32 s{78+s2}, {sRB}, 3072
        s_add_u32 s{78+s2}, s{78+s2}, {FL_ACT + 1024*s2}""")
        w0_issue(pa_ld(s2), ('pa', s2))
    def poll_act_check(s2):
        w0_check(pa_ld(s2), [pregs(s2)[0]], ('pa', s2))
    def w0_issue(ld, tag):
        L = a.label("Lw0")
        a(f"s_cmp_lg_u32 {sW}, 0\ns_cbranch_scc1 {L}")
        a(ld)
        a(f"{L}:")
        a.vm.append(('VIRT', tag))
    def w0_check(ld, regs, tag):
        L = a.label("Lw0")
        a(f"s_cmp_lg_u32 {sW}, 0\ns_cbranch_scc1 {L}")
        q = list(a.vm); d = dict(a.done)
        a.wait(vm=[('VIRT', tag)])
        a.vm[:] = [t for t in q if t != ('VIRT', tag)]; a.done.clear(); a.done.update(d)
        spin(a, ld, cmpn(regs))
        a(f"{L}:")
    flagged = set(); act_age = {}
    def pre_barrier(tags, lg="all"):
        tags = list(tags)
        for ss in range(3):
            if ss in flagged: continue
            if a.vm.count(('act', ss)) + a.done.get(('act', ss), 0) == 2:
                act_age[ss] = act_age.get(ss, 0) + 1
                if act_age[ss] >= ACT_DELAY: tags.append(('act', ss))
        a.wait(vm=tags, lg=lg)
        a("s_barrier")
        for ss in range(3):
            if ss not in flagged and a.done.get(('act', ss), 0) == 2:
                a(f"s_add_u32 s70, s81, {1024*ss}")
                flag_store(a, "s70", A0, A1, ('fl', ss)); flagged.add(ss)

    steps = [(s, kc) for s in range(3) for kc in range(10)]
    next_dma = 10; w2_issued = 0; act_issued = 0
    pend = []
    for si, (s, kc) in enumerate(steps):
        cw = 2*kc + 1 if s == 0 else 10 + 10*s + kc
        pre_barrier([('c', cw)], lg=())
        if (DIAG == 1 and (s, kc) in ((0, 0), (1, 0), (1, 4), (2, 0))) or (DIAG == 2 and s == 1 and kc < 9) or (DIAG == 3 and s == 2 and kc != 0) or (DIAG == 5 and s == 0 and kc < 9): stamp(a, f'g1 {s},{kc}', True)
        dq = []
        if si >= 2:
            nrel = 2 if (s == 0 or (s == 1 and kc <= 1)) else 1
            for _ in range(nrel):
                if next_dma < 40:
                    dq += [(dma_half, next_dma, 0), (dma_half, next_dma, 1)]; next_dma += 1
        if s == 2 and kc >= 4:
            while w2_issued < 8 and -(-10240*(w2_issued+1)//8192) <= kc - 1:
                dq += [(dma_w2_piece, w2_issued, h) for h in range(3)]; w2_issued += 1
        def dma_some(n):
            for _ in range(n):
                if dq:
                    f, x1, x2 = dq.pop(0); f(x1, x2)
        prev = pend; pend = []
        acc = accof(s)
        xf = XF + 16*kc
        hi = (s == 0 and (2*kc) % 10 == 8)
        if hi:
            for j in range(4): a(f"v_add_u32 v{xr[j]}, 0x10000, v{xr[j]}")
        def rd(j):
            r = read_w(cw, j)
            if s == 0:
                slot = (2*kc) % 10
                off = slot*8192 if slot < 8 else (slot-8)*8192
                a.ds(f"ds_read_b128 {v(xf+4*j,4)}, v{xr[j]} offset:{off}", ('w', cw, j))
            pend.append((acc, r, xf + 4*j, kc == 0 and j == 0, ('w', cw, j)))
        def mf():
            if prev:
                m = prev.pop(0); a.wait(lg=[m[4]]); mfma1(*m[:4])
        per = -(-len(dq)//4)
        rd(0); rd(1)
        mf(); dma_some(per)
        mf(); rd(2); rd(3); dma_some(per)
        if hi:
            for j in range(4): a(f"v_add_u32 v{xr[j]}, 0xffff0000, v{xr[j]}")
        run_side(1)
        mf(); dma_some(per)
        run_side(2)
        mf(); dma_some(per)
        lds_ = f"buffer_load_dword v{A0}, v{EQ}, {SWS}, s75 offen sc1"
        ldw2 = "\n".join(f"s_mov_b32 s76, {FL_AUX + 8192*n}\nbuffer_load_dword v{XF+3+n}, v{XF+2}, {SWS}, s76 offen sc1" for n in range(4))
        if (s, kc) == (1, 7): g2_setup_a()
        if (s, kc) == (1, 8): g2_setup_b()
        if (s, kc) == (int(os.environ.get('PGS', '1')), 0): a(f"s_setprio {os.environ.get('PG','2')}")
        if s == 0:
            a.wait(lg="all")
            for m in pend:
                for k in range(4): a(f"v_dot2_f32_bf16 v{22+k}, v{m[2]+k}, s69, v{22+k}")
                for k in range(4): a(f"v_dot2_f32_bf16 v{26+k}, v{m[2]+k}, v{m[2]+k}, v{26+k}")
                for k in range(4): a(f"v_dot2_f32_bf16 v{30+k}, v{m[1]+k}, s69, v{30+k}")
        if (s, kc) == (0, 9): local_stats()
        if (s, kc) == (1, 0):
            ext_mfma(0); side.extend(mish_items(0))
        if (s, kc) == (1, 3):
            a(f"s_mov_b32 s75, {FL_S}")
            w0_issue(lds_, 'ps')
        if (s, kc) == (1, 5): w0_check(lds_, [A0], 'ps')
        if (s, kc) == (1, 6): run_side(100); side.extend(ext_items())
        if (s, kc) == (1, 9): ext_build()
        if (s, kc) == (2, 0):
            run_side(100); ext_mfma(1); side.extend(mish_items(1))
        if (s, kc) == (2, 1):
            a(f"v_lshlrev_b32 v{XF+2}, 7, v0")
            w0_issue(ldw2, 'pw')
        if (s, kc) == (2, 2): g2_setup_c()
        if (s, kc) == (2, 3): w0_check(ldw2, [XF+3, XF+4, XF+5, XF+6], 'pw')
        if (s, kc) == (2, C0-2): poll_act_issue(0)
        if (s, kc) == (2, C0): poll_act_check(0)
        if s == 2 and kc > C0:
            n = min(8, 3*(kc-C0))
            while act_issued < n: load_act(act_issued); act_issued += 1

    a2pend = []
    XA = G2M + 8 - 10 + 10
    for sg in range(24):
        if DIAG == 6 and sg in (3, 4, 5): stamp(a, 'prewait')
        if DIAG == 6 and sg in (3, 4, 5):
            q = list(a.vm); d = dict(a.done)
            a.wait(vm=[('d2', sg), ('a2', sg)]); stamp(a, 'postwait')
            a.vm[:] = q; a.done.clear(); a.done.update(d)
        if DIAG == 7 and sg in (11, 12, 13): stamp(a, 'prewait')
        if DIAG == 7 and sg in (11, 12, 13):
            q = list(a.vm); d = dict(a.done)
            a.wait(vm=[('d2', sg), ('a2', sg)]); stamp(a, 'postwait')
            a.vm[:] = q; a.done.clear(); a.done.update(d)
        pre_barrier([('d2', sg), ('a2', sg)])
        if (DIAG == 6 and sg in (3, 4, 5)) or (DIAG == 7 and sg in (11, 12, 13)): stamp(a, 'postbar')
        if (DIAG == 1 and sg in (0, 8, 16, 23)) or (DIAG == 4 and sg < 9): stamp(a, f'g2 {sg}')
        dq = []
        if sg == 0:
            while w2_issued < 8:
                dq += [(w2_issued, h) for h in range(3)]; w2_issued += 1
        elif w2_issued < 24:
            dq += [(w2_issued, h) for h in range(3)]; w2_issued += 1
        wb = G2W + 20*(sg % 2)
        slot = sg % 8
        base, off = (w2l, slot*10240) if slot < 7 else (w2h, 0)
        prev = a2pend; a2pend = []
        if sg == 0:
            run_side(100)
            for m in pend:
                mfma1(*m[:4])
                if dq: dma_w2_piece(*dq.pop(0))
            pend = []
            ext_mfma(2)
            side.extend(mish_items(2))
        for dt in range(5):
            a.ds(f"ds_read_b64_tr_b16 {v(wb+4*dt,2)}, v{base} offset:{off + 32*dt}", ('w2', sg))
            a.ds(f"ds_read_b64_tr_b16 {v(wb+4*dt+2,2)}, v{base} offset:{off + 32*dt + 1280}", ('w2', sg))
            for _ in range(2):
                if prev: a(prev.pop(0))
            if dq: dma_w2_piece(*dq.pop(0))
            if dt in (0, 1, 2, 3): run_side(1)
        while dq: dma_w2_piece(*dq.pop(0))
        for dt in range(5):
            for tau in range(2):
                accr = G2ACC + 20*tau + 4*dt
                a2pend.append(f"v_mfma_f32_16x16x32_bf16 {v(accr,4)}, {v(wb+4*dt,4)}, {v(G2A+8*(sg%NA)+4*tau,4)}, {'0' if sg == 0 else v(accr,4)}")
        if sg >= 1:
            lim = min(sg + NA, 8 if sg <= C1 else 16 if sg <= C2 else 24, act_issued + 2)
            while act_issued < lim: load_act(act_issued); act_issued += 1
        if sg == C1 - 2: poll_act_issue(1)
        if sg == C1: poll_act_check(1)
        if sg == C2 - 2: poll_act_issue(2)
        if sg == C2: poll_act_check(2)
        if sg == 4:
            for dt in range(5):
                a.vmem(f"buffer_load_dwordx2 {v(G2X+2*dt,2)}, v{vO}, {SX}, 0 offen offset:{32*dt}", 'xfin')
        PV = G2M + 6
        ypoll = f"buffer_load_dword v{PV}, v{PV+1}, {SWS}, s75 offen sc1"
        if sg == 17:
            a(f"""v_and_b32 v{PV+1}, 31, v0
            v_lshlrev_b32 v{PV+1}, 7, v{PV+1}
            s_lshl_b32 s75, {sFP}, 12
            s_add_u32 s75, s75, {FL_Y}
            s_mul_i32 s70, {sW}, 160
            v_add_u32 v22, s70, v0
            v_lshrrev_b32 v23, 3, v22
            s_mul_i32 s70, {sFP}, 80
            v_add_u32 v23, s70, v23
            v_lshlrev_b32 v23, 12, v23
            v_and_b32 v22, 7, v22
            v_lshl_add_u32 v22, v22, 4, v23
            v_add_u32 v23, {32768-1024}, v22
            v_add_u32 v24, {65536-2048}, v22
            s_lshl_b32 s76, {sRB}, 7
            s_add_u32 s76, s76, {AT}
            v_lshrrev_b32 v25, 2, v0
            v_lshlrev_b32 v25, 7, v25
            v_and_b32 v26, 3, v0
            v_lshl_add_u32 v25, v26, 3, v25
            s_lshl_b32 s70, {sTH}, 1
            s_add_u32 s70, s70, {sFH}
            s_lshl_b32 s70, s70, 5
            v_add_u32 v25, s70, v25
            s_mul_i32 s70, {sW}, 5120
            s_xor_b32 s71, {sW}, 2
            s_mul_i32 s71, s71, 5120
            v_lshlrev_b32 v26, 4, v0
            v_add_u32 v27, s71, v26
            v_add_u32 v26, s70, v26""")
        if sg == 19: a.vmem(ypoll, 'py')
        def dma_at(tagit=True):
            f = a.vmem if tagit else (lambda t, g: a(t))
            a(f"s_mov_b32 m0, {sM2}")
            f(f"buffer_load_dwordx4 v22, {SWS}, s76 offen sc1 lds", 'at')
            f(f"buffer_load_dwordx4 v23, {SWS}, s76 offen offset:1024 sc1 lds", 'at')
            a("s_mov_b64 exec, 0xffffffff")
            f(f"buffer_load_dwordx4 v24, {SWS}, s76 offen offset:2048 sc1 lds", 'at')
            a("s_mov_b64 exec, -1")
        if sg == 21:
            a.wait(vm=['py'])
            a(cmpn([PV]))
            a("s_cselect_b32 s77, 1, 0")
            dma_at()
    a.wait(lg="all")
    for m in [m for i, m in enumerate(a2pend) if i % 2 == 1]: a(m)
    for m in [m for i, m in enumerate(a2pend) if i % 2 == 0]: a(m)
    for dt in range(5): a(f"ds_write_b128 v26, {v(G2ACC+20+4*dt,4)} offset:{10240+1024*dt}")
    L = a.label("Lyok")
    a(f"""s_cmp_eq_u32 s77, 1
    s_cbranch_scc1 {L}
    s_waitcnt vmcnt(0)
    v_not_b32 v{PV}, {sTAG}""")
    spin(a, ypoll, cmpn([PV]))
    dma_at(False)
    a(f"{L}:")
    a("s_waitcnt vmcnt(0) lgkmcnt(0)")
    a.vm.clear(); a.lg.clear()
    a("s_barrier")
    RX = G2A; AV = G2A + 20; TT = G2W
    for dt in range(5): a.ds(f"ds_read_b64_tr_b16 {v(AV+2*dt,2)}, v25 offset:{2048*dt}", ('av', dt))
    for dt in range(5): a.ds(f"ds_read_b128 {v(RX+4*dt,4)}, v27 offset:{10240+1024*dt}", ('rx', dt))
    def unp(d, s): return f"v_lshlrev_b32 v{d}, 16, v{s}\nv_and_b32 v{d+1}, 0xffff0000, v{s}"
    for dt in range(5):
        t = TT + 8*dt
        a(unp(t, G2X+2*dt)); a(unp(t+2, G2X+2*dt+1))
    for dt in range(5):
        t = TT + 8*dt; av = AV + 2*dt
        a.wait(lg=[('av', dt)])
        a(unp(t+4, av)); a(unp(t+6, av+1))
        a(f"""v_pk_add_f32 {v(t,2)}, {v(t,2)}, {v(t+4,2)}
        v_pk_add_f32 {v(t+2,2)}, {v(t+2,2)}, {v(t+6,2)}
        v_cvt_pk_bf16_f32 v{t+4}, v{t}, v{t+1}
        v_cvt_pk_bf16_f32 v{t+5}, v{t+2}, v{t+3}""")
        a(unp(t, t+4)); a(unp(t+2, t+5))
    for dt in range(5):
        t = TT + 8*dt; k = G2ACC + 4*dt; r = RX + 4*dt
        a.wait(lg=[('rx', dt)])
        a(f"""v_pk_add_f32 {v(k,2)}, {v(k,2)}, {v(r,2)}
        v_pk_add_f32 {v(k+2,2)}, {v(k+2,2)}, {v(r+2,2)}
        v_cvt_pk_bf16_f32 v{r}, v{k}, v{k+1}
        v_cvt_pk_bf16_f32 v{r+1}, v{k+2}, v{k+3}""")
        a(unp(k, r)); a(unp(k+2, r+1))
        a(f"""v_pk_add_f32 {v(t,2)}, {v(t,2)}, {v(k,2)}
        v_pk_add_f32 {v(t+2,2)}, {v(t+2,2)}, {v(k+2,2)}
        v_cvt_pk_bf16_f32 v{t+4}, v{t}, v{t+1}
        v_cvt_pk_bf16_f32 v{t+5}, v{t+2}, v{t+3}
        buffer_store_dwordx2 {v(t+4,2)}, v{vO}, {S4}, 0 offen offset:{32*dt}""")
    if DIAG: a("s_waitcnt vmcnt(0)")
    if DIAG == 1: stamp(a, 'end')
    stamp_flush(a, 22)
    a("s_endpgm")

UPAD = 448
UCS  = 4640
USTR = 4*UCS
KB0  = 3*USTR
K1OFF = 4224
KSTR = 2*K1OFF
CVOFF = 16
UIN = 200
def u_issue(a):
    a(f"""v_lshlrev_b32 v224, 4, v0
    s_lshl_b32 s70, {sW}, 10
    v_add_u32 v224, s70, v224
    v_lshlrev_b32 v225, 1, v224
    s_mov_b32 s70, {STATS}
    buffer_load_dwordx4 {v(UIN,4)}, v225, {SWS}, s70 offen sc1
    buffer_load_dwordx4 {v(UIN+4,4)}, v225, {SWS}, s70 offen offset:16 sc1""")
    for c, sch in enumerate(("s58", "s59", "s61")):
        a(f"""s_lshl_b32 s70, {sch}, 12
        s_add_u32 s70, s70, {XNT}
        buffer_load_dwordx4 {v(UIN+8+4*c,4)}, v224, {SWS}, s70 offen sc1""")

def ssm(a):
    sI = "s54"
    a(f"""Lssm:
    s_setprio 3
    s_mov_b32 {sI}, s2
    s_lshr_b32 s56, {sI}, 1
    s_mul_i32 s56, s56, 5
    s_and_b32 s57, {sI}, 1
    s_mul_i32 s58, s57, 3
    s_add_u32 s58, s58, s56
    s_add_u32 s59, s58, 1
    s_add_u32 s61, s56, 2""")
    for c, sch in enumerate(("s58", "s59", "s61")):
        a(f"s_lshl_b32 s70, {sch}, 1\ns_and_b32 s70, s70, -4\ns_load_dword s{34+c+(c>1)*6}, {sp('D')}, s70")
    a(f"""s_cmp_eq_u32 {sW}, 3
    s_cbranch_scc1 Laux""")
    kgen(a)
    a("s_branch Lconv")
    aux(a)
    conv(a)

def kgen(a):
    sCH, sKB = "s55", "s68"
    a(f"""s_cmp_eq_u32 {sW}, 0
    s_cselect_b32 {sCH}, s58, s59
    s_cmp_eq_u32 {sW}, 2
    s_cselect_b32 {sCH}, s61, {sCH}
    s_mul_i32 {sKB}, {sW}, {USTR}
    s_mul_i32 s70, {sCH}, 384
    v_mul_u32_u24 v1, 6, v0
    v_and_b32 v1, -4, v1
    v_add_u32 v1, s70, v1""")
    PR = 8
    names = ['Are', 'Aim', 'Bre', 'Bim', 'Cre', 'Cim']
    for k, n in enumerate(names):
        a.vmem(f"global_load_dwordx2 {v(30+2*k,2)}, v1, {sp(n)}", 'par')
    a(f"""s_lshl_b32 s70, {sCH}, 1
    s_and_b32 s70, s70, -4
    s_load_dword s69, {sp('ldt')}, s70
    v_and_b32 v2, 1, v0
    v_lshlrev_b32 v2, 4, v2""")
    a(f"""    s_mov_b32 m0, {sKB}
    v_and_b32 v6, 15, v0
    v_mul_u32_u24 v7, 288, v6
    v_lshrrev_b32 v4, 4, v0
    v_lshl_add_u32 v7, v4, 4, v7
    v_add_u32 v7, {sKB}, v7""")
    if TLB:
        a(f"""v_and_b32 v26, 7, v0
        v_lshlrev_b32 v26, 21, v26
        v_mov_b32 v27, 0
        s_mov_b64 exec, 0xff""")
        a.vmem(f"buffer_load_dword v106, v26, {SWS}, 0 offen offset:512", 'touch')
        a("s_mov_b64 exec, 1")
        for n in ('w2', 'out', 'b1'): a.vmem(f"global_load_dword v107, v27, {sp(n)}", 'touch')
        a("s_mov_b64 exec, -1")
    if TOUCHW1:
        a(f"""s_mul_i32 s70, {sW}, 80
        v_add_u32 v26, s70, v0
        v_add_u32 v27, 64, v26
        s_add_u32 s70, s70, 79
        v_min_u32 v27, s70, v27
        s_lshr_b32 s71, s2, 3
        s_mul_i32 s71, s71, {20*3072}
        s_and_b32 s70, s2, 1
        s_mul_i32 s70, s70, 1536
        s_add_u32 s71, s71, s70""")
        for r in (26, 27):
            a(f"""v_mul_u32_u24 v28, 5462, v{r}
            v_lshrrev_b32 v28, 16, v28
            v_mul_u32_u24 v29, 12, v28
            v_sub_u32 v29, v{r}, v29
            v_mul_u32_u24 v28, 0xc00, v28
            v_lshl_add_u32 v28, v29, 7, v28""")
            a.vmem(f"buffer_load_dword v{r}, v28, {SW1}, s71 offen", 'touch')
    RP = 192
    srd(a, 48, 'w2', 1966080)
    a(f"""s_mul_i32 s78, s2, {6*160}
    s_add_u32 s78, s78, {W2P}
    v_lshlrev_b32 v190, 4, v0
    s_cmp_lg_u32 {sW}, 0
    s_cbranch_scc1 Lkg_now2
    v_mul_u32_u24 v188, 6554, v0
    v_lshrrev_b32 v188, 16, v188
    v_mul_u32_u24 v189, 10, v188
    v_sub_u32 v189, v0, v189
    v_mul_u32_u24 v188, 0x500, v188
    v_lshl_add_u32 v188, v189, 4, v188
    s_mul_i32 s71, s2, {6*1280}
    s_mov_b32 exec_hi, 0x0fffffff""")
    for c in range(8):
        a(f"buffer_load_dwordx4 {v(RP+4*c,4)}, v188, {S4}, s71 offen offset:{160*c}")
    a("s_mov_b32 exec_hi, -1\nLkg_now2:")
    W2X = 8
    def kwait(tag):
        q = list(a.vm); idx = max(k for k, t in enumerate(q) if t == tag); n = len(q) - 1 - idx
        L = a.label("Lkw")
        a(f"s_waitcnt vmcnt({n+W2X})\ns_cmp_eq_u32 {sW}, 0\ns_cbranch_scc1 {L}\ns_waitcnt vmcnt({n})\n{L}:")
    a(f"s_setprio {os.environ.get('PS','0')}")
    make_tag(a)
    stamp_reset(1)
    a(f"""s_bitcmp1_b32 {sCH}, 0
    s_cselect_b32 s70, 0, 16
    s_lshl_b32 s69, s69, s70
    s_and_b32 s69, s69, 0xffff0000
    v_mov_b32 v3, s69
    v_mul_f32 v4, {LOG2E}, v3
    s_mov_b32 s70, {LOG2E}
    v_fma_f32 v5, v3, s70, -v4
    v_fmac_f32 v5, 0x32A57060, v3
    v_exp_f32 v4, v4
    v_mul_f32 v5, 0x3F317218, v5
    v_fmac_f32 v4, v4, v5
    v_cvt_pk_bf16_f32 v4, v4, v4
    v_and_b32 v3, 0xffff0000, v4""")
    R = {r: 30 + 2*(r-1) for r in range(1, 8)}
    V = {b: 44 + 2*(b-1) for b in range(1, 16)}
    Wr, Pa, Pb = 74, 76, 78
    U = [80 + 2*i for i in range(8)]
    CVT = [96 + i for i in range(8)]
    zr, th = 104, 105
    FR = 112
    KACC = 176
    cv = [0]
    def p2(r): return f"v[{r}:{r+1}]"
    def cmuls(lst):
        if os.environ.get('NOPK'):
            for D, X, Y in lst: a(f"v_mul_f32 v{D}, v{X}, v{Y}\nv_mul_f32 v{D+1}, v{X}, v{Y+1}")
            for D, X, Y in lst: a(f"v_fma_f32 v{D}, -v{X+1}, v{Y+1}, v{D}\nv_fmac_f32 v{D+1}, v{X+1}, v{Y}")
            return
        for D, X, Y in lst:
            a(f"v_pk_mul_f32 {p2(D)}, {p2(X)}, {p2(Y)} op_sel:[0,0] op_sel_hi:[0,1]")
        for D, X, Y in lst:
            a(f"v_pk_fma_f32 {p2(D)}, {p2(X)}, {p2(Y)}, {p2(D)} op_sel:[1,1,0] op_sel_hi:[1,0,1] neg_lo:[1,0,0]")
    def emit(rows_regs, neg=False):
        ts = []
        for row, r in rows_regs:
            t = CVT[cv[0] % 8]; cv[0] += 1; ts.append((row, t))
            a(f"v_cvt_pk_bf16_f32 v{t}, v{r}, {'-' if neg else ''}v{r+1}")
        for row, t in ts:
            a(f"ds_write_addtid_b32 v{t} offset:{288*row}")
    for r in range(12): a(f"v_mov_b32 v{KACC+r}, 0")
    kwait('par')
    stamp(a, 'par', True)
    for k in range(6):
        lo, hi = 30+2*k, 31+2*k
        a(f"""v_alignbit_b32 v{lo}, v{hi}, v{lo}, v2
        v_lshrrev_b32 v{hi}, v2, v{hi}
        v_lshlrev_b32 v{PR+k}, 16, v{lo}
        v_and_b32 v{PR+6+k}, 0xffff0000, v{lo}
        v_lshlrev_b32 v{PR+12+k}, 16, v{hi}""")
    a("s_mov_b32 s69, 3\nLkg:")
    a.vm.clear()
    q = PR
    a(f"""v_mul_f32 v{zr}, v3, v{q}
    v_mul_f32 v{th}, v3, v{q+1}
    v_mul_f32 v{q+2}, v3, v{q+2}
    v_mul_f32 v{q+3}, v3, v{q+3}
    v_mul_f32 v{zr}, {LOG2E}, v{zr}
    v_mul_f32 v{th}, 0.15915494, v{th}""")
    dst = [(R[1], None), (V[1], 0x41000000), (Wr, 0x43000000)]
    for k, (d, mulc) in enumerate(dst):
        e, ph = U[k], U[k]+1
        if mulc is None:
            a(f"v_exp_f32 v{e}, v{zr}\nv_fract_f32 v{ph}, v{th}")
        else:
            a(f"v_mul_f32 v{e}, {mulc}, v{zr}\nv_mul_f32 v{ph}, {mulc}, v{th}\nv_exp_f32 v{e}, v{e}\nv_fract_f32 v{ph}, v{ph}")
    for k, (d, mulc) in enumerate(dst):
        a(f"v_cos_f32 v{d}, v{U[k]+1}\nv_sin_f32 v{d+1}, v{U[k]+1}")
    cmuls([(Pa, q+4, q+2)])
    for k, (d, mulc) in enumerate(dst):
        a(f"v_mul_f32 v{d}, v{d}, v{U[k]}\nv_mul_f32 v{d+1}, v{d+1}, v{U[k]}")
    for k in range(0, 12, 2): a(f"v_pk_mul_f32 {p2(q+k)}, {p2(q+6+k)}, 1.0 op_sel_hi:[1,0]")
    a(f"v_mov_b32 v{CVT[7]}, 0x3f80")
    a(f"ds_write_addtid_b32 v{CVT[7]} offset:{288*41}")
    cmuls([(R[2], R[1], R[1]), (V[2], V[1], V[1]), (Pb, Pa, Wr)])
    emit([(0, Pa), (8, Pb)]); emit([(42, V[1]), (43, V[2])], neg=True)
    cmuls([(R[3], R[2], R[1]), (R[4], R[2], R[2]), (V[3], V[2], V[1]), (V[4], V[2], V[2]),
           (U[0], Pa, R[1]), (U[1], Pa, R[2]), (U[2], Pb, R[1]), (U[3], Pb, R[2])])
    emit([(1, U[0]), (2, U[1]), (9, U[2]), (10, U[3])]); emit([(44, V[3]), (45, V[4])], neg=True)
    cmuls([(R[5], R[4], R[1]), (R[6], R[4], R[2]), (R[7], R[4], R[3]),
           (V[5], V[4], V[1]), (V[6], V[4], V[2]), (V[7], V[4], V[3]), (V[8], V[4], V[4]),
           (U[0], Pa, R[3]), (U[1], Pa, R[4]), (U[2], Pb, R[3]), (U[3], Pb, R[4])])
    emit([(3, U[0]), (4, U[1]), (11, U[2]), (12, U[3])]); emit([(41+b, V[b]) for b in (5, 6, 7, 8)], neg=True)
    cmuls([(U[0], Pa, R[5]), (U[1], Pa, R[6]), (U[2], Pa, R[7]), (U[3], Pb, R[5]), (U[4], Pb, R[6]), (U[5], Pb, R[7])]
          + [(V[8+b], V[8], V[b]) for b in range(1, 8)] + [(U[6], Wr, Wr), (U[7], Pb, Wr)])
    W2, P2 = U[6], U[7]
    emit([(5, U[0]), (6, U[1]), (7, U[2]), (13, U[3]), (14, U[4]), (15, U[5])])
    cmuls([(Pa, Pb, W2), (U[0], P2, R[2]), (U[1], P2, R[4]), (U[2], P2, R[6])])
    cmuls([(Pb, P2, W2)])
    emit([(41+8+b, V[8+b]) for b in range(1, 8)], neg=True)
    emit([(16, P2), (17, U[0]), (18, U[1]), (19, U[2])])
    Pc, Pd = V[9], V[10]
    cmuls([(Pc, Pa, W2), (Pd, Pb, W2), (U[0], Pa, R[2]), (U[1], Pa, R[4]), (U[2], Pa, R[6]), (U[3], Pb, R[4])])
    emit([(20, Pa), (21, U[0]), (22, U[1]), (23, U[2]), (24, Pb), (25, U[3])])
    cmuls([(Pa, Pc, W2), (Pb, Pd, W2), (U[0], Pc, R[4]), (U[1], Pd, R[4])])
    emit([(26, Pc), (27, U[0]), (28, Pd), (29, U[1])])
    cmuls([(Pc, Pa, W2), (Pd, Pb, W2), (U[0], Pa, R[4]), (V[11], W2, W2)])
    emit([(30, Pa), (31, U[0]), (32, Pb)])
    W4 = V[11]
    cmuls([(Pa, Pc, W2), (U[0], Pb, W4), (U[1], Pc, W4), (U[2], Pd, W4)])
    emit([(33, Pc), (34, Pd)])
    cmuls([(U[3], Pa, W4), (U[4], U[0], W4)])
    emit([(35, Pa), (36, U[0]), (37, U[1]), (38, U[2])])
    emit([(39, U[3]), (40, U[4])])
    a("s_waitcnt lgkmcnt(0)")
    for ks in range(4):
        a.ds(f"ds_read_b128 {v(FR+16*ks+12,4)}, v7 offset:{288*41 + 64*ks}", ('fr', ks))
        for m in range(3):
            a.ds(f"ds_read_b128 {v(FR+16*ks+4*m,4)}, v7 offset:{288*16*m + 64*ks}", ('fr', ks))
    for ks in range(4):
        a.wait(lg=[('fr', ks)])
        for m in range(3):
            a(f"v_mfma_f32_16x16x32_bf16 {v(KACC+4*m,4)}, {v(FR+16*ks+4*m,4)}, {v(FR+16*ks+12,4)}, {v(KACC+4*m,4)}")
    a(f"""s_sub_u32 s69, s69, 1
    s_cmp_lg_u32 {sW}, 0
    s_cbranch_scc1 Lkg_n
    s_cmp_eq_u32 s69, 2
    s_cbranch_scc0 Lkg_f
    s_waitcnt vmcnt(0)
    s_mov_b32 exec_hi, 0x0fffffff""")
    for c in range(8):
        a(f"buffer_store_dwordx4 {v(RP+4*c,4)}, v190, {SWS}, s78 offen sc1")
        if c < 7: a("s_add_u32 s78, s78, 245760")
    a(f"""s_mov_b32 exec_hi, -1
    s_branch Lkg
    Lkg_f:
    s_cmp_eq_u32 s69, 1
    s_cbranch_scc0 Lkg_n
    s_lshl_b32 s70, s2, 7
    s_add_u32 s70, s70, {FL_AUX}
    s_waitcnt vmcnt(0)""")
    flag_store(a, "s70", 190, 191)
    a("""Lkg_n:
    s_cmp_lg_u32 s69, 0
    s_cbranch_scc1 Lkg""")
    stamp(a, 'tables', True)
    if TOUCHW2:
        a(f"""v_lshlrev_b32 v252, 7, v0
        s_and_b32 s70, s2, 1
        s_mul_i32 s70, s70, {4*245760}
        s_lshr_b32 s71, s2, 3
        s_mul_i32 s71, s71, 30720
        s_add_u32 s70, s70, s71
        s_mul_i32 s71, {sW}, 10240
        s_add_u32 s70, s70, s71
        s_add_u32 s70, s70, {W2P}
        buffer_load_dword v250, v252, {SWS}, s70 offen sc1
        s_add_u32 s70, s70, 8192
        s_mov_b64 exec, 0xffff
        buffer_load_dword v250, v252, {SWS}, s70 offen sc1
        s_mov_b64 exec, -1""")
    go_wait(a, 20)
    u_issue(a)
    stamp(a, 'aux seen', True)
    a(f"""v_lshrrev_b32 v4, 4, v0
    v_lshrrev_b32 v8, 1, v4
    v_and_b32 v9, 1, v4
    v_lshlrev_b32 v10, 8, v8
    v_lshl_add_u32 v10, v6, 4, v10
    v_lshl_add_u32 v10, v9, 3, v10
    v_add_u32 v10, {sKB}, v10
    v_lshlrev_b32 v11, 7, v4
    v_add_u32 v11, 512, v11
    v_sub_u32 v12, 3, v8
    v_lshlrev_b32 v12, v12, v6
    v_add_u32 v11, v11, v12
    v_add_u32 v11, {sKB}, v11
    v_mul_u32_u24 v12, 60, v8
    v_add_u32 v12, 4, v12
    v_add_u32 v12, v11, v12
    v_lshlrev_b32 v13, 7, v4
    v_lshl_add_u32 v13, v6, 1, v13
    v_add_u32 v13, {sKB}, v13
    v_mov_b32 v14, 0
    v_mov_b32 v15, {sKB}""")
    for i in range(6): a(f"v_cvt_pk_bf16_f32 v{16+i}, v{KACC+2*i}, v{KACC+2*i+1}")
    a(f"""ds_write_b64 v10, v[16:17] offset:{CVOFF}
    ds_write_b32 v11, v18 offset:{CVOFF}
    ds_write_b32 v12, v19 offset:{CVOFF}
    ds_write_b16 v13, v20 offset:{CVOFF+1024}
    ds_write_b16_d16_hi v13, v20 offset:{CVOFF+1024+32}
    ds_write_b16 v13, v21 offset:{CVOFF+1024+64}
    ds_write_b16_d16_hi v13, v21 offset:{CVOFF+1024+96}
    ds_write_b32 v15, v14 offset:{CVOFF-4}
    v_and_b32 v8, 31, v0
    v_lshl_add_u32 v9, v8, 4, {sKB}
    v_lshl_add_u32 v10, v8, 3, {sKB}
    v_min_u32 v11, 1, v8
    v_lshl_add_u32 v11, v11, 1, v10
    v_lshl_add_u32 v12, v0, 2, {sKB}
    v_lshl_add_u32 v13, v0, 1, {sKB}
    s_mul_i32 s69, {sW}, {KSTR}
    s_add_u32 s69, s69, {KB0}
    v_lshl_add_u32 v14, v0, 4, s69
    v_mov_b32 v40, 0
    v_mov_b32 v41, 0
    v_mov_b32 v42, 0
    v_mov_b32 v43, 0
    s_waitcnt lgkmcnt(0)
    ds_read_b128 v[16:19], v9 offset:{CVOFF}
    ds_read_b32 v20, v9 offset:{CVOFF-4}
    ds_read_b64 v[22:23], v10 offset:{CVOFF+512}
    ds_read_b32 v24, v10 offset:{CVOFF+512+8}
    ds_read_u16 v25, v11 offset:{CVOFF+512-2}
    ds_read_b32 v26, v12 offset:{CVOFF+768}
    ds_read_b32 v27, v12 offset:{CVOFF+768+4}
    ds_read_u16 v28, v13 offset:{CVOFF+1024}
    ds_read_u16 v60, v13 offset:{CVOFF+1024+2}
    ds_read_u16 v29, v13 offset:{CVOFF+1024+128}
    ds_read_u16 v61, v13 offset:{CVOFF+1024+130}
    s_mov_b32 s70, 0xffff
    s_mov_b32 s71, 0x01000100
    s_mov_b32 s72, 0x03020302
    s_mov_b32 s75, 0x05040100
    v_and_b32 v30, 1, v0
    v_mul_u32_u24 v31, 0x0404, v30
    v_lshlrev_b32 v30, 16, v31
    v_add_u32 v30, 0x01000504, v30
    v_add_u32 v31, 0x01000100, v31
    s_mov_b64 exec, 0xff
    ds_write_b128 v14, v[40:43]
    ds_write_b128 v14, v[40:43] offset:{K1OFF}
    s_mov_b64 exec, 0xffffffff
    s_waitcnt lgkmcnt(2)
    v_alignbit_b32 v32, v19, v19, 16
    v_alignbit_b32 v33, v18, v18, 16
    v_alignbit_b32 v34, v17, v17, 16
    v_alignbit_b32 v35, v16, v16, 16
    v_bfi_b32 v36, s70, v19, v18
    v_bfi_b32 v37, s70, v18, v17
    v_bfi_b32 v38, s70, v17, v16
    v_bfi_b32 v39, s70, v16, v20
    ds_write_b128 v14, v[32:35] offset:{K1OFF+128}
    ds_write_b128 v14, v[36:39] offset:128
    v_bfi_b32 v44, s70, v24, v23
    v_perm_b32 v45, v23, v23, s71
    v_bfi_b32 v46, s70, v23, v22
    v_perm_b32 v47, v22, v22, s71
    v_alignbit_b32 v48, v23, v23, 16
    v_mov_b32 v49, v45
    v_alignbit_b32 v50, v22, v22, 16
    v_perm_b32 v51, v25, v22, s75
    ds_write_b128 v14, v[44:47] offset:{K1OFF+128+512}
    ds_write_b128 v14, v[48:51] offset:{128+512}
    s_mov_b64 exec, -1
    v_perm_b32 v64, v27, v27, s71
    v_perm_b32 v65, v26, v26, s72
    v_alignbit_b32 v66, v26, v26, 16
    v_perm_b32 v67, v26, v26, s71
    v_bfi_b32 v68, s70, v27, v26
    v_mov_b32 v69, v65
    v_mov_b32 v70, v67
    v_mov_b32 v71, v67
    ds_write_b128 v14, v[64:67] offset:{K1OFF+128+1024}
    ds_write_b128 v14, v[68:71] offset:{128+1024}""")
    for k, src in enumerate((28, 29)):
        b = 72 + 8*k; s1 = 60 + k
        a(f"""v_perm_b32 v{b}, v{s1}, v{s1}, s71
        v_perm_b32 v{b+1}, v{s1}, v{src}, v30
        v_perm_b32 v{b+2}, v{src}, v{src}, s71
        v_perm_b32 v{b+5}, v{s1}, v{src}, v31
        v_mov_b32 v{b+3}, v{b+2}
        v_mov_b32 v{b+4}, v{b}
        v_mov_b32 v{b+6}, v{b+2}
        v_mov_b32 v{b+7}, v{b+2}
        ds_write_b128 v14, {v(b,4)} offset:{K1OFF+128+2048+1024*k}
        ds_write_b128 v14, {v(b+4,4)} offset:{128+2048+1024*k}""")
    a.vm.clear(); a.lg.clear()

def aux(a):
    sI = "s54"
    sX8, sJ = "s55", "s56"
    a("Laux:")
    X = 16
    TB = 56
    TB2 = 212
    TM = 96
    CS = 116
    TP = 244
    def blk_addr(sidx, sld, sst):
        a(f"""s_mul_i32 s70, {sidx}, 6554
        s_lshr_b32 s70, s70, 16
        s_mul_i32 s71, s70, 10
        s_sub_u32 s71, {sidx}, s71
        s_lshr_b32 s72, {sX8}, 1
        s_lshl_b32 s72, s72, 3
        s_add_u32 s70, s70, s72
        s_mul_i32 {sld}, s70, {64*1280}
        s_lshl_b32 s72, s71, 7
        s_add_u32 {sld}, {sld}, s72
        s_lshl_b32 {sst}, s71, 18
        s_lshl_b32 s72, s70, 7
        s_add_u32 {sst}, {sst}, s72
        s_add_u32 {sst}, {sst}, {XNT}""")
    def blk_load(base, sld):
        for r in range(8):
            a(f"buffer_load_dwordx4 {v(base+4*r,4)}, v{(2,3,6)[r//3]}, {SX}, {sld} offen offset:{(r%3)*1280}")
    def blk_store(base, sst):
        for c in range(8):
            o = TP + 4*(c % 2)
            for k in range(4):
                a(f"v_perm_b32 v{o+k}, v{base+4*(2*k+1)+c//2}, v{base+4*(2*k)+c//2}, {'s75' if c % 2 else 's74'}")
            a(f"buffer_store_dwordx4 {v(o,4)}, v7, {SWS}, {sst} offen sc1")
            if c < 7: a(f"s_add_u32 {sst}, {sst}, 4096")
    a(f"""s_and_b32 {sX8}, {sI}, 7
    s_lshr_b32 {sJ}, {sI}, 3
    s_setprio {os.environ.get('PA','1')}
    s_lshr_b32 s81, 0xdb6, {sJ}
    s_and_b32 s81, s81, 1
    v_lshrrev_b32 v4, 3, v0
    v_and_b32 v5, 7, v0""")
    a(f"""s_cmp_eq_u32 s81, 0
    s_cbranch_scc1 Laux_nocs
    s_lshr_b32 s77, {sX8}, 1
    s_and_b32 s78, {sX8}, 1
    s_mul_i32 s78, s78, 12
    s_add_u32 s78, s78, {sJ}
    v_mul_u32_u24 v8, 0xc00, v4
    v_lshl_add_u32 v8, v5, 4, v8
    s_mul_i32 s72, s77, {160*3072}
    s_lshl_b32 s73, s78, 7
    s_add_u32 s72, s72, s73""")
    for n in range(20):
        a(f"buffer_load_dwordx4 {v(CS+4*n,4)}, v8, {SW1}, s72 offen")
        if n < 19: a(f"s_add_u32 s72, s72, 24576")
    a(f"""Laux_nocs:
    s_lshl_b32 s68, {sX8}, 8
    s_lshl_b32 s70, {sJ}, 3
    s_add_u32 s68, s68, s70
    s_mul_i32 s70, s68, 1280
    v_mul_u32_u24 v1, 0x500, v4
    v_lshl_add_u32 v1, v5, 4, v1""")
    for n in range(10):
        a(f"buffer_load_dwordx4 {v(X+4*n,4)}, v1, {SX}, s70 offen offset:{128*n}")
    a(f"""s_and_b32 s69, {sX8}, 1
    s_mul_i32 s69, s69, 40
    s_add_u32 s69, s69, {sJ}
    v_mul_u32_u24 v2, {8*1280}, v5
    v_lshl_add_u32 v2, v4, 4, v2
    v_add_u32 v3, {3*1280}, v2
    v_add_u32 v6, {6*1280}, v2
    v_lshlrev_b32 v7, 15, v4
    v_lshl_add_u32 v7, v5, 4, v7""")
    blk_addr("s69", "s73", "s79")
    blk_load(TB, "s73")
    a(f"""s_cmp_lt_u32 {sJ}, 24
    s_cbranch_scc1 Laux_b1
    s_add_u32 s69, s69, 8""")
    blk_addr("s69", "s73", "s80")
    blk_load(TB2, "s73")
    a("Laux_b1:")
    if TOUCH:
        a(f"""s_getpc_b64 s[62:63]
        Lpc:
        s_sub_u32 s62, s62, Lpc-{KN}
        s_subb_u32 s63, s63, 0
        v_min_u32 v8, 9, v0
        s_mul_i32 s70, {sJ}, 10
        v_add_u32 v8, s70, v8
        v_lshlrev_b32 v8, 7, v8
        v_min_u32 v8, Lend-{KN}, v8
        s_mov_b64 exec, 0x3ff
        global_load_dword v252, v8, s[62:63]
        s_mov_b64 exec, -1""")
    make_tag(a)
    a(f"""s_mov_b32 s74, 0x05040100
    s_mov_b32 s75, 0x07060302
    s_mov_b32 s70, 0x3f803f80
    v_and_b32 v8, 15, v0
    v_lshrrev_b32 v9, 1, v8
    v_and_b32 v10, 1, v8
    v_lshlrev_b32 v10, 4, v10
    v_mov_b32 v11, 0x3f80
    v_lshlrev_b32 v11, v10, v11""")
    for k in range(4):
        a(f"v_cmp_eq_u32 vcc, {k}, v9\nv_cndmask_b32 v{88+k}, 0, v11, vcc")
    a(f"""s_lshl_b32 s76, {sI}, 7
    s_cmp_eq_u32 s81, 0
    s_cbranch_scc1 Laux_nocs1
    s_waitcnt vmcnt({18+TOUCH})""")
    for n in range(20):
        a(f"v_mfma_f32_16x16x32_bf16 v[112:115], v[88:91], {v(CS+4*n,4)}, {'0' if n == 0 else 'v[112:115]'}")
    for k in range(4):
        a(f"v_add_f32_dpp v{112+k}, v{112+k}, v{112+k} row_ror:8 row_mask:0xf bank_mask:0xf")
    a(f"""v_lshrrev_b32 v9, 4, v0
    v_lshlrev_b32 v8, 5, v5
    v_lshl_add_u32 v8, v9, 4, v8
    s_lshl_b32 s72, s78, 8
    s_mul_i32 s73, s77, 6144
    s_add_u32 s72, s72, s73
    s_add_u32 s72, s72, {CSUM}
    s_mov_b64 exec, 0x00ff00ff
    buffer_store_dwordx4 v[112:115], v8, {SWS}, s72 offen sc1
    s_mov_b64 exec, -1
    s_waitcnt vmcnt({9+TOUCH})
    s_branch Laux_w
    Laux_nocs1:
    s_waitcnt vmcnt({16+TOUCH})
    s_cmp_ge_u32 {sJ}, 24
    s_cbranch_scc1 Laux_w
    s_waitcnt vmcnt({8+TOUCH})
    Laux_w:""")
    stamp_reset(1); stamp(a, 'aux loads')
    for k in range(4): a(f"v_dot2_f32_bf16 v{8+k}, v{X+k}, s70, 0")
    for k in range(4): a(f"v_dot2_f32_bf16 v{12+k}, v{X+k}, v{X+k}, 0")
    for n in range(1, 10):
        for k in range(4): a(f"v_dot2_f32_bf16 v{8+k}, v{X+4*n+k}, s70, v{8+k}")
        for k in range(4): a(f"v_dot2_f32_bf16 v{12+k}, v{X+4*n+k}, v{X+4*n+k}, v{12+k}")
    INV640 = 0x3ACCCCCD
    def red8(rs):
        for t in ("v_add_f32 v{r}, v{r}, v{r1}", "v_add_f32 v{r2}, v{r2}, v{r3}", "v_add_f32 v{r}, v{r}, v{r2}",
                  "v_add_f32_dpp v{r}, v{r}, v{r} quad_perm:[1,0,3,2] row_mask:0xf bank_mask:0xf",
                  "v_add_f32_dpp v{r}, v{r}, v{r} quad_perm:[2,3,0,1] row_mask:0xf bank_mask:0xf",
                  "v_add_f32_dpp v{r}, v{r}, v{r} row_half_mirror row_mask:0xf bank_mask:0xf",
                  "v_mul_f32 v{r}, %d, v{r}" % INV640):
            for r in rs: a(t.format(r=r, r1=r+1, r2=r+2, r3=r+3))
    red8([8, 12])
    a("""v_mul_f32 v9, v8, v8
    v_sub_f32 v12, v12, v9
    v_mul_f32 v10, 0x41800000, v12
    v_sub_f32 v8, 0, v8
    v_cmp_nle_f32 vcc, v9, v10
    s_cbranch_vccz Laux_var
    v_mov_b32 v9, v8""")
    for n in range(10):
        t = TM + 8*(n % 2)
        for k in range(4):
            a(f"v_lshlrev_b32 v{t+2*k}, 16, v{X+4*n+k}\nv_and_b32 v{t+2*k+1}, 0xffff0000, v{X+4*n+k}")
        for k in range(4): a(f"v_pk_add_f32 {v(t+2*k,2)}, {v(t+2*k,2)}, v[8:9]")
        for k in range(4):
            if n == 0 and k < 2: a(f"v_pk_mul_f32 {v(12+2*k,2)}, {v(t+2*k,2)}, {v(t+2*k,2)}")
            else: a(f"v_pk_fma_f32 {v(12+2*(k%2),2)}, {v(t+2*k,2)}, {v(t+2*k,2)}, {v(12+2*(k%2),2)}")
    red8([12])
    a(f"""Laux_var:
    v_cvt_pk_bf16_f32 v9, v12, v12
    v_and_b32 v9, 0xffff0000, v9
    v_add_f32 v9, 0x3727C5AC, v9
    v_cvt_pk_bf16_f32 v9, v9, v9
    v_and_b32 v9, 0xffff0000, v9
    v_sqrt_f32 v9, v9
    v_cvt_pk_bf16_f32 v9, v8, v9
    v_lshlrev_b32 v12, 2, v4
    s_lshl_b32 s70, s68, 2
    s_add_u32 s70, s70, {STATS}
    s_mov_b32 exec_lo, 0x01010101
    s_mov_b32 exec_hi, 0x01010101
    buffer_store_dword v9, v12, {SWS}, s70 offen sc1
    s_mov_b64 exec, -1
    s_waitcnt vmcnt(1)
    s_cmp_eq_u32 s81, 0
    s_cbranch_scc1 Laux_w2
    s_waitcnt vmcnt(2)
    Laux_w2:""".replace("s_waitcnt vmcnt(1)\n    s_cmp_eq_u32 s81, 0\n    s_cbranch_scc1 Laux_w2\n    s_waitcnt vmcnt(2)\n    Laux_w2:", "s_waitcnt vmcnt(1)"))
    TQ = 116
    for c in range(8):
        for k in range(4):
            a(f"v_perm_b32 v{TQ+4*c+k}, v{TB+4*(2*k+1)+c//2}, v{TB+4*(2*k)+c//2}, {'s75' if c % 2 else 's74'}")
    a(f"""s_add_u32 s70, s76, {FL_S}
    s_waitcnt vmcnt(0)""")
    flag_store(a, "s70", 8, 9)
    for c in range(8):
        a(f"buffer_store_dwordx4 {v(TQ+4*c,4)}, v7, {SWS}, s79 offen sc1")
        if c < 7: a(f"s_add_u32 s79, s79, 4096")
    a(f"""s_cmp_lt_u32 {sJ}, 24
    s_cbranch_scc1 Laux_b2""")
    blk_store(TB2, "s80")
    a(f"""Laux_b2:
    s_add_u32 s70, s76, {FL_C}
    s_waitcnt vmcnt(0)""")
    flag_store(a, "s70", 8, 9)
    stamp(a, 'stats flag')
    a(f"""s_cmp_lg_u32 {sJ}, 31
    s_cbranch_scc1 Laux_go""")
    poll256(a, FL_C, 128, r=20, slp=1)
    a(f"""s_lshl_b32 s70, {sX8}, 7
    s_add_u32 s70, s70, {GO}""")
    flag_store(a, "s70", 8, 9)
    a(f"Laux_go:\ns_setprio {os.environ.get('PS','0')}")
    go_wait(a, 20)
    u_issue(a)

def conv(a):
    sI = "s54"
    a("Lconv:")
    stamp_reset(4); stamp(a, 'Lconv', True)
    a(f"""v_and_b32 v10, 15, v0
    v_lshrrev_b32 v11, 4, v0
    v_and_b32 v12, 1, v0
    v_lshrrev_b32 v13, 1, v10
    v_mul_u32_u24 v14, {K1OFF}, v12
    v_sub_u32 v15, v13, v11
    v_lshl_add_u32 v14, v15, 4, v14
    v_add_u32 v14, {KB0+64}, v14
    v_and_b32 v12, 3, v0
    v_mul_u32_u24 v15, {UCS}, v12
    v_lshrrev_b32 v13, 2, v10
    v_lshl_add_u32 v15, v13, 7, v15
    v_lshl_add_u32 v15, v11, 4, v15
    v_add_u32 v15, {UPAD+48}, v15
    v_lshlrev_b32 v19, 7, v13
    v_lshl_add_u32 v19, v11, 5, v19
    v_lshl_add_u32 v19, v12, 2, v19
    v_mov_b32 v4, 0
    v_mov_b32 v5, 0
    v_lshlrev_b32 v6, 3, v0
    s_mul_i32 s70, {sW}, {UCS}
    v_add_u32 v6, s70, v6
    s_waitcnt lgkmcnt(0)
    s_barrier""")
    a("s_mov_b32 exec_hi, 0x00ffffff")
    for c in range(3): a(f"ds_write_b64 v6, v[4:5] offset:{c*USTR}")
    a("s_mov_b32 exec_hi, -1")
    NM, RS, UD = 44, 52, 226
    def unp(d, s): return f"v_lshlrev_b32 v{d}, 16, v{s}\nv_and_b32 v{d+1}, 0xffff0000, v{s}"
    a("s_waitcnt vmcnt(0)")
    for k in range(8): a(f"v_and_b32 v{RS+k}, 0xffff0000, v{UIN+k}")
    for k in range(8): a(f"v_rcp_f32 v{RS+k}, v{RS+k}\nv_lshlrev_b32 v{NM+k}, 16, v{UIN+k}")
    a("s_waitcnt lgkmcnt(0)\ns_barrier")
    for c in range(3):
        x = UIN + 8 + 4*c; t = 60; ud = UD + 8*c; o = c*USTR + UPAD
        for k in range(4): a(unp(t+2*k, x+k))
        for k in range(4): a(f"v_pk_add_f32 {v(t+2*k,2)}, {v(t+2*k,2)}, {v(NM+2*k,2)}")
        for k in range(4): a(f"v_cvt_pk_bf16_f32 v{x+k}, v{t+2*k}, v{t+2*k+1}")
        for k in range(4): a(unp(t+2*k, x+k))
        for k in range(4): a(f"v_pk_mul_f32 {v(t+2*k,2)}, {v(t+2*k,2)}, {v(RS+2*k,2)}")
        for k in range(4): a(f"v_cvt_pk_bf16_f32 v{x+k}, v{t+2*k}, v{t+2*k+1}")
        a(f"""v_cvt_pk_bf16_f32 v{68+2*c}, v{t+2}, v{t+3}
        v_cvt_pk_bf16_f32 v{69+2*c}, v{t+4}, v{t+5}
        ds_write_b128 v224, {v(x,4)} offset:{o+3*UCS-16}
        ds_write_b64 v224, {v(x,2)} offset:{o+UCS-8}
        ds_write_b64 v224, {v(x+2,2)} offset:{o+UCS}
        ds_write_b32 v224, v{x} offset:{o-4}
        ds_write_b64 v224, {v(68+2*c,2)} offset:{o}
        ds_write_b32 v224, v{x+3} offset:{o+8}
        ds_write_b32 v224, v{x} offset:{o+2*UCS-12}
        ds_write_b64 v224, {v(68+2*c,2)} offset:{o+2*UCS-8}
        ds_write_b32 v224, v{x+3} offset:{o+2*UCS}""")
    for c in range(3):
        x = UIN + 8 + 4*c; t = 60; ud = UD + 8*c
        for k in range(4): a(unp(t+2*k, x+k))
        sd = f"s{34+c+(c>1)*6}"
        a(f"s_bitcmp1_b32 {('s58','s59','s61')[c]}, 0\ns_cselect_b32 s70, 0, 16\ns_lshl_b32 {sd}, {sd}, s70\ns_and_b32 {sd}, {sd}, 0xffff0000")
        for k in range(8): a(f"v_mul_f32 v{t+k}, {sd}, v{t+k}")
        for k in range(4): a(f"v_cvt_pk_bf16_f32 v{76+k}, v{t+2*k}, v{t+2*k+1}")
        for k in range(4): a(unp(ud+2*k, 76+k))
    a("""s_waitcnt lgkmcnt(0)
    s_barrier""")
    stamp(a, 'u ready', True)
    YA = 20
    FS = [44, 132]
    def loop(name, parts):
        ad = [(16, 17), (8, 9)]
        tiles = [(pi, j) for pi, (c, J) in enumerate(parts) for j in J]
        acc = {t: YA + 4*k for k, t in enumerate(tiles)}
        base = []; n = 0
        for c, J in parts:
            base.append(n); n += 2*(max(J)+1)
        def reads(fs):
            out = []
            for pi, (c, J) in enumerate(parts):
                for k in range(max(J)+1):
                    out.append(f"ds_read_b128 {v(FS[fs]+4*(base[pi]+2*k),4)}, v{ad[pi][0]} offset:{512*k}")
                    out.append(f"ds_read_b128 {v(FS[fs]+4*(base[pi]+2*k+1),4)}, v{ad[pi][1]} offset:{512*k}")
                out.append(f"v_add_u32 v{ad[pi][0]}, 64, v{ad[pi][0]}")
                out.append(f"v_add_u32 v{ad[pi][1]}, -64, v{ad[pi][1]}")
            return out
        def mfmas(fs):
            rem = {t: list(range(t[1]+1)) for t in tiles}
            todo = []; last = []
            while any(rem.values()):
                cand = [t for t in tiles if rem[t] and t not in last[-GAP:]] or [t for t in tiles if rem[t] and t not in last[-1:]] or [t for t in tiles if rem[t]]
                t = max(cand, key=lambda t: len(rem[t]))
                todo.append((t, rem[t].pop(0))); last.append(t)
            return [f"v_mfma_f32_16x16x32_bf16 {v(acc[t],4)}, {v(FS[fs]+4*(base[t[0]]+2*p),4)}, {v(FS[fs]+4*(base[t[0]]+2*(t[1]-p)+1),4)}, {v(acc[t],4)}" for t, p in todo]
        for pi, (c, J) in enumerate(parts):
            if isinstance(c, str):
                a(f"s_mul_i32 s70, {c}, {KSTR}\ns_mul_i32 s71, {c}, {USTR}\nv_add_u32 v{ad[pi][0]}, s70, v14\nv_add_u32 v{ad[pi][1]}, s71, v15")
            else:
                a(f"v_add_u32 v{ad[pi][0]}, {c*KSTR}, v14\nv_add_u32 v{ad[pi][1]}, {c*USTR}, v15")
        for t in reads(0): a(t)
        for r in range(4*len(tiles)): a(f"v_mov_b32 v{YA+r}, 0")
        a(f"s_mov_b32 s64, 4\n{name}:")
        for fs in (0, 1):
            a("s_waitcnt lgkmcnt(0)")
            fill = reads(1-fs); ms = mfmas(fs)
            n = len(ms) - 4; done = 0
            for i, m in enumerate(ms):
                a(m)
                want = min(len(fill), -(-len(fill)*(i+1)//n))
                while done < want: a(fill[done]); done += 1
        a(f"""s_sub_u32 s64, s64, 1
        s_cmp_lg_u32 s64, 0
        s_cbranch_scc1 {name}
        s_waitcnt lgkmcnt(0)
        s_barrier""")
        for pi, (c, J) in enumerate(parts):
            if isinstance(c, str): a(f"s_lshl_b32 s70, {c}, 12\nv_add_u32 v{ad[pi][0]}, s70, v19")
            for j in J:
                r = acc[(pi, j)]
                off = 512*j + (0 if isinstance(c, str) else 4096*c)
                adr = ad[pi][0] if isinstance(c, str) else 19
                a(f"""v_cvt_pk_bf16_f32 v{r}, v{r}, v{r+1}
                v_cvt_pk_bf16_f32 v{r+2}, v{r+2}, v{r+3}
                ds_write_b32 v{adr}, v{r} offset:{off}
                ds_write_b32 v{adr}, v{r+2} offset:{off+16}""")
    a(f"""s_lshr_b32 s62, {sW}, 1
    s_cmp_eq_u32 {sW}, 1
    s_cbranch_scc1 Lcv_w1
    s_cmp_eq_u32 {sW}, 3
    s_cbranch_scc1 Lcv_w3""")
    loop("Lcv_l0", [("s62", [7, 6, 5, 1])])
    a("s_branch Lcv_bar2\nLcv_w1:")
    loop("Lcv_l1", [(0, [4, 3, 2, 0]), (1, [4, 3])])
    a("s_branch Lcv_bar2\nLcv_w3:\ns_cmp_eq_u32 s57, 1\ns_cbranch_scc1 Lcv_w3b")
    loop("Lcv_l3a", [(1, [2, 0]), (2, [7, 5, 2, 0])])
    a("s_branch Lcv_bar2\nLcv_w3b:")
    loop("Lcv_l3b", [(1, [2, 0]), (2, [6, 4, 3, 1])])
    a(f"""Lcv_bar2:
    s_waitcnt lgkmcnt(0)
    s_barrier""")
    stamp(a, 'conv done', True)
    for c in range(3): a.ds(f"ds_read_b128 {v(32+4*c,4)}, v224 offset:{c*4096}", ('y', c))
    a(f"""s_lshr_b32 s70, {sW}, 1
    s_xor_b32 s70, s70, s57
    s_cmp_eq_u32 s70, 0
    s_cselect_b32 s66, -1, 0
    s_cselect_b32 s67, 0, -1""")
    for c, sch in enumerate(("s58", "s59", "s61")):
        a.wait(lg=[('y', c)])
        y = 32 + 4*c; t = 48 + 8*c; ud = UD + 8*c
        for k in range(4): a(unp(t+2*k, y+k))
        for k in range(4): a(f"v_pk_add_f32 {v(t+2*k,2)}, {v(t+2*k,2)}, {v(ud+2*k,2)}")
        for k in range(4): a(f"v_cvt_pk_bf16_f32 v{y+k}, v{t+2*k}, v{t+2*k+1}")
        a(f"""s_lshl_b32 s70, {sch}, 12
        s_add_u32 s70, s70, {AT}""")
        if c == 2: a("s_mov_b64 exec, s[66:67]")
        a(f"buffer_store_dwordx4 {v(y,4)}, v224, {SWS}, s70 offen sc1")
        if c == 2: a("s_mov_b64 exec, -1")
    a("s_waitcnt vmcnt(0)")
    stamp(a, 'y stored'); stamp_flush(a, 50)
    a(f"""s_barrier
    s_cmp_eq_u32 {sW}, 1
    s_cbranch_scc1 Lcv_ep
    s_cmp_lg_u32 {sW}, 0
    s_cbranch_scc1 Lend
    s_lshl_b32 s70, {sI}, 7
    s_add_u32 s70, s70, {FL_Y}""")
    flag_store(a, "s70", 4, 5)
    a(f"""s_endpgm
    Lcv_ep:
    s_cmp_lg_u32 {sI}, 0
    s_cbranch_scc1 Lend""")
    if EXP != "nogemm": poll256(a, FL_ACT, 384, slp=8)
    poll256(a, FL_Y, 128, slp=8)
    flag_store(a, "0", 4, 5)
    a("s_endpgm")

HEADER = open(os.path.join(os.path.dirname(os.path.abspath(__file__)), "..", "cdna_kernels",
              "parallel_sum__ssm_conv_s4__dense_activation_mish__prompt.s.ref")).read().split("; Override")[0]

def build():
    a = Asm()
    prologue(a)
    gemm(a)
    a.vm.clear(); a.lg.clear()
    ssm(a)
    a("Lend:\ns_endpgm")
    body = a.finalize()
    return f"""{HEADER}; @launch grid=(512,1,1) block=(256,1,1) lds=81920
.amdgcn_target "amdgcn-amd-amdhsa--gfx950"
.text
.globl {KN}
.p2align 8
.type {KN},@function
{KN}:
{body}.section .rodata,"a"
.p2align 6
.amdhsa_kernel {KN}
  .amdhsa_next_free_vgpr 256
  .amdhsa_next_free_sgpr 102
  .amdhsa_accum_offset 256
  .amdhsa_group_segment_fixed_size 0
  .amdhsa_kernarg_size 128
  .amdhsa_user_sgpr_count 2
  .amdhsa_user_sgpr_kernarg_segment_ptr 1
  .amdhsa_system_sgpr_workgroup_id_x 1
.end_amdhsa_kernel
"""

if __name__ == "__main__":
    out = sys.argv[1] if len(sys.argv) > 1 else "k.s"
    open(out, "w").write(build())
    print("wrote", out)
```

```python
import sys, os
sys.path.insert(0, os.path.dirname(os.path.abspath(__file__)))
from asmlib import Asm

KN = "parallel_sum__ssm_conv_s4__dense_activation_mish__prompt_kernel"

FL_S   = 0x0000 + 0x8000
FL_Y   = 0x10000
FL_ACT = 0x18000
STATS  = 0x30000
CSUM   = 0x34000
FL_C   = 0x70000
FL_AUX = 0x48000 + 0x20000
GO     = 0x1000
XNT    = 0x100000
AT     = 0x400000
W2P    = 0x700000
ACT    = 0xA00000
WS_SIZE= 0x1000000
LOG2E = 0x3FB8AA3B
SPIN_MAX = int(os.environ.get('SPIN_MAX', '20000'))
ACT_DELAY = int(os.environ.get('ACT_DELAY', '5'))
DIAG = int(os.environ.get("DIAG", "0"))
EXP = os.environ.get("EXP", "")
STAMP = 0x40000
DIRW2 = int(os.environ.get('DIRW2', '1'))
ROT = int(os.environ.get('ROT', '1'))
TOUCHW1 = int(os.environ.get('TOUCHW1', '0'))
TOUCHW2 = int(os.environ.get('TOUCHW2', '1'))
TLB = int(os.environ.get('TLB', '1'))
S1 = int(os.environ.get('S1', '4'))
C0 = int(os.environ.get('C0', '6'))
C1 = int(os.environ.get('C1', '2'))
C2 = int(os.environ.get('C2', '9'))
TOUCH = int(os.environ.get('TOUCH', '1'))
GAP = int(os.environ.get('GAP', '2'))

P = dict(x=16, Are=18, Aim=20, Bre=22, Bim=24, Cre=26, Cim=28, ldt=30, D=32, w1=36, b1=38, w2=40, out=42, dbg=44, ws=46)
def sp(n): return f"s[{P[n]}:{P[n]+1}]"
SX, SW1, SWS, S4 = "s[4:7]", "s[8:11]", "s[12:15]", "s[48:51]"
sW, sTAG = "s3", "s52"

_st = {"n": 0}
def stamp(a, name=None, wait=False):
    if not DIAG: return
    k = _st["n"]; _st["n"] += 1
    assert k < 10, k
    a(f"{'s_memtime' if os.environ.get('CYC') else 's_memrealtime'} s[{82+2*k}:{83+2*k}]")
    if wait: a("s_waitcnt lgkmcnt(0)")
def stamp_reset(n=0): _st["n"] = n
def stamp_flush(a, tmp):
    if not DIAG: return
    a("s_waitcnt lgkmcnt(0)")
    a(f"s_lshl_b32 s80, s2, 2\ns_add_u32 s80, s80, {sW}\ns_lshl_b32 s80, s80, 6\ns_add_u32 s80, s80, {STAMP}\nv_mov_b32 v{tmp+1}, 0\ns_mov_b64 exec, 1")
    for k in range(10):
        a(f"v_mov_b32 v{tmp}, s{82+2*k}\nbuffer_store_dword v{tmp}, v{tmp+1}, {SWS}, s80 offen offset:{4*k}\ns_nop 1")
    a("s_mov_b64 exec, -1")

def v(i, n=1): return f"v{i}" if n == 1 else f"v[{i}:{i+n-1}]"

def srd(a, base, ptr, size):
    a(f"""s_mov_b32 s{base}, s{P[ptr]}
    s_mov_b32 s{base+1}, s{P[ptr]+1}
    s_mov_b32 s{base+2}, {size}
    s_mov_b32 s{base+3}, 0x20000""")

def spin(a, load, cmp, scnt="s60", slp=4):
    L = a.label("Lspin"); Lok = a.label("Lok")
    a(cmp)
    a(f"s_cbranch_scc1 {Lok}")
    a(f"s_mov_b32 {scnt}, {SPIN_MAX}")
    a(f"{L}:")
    a(f"s_sleep {slp}")
    a(load)
    a("s_waitcnt vmcnt(0)")
    a(cmp)
    a(f"s_cbranch_scc1 {Lok}")
    a(f"s_sub_u32 {scnt}, {scnt}, 1")
    a(f"s_cmp_lg_u32 {scnt}, 0")
    a(f"s_cbranch_scc1 {L}")
    a(f"{Lok}:")

def cmpn(regs):
    dst = ["vcc", "s[62:63]", "s[64:65]", "s[66:67]"][:len(regs)]
    t = "\n".join(f"v_cmp_ne_u32 {d}, {sTAG}, v{r}" for d, r in reversed(list(zip(dst, regs))))
    for d in dst[1:]: t += f"\ns_or_b64 vcc, vcc, {d}"
    return t + "\ns_cmp_eq_u64 vcc, 0"

def poll256_issue(a, base, stride, r=4, s0=72):
    a(f"v_mul_u32_u24 v{r+4}, {stride}, v0")
    for n in range(4): a(f"s_mov_b32 s{s0+n}, {base + 64*stride*n}")
    ld = "\n".join(f"buffer_load_dword v{r+n}, v{r+4}, {SWS}, s{s0+n} offen sc1" for n in range(4))
    a(ld)
    return ld
def poll256(a, base, stride, slp=4, r=4):
    ld = poll256_issue(a, base, stride, r)
    a("s_waitcnt vmcnt(0)")
    spin(a, ld, cmpn([r, r+1, r+2, r+3]), slp=slp)

def go_issue(a, r, s="s75"):
    a(f"""v_mov_b32 v{r+1}, 0
    s_and_b32 {s}, s2, 7
    s_lshl_b32 {s}, {s}, 7
    s_add_u32 {s}, {s}, {GO}""")
    return f"buffer_load_dword v{r}, v{r+1}, {SWS}, {s} offen sc1"
def go_wait(a, r):
    ld = go_issue(a, r)
    a(ld); a("s_waitcnt vmcnt(0)")
    spin(a, ld, cmpn([r]), slp=3)

def flag_store(a, soff, t0, t1, track=None):
    a(f"""v_mov_b32 v{t0}, {sTAG}
    v_mov_b32 v{t1}, 0
    s_mov_b64 exec, 1""")
    txt = f"buffer_store_dword v{t0}, v{t1}, {SWS}, {soff} offen sc1"
    if track is not None: a.vmem(txt, track)
    else: a(txt)
    a("s_mov_b64 exec, -1")

def prologue(a):
    a(f"""s_cmp_ge_u32 s2, 512
    s_cbranch_scc1 Lend
    s_load_dwordx16 s[16:31], s[0:1], 0
    s_load_dwordx16 s[32:47], s[0:1], 64""")
    if DIAG:
        for k in range(82, 102): a(f"s_mov_b32 s{k}, 0")
    stamp(a, "start")
    a(f"""v_lshrrev_b32 v1, 6, v0
    v_and_b32 v0, 63, v0
    v_readfirstlane_b32 {sW}, v1
    s_waitcnt lgkmcnt(0)
    s_load_dword s53, {sp('ws')}, 0""")
    srd(a, 4, 'x', 2621440)
    srd(a, 8, 'w1', 1966080)
    srd(a, 12, 'ws', WS_SIZE)
    a("""s_cmp_lt_u32 s2, 256
    s_cbranch_scc1 Lssm""")

def make_tag(a):
    a(f"""s_waitcnt lgkmcnt(0)
    s_mul_i32 {sTAG}, s53, 0x9E3779B1
    s_add_u32 {sTAG}, {sTAG}, 0x7F4A7C15""")

def gemm(a):
    vX0, vX1, vW0, vW1 = 1, 2, 3, 4
    xr = [5, 6, 7, 8]
    wrl, wrh = 9, 10
    vAS = 11
    c1, c2, c3 = 12, 13, 14
    vT = 15
    EXT = 16
    T = [22, 23, 24, 25]
    OUT = 26
    EQ = 34
    A0, A1 = 38, 39
    SUMA = 22
    def accof(s): return ACC + 16*((s+1) % 2)
    WF = 40
    ACC = 64
    XF = 96
    sRB, sFP, sTH, sFH = "s54", "s55", "s56", "s57"
    sM, sSO, sAS, sT0 = "s58", "s59", "s61", "s68"
    if EXP == "nogemm": a("s_endpgm")
    a(f"""s_setprio {os.environ.get('PG0','2')}
    s_and_b32 s68, s2, 7
    s_lshr_b32 s69, s2, 3
    s_and_b32 s69, s69, 31
    s_lshr_b32 {sRB}, s68, 1
    s_lshl_b32 {sRB}, {sRB}, 3
    s_and_b32 s70, s69, 7
    s_add_u32 {sRB}, {sRB}, s70
    s_and_b32 {sFP}, s68, 1
    s_lshl_b32 {sFP}, {sFP}, 2
    s_lshr_b32 s70, s69, 3
    s_add_u32 {sFP}, {sFP}, s70
    s_lshl_b32 {sM}, {sW}, 11
    v_lshrrev_b32 v22, 3, v0
    s_lshl_b32 s70, {sW}, 4
    v_add_u32 v22, s70, v22
    v_lshrrev_b32 v23, 4, v0
    v_and_b32 v24, 7, v0
    v_xor_b32 v25, v24, v23
    s_lshl_b32 s71, {sRB}, 6
    v_add_u32 v26, s71, v22
    v_mul_u32_u24 v26, 0x500, v26
    v_lshl_add_u32 v{vX0}, v25, 4, v26
    v_xor_b32 v25, 4, v25
    v_lshl_add_u32 v{vX1}, v25, 4, v26
    v_add_u32 v{vX1}, {8*1280-1024}, v{vX1}
    v_and_b32 v23, 1, v23
    v_lshlrev_b32 v23, 2, v23
    v_xor_b32 v25, v24, v23
    v_mul_u32_u24 v26, 0xc00, v22
    v_lshl_add_u32 v{vW0}, v25, 4, v26
    s_mul_i32 s70, {sFP}, 384
    v_add_u32 v{vW0}, s70, v{vW0}
    v_add_u32 v{vW1}, {8*3072-1024}, v{vW0}""")

    a(f"""s_and_b32 s70, {sRB}, 7
    s_and_b32 s71, {sFP}, 3
    s_mul_i32 s71, s71, {3*ROT}
    s_mul_i32 s70, s70, {ROT}
    s_add_u32 s70, s70, s71
    s_cmp_ge_u32 s70, 10
    s_cselect_b32 s71, 10, 0
    s_sub_u32 s70, s70, s71""")
    for kc in range(10):
        a(f"""s_lshl_b32 s{16+kc}, s70, 7
        s_mul_i32 s{26+kc}, s70, 196608""")
        if kc < 9: a("s_add_u32 s70, s70, 1\ns_cmp_eq_u32 s70, 10\ns_cselect_b32 s70, 0, s70")

    def chunk_info(c):
        if c < 20:
            return ('X', 0, c//2) if c % 2 == 0 else ('W', 0, c//2)
        return ('W', 1 + (c-20)//10, (c-20) % 10)
    def dma_half(c, h):
        kind, s, kc = chunk_info(c)
        slot = c % 10
        if h == 0:
            a(f"s_add_u32 m0, {sM}, {slot*8192}")
            if kind == 'W' and s > 0 and kc == 0: a(f"v_add_u32 v{vW0}, 128, v{vW0}\nv_add_u32 v{vW1}, 128, v{vW1}")
        r, sr, so = ((vX0, vX1)[h], SX, 16+kc) if kind == 'X' else ((vW0, vW1)[h], SW1, 26+kc)
        a.vmem(f"buffer_load_dwordx4 v{r}, {sr}, s{so} offen {'offset:1024 ' if h else ''}lds", ('c', c))
    for c in range(10): dma_half(c, 0); dma_half(c, 1)

    srd(a, 48, 'out', 2621440)
    a(f"""s_and_b32 {sTH}, {sW}, 1
    s_lshr_b32 {sFH}, {sW}, 1
    v_and_b32 v22, 31, v0
    v_lshrrev_b32 v23, 5, v0
    v_lshrrev_b32 v24, 1, v22
    v_and_b32 v24, 7, v24
    s_lshl_b32 s70, {sTH}, 12
    v_lshl_add_u32 v25, v22, 7, s70""")
    for j in range(4):
        a(f"""v_add_u32 v26, {2*j}, v23
        v_xor_b32 v26, v26, v24
        v_lshl_add_u32 v{xr[j]}, v26, 4, v25""")
    a(f"""v_lshrrev_b32 v26, 4, v22
    s_lshl_b32 s70, {sTH}, 1
    v_add_u32 v26, s70, v26
    v_mul_u32_u24 v26, 0xc000, v26
    v_lshl_add_u32 v26, v23, 8, v26
    v_and_b32 v27, 15, v0
    v_lshl_add_u32 v{vAS}, v27, 4, v26
    v_lshrrev_b32 v24, 2, v27
    v_and_b32 v25, 3, v0
    v_lshrrev_b32 v26, 4, v0
    v_and_b32 v26, 1, v26
    v_lshlrev_b32 v26, 1, v26
    v_lshrrev_b32 v28, 1, v25
    v_add_u32 v26, v26, v28
    s_lshl_b32 s70, {sFH}, 2
    v_add_u32 v26, s70, v26
    v_lshrrev_b32 v28, 1, v24
    v_lshlrev_b32 v28, 2, v28
    v_xor_b32 v26, v26, v28
    v_lshl_add_u32 v28, v23, 3, v24
    v_lshlrev_b32 v28, 7, v28
    v_lshl_add_u32 v28, v26, 4, v28
    v_and_b32 v25, 1, v25
    v_lshl_add_u32 v{wrl}, v25, 3, v28
    v_add_u32 v{wrh}, 0x10000, v{wrl}
    v_add_u32 v{vT}, -1, v23
    s_mul_i32 {sAS}, {sRB}, 192
    s_mul_i32 s70, {sFP}, 6
    s_add_u32 {sAS}, {sAS}, s70
    s_add_u32 {sAS}, {sAS}, {sFH}
    s_lshl_b32 {sAS}, {sAS}, 10
    s_add_u32 {sAS}, {sAS}, {ACT}
    s_mul_i32 s81, {sRB}, 3072
    s_lshl_b32 s71, {sFP}, 7
    s_add_u32 s81, s81, s71
    s_add_u32 s81, s81, {FL_ACT}""")
    a(f"""v_mov_b32 v{EXT}, 0
    v_mov_b32 v{EXT+1}, 0
    v_and_b32 v24, 7, v0
    v_lshrrev_b32 v25, 2, v24
    v_and_b32 v24, 3, v24
    s_and_b32 s70, {sFP}, 3
    s_mul_i32 s70, s70, 3
    s_add_u32 s70, s70, 1
    v_add_u32 v25, s70, v25
    v_lshlrev_b32 v25, 3, v25
    v_lshl_add_u32 v25, v24, 1, v25
    s_lshr_b32 s70, {sFP}, 2
    v_add_u32 v25, s70, v25
    v_lshlrev_b32 v{EQ}, 7, v25
    s_mul_i32 s70, {sFP}, 192
    s_lshl_b32 s71, {sFH}, 5
    s_add_u32 s70, s70, s71
    v_add_u32 v24, s70, v22
    v_lshlrev_b32 v{EQ+1}, 2, v24
    v_lshlrev_b32 v24, 1, v24
    v_mul_u32_u24 v25, 6144, v23
    v_add_u32 v{EQ+1}, v{EQ+1}, v25
    v_lshl_add_u32 v{EQ+2}, v23, 7, v24
    v_mov_b32 v{EXT+3}, 0
    s_mov_b32 s69, 0x3f803f80""")
    a.vmem(f"global_load_short_d16_hi v{EXT+3}, v24, {sp('b1')}", 'b10')
    for r in range(22, 34): a(f"v_mov_b32 v{r}, 0")
    make_tag(a)

    wf_next = [0]
    def wfrag_alloc():
        r = WF + 4*(wf_next[0] % 6); wf_next[0] += 1; return r
    def read_w(c, j):
        slot = c % 10
        r = wfrag_alloc()
        base, off = (wrl, slot*8192) if slot < 8 else (wrh, (slot-8)*8192)
        a.ds(f"ds_read_b64_tr_b16 {v(r,2)}, v{base} offset:{off + 128*16*j}", ('w', c, j))
        a.ds(f"ds_read_b64_tr_b16 {v(r+2,2)}, v{base} offset:{off + 128*(16*j+4)}", ('w', c, j))
        return r
    def mfma1(acc, wfr, xfr, first):
        a(f"v_mfma_f32_32x32x16_bf16 {v(acc,16)}, {v(wfr,4)}, {v(xfr,4)}, {'0' if first else v(acc,16)}")

    side = []
    def run_side(n):
        for _ in range(n):
            if side: side.pop(0)()

    def mish_items(s):
        acc = accof(s)
        items = []
        for qd in range(4):
            R = [acc + 4*qd + k for k in range(4)]
            def f1(R=R):
                for k in range(4): a(f"v_mul_f32 v{T[k]}, v{c1}, v{R[k]}")
                for k in range(4): a(f"v_exp_f32 v{T[k]}, v{T[k]}")
                for k in range(4): a(f"v_add_f32 v{T[k]}, 1.0, v{T[k]}")
                for k in range(4): a(f"v_fma_f32 v{T[k]}, v{T[k]}, v{T[k]}, 1.0")
            def f2(R=R, qd=qd):
                for k in range(4): a(f"v_rcp_f32 v{T[k]}, v{T[k]}")
                for k in range(4): a(f"v_fma_f32 v{T[k]}, v{T[k]}, v{c2}, v{c3}")
                for k in range(4): a(f"v_mul_f32 v{T[k]}, v{T[k]}, v{R[k]}")
                a(f"v_cvt_pk_bf16_f32 v{OUT+2*qd}, v{T[0]}, v{T[1]}\nv_cvt_pk_bf16_f32 v{OUT+2*qd+1}, v{T[2]}, v{T[3]}")
                if qd % 2 == 1:
                    gp = qd // 2
                    a(f"s_add_u32 {sT0}, {sAS}, {2048*s}")
                    a.vmem(f"buffer_store_dwordx4 {v(OUT+4*gp,4)}, v{vAS}, {SWS}, {sT0} offen offset:{512*gp} sc1", ('act', s))
            items += [f1, f2]
        return items

    SPLIT = ("v_and_b32 v{q1}, 0xffff0000, v{q}", "v_sub_f32 v{q}, v{q}, v{q1}", "v_and_b32 v{q2}, 0xffff0000, v{q}",
             "v_sub_f32 v{q}, v{q}, v{q2}", "v_lshrrev_b32 v{q1}, 16, v{q1}", "v_lshrrev_b32 v{q}, 16, v{q}",
             "v_or_b32 v{q1}, v{q1}, v{q2}", "v_or_b32 v{q}, v{q}, v{b}", "v_and_b32 v{d0}, v{m}, v{q1}", "v_and_b32 v{d1}, v{m}, v{q}")
    SUM4 = ("v_add_f32 v{q}, v{q}, v{q1}", "v_add_f32 v{q2}, v{q2}, v{q3}", "v_add_f32 v{q}, v{q}, v{q2}")
    def local_stats():
        a.wait(vm=['b10'])
        for tmpl in SUM4 + ("v_mov_b32 v{q1}, v{q}", "v_permlane32_swap_b32 v{q}, v{q1}", "v_add_f32 v{q}, v{q}, v{q1}"):
            for q in (22, 26, 30): a(tmpl.format(q=q, q1=q+1, q2=q+2, q3=q+3))
        INV640 = 0x3ACCCCCD
        L = a.label("Lvar")
        a(f"""v_mul_f32 v22, {INV640}, v22
        v_mul_f32 v26, {INV640}, v26
        v_mul_f32 v23, v22, v22
        v_sub_f32 v26, v26, v23
        v_mul_f32 v24, 0x41800000, v26
        v_sub_f32 v22, 0, v22
        v_cmp_nle_f32 vcc, v23, v24
        s_cbranch_vccz {L}
        v_mov_b32 v26, 0
        v_mov_b32 v27, 0""")
        for r in range(XF, XF+160):
            a(f"""v_lshlrev_b32 v24, 16, v{r}
            v_and_b32 v25, 0xffff0000, v{r}
            v_add_f32 v24, v24, v22
            v_add_f32 v25, v25, v22
            v_fmac_f32 v26, v24, v24
            v_fmac_f32 v27, v25, v25""")
        a(f"""v_add_f32 v26, v26, v27
        v_mov_b32 v27, v26
        v_permlane32_swap_b32 v26, v27
        v_add_f32 v26, v26, v27
        v_mul_f32 v26, {INV640}, v26
        {L}:
        v_cvt_pk_bf16_f32 v27, v26, v26
        v_cvt_pk_bf16_f32 v{EXT+4}, v22, v22
        v_and_b32 v27, 0xffff0000, v27
        v_add_f32 v27, 0x3727C5AC, v27
        v_cvt_pk_bf16_f32 v27, v27, v27
        v_and_b32 v27, 0xffff0000, v27
        v_sqrt_f32 v27, v27
        v_cvt_pk_bf16_f32 v{EXT+5}, v22, v27
        v_and_b32 v{c3}, 0xffff0000, v{EXT+5}
        v_rcp_f32 v{c3}, v{c3}""")
        for tmpl in SPLIT: a(tmpl.format(q=30, q1=31, q2=32, b=EXT+3, d0=EXT+2, d1=EXT+3, m=vT))
        a(f"""v_mul_f32 v{c1}, {LOG2E}, v{c3}
        v_mul_f32 v{c2}, -2.0, v{c3}""")
    def ext_items():
        def l0():
            a(f"v_mov_b32 v26, 0\ns_mov_b32 s70, {CSUM}\ns_mov_b32 s71, {CSUM+12288}")
            for s in (1, 2):
                a.vmem(f"buffer_load_dword v{20+2*s}, v{EQ+1}, {SWS}, s70 offen offset:{256*s} sc1", 'ext')
                a.vmem(f"buffer_load_dword v{21+2*s}, v{EQ+1}, {SWS}, s71 offen offset:{256*s} sc1", 'ext')
            a.vmem(f"global_load_short_d16_hi v26, v{EQ+2}, {sp('b1')} offset:128", 'ext')
        return [l0]
    def ext_build():
        a.wait(vm=['ext'])
        a(f"v_and_b32 v27, v{vT}, v26\nv_xor_b32 v28, v27, v26")
        for tmpl in ("v_add_f32 v{q}, v{q}, v{q1}", "v_and_b32 v{q1}, 0xffff0000, v{q}", "v_sub_f32 v{q}, v{q}, v{q1}", "v_and_b32 v{d0}, 0xffff0000, v{q}",
                     "v_sub_f32 v{q}, v{q}, v{d0}", "v_lshrrev_b32 v{q1}, 16, v{q1}", "v_lshrrev_b32 v{q}, 16, v{q}",
                     "v_or_b32 v{d0}, v{q1}, v{d0}", "v_or_b32 v{d1}, v{q}, v{b}"):
            for s in (1, 2):
                q = 20 + 2*s
                a(tmpl.format(q=q, q1=q+1, b=26+s, d0=EQ+2*s-2, d1=EQ+2*s-1))
    def ext_mfma(s):
        acc = accof(s)
        if s: a(f"v_mov_b32 v{EXT+2}, v{EQ+2*s-2}\nv_mov_b32 v{EXT+3}, v{EQ+2*s-1}")
        a(f"v_mfma_f32_32x32x16_bf16 {v(acc,16)}, {v(EXT,4)}, {v(EXT+2,4)}, {v(acc,16)}")

    G2A = XF; NA = 12
    G2W = XF + 96
    G2ACC = WF
    G2X = XF + 136
    G2M = XF + 146
    vA0, vA1, vD2, w2l, w2h, vO = vX0, vX1, xr[0], xr[1], xr[2], xr[3]
    sA2, sW2, sM2 = "s72", "s73", "s74"
    def g2_setup_a():
        a(f"""v_lshlrev_b32 v{vA0}, 4, v0
        s_lshl_b32 s70, {sTH}, 1
        s_add_u32 s71, s70, {sFH}
        s_mul_i32 s71, s71, 49152
        s_xor_b32 s76, {sFH}, 1
        s_add_u32 s70, s70, s76
        s_mul_i32 s70, s70, 49152
        s_lshl_b32 s76, {sFH}, 10
        s_add_u32 s70, s70, s76
        s_add_u32 s71, s71, s76
        s_mul_i32 {sM2}, {sW}, 2560
        v_add_u32 v{vD2}, {sM2}, v{vA0}
        v_add_u32 v{vA1}, s70, v{vA0}
        v_add_u32 v{vA0}, s71, v{vA0}
        s_mul_i32 {sA2}, {sRB}, {192*1024}
        s_add_u32 {sA2}, {sA2}, {ACT}
        s_mul_i32 {sW2}, {sFP}, 245760
        s_add_u32 {sW2}, {sW2}, {W2P}""")
    def g2_setup_b():
        t0, t1 = A0, A1
        a(f"""v_lshrrev_b32 v{t0}, 5, v0
        v_lshlrev_b32 v{t0}, 4, v{t0}
        v_lshrrev_b32 v{t1}, 2, v0
        v_and_b32 v{t1}, 7, v{t1}
        v_add_u32 v{t0}, v{t0}, v{t1}
        s_lshl_b32 s70, {sFH}, 5
        v_add_u32 v{t0}, s70, v{t0}
        v_mul_u32_u24 v{t0}, 160, v{t0}
        v_and_b32 v{t1}, 3, v0
        v_lshl_add_u32 v{w2l}, v{t1}, 3, v{t0}
        v_add_u32 v{w2h}, 71680, v{w2l}
        s_lshl_b32 s70, {sTH}, 1
        s_add_u32 s70, s70, {sFH}
        s_lshl_b32 s70, s70, 4
        s_lshl_b32 s71, {sRB}, 6
        s_add_u32 s70, s70, s71
        v_and_b32 v{t0}, 15, v0
        v_add_u32 v{t0}, s70, v{t0}
        v_mul_u32_u24 v{t0}, 0x500, v{t0}
        v_lshrrev_b32 v{t1}, 4, v0
        v_lshl_add_u32 v{t0}, v{t1}, 3, v{t0}
        s_mul_i32 s70, {sFP}, 160
        v_add_u32 v{vO}, s70, v{t0}""")
    def g2_setup_c():
        a(f"""s_and_b32 s70, {sFP}, 3
        s_lshl_b32 s70, s70, 1
        s_add_u32 s70, s70, {sRB}
        s_mul_i32 s70, s70, {ROT}""")
        for p in range(8):
            a(f"""s_and_b32 s70, s70, 7
            s_mul_i32 s71, s70, 6144
            s_add_u32 s{16+p}, s71, {sA2}
            s_mul_i32 s71, s70, {192*1280 if DIRW2 else 30720}
            s_add_u32 s{26+p}, s71, {'0' if DIRW2 else sW2}
            s_add_u32 s70, s70, 1""")
    def g2_setup_d():
        a(f"""s_mov_b32 s8, s{P['w2']}
        s_mov_b32 s9, s{P['w2']+1}
        s_mul_i32 s70, {sW}, 160
        s_mul_i32 s71, {sFP}, 160""")
        for h, r in enumerate((vD2, vW0, vW1)):
            a(f"""v_add_u32 v{A0}, s70, v0
            v_add_u32 v{A0}, {64*h}, v{A0}
            v_mul_u32_u24 v{A1}, 6554, v{A0}
            v_lshrrev_b32 v{A1}, 16, v{A1}
            v_mul_u32_u24 v{r}, 10, v{A1}
            v_sub_u32 v{A0}, v{A0}, v{r}
            v_mul_u32_u24 v{A1}, 0x500, v{A1}
            v_lshl_add_u32 v{r}, v{A0}, 4, v{A1}
            v_add_u32 v{r}, s71, v{r}""")
            if h: a(f"v_add_u32 v{r}, {-1024*h}, v{r}")
    def st_sp(sg): return sg // 8, sg % 8
    def dma_w2_piece(sg, h):
        s2, p = st_sp(sg)
        if h == 0:
            a(f"s_add_u32 m0, {sM2}, {(sg % 8)*10240}")
            if s2 > 0 and p == 0:
                if DIRW2:
                    for r in (vD2, vW0, vW1): a(f"v_add_u32 v{r}, {64*1280}, v{r}")
                else: a(f"v_add_u32 v{vD2}, 10240, v{vD2}")
        if h == 2: a("s_mov_b64 exec, 0xffffffff")
        if DIRW2: a.vmem(f"buffer_load_dwordx4 v{(vD2, vW0, vW1)[h]}, {SW1}, s{26+p} offen offset:{1024*h} lds", ('d2', sg))
        else: a.vmem(f"buffer_load_dwordx4 v{vD2}, {SWS}, s{26+p} offen offset:{1024*h} sc1 lds", ('d2', sg))
        if h == 2: a("s_mov_b64 exec, -1")
    def load_act(sg):
        s2, p = st_sp(sg)
        r = G2A + 8*(sg % NA)
        if s2 > 0 and p == 0: a(f"v_add_u32 v{vA0}, 2048, v{vA0}\nv_add_u32 v{vA1}, 2048, v{vA1}")
        a.vmem(f"buffer_load_dwordx4 {v(r,4)}, v{vA0}, {SWS}, s{16+p} offen {os.environ.get('ASC','sc1')}", ('a2', sg))
        a.vmem(f"buffer_load_dwordx4 {v(r+4,4)}, v{vA1}, {SWS}, s{16+p} offen {os.environ.get('ASC','sc1')}", ('a2', sg))
    def pregs(s2): return [(XF, XF+1), (XF+94, XF+95), (G2M+4, G2M+5)][s2]
    def pa_ld(s2):
        pv, pa = pregs(s2)
        return f"buffer_load_dword v{pv}, v{pa}, {SWS}, s{78+s2} offen sc1"
    def poll_act_issue(s2):
        pv, pa = pregs(s2)
        a(f"""v_and_b32 v{pa}, 7, v0
        v_lshlrev_b32 v{pa}, 7, v{pa}
        s_mul_i32 s{78+s2}, {sRB}, 3072
        s_add_u32 s{78+s2}, s{78+s2}, {FL_ACT + 1024*s2}""")
        w0_issue(pa_ld(s2), ('pa', s2))
    def poll_act_check(s2):
        w0_check(pa_ld(s2), [pregs(s2)[0]], ('pa', s2))
    def w0_issue(ld, tag):
        L = a.label("Lw0")
        a(f"s_cmp_lg_u32 {sW}, 0\ns_cbranch_scc1 {L}")
        a(ld)
        a(f"{L}:")
        a.vm.append(('VIRT', tag))
    def w0_check(ld, regs, tag):
        L = a.label("Lw0")
        a(f"s_cmp_lg_u32 {sW}, 0\ns_cbranch_scc1 {L}")
        q = list(a.vm); d = dict(a.done)
        a.wait(vm=[('VIRT', tag)])
        a.vm[:] = [t for t in q if t != ('VIRT', tag)]; a.done.clear(); a.done.update(d)
        spin(a, ld, cmpn(regs))
        a(f"{L}:")
    flagged = set(); act_age = {}
    def pre_barrier(tags, lg="all"):
        tags = list(tags)
        for ss in range(3):
            if ss in flagged: continue
            if a.vm.count(('act', ss)) + a.done.get(('act', ss), 0) == 2:
                act_age[ss] = act_age.get(ss, 0) + 1
                if act_age[ss] >= ACT_DELAY: tags.append(('act', ss))
        a.wait(vm=tags, lg=lg)
        a("s_barrier")
        for ss in range(3):
            if ss not in flagged and a.done.get(('act', ss), 0) == 2:
                a(f"s_add_u32 s70, s81, {1024*ss}")
                flag_store(a, "s70", A0, A1, ('fl', ss)); flagged.add(ss)

    steps = [(s, kc) for s in range(3) for kc in range(10)]
    next_dma = 10; w2_issued = 0; act_issued = 0
    pend = []
    for si, (s, kc) in enumerate(steps):
        cw = 2*kc + 1 if s == 0 else 10 + 10*s + kc
        pre_barrier([('c', cw)], lg=())
        if (DIAG == 1 and (s, kc) in ((0, 0), (1, 0), (1, 4), (2, 0))) or (DIAG == 2 and s == 1 and kc < 9) or (DIAG == 3 and s == 2 and kc != 0) or (DIAG == 5 and s == 0 and kc < 9): stamp(a, f'g1 {s},{kc}', True)
        dq = []
        if si >= 2:
            nrel = 2 if (s == 0 or (s == 1 and kc <= 1)) else 1
            for _ in range(nrel):
                if next_dma < 40:
                    dq += [(dma_half, next_dma, 0), (dma_half, next_dma, 1)]; next_dma += 1
        if s == 2 and kc >= 4:
            while w2_issued < 8 and -(-10240*(w2_issued+1)//8192) <= kc - 1:
                dq += [(dma_w2_piece, w2_issued, h) for h in range(3)]; w2_issued += 1
        def dma_some(n):
            for _ in range(n):
                if dq:
                    f, x1, x2 = dq.pop(0); f(x1, x2)
        prev = pend; pend = []
        acc = accof(s)
        xf = XF + 16*kc
        hi = (s == 0 and (2*kc) % 10 == 8)
        if hi:
            for j in range(4): a(f"v_add_u32 v{xr[j]}, 0x10000, v{xr[j]}")
        def rd(j):
            r = read_w(cw, j)
            if s == 0:
                slot = (2*kc) % 10
                off = slot*8192 if slot < 8 else (slot-8)*8192
                a.ds(f"ds_read_b128 {v(xf+4*j,4)}, v{xr[j]} offset:{off}", ('w', cw, j))
            pend.append((acc, r, xf + 4*j, kc == 0 and j == 0, ('w', cw, j)))
        def mf():
            if prev:
                m = prev.pop(0); a.wait(lg=[m[4]]); mfma1(*m[:4])
        per = -(-len(dq)//4)
        rd(0); rd(1)
        mf(); dma_some(per)
        mf(); rd(2); rd(3); dma_some(per)
        if hi:
            for j in range(4): a(f"v_add_u32 v{xr[j]}, 0xffff0000, v{xr[j]}")
        run_side(1)
        mf(); dma_some(per)
        run_side(2)
        mf(); dma_some(per)
        lds_ = f"buffer_load_dword v{A0}, v{EQ}, {SWS}, s75 offen sc1"
        ldw2 = "\n".join(f"s_mov_b32 s76, {FL_AUX + 8192*n}\nbuffer_load_dword v{XF+3+n}, v{XF+2}, {SWS}, s76 offen sc1" for n in range(4))
        if (s, kc) == (1, 7): g2_setup_a()
        if (s, kc) == (1, 8): g2_setup_b()
        if (s, kc) == (int(os.environ.get('PGS', '1')), 0): a(f"s_setprio {os.environ.get('PG','2')}")
        if s == 0:
            a.wait(lg="all")
            for m in pend:
                for k in range(4): a(f"v_dot2_f32_bf16 v{22+k}, v{m[2]+k}, s69, v{22+k}")
                for k in range(4): a(f"v_dot2_f32_bf16 v{26+k}, v{m[2]+k}, v{m[2]+k}, v{26+k}")
                for k in range(4): a(f"v_dot2_f32_bf16 v{30+k}, v{m[1]+k}, s69, v{30+k}")
        if (s, kc) == (0, 9): local_stats()
        if (s, kc) == (1, 0):
            ext_mfma(0); side.extend(mish_items(0))
        if (s, kc) == (1, 3):
            a(f"s_mov_b32 s75, {FL_S}")
            w0_issue(lds_, 'ps')
        if (s, kc) == (1, 5): w0_check(lds_, [A0], 'ps')
        if (s, kc) == (1, 6): run_side(100); side.extend(ext_items())
        if (s, kc) == (1, 9): ext_build()
        if (s, kc) == (2, 0):
            run_side(100); ext_mfma(1); side.extend(mish_items(1))
        if (s, kc) == (2, 1) and not DIRW2:
            a(f"v_lshlrev_b32 v{XF+2}, 7, v0")
            w0_issue(ldw2, 'pw')
        if (s, kc) == (2, 2):
            g2_setup_c()
            if DIRW2: g2_setup_d()
        if (s, kc) == (2, 3) and not DIRW2: w0_check(ldw2, [XF+3, XF+4, XF+5, XF+6], 'pw')
        if (s, kc) == (2, C0-2): poll_act_issue(0)
        if (s, kc) == (2, C0): poll_act_check(0)
        if s == 2 and kc > C0:
            n = min(8, 3*(kc-C0))
            while act_issued < n: load_act(act_issued); act_issued += 1

    a2pend = []
    XA = G2M + 8 - 10 + 10
    for sg in range(24):
        if DIAG == 6 and sg in (3, 4, 5): stamp(a, 'prewait')
        if DIAG == 6 and sg in (3, 4, 5):
            q = list(a.vm); d = dict(a.done)
            a.wait(vm=[('d2', sg), ('a2', sg)]); stamp(a, 'postwait')
            a.vm[:] = q; a.done.clear(); a.done.update(d)
        if DIAG == 7 and sg in (11, 12, 13): stamp(a, 'prewait')
        if DIAG == 7 and sg in (11, 12, 13):
            q = list(a.vm); d = dict(a.done)
            a.wait(vm=[('d2', sg), ('a2', sg)]); stamp(a, 'postwait')
            a.vm[:] = q; a.done.clear(); a.done.update(d)
        pre_barrier([('d2', sg), ('a2', sg)])
        if (DIAG == 6 and sg in (3, 4, 5)) or (DIAG == 7 and sg in (11, 12, 13)): stamp(a, 'postbar')
        if (DIAG == 1 and sg in (0, 8, 16, 23)) or (DIAG == 4 and sg < 9): stamp(a, f'g2 {sg}')
        dq = []
        if sg == 0:
            while w2_issued < 8:
                dq += [(w2_issued, h) for h in range(3)]; w2_issued += 1
        elif w2_issued < 24:
            dq += [(w2_issued, h) for h in range(3)]; w2_issued += 1
        wb = G2W + 20*(sg % 2)
        slot = sg % 8
        base, off = (w2l, slot*10240) if slot < 7 else (w2h, 0)
        prev = a2pend; a2pend = []
        if sg == 0:
            run_side(100)
            for m in pend:
                mfma1(*m[:4])
                if dq: dma_w2_piece(*dq.pop(0))
            pend = []
            ext_mfma(2)
            side.extend(mish_items(2))
        for dt in range(5):
            a.ds(f"ds_read_b64_tr_b16 {v(wb+4*dt,2)}, v{base} offset:{off + 32*dt}", ('w2', sg))
            a.ds(f"ds_read_b64_tr_b16 {v(wb+4*dt+2,2)}, v{base} offset:{off + 32*dt + 1280}", ('w2', sg))
            for _ in range(2):
                if prev: a(prev.pop(0))
            if dq: dma_w2_piece(*dq.pop(0))
            if dt in (0, 1, 2, 3): run_side(1)
        while dq: dma_w2_piece(*dq.pop(0))
        for dt in range(5):
            for tau in range(2):
                accr = G2ACC + 20*tau + 4*dt
                a2pend.append(f"v_mfma_f32_16x16x32_bf16 {v(accr,4)}, {v(wb+4*dt,4)}, {v(G2A+8*(sg%NA)+4*tau,4)}, {'0' if sg == 0 else v(accr,4)}")
        if sg >= 1:
            lim = min(sg + NA, 8 if sg <= C1 else 16 if sg <= C2 else 24, act_issued + 2)
            while act_issued < lim: load_act(act_issued); act_issued += 1
        if sg == C1 - 2: poll_act_issue(1)
        if sg == C1: poll_act_check(1)
        if sg == C2 - 2: poll_act_issue(2)
        if sg == C2: poll_act_check(2)
        if sg == 4:
            for dt in range(5):
                a.vmem(f"buffer_load_dwordx2 {v(G2X+2*dt,2)}, v{vO}, {SX}, 0 offen offset:{32*dt}", 'xfin')
        PV = G2M + 6
        ypoll = f"buffer_load_dword v{PV}, v{PV+1}, {SWS}, s75 offen sc1"
        if sg == 17:
            a(f"""v_and_b32 v{PV+1}, 31, v0
            v_lshlrev_b32 v{PV+1}, 7, v{PV+1}
            s_lshl_b32 s75, {sFP}, 12
            s_add_u32 s75, s75, {FL_Y}
            s_mul_i32 s70, {sW}, 160
            v_add_u32 v22, s70, v0
            v_lshrrev_b32 v23, 3, v22
            s_mul_i32 s70, {sFP}, 80
            v_add_u32 v23, s70, v23
            v_lshlrev_b32 v23, 12, v23
            v_and_b32 v22, 7, v22
            v_lshl_add_u32 v22, v22, 4, v23
            v_add_u32 v23, {32768-1024}, v22
            v_add_u32 v24, {65536-2048}, v22
            s_lshl_b32 s76, {sRB}, 7
            s_add_u32 s76, s76, {AT}
            v_lshrrev_b32 v25, 2, v0
            v_lshlrev_b32 v25, 7, v25
            v_and_b32 v26, 3, v0
            v_lshl_add_u32 v25, v26, 3, v25
            s_lshl_b32 s70, {sTH}, 1
            s_add_u32 s70, s70, {sFH}
            s_lshl_b32 s70, s70, 5
            v_add_u32 v25, s70, v25
            s_mul_i32 s70, {sW}, 5120
            s_xor_b32 s71, {sW}, 2
            s_mul_i32 s71, s71, 5120
            v_lshlrev_b32 v26, 4, v0
            v_add_u32 v27, s71, v26
            v_add_u32 v26, s70, v26""")
        if sg == 19: a.vmem(ypoll, 'py')
        def dma_at(tagit=True):
            f = a.vmem if tagit else (lambda t, g: a(t))
            a(f"s_mov_b32 m0, {sM2}")
            f(f"buffer_load_dwordx4 v22, {SWS}, s76 offen sc1 lds", 'at')
            f(f"buffer_load_dwordx4 v23, {SWS}, s76 offen offset:1024 sc1 lds", 'at')
            a("s_mov_b64 exec, 0xffffffff")
            f(f"buffer_load_dwordx4 v24, {SWS}, s76 offen offset:2048 sc1 lds", 'at')
            a("s_mov_b64 exec, -1")
        if sg == 21:
            a.wait(vm=['py'])
            a(cmpn([PV]))
            a("s_cselect_b32 s77, 1, 0")
            dma_at()
    a.wait(lg="all")
    for m in [m for i, m in enumerate(a2pend) if i % 2 == 1]: a(m)
    for m in [m for i, m in enumerate(a2pend) if i % 2 == 0]: a(m)
    for dt in range(5): a(f"ds_write_b128 v26, {v(G2ACC+20+4*dt,4)} offset:{10240+1024*dt}")
    L = a.label("Lyok")
    a(f"""s_cmp_eq_u32 s77, 1
    s_cbranch_scc1 {L}
    s_waitcnt vmcnt(0)
    v_not_b32 v{PV}, {sTAG}""")
    spin(a, ypoll, cmpn([PV]))
    dma_at(False)
    a(f"{L}:")
    a("s_waitcnt vmcnt(0) lgkmcnt(0)")
    a.vm.clear(); a.lg.clear()
    a("s_barrier")
    RX = G2A; AV = G2A + 20; TT = G2W
    for dt in range(5): a.ds(f"ds_read_b64_tr_b16 {v(AV+2*dt,2)}, v25 offset:{2048*dt}", ('av', dt))
    for dt in range(5): a.ds(f"ds_read_b128 {v(RX+4*dt,4)}, v27 offset:{10240+1024*dt}", ('rx', dt))
    def unp(d, s): return f"v_lshlrev_b32 v{d}, 16, v{s}\nv_and_b32 v{d+1}, 0xffff0000, v{s}"
    for dt in range(5):
        t = TT + 8*dt
        a(unp(t, G2X+2*dt)); a(unp(t+2, G2X+2*dt+1))
    for dt in range(5):
        t = TT + 8*dt; av = AV + 2*dt
        a.wait(lg=[('av', dt)])
        a(unp(t+4, av)); a(unp(t+6, av+1))
        a(f"""v_pk_add_f32 {v(t,2)}, {v(t,2)}, {v(t+4,2)}
        v_pk_add_f32 {v(t+2,2)}, {v(t+2,2)}, {v(t+6,2)}
        v_cvt_pk_bf16_f32 v{t+4}, v{t}, v{t+1}
        v_cvt_pk_bf16_f32 v{t+5}, v{t+2}, v{t+3}""")
        a(unp(t, t+4)); a(unp(t+2, t+5))
    for dt in range(5):
        t = TT + 8*dt; k = G2ACC + 4*dt; r = RX + 4*dt
        a.wait(lg=[('rx', dt)])
        a(f"""v_pk_add_f32 {v(k,2)}, {v(k,2)}, {v(r,2)}
        v_pk_add_f32 {v(k+2,2)}, {v(k+2,2)}, {v(r+2,2)}
        v_cvt_pk_bf16_f32 v{r}, v{k}, v{k+1}
        v_cvt_pk_bf16_f32 v{r+1}, v{k+2}, v{k+3}""")
        a(unp(k, r)); a(unp(k+2, r+1))
        a(f"""v_pk_add_f32 {v(t,2)}, {v(t,2)}, {v(k,2)}
        v_pk_add_f32 {v(t+2,2)}, {v(t+2,2)}, {v(k+2,2)}
        v_cvt_pk_bf16_f32 v{t+4}, v{t}, v{t+1}
        v_cvt_pk_bf16_f32 v{t+5}, v{t+2}, v{t+3}
        buffer_store_dwordx2 {v(t+4,2)}, v{vO}, {S4}, 0 offen offset:{32*dt}""")
    if DIAG: a("s_waitcnt vmcnt(0)")
    if DIAG == 1: stamp(a, 'end')
    stamp_flush(a, 22)
    a("s_endpgm")

UPAD = 448
UCS  = 4640
USTR = 4*UCS
KB0  = 3*USTR
K1OFF = 4224
KSTR = 2*K1OFF
CVOFF = 16
UIN = 200
def u_issue(a):
    a(f"""v_lshlrev_b32 v224, 4, v0
    s_lshl_b32 s70, {sW}, 10
    v_add_u32 v224, s70, v224
    v_lshlrev_b32 v225, 1, v224
    s_mov_b32 s70, {STATS}
    buffer_load_dwordx4 {v(UIN,4)}, v225, {SWS}, s70 offen sc1
    buffer_load_dwordx4 {v(UIN+4,4)}, v225, {SWS}, s70 offen offset:16 sc1""")
    for c, sch in enumerate(("s58", "s59", "s61")):
        a(f"""s_lshl_b32 s70, {sch}, 12
        s_add_u32 s70, s70, {XNT}
        buffer_load_dwordx4 {v(UIN+8+4*c,4)}, v224, {SWS}, s70 offen sc1""")

def ssm(a):
    sI = "s54"
    a(f"""Lssm:
    s_setprio 3
    s_mov_b32 {sI}, s2
    s_lshr_b32 s56, {sI}, 1
    s_mul_i32 s56, s56, 5
    s_and_b32 s57, {sI}, 1
    s_mul_i32 s58, s57, 3
    s_add_u32 s58, s58, s56
    s_add_u32 s59, s58, 1
    s_add_u32 s61, s56, 2""")
    for c, sch in enumerate(("s58", "s59", "s61")):
        a(f"s_lshl_b32 s70, {sch}, 1\ns_and_b32 s70, s70, -4\ns_load_dword s{34+c+(c>1)*6}, {sp('D')}, s70")
    a(f"""s_cmp_eq_u32 {sW}, 3
    s_cbranch_scc1 Laux""")
    kgen(a)
    a("s_branch Lconv")
    aux(a)
    conv(a)

def kgen(a):
    sCH, sKB = "s55", "s68"
    a(f"""s_cmp_eq_u32 {sW}, 0
    s_cselect_b32 {sCH}, s58, s59
    s_cmp_eq_u32 {sW}, 2
    s_cselect_b32 {sCH}, s61, {sCH}
    s_mul_i32 {sKB}, {sW}, {USTR}
    s_mul_i32 s70, {sCH}, 384
    v_mul_u32_u24 v1, 6, v0
    v_and_b32 v1, -4, v1
    v_add_u32 v1, s70, v1""")
    PR = 8
    names = ['Are', 'Aim', 'Bre', 'Bim', 'Cre', 'Cim']
    for k, n in enumerate(names):
        a.vmem(f"global_load_dwordx2 {v(30+2*k,2)}, v1, {sp(n)}", 'par')
    a(f"""s_lshl_b32 s70, {sCH}, 1
    s_and_b32 s70, s70, -4
    s_load_dword s69, {sp('ldt')}, s70
    v_and_b32 v2, 1, v0
    v_lshlrev_b32 v2, 4, v2""")
    a(f"""    s_mov_b32 m0, {sKB}
    v_and_b32 v6, 15, v0
    v_mul_u32_u24 v7, 288, v6
    v_lshrrev_b32 v4, 4, v0
    v_lshl_add_u32 v7, v4, 4, v7
    v_add_u32 v7, {sKB}, v7""")
    if TLB:
        a(f"""v_and_b32 v26, 7, v0
        v_lshlrev_b32 v26, 21, v26
        v_mov_b32 v27, 0
        s_mov_b64 exec, 0xff""")
        a.vmem(f"buffer_load_dword v106, v26, {SWS}, 0 offen offset:512", 'touch')
        a("s_mov_b64 exec, 1")
        for n in ('w2', 'out', 'b1'): a.vmem(f"global_load_dword v107, v27, {sp(n)}", 'touch')
        a("s_mov_b64 exec, -1")
    if TOUCHW1:
        a(f"""s_mul_i32 s70, {sW}, 80
        v_add_u32 v26, s70, v0
        v_add_u32 v27, 64, v26
        s_add_u32 s70, s70, 79
        v_min_u32 v27, s70, v27
        s_lshr_b32 s71, s2, 3
        s_mul_i32 s71, s71, {20*3072}
        s_and_b32 s70, s2, 1
        s_mul_i32 s70, s70, 1536
        s_add_u32 s71, s71, s70""")
        for r in (26, 27):
            a(f"""v_mul_u32_u24 v28, 5462, v{r}
            v_lshrrev_b32 v28, 16, v28
            v_mul_u32_u24 v29, 12, v28
            v_sub_u32 v29, v{r}, v29
            v_mul_u32_u24 v28, 0xc00, v28
            v_lshl_add_u32 v28, v29, 7, v28""")
            a.vmem(f"buffer_load_dword v{r}, v28, {SW1}, s71 offen", 'touch')
    RP = 192
    srd(a, 48, 'w2', 1966080)
    a(f"""s_mul_i32 s78, s2, {6*160}
    s_add_u32 s78, s78, {W2P}
    v_lshlrev_b32 v190, 4, v0
    s_cmp_lg_u32 {sW}, {7 if DIRW2 else 0}
    s_cbranch_scc1 Lkg_now2
    v_mul_u32_u24 v188, 6554, v0
    v_lshrrev_b32 v188, 16, v188
    v_mul_u32_u24 v189, 10, v188
    v_sub_u32 v189, v0, v189
    v_mul_u32_u24 v188, 0x500, v188
    v_lshl_add_u32 v188, v189, 4, v188
    s_mul_i32 s71, s2, {6*1280}
    s_mov_b32 exec_hi, 0x0fffffff""")
    for c in range(8):
        a(f"buffer_load_dwordx4 {v(RP+4*c,4)}, v188, {S4}, s71 offen offset:{160*c}")
    a("s_mov_b32 exec_hi, -1\nLkg_now2:")
    W2X = 0 if DIRW2 else 8
    def kwait(tag):
        q = list(a.vm); idx = max(k for k, t in enumerate(q) if t == tag); n = len(q) - 1 - idx
        L = a.label("Lkw")
        a(f"s_waitcnt vmcnt({n+W2X})\ns_cmp_eq_u32 {sW}, 0\ns_cbranch_scc1 {L}\ns_waitcnt vmcnt({n})\n{L}:")
    a(f"s_setprio {os.environ.get('PS','0')}")
    def W2T():
        a(f"""s_mul_i32 s70, {sW}, 80
        v_add_u32 v250, s70, v0
        v_add_u32 v251, 64, v250
        s_add_u32 s70, s70, 79
        v_min_u32 v251, s70, v251
        s_lshr_b32 s71, s2, 3
        s_mul_i32 s71, s71, {48*1280}
        s_and_b32 s70, s2, 1
        s_mul_i32 s70, s70, 640
        s_add_u32 s71, s71, s70""")
        for r in (250, 251):
            a(f"""v_mul_u32_u24 v252, 13108, v{r}
            v_lshrrev_b32 v252, 16, v252
            v_mul_u32_u24 v253, 5, v252
            v_sub_u32 v253, v{r}, v253
            v_mul_u32_u24 v252, 0x500, v252
            v_lshl_add_u32 v252, v253, 7, v252
            buffer_load_dword v{r}, v252, {S4}, s71 offen""")
    make_tag(a)
    stamp_reset(1)
    a(f"""s_bitcmp1_b32 {sCH}, 0
    s_cselect_b32 s70, 0, 16
    s_lshl_b32 s69, s69, s70
    s_and_b32 s69, s69, 0xffff0000
    v_mov_b32 v3, s69
    v_mul_f32 v4, {LOG2E}, v3
    s_mov_b32 s70, {LOG2E}
    v_fma_f32 v5, v3, s70, -v4
    v_fmac_f32 v5, 0x32A57060, v3
    v_exp_f32 v4, v4
    v_mul_f32 v5, 0x3F317218, v5
    v_fmac_f32 v4, v4, v5
    v_cvt_pk_bf16_f32 v4, v4, v4
    v_and_b32 v3, 0xffff0000, v4""")
    R = {r: 30 + 2*(r-1) for r in range(1, 8)}
    V = {b: 44 + 2*(b-1) for b in range(1, 16)}
    Wr, Pa, Pb = 74, 76, 78
    U = [80 + 2*i for i in range(8)]
    CVT = [96 + i for i in range(8)]
    zr, th = 104, 105
    FR = 112
    KACC = 176
    cv = [0]
    def p2(r): return f"v[{r}:{r+1}]"
    def cmuls(lst):
        if os.environ.get('NOPK'):
            for D, X, Y in lst: a(f"v_mul_f32 v{D}, v{X}, v{Y}\nv_mul_f32 v{D+1}, v{X}, v{Y+1}")
            for D, X, Y in lst: a(f"v_fma_f32 v{D}, -v{X+1}, v{Y+1}, v{D}\nv_fmac_f32 v{D+1}, v{X+1}, v{Y}")
            return
        for D, X, Y in lst:
            a(f"v_pk_mul_f32 {p2(D)}, {p2(X)}, {p2(Y)} op_sel:[0,0] op_sel_hi:[0,1]")
        for D, X, Y in lst:
            a(f"v_pk_fma_f32 {p2(D)}, {p2(X)}, {p2(Y)}, {p2(D)} op_sel:[1,1,0] op_sel_hi:[1,0,1] neg_lo:[1,0,0]")
    def emit(rows_regs, neg=False):
        ts = []
        for row, r in rows_regs:
            t = CVT[cv[0] % 8]; cv[0] += 1; ts.append((row, t))
            a(f"v_cvt_pk_bf16_f32 v{t}, v{r}, {'-' if neg else ''}v{r+1}")
        for row, t in ts:
            a(f"ds_write_addtid_b32 v{t} offset:{288*row}")
    for r in range(12): a(f"v_mov_b32 v{KACC+r}, 0")
    kwait('par')
    stamp(a, 'par', True)
    for k in range(6):
        lo, hi = 30+2*k, 31+2*k
        a(f"""v_alignbit_b32 v{lo}, v{hi}, v{lo}, v2
        v_lshrrev_b32 v{hi}, v2, v{hi}
        v_lshlrev_b32 v{PR+k}, 16, v{lo}
        v_and_b32 v{PR+6+k}, 0xffff0000, v{lo}
        v_lshlrev_b32 v{PR+12+k}, 16, v{hi}""")
    if TOUCHW2 == 2: W2T()
    a("s_mov_b32 s69, 3\nLkg:")
    a.vm.clear()
    q = PR
    a(f"""v_mul_f32 v{zr}, v3, v{q}
    v_mul_f32 v{th}, v3, v{q+1}
    v_mul_f32 v{q+2}, v3, v{q+2}
    v_mul_f32 v{q+3}, v3, v{q+3}
    v_mul_f32 v{zr}, {LOG2E}, v{zr}
    v_mul_f32 v{th}, 0.15915494, v{th}""")
    dst = [(R[1], None), (V[1], 0x41000000), (Wr, 0x43000000)]
    for k, (d, mulc) in enumerate(dst):
        e, ph = U[k], U[k]+1
        if mulc is None:
            a(f"v_exp_f32 v{e}, v{zr}\nv_fract_f32 v{ph}, v{th}")
        else:
            a(f"v_mul_f32 v{e}, {mulc}, v{zr}\nv_mul_f32 v{ph}, {mulc}, v{th}\nv_exp_f32 v{e}, v{e}\nv_fract_f32 v{ph}, v{ph}")
    for k, (d, mulc) in enumerate(dst):
        a(f"v_cos_f32 v{d}, v{U[k]+1}\nv_sin_f32 v{d+1}, v{U[k]+1}")
    cmuls([(Pa, q+4, q+2)])
    for k, (d, mulc) in enumerate(dst):
        a(f"v_mul_f32 v{d}, v{d}, v{U[k]}\nv_mul_f32 v{d+1}, v{d+1}, v{U[k]}")
    for k in range(0, 12, 2): a(f"v_pk_mul_f32 {p2(q+k)}, {p2(q+6+k)}, 1.0 op_sel_hi:[1,0]")
    a(f"v_mov_b32 v{CVT[7]}, 0x3f80")
    a(f"ds_write_addtid_b32 v{CVT[7]} offset:{288*41}")
    cmuls([(R[2], R[1], R[1]), (V[2], V[1], V[1]), (Pb, Pa, Wr)])
    emit([(0, Pa), (8, Pb)]); emit([(42, V[1]), (43, V[2])], neg=True)
    cmuls([(R[3], R[2], R[1]), (R[4], R[2], R[2]), (V[3], V[2], V[1]), (V[4], V[2], V[2]),
           (U[0], Pa, R[1]), (U[1], Pa, R[2]), (U[2], Pb, R[1]), (U[3], Pb, R[2])])
    emit([(1, U[0]), (2, U[1]), (9, U[2]), (10, U[3])]); emit([(44, V[3]), (45, V[4])], neg=True)
    cmuls([(R[5], R[4], R[1]), (R[6], R[4], R[2]), (R[7], R[4], R[3]),
           (V[5], V[4], V[1]), (V[6], V[4], V[2]), (V[7], V[4], V[3]), (V[8], V[4], V[4]),
           (U[0], Pa, R[3]), (U[1], Pa, R[4]), (U[2], Pb, R[3]), (U[3], Pb, R[4])])
    emit([(3, U[0]), (4, U[1]), (11, U[2]), (12, U[3])]); emit([(41+b, V[b]) for b in (5, 6, 7, 8)], neg=True)
    cmuls([(U[0], Pa, R[5]), (U[1], Pa, R[6]), (U[2], Pa, R[7]), (U[3], Pb, R[5]), (U[4], Pb, R[6]), (U[5], Pb, R[7])]
          + [(V[8+b], V[8], V[b]) for b in range(1, 8)] + [(U[6], Wr, Wr), (U[7], Pb, Wr)])
    W2, P2 = U[6], U[7]
    emit([(5, U[0]), (6, U[1]), (7, U[2]), (13, U[3]), (14, U[4]), (15, U[5])])
    cmuls([(Pa, Pb, W2), (U[0], P2, R[2]), (U[1], P2, R[4]), (U[2], P2, R[6])])
    cmuls([(Pb, P2, W2)])
    emit([(41+8+b, V[8+b]) for b in range(1, 8)], neg=True)
    emit([(16, P2), (17, U[0]), (18, U[1]), (19, U[2])])
    Pc, Pd = V[9], V[10]
    cmuls([(Pc, Pa, W2), (Pd, Pb, W2), (U[0], Pa, R[2]), (U[1], Pa, R[4]), (U[2], Pa, R[6]), (U[3], Pb, R[4])])
    emit([(20, Pa), (21, U[0]), (22, U[1]), (23, U[2]), (24, Pb), (25, U[3])])
    cmuls([(Pa, Pc, W2), (Pb, Pd, W2), (U[0], Pc, R[4]), (U[1], Pd, R[4])])
    emit([(26, Pc), (27, U[0]), (28, Pd), (29, U[1])])
    cmuls([(Pc, Pa, W2), (Pd, Pb, W2), (U[0], Pa, R[4]), (V[11], W2, W2)])
    emit([(30, Pa), (31, U[0]), (32, Pb)])
    W4 = V[11]
    cmuls([(Pa, Pc, W2), (U[0], Pb, W4), (U[1], Pc, W4), (U[2], Pd, W4)])
    emit([(33, Pc), (34, Pd)])
    cmuls([(U[3], Pa, W4), (U[4], U[0], W4)])
    emit([(35, Pa), (36, U[0]), (37, U[1]), (38, U[2])])
    emit([(39, U[3]), (40, U[4])])
    a("s_waitcnt lgkmcnt(0)")
    for ks in range(4):
        a.ds(f"ds_read_b128 {v(FR+16*ks+12,4)}, v7 offset:{288*41 + 64*ks}", ('fr', ks))
        for m in range(3):
            a.ds(f"ds_read_b128 {v(FR+16*ks+4*m,4)}, v7 offset:{288*16*m + 64*ks}", ('fr', ks))
    for ks in range(4):
        a.wait(lg=[('fr', ks)])
        for m in range(3):
            a(f"v_mfma_f32_16x16x32_bf16 {v(KACC+4*m,4)}, {v(FR+16*ks+4*m,4)}, {v(FR+16*ks+12,4)}, {v(KACC+4*m,4)}")
    a(f"""s_sub_u32 s69, s69, 1
    s_cmp_lg_u32 {sW}, {7 if DIRW2 else 0}
    s_cbranch_scc1 Lkg_n
    s_cmp_eq_u32 s69, 2
    s_cbranch_scc0 Lkg_f
    s_waitcnt vmcnt(0)
    s_mov_b32 exec_hi, 0x0fffffff""")
    for c in range(8):
        a(f"buffer_store_dwordx4 {v(RP+4*c,4)}, v190, {SWS}, s78 offen sc1")
        if c < 7: a("s_add_u32 s78, s78, 245760")
    a(f"""s_mov_b32 exec_hi, -1
    s_branch Lkg
    Lkg_f:
    s_cmp_eq_u32 s69, 1
    s_cbranch_scc0 Lkg_n
    s_lshl_b32 s70, s2, 7
    s_add_u32 s70, s70, {FL_AUX}
    s_waitcnt vmcnt(0)""")
    flag_store(a, "s70", 190, 191)
    a("""Lkg_n:
    s_cmp_lg_u32 s69, 0
    s_cbranch_scc1 Lkg""")
    stamp(a, 'tables', True)
    if TOUCHW2 == 1:
        W2T()
    go_wait(a, 20)
    u_issue(a)
    stamp(a, 'aux seen', True)
    a(f"""v_lshrrev_b32 v4, 4, v0
    v_lshrrev_b32 v8, 1, v4
    v_and_b32 v9, 1, v4
    v_lshlrev_b32 v10, 8, v8
    v_lshl_add_u32 v10, v6, 4, v10
    v_lshl_add_u32 v10, v9, 3, v10
    v_add_u32 v10, {sKB}, v10
    v_lshlrev_b32 v11, 7, v4
    v_add_u32 v11, 512, v11
    v_sub_u32 v12, 3, v8
    v_lshlrev_b32 v12, v12, v6
    v_add_u32 v11, v11, v12
    v_add_u32 v11, {sKB}, v11
    v_mul_u32_u24 v12, 60, v8
    v_add_u32 v12, 4, v12
    v_add_u32 v12, v11, v12
    v_lshlrev_b32 v13, 7, v4
    v_lshl_add_u32 v13, v6, 1, v13
    v_add_u32 v13, {sKB}, v13
    v_mov_b32 v14, 0
    v_mov_b32 v15, {sKB}""")
    for i in range(6): a(f"v_cvt_pk_bf16_f32 v{16+i}, v{KACC+2*i}, v{KACC+2*i+1}")
    a(f"""ds_write_b64 v10, v[16:17] offset:{CVOFF}
    ds_write_b32 v11, v18 offset:{CVOFF}
    ds_write_b32 v12, v19 offset:{CVOFF}
    ds_write_b16 v13, v20 offset:{CVOFF+1024}
    ds_write_b16_d16_hi v13, v20 offset:{CVOFF+1024+32}
    ds_write_b16 v13, v21 offset:{CVOFF+1024+64}
    ds_write_b16_d16_hi v13, v21 offset:{CVOFF+1024+96}
    ds_write_b32 v15, v14 offset:{CVOFF-4}
    v_and_b32 v8, 31, v0
    v_lshl_add_u32 v9, v8, 4, {sKB}
    v_lshl_add_u32 v10, v8, 3, {sKB}
    v_min_u32 v11, 1, v8
    v_lshl_add_u32 v11, v11, 1, v10
    v_lshl_add_u32 v12, v0, 2, {sKB}
    v_lshl_add_u32 v13, v0, 1, {sKB}
    s_mul_i32 s69, {sW}, {KSTR}
    s_add_u32 s69, s69, {KB0}
    v_lshl_add_u32 v14, v0, 4, s69
    v_mov_b32 v40, 0
    v_mov_b32 v41, 0
    v_mov_b32 v42, 0
    v_mov_b32 v43, 0
    s_waitcnt lgkmcnt(0)
    ds_read_b128 v[16:19], v9 offset:{CVOFF}
    ds_read_b32 v20, v9 offset:{CVOFF-4}
    ds_read_b64 v[22:23], v10 offset:{CVOFF+512}
    ds_read_b32 v24, v10 offset:{CVOFF+512+8}
    ds_read_u16 v25, v11 offset:{CVOFF+512-2}
    ds_read_b32 v26, v12 offset:{CVOFF+768}
    ds_read_b32 v27, v12 offset:{CVOFF+768+4}
    ds_read_u16 v28, v13 offset:{CVOFF+1024}
    ds_read_u16 v60, v13 offset:{CVOFF+1024+2}
    ds_read_u16 v29, v13 offset:{CVOFF+1024+128}
    ds_read_u16 v61, v13 offset:{CVOFF+1024+130}
    s_mov_b32 s70, 0xffff
    s_mov_b32 s71, 0x01000100
    s_mov_b32 s72, 0x03020302
    s_mov_b32 s75, 0x05040100
    v_and_b32 v30, 1, v0
    v_mul_u32_u24 v31, 0x0404, v30
    v_lshlrev_b32 v30, 16, v31
    v_add_u32 v30, 0x01000504, v30
    v_add_u32 v31, 0x01000100, v31
    s_mov_b64 exec, 0xff
    ds_write_b128 v14, v[40:43]
    ds_write_b128 v14, v[40:43] offset:{K1OFF}
    s_mov_b64 exec, 0xffffffff
    s_waitcnt lgkmcnt(2)
    v_alignbit_b32 v32, v19, v19, 16
    v_alignbit_b32 v33, v18, v18, 16
    v_alignbit_b32 v34, v17, v17, 16
    v_alignbit_b32 v35, v16, v16, 16
    v_bfi_b32 v36, s70, v19, v18
    v_bfi_b32 v37, s70, v18, v17
    v_bfi_b32 v38, s70, v17, v16
    v_bfi_b32 v39, s70, v16, v20
    ds_write_b128 v14, v[32:35] offset:{K1OFF+128}
    ds_write_b128 v14, v[36:39] offset:128
    v_bfi_b32 v44, s70, v24, v23
    v_perm_b32 v45, v23, v23, s71
    v_bfi_b32 v46, s70, v23, v22
    v_perm_b32 v47, v22, v22, s71
    v_alignbit_b32 v48, v23, v23, 16
    v_mov_b32 v49, v45
    v_alignbit_b32 v50, v22, v22, 16
    v_perm_b32 v51, v25, v22, s75
    ds_write_b128 v14, v[44:47] offset:{K1OFF+128+512}
    ds_write_b128 v14, v[48:51] offset:{128+512}
    s_mov_b64 exec, -1
    v_perm_b32 v64, v27, v27, s71
    v_perm_b32 v65, v26, v26, s72
    v_alignbit_b32 v66, v26, v26, 16
    v_perm_b32 v67, v26, v26, s71
    v_bfi_b32 v68, s70, v27, v26
    v_mov_b32 v69, v65
    v_mov_b32 v70, v67
    v_mov_b32 v71, v67
    ds_write_b128 v14, v[64:67] offset:{K1OFF+128+1024}
    ds_write_b128 v14, v[68:71] offset:{128+1024}""")
    for k, src in enumerate((28, 29)):
        b = 72 + 8*k; s1 = 60 + k
        a(f"""v_perm_b32 v{b}, v{s1}, v{s1}, s71
        v_perm_b32 v{b+1}, v{s1}, v{src}, v30
        v_perm_b32 v{b+2}, v{src}, v{src}, s71
        v_perm_b32 v{b+5}, v{s1}, v{src}, v31
        v_mov_b32 v{b+3}, v{b+2}
        v_mov_b32 v{b+4}, v{b}
        v_mov_b32 v{b+6}, v{b+2}
        v_mov_b32 v{b+7}, v{b+2}
        ds_write_b128 v14, {v(b,4)} offset:{K1OFF+128+2048+1024*k}
        ds_write_b128 v14, {v(b+4,4)} offset:{128+2048+1024*k}""")
    a.vm.clear(); a.lg.clear()

def aux(a):
    sI = "s54"
    sX8, sJ = "s55", "s56"
    a("Laux:")
    X = 16
    TB = 56
    TB2 = 212
    TM = 96
    CS = 116
    TP = 244
    def blk_addr(sidx, sld, sst):
        a(f"""s_mul_i32 s70, {sidx}, 6554
        s_lshr_b32 s70, s70, 16
        s_mul_i32 s71, s70, 10
        s_sub_u32 s71, {sidx}, s71
        s_lshr_b32 s72, {sX8}, 1
        s_lshl_b32 s72, s72, 3
        s_add_u32 s70, s70, s72
        s_mul_i32 {sld}, s70, {64*1280}
        s_lshl_b32 s72, s71, 7
        s_add_u32 {sld}, {sld}, s72
        s_lshl_b32 {sst}, s71, 18
        s_lshl_b32 s72, s70, 7
        s_add_u32 {sst}, {sst}, s72
        s_add_u32 {sst}, {sst}, {XNT}""")
    def blk_load(base, sld):
        for r in range(8):
            a(f"buffer_load_dwordx4 {v(base+4*r,4)}, v{(2,3,6)[r//3]}, {SX}, {sld} offen offset:{(r%3)*1280}")
    def blk_store(base, sst):
        for c in range(8):
            o = TP + 4*(c % 2)
            for k in range(4):
                a(f"v_perm_b32 v{o+k}, v{base+4*(2*k+1)+c//2}, v{base+4*(2*k)+c//2}, {'s75' if c % 2 else 's74'}")
            a(f"buffer_store_dwordx4 {v(o,4)}, v7, {SWS}, {sst} offen sc1")
            if c < 7: a(f"s_add_u32 {sst}, {sst}, 4096")
    a(f"""s_and_b32 {sX8}, {sI}, 7
    s_lshr_b32 {sJ}, {sI}, 3
    s_setprio {os.environ.get('PA','1')}
    s_lshr_b32 s81, 0xdb6, {sJ}
    s_and_b32 s81, s81, 1
    v_lshrrev_b32 v4, 3, v0
    v_and_b32 v5, 7, v0""")
    a(f"""s_cmp_eq_u32 s81, 0
    s_cbranch_scc1 Laux_nocs
    s_lshr_b32 s77, {sX8}, 1
    s_and_b32 s78, {sX8}, 1
    s_mul_i32 s78, s78, 12
    s_add_u32 s78, s78, {sJ}
    v_mul_u32_u24 v8, 0xc00, v4
    v_lshl_add_u32 v8, v5, 4, v8
    s_mul_i32 s72, s77, {160*3072}
    s_lshl_b32 s73, s78, 7
    s_add_u32 s72, s72, s73""")
    for n in range(20):
        a(f"buffer_load_dwordx4 {v(CS+4*n,4)}, v8, {SW1}, s72 offen")
        if n < 19: a(f"s_add_u32 s72, s72, 24576")
    a(f"""Laux_nocs:
    s_lshl_b32 s68, {sX8}, 8
    s_lshl_b32 s70, {sJ}, 3
    s_add_u32 s68, s68, s70
    s_mul_i32 s70, s68, 1280
    v_mul_u32_u24 v1, 0x500, v4
    v_lshl_add_u32 v1, v5, 4, v1""")
    for n in range(10):
        a(f"buffer_load_dwordx4 {v(X+4*n,4)}, v1, {SX}, s70 offen offset:{128*n}")
    a(f"""s_and_b32 s69, {sX8}, 1
    s_mul_i32 s69, s69, 40
    s_add_u32 s69, s69, {sJ}
    v_mul_u32_u24 v2, {8*1280}, v5
    v_lshl_add_u32 v2, v4, 4, v2
    v_add_u32 v3, {3*1280}, v2
    v_add_u32 v6, {6*1280}, v2
    v_lshlrev_b32 v7, 15, v4
    v_lshl_add_u32 v7, v5, 4, v7""")
    blk_addr("s69", "s73", "s79")
    blk_load(TB, "s73")
    a(f"""s_cmp_lt_u32 {sJ}, 24
    s_cbranch_scc1 Laux_b1
    s_add_u32 s69, s69, 8""")
    blk_addr("s69", "s73", "s80")
    blk_load(TB2, "s73")
    a("Laux_b1:")
    if TOUCH:
        a(f"""s_getpc_b64 s[62:63]
        Lpc:
        s_sub_u32 s62, s62, Lpc-{KN}
        s_subb_u32 s63, s63, 0
        v_min_u32 v8, 9, v0
        s_mul_i32 s70, {sJ}, 10
        v_add_u32 v8, s70, v8
        v_lshlrev_b32 v8, 7, v8
        v_min_u32 v8, Lend-{KN}, v8
        s_mov_b64 exec, 0x3ff
        global_load_dword v252, v8, s[62:63]
        s_mov_b64 exec, -1""")
    make_tag(a)
    a(f"""s_mov_b32 s74, 0x05040100
    s_mov_b32 s75, 0x07060302
    s_mov_b32 s70, 0x3f803f80
    v_and_b32 v8, 15, v0
    v_lshrrev_b32 v9, 1, v8
    v_and_b32 v10, 1, v8
    v_lshlrev_b32 v10, 4, v10
    v_mov_b32 v11, 0x3f80
    v_lshlrev_b32 v11, v10, v11""")
    for k in range(4):
        a(f"v_cmp_eq_u32 vcc, {k}, v9\nv_cndmask_b32 v{88+k}, 0, v11, vcc")
    a(f"""s_lshl_b32 s76, {sI}, 7
    s_cmp_eq_u32 s81, 0
    s_cbranch_scc1 Laux_nocs1
    s_waitcnt vmcnt({18+TOUCH})""")
    for n in range(20):
        a(f"v_mfma_f32_16x16x32_bf16 v[112:115], v[88:91], {v(CS+4*n,4)}, {'0' if n == 0 else 'v[112:115]'}")
    for k in range(4):
        a(f"v_add_f32_dpp v{112+k}, v{112+k}, v{112+k} row_ror:8 row_mask:0xf bank_mask:0xf")
    a(f"""v_lshrrev_b32 v9, 4, v0
    v_lshlrev_b32 v8, 5, v5
    v_lshl_add_u32 v8, v9, 4, v8
    s_lshl_b32 s72, s78, 8
    s_mul_i32 s73, s77, 6144
    s_add_u32 s72, s72, s73
    s_add_u32 s72, s72, {CSUM}
    s_mov_b64 exec, 0x00ff00ff
    buffer_store_dwordx4 v[112:115], v8, {SWS}, s72 offen sc1
    s_mov_b64 exec, -1
    s_waitcnt vmcnt({9+TOUCH})
    s_branch Laux_w
    Laux_nocs1:
    s_waitcnt vmcnt({16+TOUCH})
    s_cmp_ge_u32 {sJ}, 24
    s_cbranch_scc1 Laux_w
    s_waitcnt vmcnt({8+TOUCH})
    Laux_w:""")
    stamp_reset(1); stamp(a, 'aux loads')
    for k in range(4): a(f"v_dot2_f32_bf16 v{8+k}, v{X+k}, s70, 0")
    for k in range(4): a(f"v_dot2_f32_bf16 v{12+k}, v{X+k}, v{X+k}, 0")
    for n in range(1, 10):
        for k in range(4): a(f"v_dot2_f32_bf16 v{8+k}, v{X+4*n+k}, s70, v{8+k}")
        for k in range(4): a(f"v_dot2_f32_bf16 v{12+k}, v{X+4*n+k}, v{X+4*n+k}, v{12+k}")
    INV640 = 0x3ACCCCCD
    def red8(rs):
        for t in ("v_add_f32 v{r}, v{r}, v{r1}", "v_add_f32 v{r2}, v{r2}, v{r3}", "v_add_f32 v{r}, v{r}, v{r2}",
                  "v_add_f32_dpp v{r}, v{r}, v{r} quad_perm:[1,0,3,2] row_mask:0xf bank_mask:0xf",
                  "v_add_f32_dpp v{r}, v{r}, v{r} quad_perm:[2,3,0,1] row_mask:0xf bank_mask:0xf",
                  "v_add_f32_dpp v{r}, v{r}, v{r} row_half_mirror row_mask:0xf bank_mask:0xf",
                  "v_mul_f32 v{r}, %d, v{r}" % INV640):
            for r in rs: a(t.format(r=r, r1=r+1, r2=r+2, r3=r+3))
    red8([8, 12])
    a("""v_mul_f32 v9, v8, v8
    v_sub_f32 v12, v12, v9
    v_mul_f32 v10, 0x41800000, v12
    v_sub_f32 v8, 0, v8
    v_cmp_nle_f32 vcc, v9, v10
    s_cbranch_vccz Laux_var
    v_mov_b32 v9, v8""")
    for n in range(10):
        t = TM + 8*(n % 2)
        for k in range(4):
            a(f"v_lshlrev_b32 v{t+2*k}, 16, v{X+4*n+k}\nv_and_b32 v{t+2*k+1}, 0xffff0000, v{X+4*n+k}")
        for k in range(4): a(f"v_pk_add_f32 {v(t+2*k,2)}, {v(t+2*k,2)}, v[8:9]")
        for k in range(4):
            if n == 0 and k < 2: a(f"v_pk_mul_f32 {v(12+2*k,2)}, {v(t+2*k,2)}, {v(t+2*k,2)}")
            else: a(f"v_pk_fma_f32 {v(12+2*(k%2),2)}, {v(t+2*k,2)}, {v(t+2*k,2)}, {v(12+2*(k%2),2)}")
    red8([12])
    a(f"""Laux_var:
    v_cvt_pk_bf16_f32 v9, v12, v12
    v_and_b32 v9, 0xffff0000, v9
    v_add_f32 v9, 0x3727C5AC, v9
    v_cvt_pk_bf16_f32 v9, v9, v9
    v_and_b32 v9, 0xffff0000, v9
    v_sqrt_f32 v9, v9
    v_cvt_pk_bf16_f32 v9, v8, v9
    v_lshlrev_b32 v12, 2, v4
    s_lshl_b32 s70, s68, 2
    s_add_u32 s70, s70, {STATS}
    s_mov_b32 exec_lo, 0x01010101
    s_mov_b32 exec_hi, 0x01010101
    buffer_store_dword v9, v12, {SWS}, s70 offen sc1
    s_mov_b64 exec, -1
    s_waitcnt vmcnt(1)
    s_cmp_eq_u32 s81, 0
    s_cbranch_scc1 Laux_w2
    s_waitcnt vmcnt(2)
    Laux_w2:""".replace("s_waitcnt vmcnt(1)\n    s_cmp_eq_u32 s81, 0\n    s_cbranch_scc1 Laux_w2\n    s_waitcnt vmcnt(2)\n    Laux_w2:", "s_waitcnt vmcnt(1)"))
    TQ = 116
    for c in range(8):
        for k in range(4):
            a(f"v_perm_b32 v{TQ+4*c+k}, v{TB+4*(2*k+1)+c//2}, v{TB+4*(2*k)+c//2}, {'s75' if c % 2 else 's74'}")
    a(f"""s_add_u32 s70, s76, {FL_S}
    s_waitcnt vmcnt(0)""")
    flag_store(a, "s70", 8, 9)
    for c in range(8):
        a(f"buffer_store_dwordx4 {v(TQ+4*c,4)}, v7, {SWS}, s79 offen sc1")
        if c < 7: a(f"s_add_u32 s79, s79, 4096")
    a(f"""s_cmp_lt_u32 {sJ}, 24
    s_cbranch_scc1 Laux_b2""")
    blk_store(TB2, "s80")
    a(f"""Laux_b2:
    s_add_u32 s70, s76, {FL_C}
    s_waitcnt vmcnt(0)""")
    flag_store(a, "s70", 8, 9)
    stamp(a, 'stats flag')
    a(f"""s_cmp_lg_u32 {sJ}, 31
    s_cbranch_scc1 Laux_go""")
    poll256(a, FL_C, 128, r=20, slp=1)
    a(f"""s_lshl_b32 s70, {sX8}, 7
    s_add_u32 s70, s70, {GO}""")
    flag_store(a, "s70", 8, 9)
    a(f"Laux_go:\ns_setprio {os.environ.get('PS','0')}")
    go_wait(a, 20)
    u_issue(a)

def conv(a):
    sI = "s54"
    a("Lconv:")
    stamp_reset(4); stamp(a, 'Lconv', True)
    a(f"""v_and_b32 v10, 15, v0
    v_lshrrev_b32 v11, 4, v0
    v_and_b32 v12, 1, v0
    v_lshrrev_b32 v13, 1, v10
    v_mul_u32_u24 v14, {K1OFF}, v12
    v_sub_u32 v15, v13, v11
    v_lshl_add_u32 v14, v15, 4, v14
    v_add_u32 v14, {KB0+64}, v14
    v_and_b32 v12, 3, v0
    v_mul_u32_u24 v15, {UCS}, v12
    v_lshrrev_b32 v13, 2, v10
    v_lshl_add_u32 v15, v13, 7, v15
    v_lshl_add_u32 v15, v11, 4, v15
    v_add_u32 v15, {UPAD+48}, v15
    v_lshlrev_b32 v19, 7, v13
    v_lshl_add_u32 v19, v11, 5, v19
    v_lshl_add_u32 v19, v12, 2, v19
    v_mov_b32 v4, 0
    v_mov_b32 v5, 0
    v_lshlrev_b32 v6, 3, v0
    s_mul_i32 s70, {sW}, {UCS}
    v_add_u32 v6, s70, v6
    s_waitcnt lgkmcnt(0)
    s_barrier""")
    a("s_mov_b32 exec_hi, 0x00ffffff")
    for c in range(3): a(f"ds_write_b64 v6, v[4:5] offset:{c*USTR}")
    a("s_mov_b32 exec_hi, -1")
    NM, RS, UD = 44, 52, 226
    def unp(d, s): return f"v_lshlrev_b32 v{d}, 16, v{s}\nv_and_b32 v{d+1}, 0xffff0000, v{s}"
    a("s_waitcnt vmcnt(0)")
    for k in range(8): a(f"v_and_b32 v{RS+k}, 0xffff0000, v{UIN+k}")
    for k in range(8): a(f"v_rcp_f32 v{RS+k}, v{RS+k}\nv_lshlrev_b32 v{NM+k}, 16, v{UIN+k}")
    a("s_waitcnt lgkmcnt(0)\ns_barrier")
    for c in range(3):
        x = UIN + 8 + 4*c; t = 60; ud = UD + 8*c; o = c*USTR + UPAD
        for k in range(4): a(unp(t+2*k, x+k))
        for k in range(4): a(f"v_pk_add_f32 {v(t+2*k,2)}, {v(t+2*k,2)}, {v(NM+2*k,2)}")
        for k in range(4): a(f"v_cvt_pk_bf16_f32 v{x+k}, v{t+2*k}, v{t+2*k+1}")
        for k in range(4): a(unp(t+2*k, x+k))
        for k in range(4): a(f"v_pk_mul_f32 {v(t+2*k,2)}, {v(t+2*k,2)}, {v(RS+2*k,2)}")
        for k in range(4): a(f"v_cvt_pk_bf16_f32 v{x+k}, v{t+2*k}, v{t+2*k+1}")
        a(f"""v_cvt_pk_bf16_f32 v{68+2*c}, v{t+2}, v{t+3}
        v_cvt_pk_bf16_f32 v{69+2*c}, v{t+4}, v{t+5}
        ds_write_b128 v224, {v(x,4)} offset:{o+3*UCS-16}
        ds_write_b64 v224, {v(x,2)} offset:{o+UCS-8}
        ds_write_b64 v224, {v(x+2,2)} offset:{o+UCS}
        ds_write_b32 v224, v{x} offset:{o-4}
        ds_write_b64 v224, {v(68+2*c,2)} offset:{o}
        ds_write_b32 v224, v{x+3} offset:{o+8}
        ds_write_b32 v224, v{x} offset:{o+2*UCS-12}
        ds_write_b64 v224, {v(68+2*c,2)} offset:{o+2*UCS-8}
        ds_write_b32 v224, v{x+3} offset:{o+2*UCS}""")
    for c in range(3):
        x = UIN + 8 + 4*c; t = 60; ud = UD + 8*c
        for k in range(4): a(unp(t+2*k, x+k))
        sd = f"s{34+c+(c>1)*6}"
        a(f"s_bitcmp1_b32 {('s58','s59','s61')[c]}, 0\ns_cselect_b32 s70, 0, 16\ns_lshl_b32 {sd}, {sd}, s70\ns_and_b32 {sd}, {sd}, 0xffff0000")
        for k in range(8): a(f"v_mul_f32 v{t+k}, {sd}, v{t+k}")
        for k in range(4): a(f"v_cvt_pk_bf16_f32 v{76+k}, v{t+2*k}, v{t+2*k+1}")
        for k in range(4): a(unp(ud+2*k, 76+k))
    a("""s_waitcnt lgkmcnt(0)
    s_barrier""")
    stamp(a, 'u ready', True)
    YA = 20
    FS = [44, 132]
    def loop(name, parts):
        ad = [(16, 17), (8, 9)]
        tiles = [(pi, j) for pi, (c, J) in enumerate(parts) for j in J]
        acc = {t: YA + 4*k for k, t in enumerate(tiles)}
        base = []; n = 0
        for c, J in parts:
            base.append(n); n += 2*(max(J)+1)
        def reads(fs):
            out = []
            for pi, (c, J) in enumerate(parts):
                for k in range(max(J)+1):
                    out.append(f"ds_read_b128 {v(FS[fs]+4*(base[pi]+2*k),4)}, v{ad[pi][0]} offset:{512*k}")
                    out.append(f"ds_read_b128 {v(FS[fs]+4*(base[pi]+2*k+1),4)}, v{ad[pi][1]} offset:{512*k}")
                out.append(f"v_add_u32 v{ad[pi][0]}, 64, v{ad[pi][0]}")
                out.append(f"v_add_u32 v{ad[pi][1]}, -64, v{ad[pi][1]}")
            return out
        def mfmas(fs):
            rem = {t: list(range(t[1]+1)) for t in tiles}
            todo = []; last = []
            while any(rem.values()):
                cand = [t for t in tiles if rem[t] and t not in last[-GAP:]] or [t for t in tiles if rem[t] and t not in last[-1:]] or [t for t in tiles if rem[t]]
                t = max(cand, key=lambda t: len(rem[t]))
                todo.append((t, rem[t].pop(0))); last.append(t)
            return [f"v_mfma_f32_16x16x32_bf16 {v(acc[t],4)}, {v(FS[fs]+4*(base[t[0]]+2*p),4)}, {v(FS[fs]+4*(base[t[0]]+2*(t[1]-p)+1),4)}, {v(acc[t],4)}" for t, p in todo]
        for pi, (c, J) in enumerate(parts):
            if isinstance(c, str):
                a(f"s_mul_i32 s70, {c}, {KSTR}\ns_mul_i32 s71, {c}, {USTR}\nv_add_u32 v{ad[pi][0]}, s70, v14\nv_add_u32 v{ad[pi][1]}, s71, v15")
            else:
                a(f"v_add_u32 v{ad[pi][0]}, {c*KSTR}, v14\nv_add_u32 v{ad[pi][1]}, {c*USTR}, v15")
        for t in reads(0): a(t)
        for r in range(4*len(tiles)): a(f"v_mov_b32 v{YA+r}, 0")
        a(f"s_mov_b32 s64, 4\n{name}:")
        for fs in (0, 1):
            a("s_waitcnt lgkmcnt(0)")
            fill = reads(1-fs); ms = mfmas(fs)
            n = len(ms) - 4; done = 0
            for i, m in enumerate(ms):
                a(m)
                want = min(len(fill), -(-len(fill)*(i+1)//n))
                while done < want: a(fill[done]); done += 1
        a(f"""s_sub_u32 s64, s64, 1
        s_cmp_lg_u32 s64, 0
        s_cbranch_scc1 {name}
        s_waitcnt lgkmcnt(0)
        s_barrier""")
        for pi, (c, J) in enumerate(parts):
            if isinstance(c, str): a(f"s_lshl_b32 s70, {c}, 12\nv_add_u32 v{ad[pi][0]}, s70, v19")
            for j in J:
                r = acc[(pi, j)]
                off = 512*j + (0 if isinstance(c, str) else 4096*c)
                adr = ad[pi][0] if isinstance(c, str) else 19
                a(f"""v_cvt_pk_bf16_f32 v{r}, v{r}, v{r+1}
                v_cvt_pk_bf16_f32 v{r+2}, v{r+2}, v{r+3}
                ds_write_b32 v{adr}, v{r} offset:{off}
                ds_write_b32 v{adr}, v{r+2} offset:{off+16}""")
    a(f"""s_lshr_b32 s62, {sW}, 1
    s_cmp_eq_u32 {sW}, 1
    s_cbranch_scc1 Lcv_w1
    s_cmp_eq_u32 {sW}, 3
    s_cbranch_scc1 Lcv_w3""")
    loop("Lcv_l0", [("s62", [7, 6, 5, 1])])
    a("s_branch Lcv_bar2\nLcv_w1:")
    loop("Lcv_l1", [(0, [4, 3, 2, 0]), (1, [4, 3])])
    a("s_branch Lcv_bar2\nLcv_w3:\ns_cmp_eq_u32 s57, 1\ns_cbranch_scc1 Lcv_w3b")
    loop("Lcv_l3a", [(1, [2, 0]), (2, [7, 5, 2, 0])])
    a("s_branch Lcv_bar2\nLcv_w3b:")
    loop("Lcv_l3b", [(1, [2, 0]), (2, [6, 4, 3, 1])])
    a(f"""Lcv_bar2:
    s_waitcnt lgkmcnt(0)
    s_barrier""")
    stamp(a, 'conv done', True)
    for c in range(3): a.ds(f"ds_read_b128 {v(32+4*c,4)}, v224 offset:{c*4096}", ('y', c))
    a(f"""s_lshr_b32 s70, {sW}, 1
    s_xor_b32 s70, s70, s57
    s_cmp_eq_u32 s70, 0
    s_cselect_b32 s66, -1, 0
    s_cselect_b32 s67, 0, -1""")
    for c, sch in enumerate(("s58", "s59", "s61")):
        a.wait(lg=[('y', c)])
        y = 32 + 4*c; t = 48 + 8*c; ud = UD + 8*c
        for k in range(4): a(unp(t+2*k, y+k))
        for k in range(4): a(f"v_pk_add_f32 {v(t+2*k,2)}, {v(t+2*k,2)}, {v(ud+2*k,2)}")
        for k in range(4): a(f"v_cvt_pk_bf16_f32 v{y+k}, v{t+2*k}, v{t+2*k+1}")
        a(f"""s_lshl_b32 s70, {sch}, 12
        s_add_u32 s70, s70, {AT}""")
        if c == 2: a("s_mov_b64 exec, s[66:67]")
        a(f"buffer_store_dwordx4 {v(y,4)}, v224, {SWS}, s70 offen sc1")
        if c == 2: a("s_mov_b64 exec, -1")
    a("s_waitcnt vmcnt(0)")
    stamp(a, 'y stored'); stamp_flush(a, 50)
    a(f"""s_barrier
    s_cmp_eq_u32 {sW}, 1
    s_cbranch_scc1 Lcv_ep
    s_cmp_lg_u32 {sW}, 0
    s_cbranch_scc1 Lend
    s_lshl_b32 s70, {sI}, 7
    s_add_u32 s70, s70, {FL_Y}""")
    flag_store(a, "s70", 4, 5)
    a(f"""s_endpgm
    Lcv_ep:
    s_cmp_lg_u32 {sI}, 0
    s_cbranch_scc1 Lend""")
    if EXP != "nogemm": poll256(a, FL_ACT, 384, slp=8)
    poll256(a, FL_Y, 128, slp=8)
    flag_store(a, "0", 4, 5)
    a("s_endpgm")

HEADER = open(os.path.join(os.path.dirname(os.path.abspath(__file__)), "..", "cdna_kernels",
              "parallel_sum__ssm_conv_s4__dense_activation_mish__prompt.s.ref")).read().split("; Override")[0]

def build():
    a = Asm()
    prologue(a)
    gemm(a)
    a.vm.clear(); a.lg.clear()
    ssm(a)
    a("Lend:\ns_endpgm")
    body = a.finalize()
    return f"""{HEADER}; @launch grid=(512,1,1) block=(256,1,1) lds=81920
.amdgcn_target "amdgcn-amd-amdhsa--gfx950"
.text
.globl {KN}
.p2align 8
.type {KN},@function
{KN}:
{body}.section .rodata,"a"
.p2align 6
.amdhsa_kernel {KN}
  .amdhsa_next_free_vgpr 256
  .amdhsa_next_free_sgpr 102
  .amdhsa_accum_offset 256
  .amdhsa_group_segment_fixed_size 0
  .amdhsa_kernarg_size 128
  .amdhsa_user_sgpr_count 2
  .amdhsa_user_sgpr_kernarg_segment_ptr 1
  .amdhsa_system_sgpr_workgroup_id_x 1
.end_amdhsa_kernel
"""

if __name__ == "__main__":
    out = sys.argv[1] if len(sys.argv) > 1 else "k.s"
    open(out, "w").write(build())
    print("wrote", out)
```

```python
import sys, os
sys.path.insert(0, os.path.dirname(os.path.abspath(__file__)))
from asmlib import Asm

KN = "parallel_sum__ssm_conv_s4__dense_activation_mish__prompt_kernel"

FL_S   = 0x0000 + 0x8000
FL_Y   = 0x10000
FL_ACT = 0x1000000
STATS  = 0x30000
CSUM   = 0x34000
FL_C   = 0x70000
FL_AUX = 0x48000 + 0x20000
GO     = 0x1000
XNT    = 0x100000
AT     = 0x400000
W2P    = 0x700000
ACT    = 0xA00000
WS_SIZE= 0x1080000
LOG2E = 0x3FB8AA3B
SPIN_MAX = int(os.environ.get('SPIN_MAX', '20000'))
ACT_DELAY = int(os.environ.get('ACT_DELAY', '5'))
DIAG = int(os.environ.get("DIAG", "0"))
EXP = os.environ.get("EXP", "")
STAMP = 0x40000
DIRW2 = int(os.environ.get('DIRW2', '0'))
ROT = int(os.environ.get('ROT', '1'))
TOUCHW1 = int(os.environ.get('TOUCHW1', '0'))
TOUCHW2 = int(os.environ.get('TOUCHW2', '1'))
TLB = int(os.environ.get('TLB', '1'))
S1 = int(os.environ.get('S1', '4'))
C0 = int(os.environ.get('C0', '6'))
C1 = int(os.environ.get('C1', '0'))
C2 = int(os.environ.get('C2', '5'))
TOUCH = int(os.environ.get('TOUCH', '1'))
GAP = int(os.environ.get('GAP', '2'))

P = dict(x=16, Are=18, Aim=20, Bre=22, Bim=24, Cre=26, Cim=28, ldt=30, D=32, w1=36, b1=38, w2=40, out=42, dbg=44, ws=46)
def sp(n): return f"s[{P[n]}:{P[n]+1}]"
SX, SW1, SWS, S4 = "s[4:7]", "s[8:11]", "s[12:15]", "s[48:51]"
sW, sTAG = "s3", "s52"

_st = {"n": 0}
def stamp(a, name=None, wait=False):
    if not DIAG: return
    k = _st["n"]; _st["n"] += 1
    assert k < 10, k
    a(f"{'s_memtime' if os.environ.get('CYC') else 's_memrealtime'} s[{82+2*k}:{83+2*k}]")
    if wait: a("s_waitcnt lgkmcnt(0)")
def stamp_reset(n=0): _st["n"] = n
def stamp_flush(a, tmp):
    if not DIAG: return
    a("s_waitcnt lgkmcnt(0)")
    a(f"s_lshl_b32 s80, s2, 2\ns_add_u32 s80, s80, {sW}\ns_lshl_b32 s80, s80, 6\ns_add_u32 s80, s80, {STAMP}\nv_mov_b32 v{tmp+1}, 0\ns_mov_b64 exec, 1")
    for k in range(10):
        a(f"v_mov_b32 v{tmp}, s{82+2*k}\nbuffer_store_dword v{tmp}, v{tmp+1}, {SWS}, s80 offen offset:{4*k}\ns_nop 1")
    a("s_mov_b64 exec, -1")

def v(i, n=1): return f"v{i}" if n == 1 else f"v[{i}:{i+n-1}]"

def srd(a, base, ptr, size):
    a(f"""s_mov_b32 s{base}, s{P[ptr]}
    s_mov_b32 s{base+1}, s{P[ptr]+1}
    s_mov_b32 s{base+2}, {size}
    s_mov_b32 s{base+3}, 0x20000""")

def spin(a, load, cmp, scnt="s60", slp=4):
    L = a.label("Lspin"); Lok = a.label("Lok")
    a(cmp)
    a(f"s_cbranch_scc1 {Lok}")
    a(f"s_mov_b32 {scnt}, {SPIN_MAX}")
    a(f"{L}:")
    a(f"s_sleep {slp}")
    a(load)
    a("s_waitcnt vmcnt(0)")
    a(cmp)
    a(f"s_cbranch_scc1 {Lok}")
    a(f"s_sub_u32 {scnt}, {scnt}, 1")
    a(f"s_cmp_lg_u32 {scnt}, 0")
    a(f"s_cbranch_scc1 {L}")
    a(f"{Lok}:")

def cmpn(regs):
    dst = ["vcc", "s[62:63]", "s[64:65]", "s[66:67]"][:len(regs)]
    t = "\n".join(f"v_cmp_ne_u32 {d}, {sTAG}, v{r}" for d, r in reversed(list(zip(dst, regs))))
    for d in dst[1:]: t += f"\ns_or_b64 vcc, vcc, {d}"
    return t + "\ns_cmp_eq_u64 vcc, 0"

def poll256_issue(a, base, stride, r=4, s0=72, grp=False):
    if grp:
        a(f"v_lshrrev_b32 v{r+4}, 3, v0\nv_mul_u32_u24 v{r+4}, 12288, v{r+4}\nv_and_b32 v{r}, 7, v0\nv_lshl_add_u32 v{r+4}, v{r}, 9, v{r+4}")
        for n in range(4): a(f"s_mov_b32 s{s0+n}, {base + 8*12288*n}")
    else:
        a(f"v_mul_u32_u24 v{r+4}, {stride}, v0")
        for n in range(4): a(f"s_mov_b32 s{s0+n}, {base + 64*stride*n}")
    ld = "\n".join(f"buffer_load_dword v{r+n}, v{r+4}, {SWS}, s{s0+n} offen sc1" for n in range(4))
    a(ld)
    return ld
def poll256(a, base, stride, slp=4, r=4, grp=False):
    ld = poll256_issue(a, base, stride, r, grp=grp)
    a("s_waitcnt vmcnt(0)")
    spin(a, ld, cmpn([r, r+1, r+2, r+3]), slp=slp)

def go_issue(a, r, s="s75"):
    a(f"""v_mov_b32 v{r+1}, 0
    s_and_b32 {s}, s2, 7
    s_lshl_b32 {s}, {s}, 7
    s_add_u32 {s}, {s}, {GO}""")
    return f"buffer_load_dword v{r}, v{r+1}, {SWS}, {s} offen sc1"
def go_wait(a, r):
    ld = go_issue(a, r)
    a(ld); a("s_waitcnt vmcnt(0)")
    spin(a, ld, cmpn([r]), slp=3)

def flag_store(a, soff, t0, t1, track=None):
    a(f"""v_mov_b32 v{t0}, {sTAG}
    v_mov_b32 v{t1}, 0
    s_mov_b64 exec, 1""")
    txt = f"buffer_store_dword v{t0}, v{t1}, {SWS}, {soff} offen sc1"
    if track is not None: a.vmem(txt, track)
    else: a(txt)
    a("s_mov_b64 exec, -1")

def prologue(a):
    a(f"""s_cmp_ge_u32 s2, 512
    s_cbranch_scc1 Lend
    s_load_dwordx16 s[16:31], s[0:1], 0
    s_load_dwordx16 s[32:47], s[0:1], 64""")
    if DIAG:
        for k in range(82, 102): a(f"s_mov_b32 s{k}, 0")
    stamp(a, "start")
    a(f"""v_lshrrev_b32 v1, 6, v0
    v_and_b32 v0, 63, v0
    v_readfirstlane_b32 {sW}, v1
    s_waitcnt lgkmcnt(0)
    s_load_dword s53, {sp('ws')}, 0""")
    srd(a, 4, 'x', 2621440)
    srd(a, 8, 'w1', 1966080)
    srd(a, 12, 'ws', WS_SIZE)
    a("""s_cmp_lt_u32 s2, 256
    s_cbranch_scc1 Lssm""")

def make_tag(a):
    a(f"""s_waitcnt lgkmcnt(0)
    s_mul_i32 {sTAG}, s53, 0x9E3779B1
    s_add_u32 {sTAG}, {sTAG}, 0x7F4A7C15""")

def gemm(a):
    vX0, vX1, vW0, vW1 = 1, 2, 3, 4
    xr = [5, 6, 7, 8]
    wrl, wrh = 9, 10
    vAS = 11
    c1, c2, c3 = 12, 13, 14
    vT = 15
    EXT = 16
    T = [22, 23, 24, 25]
    OUT = 26
    EQ = 34
    A0, A1 = 38, 39
    SUMA = 22
    def accof(s): return ACC + 16*((s+1) % 2)
    WF = 40
    ACC = 64
    XF = 96
    sRB, sFP, sTH, sFH = "s54", "s55", "s56", "s57"
    sM, sSO, sAS, sT0 = "s58", "s59", "s61", "s68"
    if EXP == "nogemm": a("s_endpgm")
    a(f"""s_setprio {os.environ.get('PG0','2')}
    s_and_b32 s68, s2, 7
    s_lshr_b32 s69, s2, 3
    s_and_b32 s69, s69, 31
    s_lshr_b32 {sRB}, s68, 1
    s_lshl_b32 {sRB}, {sRB}, 3
    s_and_b32 s70, s69, 7
    s_add_u32 {sRB}, {sRB}, s70
    s_and_b32 {sFP}, s68, 1
    s_lshl_b32 {sFP}, {sFP}, 2
    s_lshr_b32 s70, s69, 3
    s_add_u32 {sFP}, {sFP}, s70
    s_lshl_b32 {sM}, {sW}, 11
    v_lshrrev_b32 v22, 3, v0
    s_lshl_b32 s70, {sW}, 4
    v_add_u32 v22, s70, v22
    v_lshrrev_b32 v23, 4, v0
    v_and_b32 v24, 7, v0
    v_xor_b32 v25, v24, v23
    s_lshl_b32 s71, {sRB}, 6
    v_add_u32 v26, s71, v22
    v_mul_u32_u24 v26, 0x500, v26
    v_lshl_add_u32 v{vX0}, v25, 4, v26
    v_xor_b32 v25, 4, v25
    v_lshl_add_u32 v{vX1}, v25, 4, v26
    v_add_u32 v{vX1}, {8*1280-1024}, v{vX1}
    v_and_b32 v23, 1, v23
    v_lshlrev_b32 v23, 2, v23
    v_xor_b32 v25, v24, v23
    v_mul_u32_u24 v26, 0xc00, v22
    v_lshl_add_u32 v{vW0}, v25, 4, v26
    s_mul_i32 s70, {sFP}, 384
    v_add_u32 v{vW0}, s70, v{vW0}
    v_add_u32 v{vW1}, {8*3072-1024}, v{vW0}""")

    a(f"""s_and_b32 s70, {sRB}, 7
    s_and_b32 s71, {sFP}, 3
    s_mul_i32 s71, s71, {3*ROT}
    s_mul_i32 s70, s70, {ROT}
    s_add_u32 s70, s70, s71
    s_cmp_ge_u32 s70, 10
    s_cselect_b32 s71, 10, 0
    s_sub_u32 s70, s70, s71""")
    for kc in range(10):
        a(f"""s_lshl_b32 s{16+kc}, s70, 7
        s_mul_i32 s{26+kc}, s70, 196608""")
        if kc < 9: a("s_add_u32 s70, s70, 1\ns_cmp_eq_u32 s70, 10\ns_cselect_b32 s70, 0, s70")

    def chunk_info(c):
        if c < 20:
            return ('X', 0, c//2) if c % 2 == 0 else ('W', 0, c//2)
        return ('W', 1 + (c-20)//10, (c-20) % 10)
    def dma_half(c, h):
        kind, s, kc = chunk_info(c)
        slot = c % 10
        if h == 0:
            a(f"s_add_u32 m0, {sM}, {slot*8192}")
            if kind == 'W' and s > 0 and kc == 0: a(f"v_add_u32 v{vW0}, 128, v{vW0}\nv_add_u32 v{vW1}, 128, v{vW1}")
        r, sr, so = ((vX0, vX1)[h], SX, 16+kc) if kind == 'X' else ((vW0, vW1)[h], SW1, 26+kc)
        a.vmem(f"buffer_load_dwordx4 v{r}, {sr}, s{so} offen {'offset:1024 ' if h else ''}lds", ('c', c))
    for c in range(10): dma_half(c, 0); dma_half(c, 1)

    srd(a, 48, 'out', 2621440)
    a(f"""s_and_b32 {sTH}, {sW}, 1
    s_lshr_b32 {sFH}, {sW}, 1
    v_and_b32 v22, 31, v0
    v_lshrrev_b32 v23, 5, v0
    v_lshrrev_b32 v24, 1, v22
    v_and_b32 v24, 7, v24
    s_lshl_b32 s70, {sTH}, 12
    v_lshl_add_u32 v25, v22, 7, s70""")
    for j in range(4):
        a(f"""v_add_u32 v26, {2*j}, v23
        v_xor_b32 v26, v26, v24
        v_lshl_add_u32 v{xr[j]}, v26, 4, v25""")
    a(f"""v_lshrrev_b32 v26, 4, v22
    s_lshl_b32 s70, {sTH}, 1
    v_add_u32 v26, s70, v26
    v_mul_u32_u24 v26, 0xc000, v26
    v_lshl_add_u32 v26, v23, 8, v26
    v_and_b32 v27, 15, v0
    v_lshl_add_u32 v{vAS}, v27, 4, v26
    v_lshrrev_b32 v24, 2, v27
    v_and_b32 v25, 3, v0
    v_lshrrev_b32 v26, 4, v0
    v_and_b32 v26, 1, v26
    v_lshlrev_b32 v26, 1, v26
    v_lshrrev_b32 v28, 1, v25
    v_add_u32 v26, v26, v28
    s_lshl_b32 s70, {sFH}, 2
    v_add_u32 v26, s70, v26
    v_lshrrev_b32 v28, 1, v24
    v_lshlrev_b32 v28, 2, v28
    v_xor_b32 v26, v26, v28
    v_lshl_add_u32 v28, v23, 3, v24
    v_lshlrev_b32 v28, 7, v28
    v_lshl_add_u32 v28, v26, 4, v28
    v_and_b32 v25, 1, v25
    v_lshl_add_u32 v{wrl}, v25, 3, v28
    v_add_u32 v{wrh}, 0x10000, v{wrl}
    v_add_u32 v{vT}, -1, v23
    s_mul_i32 {sAS}, {sRB}, 192
    s_mul_i32 s70, {sFP}, 6
    s_add_u32 {sAS}, {sAS}, s70
    s_add_u32 {sAS}, {sAS}, {sFH}
    s_lshl_b32 {sAS}, {sAS}, 10
    s_add_u32 {sAS}, {sAS}, {ACT}
    s_mul_i32 s81, {sRB}, 12288
    s_lshl_b32 s71, {sFP}, 9
    s_add_u32 s81, s81, s71
    s_lshl_b32 s71, {sW}, 7
    s_add_u32 s81, s81, s71
    s_add_u32 s81, s81, {FL_ACT}""")
    a(f"""v_mov_b32 v{EXT}, 0
    v_mov_b32 v{EXT+1}, 0
    v_add_u32 v24, -8, v0
    v_lshrrev_b32 v25, 2, v24
    v_and_b32 v24, 3, v24
    s_and_b32 s70, {sFP}, 3
    s_mul_i32 s70, s70, 3
    v_add_u32 v25, s70, v25
    v_lshlrev_b32 v25, 3, v25
    v_lshl_add_u32 v25, v24, 1, v25
    s_lshr_b32 s70, {sFP}, 2
    v_add_u32 v25, s70, v25
    v_and_b32 v24, 7, v0
    s_and_b32 s70, {sRB}, 3
    s_lshl_b32 s70, s70, 6
    s_lshr_b32 s71, {sRB}, 2
    s_add_u32 s70, s70, s71
    v_lshl_add_u32 v24, v24, 3, s70
    v_add_u32 v26, -8, v0
    v_cmp_gt_u32 vcc, 12, v26
    v_cndmask_b32 v24, v24, v25, vcc
    v_lshlrev_b32 v{EQ}, 7, v24
    s_mul_i32 s70, {sFP}, 192
    s_lshl_b32 s71, {sFH}, 5
    s_add_u32 s70, s70, s71
    v_add_u32 v24, s70, v22
    v_lshlrev_b32 v{EQ+1}, 2, v24
    v_lshlrev_b32 v{A1}, 1, v24
    v_mul_u32_u24 v25, 6144, v23
    v_add_u32 v{EQ+1}, v{EQ+1}, v25
    v_lshl_add_u32 v{EQ+2}, v23, 7, v{A1}
    s_lshl_b32 s70, {sRB}, 6
    s_lshl_b32 s71, {sTH}, 5
    s_add_u32 s70, s70, s71
    v_add_u32 v24, s70, v22
    v_lshlrev_b32 v{EQ+3}, 2, v24""")
    make_tag(a)

    wf_next = [0]
    def wfrag_alloc():
        r = WF + 4*(wf_next[0] % 6); wf_next[0] += 1; return r
    def read_w(c, j):
        slot = c % 10
        r = wfrag_alloc()
        base, off = (wrl, slot*8192) if slot < 8 else (wrh, (slot-8)*8192)
        a.ds(f"ds_read_b64_tr_b16 {v(r,2)}, v{base} offset:{off + 128*16*j}", ('w', c, j))
        a.ds(f"ds_read_b64_tr_b16 {v(r+2,2)}, v{base} offset:{off + 128*(16*j+4)}", ('w', c, j))
        return r
    def mfma1(acc, wfr, xfr, first):
        a(f"v_mfma_f32_32x32x16_bf16 {v(acc,16)}, {v(wfr,4)}, {v(xfr,4)}, {'0' if first else v(acc,16)}")

    side = []
    def run_side(n):
        for _ in range(n):
            if side: side.pop(0)()

    def mish_items(s):
        acc = accof(s)
        items = []
        for qd in range(4):
            R = [acc + 4*qd + k for k in range(4)]
            def f1(R=R):
                for k in range(4): a(f"v_mul_f32 v{T[k]}, v{c1}, v{R[k]}")
                for k in range(4): a(f"v_exp_f32 v{T[k]}, v{T[k]}")
                for k in range(4): a(f"v_add_f32 v{T[k]}, 1.0, v{T[k]}")
                for k in range(4): a(f"v_fma_f32 v{T[k]}, v{T[k]}, v{T[k]}, 1.0")
            def f2(R=R, qd=qd):
                for k in range(4): a(f"v_rcp_f32 v{T[k]}, v{T[k]}")
                for k in range(4): a(f"v_fma_f32 v{T[k]}, v{T[k]}, v{c2}, v{c3}")
                for k in range(4): a(f"v_mul_f32 v{T[k]}, v{T[k]}, v{R[k]}")
                a(f"v_cvt_pk_bf16_f32 v{OUT+2*qd}, v{T[0]}, v{T[1]}\nv_cvt_pk_bf16_f32 v{OUT+2*qd+1}, v{T[2]}, v{T[3]}")
                if qd % 2 == 1:
                    gp = qd // 2
                    a(f"s_add_u32 {sT0}, {sAS}, {2048*s}")
                    a.vmem(f"buffer_store_dwordx4 {v(OUT+4*gp,4)}, v{vAS}, {SWS}, {sT0} offen offset:{512*gp} sc1", ('act', s))
            items += [f1, f2]
        return items

    SPLIT = ("v_and_b32 v{q1}, 0xffff0000, v{q}", "v_sub_f32 v{q}, v{q}, v{q1}", "v_and_b32 v{q2}, 0xffff0000, v{q}",
             "v_sub_f32 v{q}, v{q}, v{q2}", "v_lshrrev_b32 v{q1}, 16, v{q1}", "v_lshrrev_b32 v{q}, 16, v{q}",
             "v_or_b32 v{q1}, v{q1}, v{q2}", "v_or_b32 v{q}, v{q}, v{b}", "v_and_b32 v{d0}, v{m}, v{q1}", "v_and_b32 v{d1}, v{m}, v{q}")
    SUM4 = ("v_add_f32 v{q}, v{q}, v{q1}", "v_add_f32 v{q2}, v{q2}, v{q3}", "v_add_f32 v{q}, v{q}, v{q2}")
    def ext_items():
        def l0():
            a(f"v_mov_b32 v28, 0\nv_mov_b32 v29, 0\ns_mov_b32 s70, {STATS}\ns_mov_b32 s71, {CSUM}")
            a.vmem(f"buffer_load_dword v{EXT+5}, v{EQ+3}, {SWS}, s70 offen sc1", 'ext')
            for s in range(3): a.vmem(f"buffer_load_dword v{22+2*s}, v{EQ+1}, {SWS}, s71 offen offset:{256*s} sc1", 'ext')
        def l1():
            a(f"s_mov_b32 s71, {CSUM+12288}")
            for s in range(3): a.vmem(f"buffer_load_dword v{23+2*s}, v{EQ+1}, {SWS}, s71 offen offset:{256*s} sc1", 'ext')
            a.vmem(f"global_load_short_d16_hi v28, v{EQ+2}, {sp('b1')}", 'ext')
            a.vmem(f"global_load_short_d16_hi v29, v{A1}, {sp('b1')} offset:256", 'ext')
        return [l0, l1]
    def ext_build():
        a.wait(vm=['ext'])
        D = [(EXT+2, EXT+3), (EQ, EQ+1), (EQ+2, EQ+3)]
        a(f"""v_and_b32 v30, v{vT}, v28
        v_xor_b32 v31, v30, v28
        v_and_b32 v29, v{vT}, v29""")
        B = [30, 31, 29]
        for tmpl in ("v_add_f32 v{q}, v{q}, v{q1}", "v_and_b32 v{q1}, 0xffff0000, v{q}", "v_sub_f32 v{q}, v{q}, v{q1}", "v_and_b32 v{d0}, 0xffff0000, v{q}",
                     "v_sub_f32 v{q}, v{q}, v{d0}", "v_lshrrev_b32 v{q1}, 16, v{q1}", "v_lshrrev_b32 v{q}, 16, v{q}",
                     "v_or_b32 v{d0}, v{q1}, v{d0}", "v_or_b32 v{d1}, v{q}, v{b}"):
            for s in range(3):
                q = 22 + 2*s
                a(tmpl.format(q=q, q1=q+1, b=B[s], d0=D[s][0], d1=D[s][1]))
        a(f"""v_and_b32 v{c3}, 0xffff0000, v{EXT+5}
        s_mov_b32 s70, 0x01000100
        v_perm_b32 v{EXT+4}, v{EXT+5}, v{EXT+5}, s70
        v_rcp_f32 v{c3}, v{c3}
        v_mul_f32 v{c1}, {LOG2E}, v{c3}
        v_mul_f32 v{c2}, -2.0, v{c3}""")
    def ext_mfma(s):
        acc = accof(s)
        if s: a(f"v_mov_b32 v{EXT+2}, v{EQ+2*s-2}\nv_mov_b32 v{EXT+3}, v{EQ+2*s-1}")
        a(f"v_mfma_f32_32x32x16_bf16 {v(acc,16)}, {v(EXT,4)}, {v(EXT+2,4)}, {v(acc,16)}")

    G2A = XF; NA = 5
    def acc2(lam, dt): return (WF + 20*lam if lam < 2 else XF + 80 + 20*(lam-2)) + 4*dt
    G2W = XF + 120
    vA = [vX0, vX1, xr[0], xr[1]]
    vD2, w2l, vO = xr[2], xr[3], vW0
    sM2 = "s74"
    def g2_setup_a():
        a(f"v_lshlrev_b32 v{vD2}, 4, v0")
        for lam in range(4):
            a(f"""s_add_u32 s70, {sW}, {lam}
            s_and_b32 s70, s70, 3
            s_mul_i32 s70, s70, 49152
            v_add_u32 v{vA[lam]}, s70, v{vD2}""")
        a(f"""s_mul_i32 {sM2}, {sW}, 5120
        v_lshrrev_b32 v{A0}, 5, v0
        v_lshlrev_b32 v{A0}, 4, v{A0}
        v_lshrrev_b32 v{A1}, 2, v0
        v_and_b32 v{A1}, 7, v{A1}
        v_add_u32 v{A0}, v{A0}, v{A1}
        v_mul_u32_u24 v{A0}, 160, v{A0}
        v_and_b32 v{A1}, 3, v0
        v_lshl_add_u32 v{w2l}, v{A1}, 3, v{A0}
        v_add_u32 v{w2l}, {sM2}, v{w2l}""")
    def g2_setup_c():
        a(f"""s_and_b32 s70, {sFP}, 3
        s_lshl_b32 s70, s70, 1
        s_add_u32 s70, s70, {sRB}
        s_mul_i32 s70, s70, {ROT}
        s_add_u32 s70, s70, {sFH}
        s_mul_i32 s72, {sRB}, 192
        s_add_u32 s72, s72, {sTH}
        s_lshl_b32 s72, s72, 10
        s_add_u32 s72, s72, {ACT}
        s_mul_i32 s73, {sFP}, 245760
        s_mul_i32 s71, {sTH}, 5120
        s_add_u32 s73, s73, s71
        s_add_u32 s73, s73, {W2P}""")
        for q in range(4):
            a(f"""s_and_b32 s70, s70, 7
            s_mul_i32 s71, s70, 6144
            s_add_u32 s{16+q}, s71, s72
            s_mul_i32 s71, s70, 30720
            s_add_u32 s{26+q}, s71, s73
            s_add_u32 s70, s70, 2""")
        a(f"""s_lshl_b32 s70, {sW}, 4
        s_lshl_b32 s71, {sRB}, 6
        s_add_u32 s70, s70, s71
        v_and_b32 v{A0}, 15, v0
        v_add_u32 v{A0}, s70, v{A0}
        v_mul_u32_u24 v{A0}, 0x500, v{A0}
        v_lshrrev_b32 v{A1}, 4, v0
        v_lshl_add_u32 v{A0}, v{A1}, 3, v{A0}
        s_mul_i32 s70, {sFP}, 160
        v_add_u32 v{vO}, s70, v{A0}
        v_and_b32 v{vW1}, 31, v0
        v_lshlrev_b32 v{vW1}, 7, v{vW1}
        s_mul_i32 s78, {sRB}, 12288
        s_add_u32 s78, s78, {FL_ACT}
        s_add_u32 s79, s78, 4096
        s_add_u32 s80, s78, 8192""")
    def dma_w2_piece(n, h):
        s2, q = n // 4, n % 4
        if h == 0:
            a(f"s_add_u32 m0, {sM2}, {q*20480}")
            if s2 > 0 and q == 0: a(f"v_add_u32 v{vD2}, 10240, v{vD2}")
        if h == 4: a(f"s_add_u32 m0, {sM2}, {q*20480 + 4096}\ns_add_u32 s70, s{26+q}, 4096")
        a.vmem(f"buffer_load_dwordx4 v{vD2}, {SWS}, {'s70' if h == 4 else 's%d' % (26+q)} offen offset:{1024*(h%4)} sc1 lds", ('d2', n))
    def load_act(n, lams=range(4)):
        s2, q = n // 4, n % 4
        r = G2A + 16*(n % NA)
        for lam in lams:
            if s2 > 0 and q == 0: a(f"v_add_u32 v{vA[lam]}, 2048, v{vA[lam]}")
            a.vmem(f"buffer_load_dwordx4 {v(r+4*lam,4)}, v{vA[lam]}, {SWS}, s{16+q} offen sc1", ('a2', n))
    PVR = A0
    def pa_ld(s2): return f"buffer_load_dword v{EQ+s2}, v{vW1}, {SWS}, s{78+s2} offen sc1"
    def poll_act_issue(s2): a.vmem(pa_ld(s2).replace(f"v{EQ+s2},", f"v{pdst(s2)},"), ('pa', s2))
    def pdst(s2): return (XF+47, EXT, EXT+1)[s2] if s2 == 0 else (0, wrl, wrh)[s2]
    def poll_act_check(s2):
        a.wait(vm=[('pa', s2)])
        spin(a, pa_ld(s2).replace(f"v{EQ+s2},", f"v{pdst(s2)},"), cmpn([pdst(s2)]))
    def w0_issue(ld, tag):
        L = a.label("Lw0")
        a(f"s_cmp_lg_u32 {sW}, 0\ns_cbranch_scc1 {L}")
        a(ld)
        a(f"{L}:")
        a.vm.append(('VIRT', tag))
    def w0_check(ld, regs, tag):
        L = a.label("Lw0")
        a(f"s_cmp_lg_u32 {sW}, 0\ns_cbranch_scc1 {L}")
        q = list(a.vm); d = dict(a.done)
        a.wait(vm=[('VIRT', tag)])
        a.vm[:] = [t for t in q if t != ('VIRT', tag)]; a.done.clear(); a.done.update(d)
        spin(a, ld, cmpn(regs))
        a(f"{L}:")
    flagged = set(); act_age = {}
    def pre_barrier(tags, lg="all", bar=True):
        tags = list(tags)
        for ss in range(3):
            if ss in flagged: continue
            if a.vm.count(('act', ss)) + a.done.get(('act', ss), 0) == 2:
                act_age[ss] = act_age.get(ss, 0) + 1
                if act_age[ss] >= (ACT_DELAY if bar else 2): tags.append(('act', ss))
        a.wait(vm=tags, lg=lg)
        if bar: a("s_barrier")
        for ss in range(3):
            if ss not in flagged and a.done.get(('act', ss), 0) == 2:
                a(f"s_add_u32 s70, s81, {4096*ss}")
                flag_store(a, "s70", A0, A1, ('fl', ss)); flagged.add(ss)

    steps = [(s, kc) for s in range(3) for kc in range(10)]
    next_dma = 10; w2_issued = 0; act_issued = 0
    pend = []
    for si, (s, kc) in enumerate(steps):
        cw = 2*kc + 1 if s == 0 else 10 + 10*s + kc
        pre_barrier([('c', cw)], lg=())
        if (DIAG == 1 and (s, kc) in ((0, 0), (1, 0), (1, 4), (2, 0))) or (DIAG == 2 and s == 1 and kc < 9) or (DIAG == 3 and s == 2 and kc != 0) or (DIAG == 5 and s == 0 and kc < 9): stamp(a, f'g1 {s},{kc}', True)
        dq = []
        if si >= 2:
            nrel = 2 if (s == 0 or (s == 1 and kc <= 1)) else 1
            for _ in range(nrel):
                if next_dma < 40:
                    dq += [(dma_half, next_dma, 0), (dma_half, next_dma, 1)]; next_dma += 1
        if s == 2 and kc in (4, 6, 9):
            dq += [(dma_w2_piece, w2_issued, h) for h in range(5)]; w2_issued += 1
        def dma_some(n):
            for _ in range(n):
                if dq:
                    f, x1, x2 = dq.pop(0); f(x1, x2)
        prev = pend; pend = []
        acc = accof(s)
        xf = XF + 16*kc
        hi = (s == 0 and (2*kc) % 10 == 8)
        if hi:
            for j in range(4): a(f"v_add_u32 v{xr[j]}, 0x10000, v{xr[j]}")
        def rd(j):
            r = read_w(cw, j)
            if s == 0:
                slot = (2*kc) % 10
                off = slot*8192 if slot < 8 else (slot-8)*8192
                a.ds(f"ds_read_b128 {v(xf+4*j,4)}, v{xr[j]} offset:{off}", ('w', cw, j))
            pend.append((acc, r, xf + 4*j, kc == 0 and j == 0, ('w', cw, j)))
        def mf():
            if prev:
                m = prev.pop(0); a.wait(lg=[x[4] for x in prev] + [m[4]]); mfma1(*m[:4])
        per = -(-len(dq)//4)
        rd(0); rd(1)
        mf(); dma_some(per)
        mf(); rd(2); rd(3); dma_some(per)
        if hi:
            for j in range(4): a(f"v_add_u32 v{xr[j]}, 0xffff0000, v{xr[j]}")
        run_side(1)
        mf(); dma_some(per)
        run_side(2)
        mf(); dma_some(per)
        lds_ = f"buffer_load_dword v{A0}, v{EQ}, {SWS}, s75 offen sc1"
        ldw2 = "\n".join(f"s_mov_b32 s76, {FL_AUX + 8192*n}\nbuffer_load_dword v{XF+3+n}, v{XF+2}, {SWS}, s76 offen sc1" for n in range(4))
        if (s, kc) == (1, S1+2): g2_setup_a()
        if (s, kc) == (int(os.environ.get('PGS', '1')), 0): a(f"s_setprio {os.environ.get('PG','2')}")
        if (s, kc) == (1, S1-2):
            a(f"s_mov_b32 s75, {FL_S}")
            w0_issue(lds_, 'ps')
        if (s, kc) == (1, S1): w0_check(lds_, [A0], 'ps')
        if (s, kc) == (1, S1): side.extend(ext_items())
        if (s, kc) == (1, S1+3):
            ext_build(); ext_mfma(0); side.extend(mish_items(0))
        if (s, kc) == (2, 0):
            run_side(100); ext_mfma(1); side.extend(mish_items(1))
        if (s, kc) == (2, 1) and not DIRW2:
            a(f"v_lshlrev_b32 v{XF+2}, 7, v0")
            w0_issue(ldw2, 'pw')
        if (s, kc) == (2, 2):
            g2_setup_c()
            if DIRW2: g2_setup_d()
        if (s, kc) == (2, 3) and not DIRW2: w0_check(ldw2, [XF+3, XF+4, XF+5, XF+6], 'pw')
        if (s, kc) == (2, C0-2): poll_act_issue(0)
        if (s, kc) == (2, C0): poll_act_check(0)
        if s == 2 and kc > C0:
            for _ in range(2 if C0 >= 7 else 1):
                if act_issued < 4: load_act(act_issued); act_issued += 1

    pre_barrier([], lg="all")
    run_side(100)
    for m in pend: mfma1(*m[:4])
    for h in range(5): dma_w2_piece(3, h)
    w2_issued = 4
    ext_mfma(2)
    side.extend(mish_items(2))
    poll_act_issue(1)
    a2pend = []
    G2X = 22
    for n in range(12):
        pre_barrier([('d2', n), ('a2', n)], bar=False)
        if DIAG == 1 and n in (0, 4, 8, 11): stamp(a, f'g2 {n}', True)
        dq = []
        if n >= 1 and w2_issued < 12:
            dq += [lambda h=h, k=w2_issued: dma_w2_piece(k, h) for h in range(5)]; w2_issued += 1
        lim = min(n + NA - 1, 4 if n <= C1 else 8 if n <= C2 else 12)
        if act_issued < lim:
            k = act_issued; act_issued += 1
            dq += [lambda k=k: load_act(k, (0, 1)), lambda k=k: load_act(k, (2, 3))]
            if act_issued < lim:
                k = act_issued; act_issued += 1
                dq += [lambda k=k: load_act(k, (0, 1)), lambda k=k: load_act(k, (2, 3))]
        wb = G2W + 20*(n % 2)
        prev = a2pend; a2pend = []
        for dt in range(5):
            a.ds(f"ds_read_b64_tr_b16 {v(wb+4*dt,2)}, v{w2l} offset:{(n%4)*20480 + 32*dt}", ('w2', n))
            a.ds(f"ds_read_b64_tr_b16 {v(wb+4*dt+2,2)}, v{w2l} offset:{(n%4)*20480 + 32*dt + 1280}", ('w2', n))
            for _ in range(2):
                for _ in range(2):
                    if prev: a(prev.pop(0))
                if dq: dq.pop(0)()
            if dt < 4: run_side(1)
        while dq: dq.pop(0)()
        for dt in range(5):
            for lam in (1, 2, 3, 0):
                r = acc2(lam, dt)
                a2pend.append((lam, f"v_mfma_f32_16x16x32_bf16 {v(r,4)}, {v(wb+4*dt,4)}, {v(G2A+16*(n%NA)+4*lam,4)}, {'0' if n == 0 else v(r,4)}"))
        if n < 11: a2pend = [m for _, m in a2pend]
        if n == C1: poll_act_check(1)
        if n == C2 - 1: poll_act_issue(2)
        if n == C2: poll_act_check(2)
        ypoll = f"buffer_load_dword v32, v{vW1}, {SWS}, s75 offen sc1"
        if n == 3:
            for dt in range(5):
                a.vmem(f"buffer_load_dwordx2 {v(G2X+2*dt,2)}, v{vO}, {SX}, 0 offen offset:{32*dt}", 'xfin')
        if n == 7:
            a(f"""s_lshl_b32 s75, {sFP}, 12
            s_add_u32 s75, s75, {FL_Y}
            s_mul_i32 s70, {sW}, 20
            s_mul_i32 s71, {sFP}, 80
            s_add_u32 s70, s70, s71
            v_lshrrev_b32 v33, 3, v0
            v_add_u32 v33, s70, v33
            v_lshlrev_b32 v33, 12, v33
            v_and_b32 v34, 7, v0
            v_lshl_add_u32 v33, v34, 4, v33
            v_add_u32 v34, {32768-1024}, v33
            v_add_u32 v35, {65536-2048}, v33
            s_lshl_b32 s76, {sRB}, 7
            s_add_u32 s76, s76, {AT}
            v_lshrrev_b32 v36, 2, v0
            v_and_b32 v37, 3, v0
            v_lshlrev_b32 v37, 3, v37
            s_lshl_b32 s70, {sW}, 5
            v_add_u32 v37, s70, v37""")
            for dt in range(5):
                a(f"""v_add_u32 v{A0}, {16*dt}, v36
                v_mul_u32_u24 v{A1}, 3277, v{A0}
                v_lshrrev_b32 v{A1}, 16, v{A1}
                v_mul_u32_u24 v{80+dt}, {5120-2560}, v{A1}
                v_lshl_add_u32 v{80+dt}, v{A0}, 7, v{80+dt}
                v_add_u32 v{80+dt}, v{80+dt}, v37""")
            a(f"v_lshlrev_b32 v36, 4, v0\nv_add_u32 v36, 4096, v36\nv_add_u32 v37, {sM2}, v36")
            for lam in (1, 2, 3):
                a(f"s_sub_u32 s70, {sW}, {lam}\ns_and_b32 s70, s70, 3\ns_mul_i32 s70, s70, 5120\nv_add_u32 v{84+lam}, s70, v36")
        if n == 8: a.vmem(ypoll, 'py')
        def dma_at(tagit=True):
            f = a.vmem if tagit else (lambda t, g: a(t))
            a(f"s_mov_b32 m0, {sM2}")
            f(f"buffer_load_dwordx4 v33, {SWS}, s76 offen sc1 lds", 'at')
            f(f"buffer_load_dwordx4 v34, {SWS}, s76 offen offset:1024 sc1 lds", 'at')
            a("s_mov_b64 exec, 0xffffffff")
            f(f"buffer_load_dwordx4 v35, {SWS}, s76 offen offset:2048 sc1 lds", 'at')
            a("s_mov_b64 exec, -1")
        if n == 10:
            a.wait(vm=['py'])
            a(cmpn([32]))
            a("s_cselect_b32 s77, 1, 0")
            dma_at()
    a.wait(lg="all")
    for lam in (1, 2, 3, 0):
        for l2, m in a2pend:
            if l2 == lam: a(m)
        if lam in (2, 3, 0):
            lp = {2: 1, 3: 2, 0: 3}[lam]
            for dt in range(5): a(f"ds_write_b128 v37, {v(acc2(lp, dt),4)} offset:{20480*lp + 1024*dt - 4096}")
    L = a.label("Lyok")
    a(f"""s_cmp_eq_u32 s77, 1
    s_cbranch_scc1 {L}
    s_waitcnt vmcnt(0)
    v_not_b32 v32, {sTAG}""")
    spin(a, ypoll, cmpn([32]))
    dma_at(False)
    a(f"{L}:")
    RX = G2A; AV = XF + 60; TT = XF + 80
    def unp(d, s): return f"v_lshlrev_b32 v{d}, 16, v{s}\nv_and_b32 v{d+1}, 0xffff0000, v{s}"
    a("s_waitcnt vmcnt(0) lgkmcnt(0)")
    a.vm.clear(); a.lg.clear()
    a("s_barrier")
    for dt in range(5): a.ds(f"ds_read_b64_tr_b16 {v(AV+2*dt,2)}, v{80+dt}", ('av', dt))
    for dt in range(5):
        for lam in (1, 2, 3): a.ds(f"ds_read_b128 {v(RX+12*dt+4*(lam-1),4)}, v{84+lam} offset:{20480*lam+1024*dt-4096}", ('rx', dt))
        t = TT + 8*dt
        a(unp(t, G2X+2*dt)); a(unp(t+2, G2X+2*dt+1))
    for dt in range(5):
        t = TT + 8*dt; av = AV + 2*dt
        a.wait(lg=[('av', dt)])
        a(unp(t+4, av)); a(unp(t+6, av+1))
        a(f"""v_pk_add_f32 {v(t,2)}, {v(t,2)}, {v(t+4,2)}
        v_pk_add_f32 {v(t+2,2)}, {v(t+2,2)}, {v(t+6,2)}
        v_cvt_pk_bf16_f32 v{t+4}, v{t}, v{t+1}
        v_cvt_pk_bf16_f32 v{t+5}, v{t+2}, v{t+3}""")
        a(unp(t, t+4)); a(unp(t+2, t+5))
    for dt in range(5):
        t = TT + 8*dt; k = acc2(0, dt); r = RX + 12*dt
        a.wait(lg=[('rx', dt)])
        a(f"""v_pk_add_f32 {v(k,2)}, {v(k,2)}, {v(r,2)}
        v_pk_add_f32 {v(k+2,2)}, {v(k+2,2)}, {v(r+2,2)}
        v_pk_add_f32 {v(r+4,2)}, {v(r+4,2)}, {v(r+8,2)}
        v_pk_add_f32 {v(r+6,2)}, {v(r+6,2)}, {v(r+10,2)}
        v_pk_add_f32 {v(k,2)}, {v(k,2)}, {v(r+4,2)}
        v_pk_add_f32 {v(k+2,2)}, {v(k+2,2)}, {v(r+6,2)}
        v_cvt_pk_bf16_f32 v{r}, v{k}, v{k+1}
        v_cvt_pk_bf16_f32 v{r+1}, v{k+2}, v{k+3}""")
        a(unp(k, r)); a(unp(k+2, r+1))
        a(f"""v_pk_add_f32 {v(t,2)}, {v(t,2)}, {v(k,2)}
        v_pk_add_f32 {v(t+2,2)}, {v(t+2,2)}, {v(k+2,2)}
        v_cvt_pk_bf16_f32 v{t+4}, v{t}, v{t+1}
        v_cvt_pk_bf16_f32 v{t+5}, v{t+2}, v{t+3}
        buffer_store_dwordx2 {v(t+4,2)}, v{vO}, {S4}, 0 offen offset:{32*dt}""")
    if DIAG: a("s_waitcnt vmcnt(0)")
    if DIAG == 1: stamp(a, 'end')
    stamp_flush(a, 22)
    a("s_endpgm")

UPAD = 448
UCS  = 4640
USTR = 4*UCS
KB0  = 3*USTR
K1OFF = 4224
KSTR = 2*K1OFF
CVOFF = 16
UIN = 200
def u_issue(a):
    a(f"""v_lshlrev_b32 v224, 4, v0
    s_lshl_b32 s70, {sW}, 10
    v_add_u32 v224, s70, v224
    v_lshlrev_b32 v225, 1, v224
    s_mov_b32 s70, {STATS}
    buffer_load_dwordx4 {v(UIN,4)}, v225, {SWS}, s70 offen sc1
    buffer_load_dwordx4 {v(UIN+4,4)}, v225, {SWS}, s70 offen offset:16 sc1""")
    for c, sch in enumerate(("s58", "s59", "s61")):
        a(f"""s_lshl_b32 s70, {sch}, 12
        s_add_u32 s70, s70, {XNT}
        buffer_load_dwordx4 {v(UIN+8+4*c,4)}, v224, {SWS}, s70 offen sc1""")

def ssm(a):
    sI = "s54"
    a(f"""Lssm:
    s_setprio 3
    s_mov_b32 {sI}, s2
    s_lshr_b32 s56, {sI}, 1
    s_mul_i32 s56, s56, 5
    s_and_b32 s57, {sI}, 1
    s_mul_i32 s58, s57, 3
    s_add_u32 s58, s58, s56
    s_add_u32 s59, s58, 1
    s_add_u32 s61, s56, 2""")
    for c, sch in enumerate(("s58", "s59", "s61")):
        a(f"s_lshl_b32 s70, {sch}, 1\ns_and_b32 s70, s70, -4\ns_load_dword s{34+c+(c>1)*6}, {sp('D')}, s70")
    a(f"""s_cmp_eq_u32 {sW}, 3
    s_cbranch_scc1 Laux""")
    kgen(a)
    a("s_branch Lconv")
    aux(a)
    conv(a)

def kgen(a):
    sCH, sKB = "s55", "s68"
    a(f"""s_cmp_eq_u32 {sW}, 0
    s_cselect_b32 {sCH}, s58, s59
    s_cmp_eq_u32 {sW}, 2
    s_cselect_b32 {sCH}, s61, {sCH}
    s_mul_i32 {sKB}, {sW}, {USTR}
    s_mul_i32 s70, {sCH}, 384
    v_mul_u32_u24 v1, 6, v0
    v_and_b32 v1, -4, v1
    v_add_u32 v1, s70, v1""")
    PR = 8
    names = ['Are', 'Aim', 'Bre', 'Bim', 'Cre', 'Cim']
    for k, n in enumerate(names):
        a.vmem(f"global_load_dwordx2 {v(30+2*k,2)}, v1, {sp(n)}", 'par')
    a(f"""s_lshl_b32 s70, {sCH}, 1
    s_and_b32 s70, s70, -4
    s_load_dword s69, {sp('ldt')}, s70
    v_and_b32 v2, 1, v0
    v_lshlrev_b32 v2, 4, v2""")
    a(f"""    s_mov_b32 m0, {sKB}
    v_and_b32 v6, 15, v0
    v_mul_u32_u24 v7, 288, v6
    v_lshrrev_b32 v4, 4, v0
    v_lshl_add_u32 v7, v4, 4, v7
    v_add_u32 v7, {sKB}, v7""")
    if TLB:
        a(f"""v_and_b32 v26, 7, v0
        v_lshlrev_b32 v26, 21, v26
        v_mov_b32 v27, 0
        s_mov_b64 exec, 0xff""")
        a.vmem(f"buffer_load_dword v106, v26, {SWS}, 0 offen offset:512", 'touch')
        a("s_mov_b64 exec, 1")
        for n in ('w2', 'out', 'b1'): a.vmem(f"global_load_dword v107, v27, {sp(n)}", 'touch')
        a("s_mov_b64 exec, -1")
    if TOUCHW1:
        a(f"""s_mul_i32 s70, {sW}, 80
        v_add_u32 v26, s70, v0
        v_add_u32 v27, 64, v26
        s_add_u32 s70, s70, 79
        v_min_u32 v27, s70, v27
        s_lshr_b32 s71, s2, 3
        s_mul_i32 s71, s71, {20*3072}
        s_and_b32 s70, s2, 1
        s_mul_i32 s70, s70, 1536
        s_add_u32 s71, s71, s70""")
        for r in (26, 27):
            a(f"""v_mul_u32_u24 v28, 5462, v{r}
            v_lshrrev_b32 v28, 16, v28
            v_mul_u32_u24 v29, 12, v28
            v_sub_u32 v29, v{r}, v29
            v_mul_u32_u24 v28, 0xc00, v28
            v_lshl_add_u32 v28, v29, 7, v28""")
            a.vmem(f"buffer_load_dword v{r}, v28, {SW1}, s71 offen", 'touch')
    RP = 192
    srd(a, 48, 'w2', 1966080)
    a(f"""s_mul_i32 s78, s2, {6*160}
    s_add_u32 s78, s78, {W2P}
    v_lshlrev_b32 v190, 4, v0
    s_cmp_lg_u32 {sW}, {7 if DIRW2 else 0}
    s_cbranch_scc1 Lkg_now2
    v_mul_u32_u24 v188, 6554, v0
    v_lshrrev_b32 v188, 16, v188
    v_mul_u32_u24 v189, 10, v188
    v_sub_u32 v189, v0, v189
    v_mul_u32_u24 v188, 0x500, v188
    v_lshl_add_u32 v188, v189, 4, v188
    s_mul_i32 s71, s2, {6*1280}
    s_mov_b32 exec_hi, 0x0fffffff""")
    for c in range(8):
        a(f"buffer_load_dwordx4 {v(RP+4*c,4)}, v188, {S4}, s71 offen offset:{160*c}")
    a("s_mov_b32 exec_hi, -1\nLkg_now2:")
    W2X = 0 if DIRW2 else 8
    def kwait(tag):
        q = list(a.vm); idx = max(k for k, t in enumerate(q) if t == tag); n = len(q) - 1 - idx
        L = a.label("Lkw")
        a(f"s_waitcnt vmcnt({n+W2X})\ns_cmp_eq_u32 {sW}, 0\ns_cbranch_scc1 {L}\ns_waitcnt vmcnt({n})\n{L}:")
    a(f"s_setprio {os.environ.get('PS','0')}")
    def W2T():
        a(f"""s_mul_i32 s70, {sW}, 80
        v_add_u32 v250, s70, v0
        v_add_u32 v251, 64, v250
        s_add_u32 s70, s70, 79
        v_min_u32 v251, s70, v251
        s_lshr_b32 s71, s2, 3
        s_mul_i32 s71, s71, {48*1280}
        s_and_b32 s70, s2, 1
        s_mul_i32 s70, s70, 640
        s_add_u32 s71, s71, s70""")
        for r in (250, 251):
            a(f"""v_mul_u32_u24 v252, 13108, v{r}
            v_lshrrev_b32 v252, 16, v252
            v_mul_u32_u24 v253, 5, v252
            v_sub_u32 v253, v{r}, v253
            v_mul_u32_u24 v252, 0x500, v252
            v_lshl_add_u32 v252, v253, 7, v252
            buffer_load_dword v{r}, v252, {S4}, s71 offen""")
    make_tag(a)
    stamp_reset(1)
    a(f"""s_bitcmp1_b32 {sCH}, 0
    s_cselect_b32 s70, 0, 16
    s_lshl_b32 s69, s69, s70
    s_and_b32 s69, s69, 0xffff0000
    v_mov_b32 v3, s69
    v_mul_f32 v4, {LOG2E}, v3
    s_mov_b32 s70, {LOG2E}
    v_fma_f32 v5, v3, s70, -v4
    v_fmac_f32 v5, 0x32A57060, v3
    v_exp_f32 v4, v4
    v_mul_f32 v5, 0x3F317218, v5
    v_fmac_f32 v4, v4, v5
    v_cvt_pk_bf16_f32 v4, v4, v4
    v_and_b32 v3, 0xffff0000, v4""")
    R = {r: 30 + 2*(r-1) for r in range(1, 8)}
    V = {b: 44 + 2*(b-1) for b in range(1, 16)}
    Wr, Pa, Pb = 74, 76, 78
    U = [80 + 2*i for i in range(8)]
    CVT = [96 + i for i in range(8)]
    zr, th = 104, 105
    FR = 112
    KACC = 176
    cv = [0]
    def p2(r): return f"v[{r}:{r+1}]"
    def cmuls(lst):
        if os.environ.get('NOPK'):
            for D, X, Y in lst: a(f"v_mul_f32 v{D}, v{X}, v{Y}\nv_mul_f32 v{D+1}, v{X}, v{Y+1}")
            for D, X, Y in lst: a(f"v_fma_f32 v{D}, -v{X+1}, v{Y+1}, v{D}\nv_fmac_f32 v{D+1}, v{X+1}, v{Y}")
            return
        for D, X, Y in lst:
            a(f"v_pk_mul_f32 {p2(D)}, {p2(X)}, {p2(Y)} op_sel:[0,0] op_sel_hi:[0,1]")
        for D, X, Y in lst:
            a(f"v_pk_fma_f32 {p2(D)}, {p2(X)}, {p2(Y)}, {p2(D)} op_sel:[1,1,0] op_sel_hi:[1,0,1] neg_lo:[1,0,0]")
    def emit(rows_regs, neg=False):
        ts = []
        for row, r in rows_regs:
            t = CVT[cv[0] % 8]; cv[0] += 1; ts.append((row, t))
            a(f"v_cvt_pk_bf16_f32 v{t}, v{r}, {'-' if neg else ''}v{r+1}")
        for row, t in ts:
            a(f"ds_write_addtid_b32 v{t} offset:{288*row}")
    for r in range(12): a(f"v_mov_b32 v{KACC+r}, 0")
    kwait('par')
    stamp(a, 'par', True)
    for k in range(6):
        lo, hi = 30+2*k, 31+2*k
        a(f"""v_alignbit_b32 v{lo}, v{hi}, v{lo}, v2
        v_lshrrev_b32 v{hi}, v2, v{hi}
        v_lshlrev_b32 v{PR+k}, 16, v{lo}
        v_and_b32 v{PR+6+k}, 0xffff0000, v{lo}
        v_lshlrev_b32 v{PR+12+k}, 16, v{hi}""")
    if TOUCHW2 == 2: W2T()
    a("s_mov_b32 s69, 3\nLkg:")
    a.vm.clear()
    q = PR
    a(f"""v_mul_f32 v{zr}, v3, v{q}
    v_mul_f32 v{th}, v3, v{q+1}
    v_mul_f32 v{q+2}, v3, v{q+2}
    v_mul_f32 v{q+3}, v3, v{q+3}
    v_mul_f32 v{zr}, {LOG2E}, v{zr}
    v_mul_f32 v{th}, 0.15915494, v{th}""")
    dst = [(R[1], None), (V[1], 0x41000000), (Wr, 0x43000000)]
    for k, (d, mulc) in enumerate(dst):
        e, ph = U[k], U[k]+1
        if mulc is None:
            a(f"v_exp_f32 v{e}, v{zr}\nv_fract_f32 v{ph}, v{th}")
        else:
            a(f"v_mul_f32 v{e}, {mulc}, v{zr}\nv_mul_f32 v{ph}, {mulc}, v{th}\nv_exp_f32 v{e}, v{e}\nv_fract_f32 v{ph}, v{ph}")
    for k, (d, mulc) in enumerate(dst):
        a(f"v_cos_f32 v{d}, v{U[k]+1}\nv_sin_f32 v{d+1}, v{U[k]+1}")
    cmuls([(Pa, q+4, q+2)])
    for k, (d, mulc) in enumerate(dst):
        a(f"v_mul_f32 v{d}, v{d}, v{U[k]}\nv_mul_f32 v{d+1}, v{d+1}, v{U[k]}")
    for k in range(0, 12, 2): a(f"v_pk_mul_f32 {p2(q+k)}, {p2(q+6+k)}, 1.0 op_sel_hi:[1,0]")
    a(f"v_mov_b32 v{CVT[7]}, 0x3f80")
    a(f"ds_write_addtid_b32 v{CVT[7]} offset:{288*41}")
    cmuls([(R[2], R[1], R[1]), (V[2], V[1], V[1]), (Pb, Pa, Wr)])
    emit([(0, Pa), (8, Pb)]); emit([(42, V[1]), (43, V[2])], neg=True)
    cmuls([(R[3], R[2], R[1]), (R[4], R[2], R[2]), (V[3], V[2], V[1]), (V[4], V[2], V[2]),
           (U[0], Pa, R[1]), (U[1], Pa, R[2]), (U[2], Pb, R[1]), (U[3], Pb, R[2])])
    emit([(1, U[0]), (2, U[1]), (9, U[2]), (10, U[3])]); emit([(44, V[3]), (45, V[4])], neg=True)
    cmuls([(R[5], R[4], R[1]), (R[6], R[4], R[2]), (R[7], R[4], R[3]),
           (V[5], V[4], V[1]), (V[6], V[4], V[2]), (V[7], V[4], V[3]), (V[8], V[4], V[4]),
           (U[0], Pa, R[3]), (U[1], Pa, R[4]), (U[2], Pb, R[3]), (U[3], Pb, R[4])])
    emit([(3, U[0]), (4, U[1]), (11, U[2]), (12, U[3])]); emit([(41+b, V[b]) for b in (5, 6, 7, 8)], neg=True)
    cmuls([(U[0], Pa, R[5]), (U[1], Pa, R[6]), (U[2], Pa, R[7]), (U[3], Pb, R[5]), (U[4], Pb, R[6]), (U[5], Pb, R[7])]
          + [(V[8+b], V[8], V[b]) for b in range(1, 8)] + [(U[6], Wr, Wr), (U[7], Pb, Wr)])
    W2, P2 = U[6], U[7]
    emit([(5, U[0]), (6, U[1]), (7, U[2]), (13, U[3]), (14, U[4]), (15, U[5])])
    cmuls([(Pa, Pb, W2), (U[0], P2, R[2]), (U[1], P2, R[4]), (U[2], P2, R[6])])
    cmuls([(Pb, P2, W2)])
    emit([(41+8+b, V[8+b]) for b in range(1, 8)], neg=True)
    emit([(16, P2), (17, U[0]), (18, U[1]), (19, U[2])])
    Pc, Pd = V[9], V[10]
    cmuls([(Pc, Pa, W2), (Pd, Pb, W2), (U[0], Pa, R[2]), (U[1], Pa, R[4]), (U[2], Pa, R[6]), (U[3], Pb, R[4])])
    emit([(20, Pa), (21, U[0]), (22, U[1]), (23, U[2]), (24, Pb), (25, U[3])])
    cmuls([(Pa, Pc, W2), (Pb, Pd, W2), (U[0], Pc, R[4]), (U[1], Pd, R[4])])
    emit([(26, Pc), (27, U[0]), (28, Pd), (29, U[1])])
    cmuls([(Pc, Pa, W2), (Pd, Pb, W2), (U[0], Pa, R[4]), (V[11], W2, W2)])
    emit([(30, Pa), (31, U[0]), (32, Pb)])
    W4 = V[11]
    cmuls([(Pa, Pc, W2), (U[0], Pb, W4), (U[1], Pc, W4), (U[2], Pd, W4)])
    emit([(33, Pc), (34, Pd)])
    cmuls([(U[3], Pa, W4), (U[4], U[0], W4)])
    emit([(35, Pa), (36, U[0]), (37, U[1]), (38, U[2])])
    emit([(39, U[3]), (40, U[4])])
    a("s_waitcnt lgkmcnt(0)")
    for ks in range(4):
        a.ds(f"ds_read_b128 {v(FR+16*ks+12,4)}, v7 offset:{288*41 + 64*ks}", ('fr', ks))
        for m in range(3):
            a.ds(f"ds_read_b128 {v(FR+16*ks+4*m,4)}, v7 offset:{288*16*m + 64*ks}", ('fr', ks))
    for ks in range(4):
        a.wait(lg=[('fr', ks)])
        for m in range(3):
            a(f"v_mfma_f32_16x16x32_bf16 {v(KACC+4*m,4)}, {v(FR+16*ks+4*m,4)}, {v(FR+16*ks+12,4)}, {v(KACC+4*m,4)}")
    a(f"""s_sub_u32 s69, s69, 1
    s_cmp_lg_u32 {sW}, {7 if DIRW2 else 0}
    s_cbranch_scc1 Lkg_n
    s_cmp_eq_u32 s69, 2
    s_cbranch_scc0 Lkg_f
    s_waitcnt vmcnt(0)
    s_mov_b32 exec_hi, 0x0fffffff""")
    for c in range(8):
        a(f"buffer_store_dwordx4 {v(RP+4*c,4)}, v190, {SWS}, s78 offen sc1")
        if c < 7: a("s_add_u32 s78, s78, 245760")
    a(f"""s_mov_b32 exec_hi, -1
    s_branch Lkg
    Lkg_f:
    s_cmp_eq_u32 s69, 1
    s_cbranch_scc0 Lkg_n
    s_lshl_b32 s70, s2, 7
    s_add_u32 s70, s70, {FL_AUX}
    s_waitcnt vmcnt(0)""")
    flag_store(a, "s70", 190, 191)
    a("""Lkg_n:
    s_cmp_lg_u32 s69, 0
    s_cbranch_scc1 Lkg""")
    stamp(a, 'tables', True)
    if TOUCHW2 == 1:
        W2T()
    go_wait(a, 20)
    u_issue(a)
    stamp(a, 'aux seen', True)
    a(f"""v_lshrrev_b32 v4, 4, v0
    v_lshrrev_b32 v8, 1, v4
    v_and_b32 v9, 1, v4
    v_lshlrev_b32 v10, 8, v8
    v_lshl_add_u32 v10, v6, 4, v10
    v_lshl_add_u32 v10, v9, 3, v10
    v_add_u32 v10, {sKB}, v10
    v_lshlrev_b32 v11, 7, v4
    v_add_u32 v11, 512, v11
    v_sub_u32 v12, 3, v8
    v_lshlrev_b32 v12, v12, v6
    v_add_u32 v11, v11, v12
    v_add_u32 v11, {sKB}, v11
    v_mul_u32_u24 v12, 60, v8
    v_add_u32 v12, 4, v12
    v_add_u32 v12, v11, v12
    v_lshlrev_b32 v13, 7, v4
    v_lshl_add_u32 v13, v6, 1, v13
    v_add_u32 v13, {sKB}, v13
    v_mov_b32 v14, 0
    v_mov_b32 v15, {sKB}""")
    for i in range(6): a(f"v_cvt_pk_bf16_f32 v{16+i}, v{KACC+2*i}, v{KACC+2*i+1}")
    a(f"""ds_write_b64 v10, v[16:17] offset:{CVOFF}
    ds_write_b32 v11, v18 offset:{CVOFF}
    ds_write_b32 v12, v19 offset:{CVOFF}
    ds_write_b16 v13, v20 offset:{CVOFF+1024}
    ds_write_b16_d16_hi v13, v20 offset:{CVOFF+1024+32}
    ds_write_b16 v13, v21 offset:{CVOFF+1024+64}
    ds_write_b16_d16_hi v13, v21 offset:{CVOFF+1024+96}
    ds_write_b32 v15, v14 offset:{CVOFF-4}
    v_and_b32 v8, 31, v0
    v_lshl_add_u32 v9, v8, 4, {sKB}
    v_lshl_add_u32 v10, v8, 3, {sKB}
    v_min_u32 v11, 1, v8
    v_lshl_add_u32 v11, v11, 1, v10
    v_lshl_add_u32 v12, v0, 2, {sKB}
    v_lshl_add_u32 v13, v0, 1, {sKB}
    s_mul_i32 s69, {sW}, {KSTR}
    s_add_u32 s69, s69, {KB0}
    v_lshl_add_u32 v14, v0, 4, s69
    v_mov_b32 v40, 0
    v_mov_b32 v41, 0
    v_mov_b32 v42, 0
    v_mov_b32 v43, 0
    s_waitcnt lgkmcnt(0)
    ds_read_b128 v[16:19], v9 offset:{CVOFF}
    ds_read_b32 v20, v9 offset:{CVOFF-4}
    ds_read_b64 v[22:23], v10 offset:{CVOFF+512}
    ds_read_b32 v24, v10 offset:{CVOFF+512+8}
    ds_read_u16 v25, v11 offset:{CVOFF+512-2}
    ds_read_b32 v26, v12 offset:{CVOFF+768}
    ds_read_b32 v27, v12 offset:{CVOFF+768+4}
    ds_read_u16 v28, v13 offset:{CVOFF+1024}
    ds_read_u16 v60, v13 offset:{CVOFF+1024+2}
    ds_read_u16 v29, v13 offset:{CVOFF+1024+128}
    ds_read_u16 v61, v13 offset:{CVOFF+1024+130}
    s_mov_b32 s70, 0xffff
    s_mov_b32 s71, 0x01000100
    s_mov_b32 s72, 0x03020302
    s_mov_b32 s75, 0x05040100
    v_and_b32 v30, 1, v0
    v_mul_u32_u24 v31, 0x0404, v30
    v_lshlrev_b32 v30, 16, v31
    v_add_u32 v30, 0x01000504, v30
    v_add_u32 v31, 0x01000100, v31
    s_mov_b64 exec, 0xff
    ds_write_b128 v14, v[40:43]
    ds_write_b128 v14, v[40:43] offset:{K1OFF}
    s_mov_b64 exec, 0xffffffff
    s_waitcnt lgkmcnt(2)
    v_alignbit_b32 v32, v19, v19, 16
    v_alignbit_b32 v33, v18, v18, 16
    v_alignbit_b32 v34, v17, v17, 16
    v_alignbit_b32 v35, v16, v16, 16
    v_bfi_b32 v36, s70, v19, v18
    v_bfi_b32 v37, s70, v18, v17
    v_bfi_b32 v38, s70, v17, v16
    v_bfi_b32 v39, s70, v16, v20
    ds_write_b128 v14, v[32:35] offset:{K1OFF+128}
    ds_write_b128 v14, v[36:39] offset:128
    v_bfi_b32 v44, s70, v24, v23
    v_perm_b32 v45, v23, v23, s71
    v_bfi_b32 v46, s70, v23, v22
    v_perm_b32 v47, v22, v22, s71
    v_alignbit_b32 v48, v23, v23, 16
    v_mov_b32 v49, v45
    v_alignbit_b32 v50, v22, v22, 16
    v_perm_b32 v51, v25, v22, s75
    ds_write_b128 v14, v[44:47] offset:{K1OFF+128+512}
    ds_write_b128 v14, v[48:51] offset:{128+512}
    s_mov_b64 exec, -1
    v_perm_b32 v64, v27, v27, s71
    v_perm_b32 v65, v26, v26, s72
    v_alignbit_b32 v66, v26, v26, 16
    v_perm_b32 v67, v26, v26, s71
    v_bfi_b32 v68, s70, v27, v26
    v_mov_b32 v69, v65
    v_mov_b32 v70, v67
    v_mov_b32 v71, v67
    ds_write_b128 v14, v[64:67] offset:{K1OFF+128+1024}
    ds_write_b128 v14, v[68:71] offset:{128+1024}""")
    for k, src in enumerate((28, 29)):
        b = 72 + 8*k; s1 = 60 + k
        a(f"""v_perm_b32 v{b}, v{s1}, v{s1}, s71
        v_perm_b32 v{b+1}, v{s1}, v{src}, v30
        v_perm_b32 v{b+2}, v{src}, v{src}, s71
        v_perm_b32 v{b+5}, v{s1}, v{src}, v31
        v_mov_b32 v{b+3}, v{b+2}
        v_mov_b32 v{b+4}, v{b}
        v_mov_b32 v{b+6}, v{b+2}
        v_mov_b32 v{b+7}, v{b+2}
        ds_write_b128 v14, {v(b,4)} offset:{K1OFF+128+2048+1024*k}
        ds_write_b128 v14, {v(b+4,4)} offset:{128+2048+1024*k}""")
    a.vm.clear(); a.lg.clear()

def aux(a):
    sI = "s54"
    sX8, sJ = "s55", "s56"
    a("Laux:")
    X = 16
    TB = 56
    TB2 = 212
    TM = 96
    CS = 116
    TP = 244
    def blk_addr(sidx, sld, sst):
        a(f"""s_mul_i32 s70, {sidx}, 6554
        s_lshr_b32 s70, s70, 16
        s_mul_i32 s71, s70, 10
        s_sub_u32 s71, {sidx}, s71
        s_lshr_b32 s72, {sX8}, 1
        s_lshl_b32 s72, s72, 3
        s_add_u32 s70, s70, s72
        s_mul_i32 {sld}, s70, {64*1280}
        s_lshl_b32 s72, s71, 7
        s_add_u32 {sld}, {sld}, s72
        s_lshl_b32 {sst}, s71, 18
        s_lshl_b32 s72, s70, 7
        s_add_u32 {sst}, {sst}, s72
        s_add_u32 {sst}, {sst}, {XNT}""")
    def blk_load(base, sld):
        for r in range(8):
            a(f"buffer_load_dwordx4 {v(base+4*r,4)}, v{(2,3,6)[r//3]}, {SX}, {sld} offen offset:{(r%3)*1280}")
    def blk_store(base, sst):
        for c in range(8):
            o = TP + 4*(c % 2)
            for k in range(4):
                a(f"v_perm_b32 v{o+k}, v{base+4*(2*k+1)+c//2}, v{base+4*(2*k)+c//2}, {'s75' if c % 2 else 's74'}")
            a(f"buffer_store_dwordx4 {v(o,4)}, v7, {SWS}, {sst} offen sc1")
            if c < 7: a(f"s_add_u32 {sst}, {sst}, 4096")
    a(f"""s_and_b32 {sX8}, {sI}, 7
    s_lshr_b32 {sJ}, {sI}, 3
    s_setprio {os.environ.get('PA','1')}
    s_lshr_b32 s81, 0xfff, {sJ}
    s_and_b32 s81, s81, 1
    v_lshrrev_b32 v4, 3, v0
    v_and_b32 v5, 7, v0""")
    a(f"""s_cmp_eq_u32 s81, 0
    s_cbranch_scc1 Laux_nocs
    s_lshr_b32 s77, {sX8}, 1
    s_and_b32 s78, {sX8}, 1
    s_mul_i32 s78, s78, 12
    s_add_u32 s78, s78, {sJ}
    v_mul_u32_u24 v8, 0xc00, v4
    v_lshl_add_u32 v8, v5, 4, v8
    s_mul_i32 s72, s77, {160*3072}
    s_lshl_b32 s73, s78, 7
    s_add_u32 s72, s72, s73""")
    for n in range(20):
        a(f"buffer_load_dwordx4 {v(CS+4*n,4)}, v8, {SW1}, s72 offen")
        if n < 19: a(f"s_add_u32 s72, s72, 24576")
    a(f"""Laux_nocs:
    s_lshl_b32 s68, {sX8}, 8
    s_lshl_b32 s70, {sJ}, 3
    s_add_u32 s68, s68, s70
    s_mul_i32 s70, s68, 1280
    v_mul_u32_u24 v1, 0x500, v4
    v_lshl_add_u32 v1, v5, 4, v1""")
    for n in range(10):
        a(f"buffer_load_dwordx4 {v(X+4*n,4)}, v1, {SX}, s70 offen offset:{128*n}")
    a(f"""s_and_b32 s69, {sX8}, 1
    s_mul_i32 s69, s69, 40
    s_add_u32 s69, s69, {sJ}
    v_mul_u32_u24 v2, {8*1280}, v5
    v_lshl_add_u32 v2, v4, 4, v2
    v_add_u32 v3, {3*1280}, v2
    v_add_u32 v6, {6*1280}, v2
    v_lshlrev_b32 v7, 15, v4
    v_lshl_add_u32 v7, v5, 4, v7""")
    blk_addr("s69", "s73", "s79")
    blk_load(TB, "s73")
    a(f"""s_cmp_lt_u32 {sJ}, 24
    s_cbranch_scc1 Laux_b1
    s_add_u32 s69, s69, 8""")
    blk_addr("s69", "s73", "s80")
    blk_load(TB2, "s73")
    a("Laux_b1:")
    if TOUCH:
        a(f"""s_getpc_b64 s[62:63]
        Lpc:
        s_sub_u32 s62, s62, Lpc-{KN}
        s_subb_u32 s63, s63, 0
        v_min_u32 v8, 9, v0
        s_mul_i32 s70, {sJ}, 10
        v_add_u32 v8, s70, v8
        v_lshlrev_b32 v8, 7, v8
        v_min_u32 v8, Lend-{KN}, v8
        s_mov_b64 exec, 0x3ff
        global_load_dword v252, v8, s[62:63]
        s_mov_b64 exec, -1""")
    make_tag(a)
    a(f"""s_mov_b32 s74, 0x05040100
    s_mov_b32 s75, 0x07060302
    s_mov_b32 s70, 0x3f803f80
    v_and_b32 v8, 15, v0
    v_lshrrev_b32 v9, 1, v8
    v_and_b32 v10, 1, v8
    v_lshlrev_b32 v10, 4, v10
    v_mov_b32 v11, 0x3f80
    v_lshlrev_b32 v11, v10, v11""")
    for k in range(4):
        a(f"v_cmp_eq_u32 vcc, {k}, v9\nv_cndmask_b32 v{88+k}, 0, v11, vcc")
    a(f"""s_lshl_b32 s76, {sI}, 7
    s_cmp_eq_u32 s81, 0
    s_cbranch_scc1 Laux_nocs1
    s_waitcnt vmcnt({18+TOUCH})""")
    for n in range(20):
        a(f"v_mfma_f32_16x16x32_bf16 v[112:115], v[88:91], {v(CS+4*n,4)}, {'0' if n == 0 else 'v[112:115]'}")
    for k in range(4):
        a(f"v_add_f32_dpp v{112+k}, v{112+k}, v{112+k} row_ror:8 row_mask:0xf bank_mask:0xf")
    a(f"""v_lshrrev_b32 v9, 4, v0
    v_lshlrev_b32 v8, 5, v5
    v_lshl_add_u32 v8, v9, 4, v8
    s_lshl_b32 s72, s78, 8
    s_mul_i32 s73, s77, 6144
    s_add_u32 s72, s72, s73
    s_add_u32 s72, s72, {CSUM}
    s_mov_b64 exec, 0x00ff00ff
    buffer_store_dwordx4 v[112:115], v8, {SWS}, s72 offen sc1
    s_mov_b64 exec, -1
    s_waitcnt vmcnt({9+TOUCH})
    s_branch Laux_w
    Laux_nocs1:
    s_waitcnt vmcnt({16+TOUCH})
    s_cmp_ge_u32 {sJ}, 24
    s_cbranch_scc1 Laux_w
    s_waitcnt vmcnt({8+TOUCH})
    Laux_w:""")
    stamp_reset(1); stamp(a, 'aux loads')
    for k in range(4): a(f"v_dot2_f32_bf16 v{8+k}, v{X+k}, s70, 0")
    for k in range(4): a(f"v_dot2_f32_bf16 v{12+k}, v{X+k}, v{X+k}, 0")
    for n in range(1, 10):
        for k in range(4): a(f"v_dot2_f32_bf16 v{8+k}, v{X+4*n+k}, s70, v{8+k}")
        for k in range(4): a(f"v_dot2_f32_bf16 v{12+k}, v{X+4*n+k}, v{X+4*n+k}, v{12+k}")
    INV640 = 0x3ACCCCCD
    def red8(rs):
        for t in ("v_add_f32 v{r}, v{r}, v{r1}", "v_add_f32 v{r2}, v{r2}, v{r3}", "v_add_f32 v{r}, v{r}, v{r2}",
                  "v_add_f32_dpp v{r}, v{r}, v{r} quad_perm:[1,0,3,2] row_mask:0xf bank_mask:0xf",
                  "v_add_f32_dpp v{r}, v{r}, v{r} quad_perm:[2,3,0,1] row_mask:0xf bank_mask:0xf",
                  "v_add_f32_dpp v{r}, v{r}, v{r} row_half_mirror row_mask:0xf bank_mask:0xf",
                  "v_mul_f32 v{r}, %d, v{r}" % INV640):
            for r in rs: a(t.format(r=r, r1=r+1, r2=r+2, r3=r+3))
    red8([8, 12])
    a("""v_mul_f32 v9, v8, v8
    v_sub_f32 v12, v12, v9
    v_mul_f32 v10, 0x41800000, v12
    v_sub_f32 v8, 0, v8
    v_cmp_nle_f32 vcc, v9, v10
    s_cbranch_vccz Laux_var
    v_mov_b32 v9, v8""")
    for n in range(10):
        t = TM + 8*(n % 2)
        for k in range(4):
            a(f"v_lshlrev_b32 v{t+2*k}, 16, v{X+4*n+k}\nv_and_b32 v{t+2*k+1}, 0xffff0000, v{X+4*n+k}")
        for k in range(4): a(f"v_pk_add_f32 {v(t+2*k,2)}, {v(t+2*k,2)}, v[8:9]")
        for k in range(4):
            if n == 0 and k < 2: a(f"v_pk_mul_f32 {v(12+2*k,2)}, {v(t+2*k,2)}, {v(t+2*k,2)}")
            else: a(f"v_pk_fma_f32 {v(12+2*(k%2),2)}, {v(t+2*k,2)}, {v(t+2*k,2)}, {v(12+2*(k%2),2)}")
    red8([12])
    a(f"""Laux_var:
    v_cvt_pk_bf16_f32 v9, v12, v12
    v_and_b32 v9, 0xffff0000, v9
    v_add_f32 v9, 0x3727C5AC, v9
    v_cvt_pk_bf16_f32 v9, v9, v9
    v_and_b32 v9, 0xffff0000, v9
    v_sqrt_f32 v9, v9
    v_cvt_pk_bf16_f32 v9, v8, v9
    v_lshlrev_b32 v12, 2, v4
    s_lshl_b32 s70, s68, 2
    s_add_u32 s70, s70, {STATS}
    s_mov_b32 exec_lo, 0x01010101
    s_mov_b32 exec_hi, 0x01010101
    buffer_store_dword v9, v12, {SWS}, s70 offen sc1
    s_mov_b64 exec, -1
    s_waitcnt vmcnt(1)
    s_cmp_eq_u32 s81, 0
    s_cbranch_scc1 Laux_w2
    s_waitcnt vmcnt(2)
    Laux_w2:""".replace("s_waitcnt vmcnt(1)\n    s_cmp_eq_u32 s81, 0\n    s_cbranch_scc1 Laux_w2\n    s_waitcnt vmcnt(2)\n    Laux_w2:", "s_waitcnt vmcnt(1)"))
    TQ = 116
    for c in range(8):
        for k in range(4):
            a(f"v_perm_b32 v{TQ+4*c+k}, v{TB+4*(2*k+1)+c//2}, v{TB+4*(2*k)+c//2}, {'s75' if c % 2 else 's74'}")
    a(f"""s_add_u32 s70, s76, {FL_S}
    s_waitcnt vmcnt(0)""")
    flag_store(a, "s70", 8, 9)
    for c in range(8):
        a(f"buffer_store_dwordx4 {v(TQ+4*c,4)}, v7, {SWS}, s79 offen sc1")
        if c < 7: a(f"s_add_u32 s79, s79, 4096")
    a(f"""s_cmp_lt_u32 {sJ}, 24
    s_cbranch_scc1 Laux_b2""")
    blk_store(TB2, "s80")
    a(f"""Laux_b2:
    s_add_u32 s70, s76, {FL_C}
    s_waitcnt vmcnt(0)""")
    flag_store(a, "s70", 8, 9)
    stamp(a, 'stats flag')
    a(f"""s_cmp_lg_u32 {sJ}, 31
    s_cbranch_scc1 Laux_go""")
    poll256(a, FL_C, 128, r=20, slp=1)
    a(f"""s_lshl_b32 s70, {sX8}, 7
    s_add_u32 s70, s70, {GO}""")
    flag_store(a, "s70", 8, 9)
    a(f"Laux_go:\ns_setprio {os.environ.get('PS','0')}")
    go_wait(a, 20)
    u_issue(a)

def conv(a):
    sI = "s54"
    a("Lconv:")
    stamp_reset(4); stamp(a, 'Lconv', True)
    a(f"""v_and_b32 v10, 15, v0
    v_lshrrev_b32 v11, 4, v0
    v_and_b32 v12, 1, v0
    v_lshrrev_b32 v13, 1, v10
    v_mul_u32_u24 v14, {K1OFF}, v12
    v_sub_u32 v15, v13, v11
    v_lshl_add_u32 v14, v15, 4, v14
    v_add_u32 v14, {KB0+64}, v14
    v_and_b32 v12, 3, v0
    v_mul_u32_u24 v15, {UCS}, v12
    v_lshrrev_b32 v13, 2, v10
    v_lshl_add_u32 v15, v13, 7, v15
    v_lshl_add_u32 v15, v11, 4, v15
    v_add_u32 v15, {UPAD+48}, v15
    v_lshlrev_b32 v19, 7, v13
    v_lshl_add_u32 v19, v11, 5, v19
    v_lshl_add_u32 v19, v12, 2, v19
    v_mov_b32 v4, 0
    v_mov_b32 v5, 0
    v_lshlrev_b32 v6, 3, v0
    s_mul_i32 s70, {sW}, {UCS}
    v_add_u32 v6, s70, v6
    s_waitcnt lgkmcnt(0)
    s_barrier""")
    a("s_mov_b32 exec_hi, 0x00ffffff")
    for c in range(3): a(f"ds_write_b64 v6, v[4:5] offset:{c*USTR}")
    a("s_mov_b32 exec_hi, -1")
    NM, RS, UD = 44, 52, 226
    def unp(d, s): return f"v_lshlrev_b32 v{d}, 16, v{s}\nv_and_b32 v{d+1}, 0xffff0000, v{s}"
    a("s_waitcnt vmcnt(0)")
    for k in range(8): a(f"v_and_b32 v{RS+k}, 0xffff0000, v{UIN+k}")
    for k in range(8): a(f"v_rcp_f32 v{RS+k}, v{RS+k}\nv_lshlrev_b32 v{NM+k}, 16, v{UIN+k}")
    a("s_waitcnt lgkmcnt(0)\ns_barrier")
    for c in range(3):
        x = UIN + 8 + 4*c; t = 60; ud = UD + 8*c; o = c*USTR + UPAD
        for k in range(4): a(unp(t+2*k, x+k))
        for k in range(4): a(f"v_pk_add_f32 {v(t+2*k,2)}, {v(t+2*k,2)}, {v(NM+2*k,2)}")
        for k in range(4): a(f"v_cvt_pk_bf16_f32 v{x+k}, v{t+2*k}, v{t+2*k+1}")
        for k in range(4): a(unp(t+2*k, x+k))
        for k in range(4): a(f"v_pk_mul_f32 {v(t+2*k,2)}, {v(t+2*k,2)}, {v(RS+2*k,2)}")
        for k in range(4): a(f"v_cvt_pk_bf16_f32 v{x+k}, v{t+2*k}, v{t+2*k+1}")
        a(f"""v_cvt_pk_bf16_f32 v{68+2*c}, v{t+2}, v{t+3}
        v_cvt_pk_bf16_f32 v{69+2*c}, v{t+4}, v{t+5}
        ds_write_b128 v224, {v(x,4)} offset:{o+3*UCS-16}
        ds_write_b64 v224, {v(x,2)} offset:{o+UCS-8}
        ds_write_b64 v224, {v(x+2,2)} offset:{o+UCS}
        ds_write_b32 v224, v{x} offset:{o-4}
        ds_write_b64 v224, {v(68+2*c,2)} offset:{o}
        ds_write_b32 v224, v{x+3} offset:{o+8}
        ds_write_b32 v224, v{x} offset:{o+2*UCS-12}
        ds_write_b64 v224, {v(68+2*c,2)} offset:{o+2*UCS-8}
        ds_write_b32 v224, v{x+3} offset:{o+2*UCS}""")
    for c in range(3):
        x = UIN + 8 + 4*c; t = 60; ud = UD + 8*c
        for k in range(4): a(unp(t+2*k, x+k))
        sd = f"s{34+c+(c>1)*6}"
        a(f"s_bitcmp1_b32 {('s58','s59','s61')[c]}, 0\ns_cselect_b32 s70, 0, 16\ns_lshl_b32 {sd}, {sd}, s70\ns_and_b32 {sd}, {sd}, 0xffff0000")
        for k in range(8): a(f"v_mul_f32 v{t+k}, {sd}, v{t+k}")
        for k in range(4): a(f"v_cvt_pk_bf16_f32 v{76+k}, v{t+2*k}, v{t+2*k+1}")
        for k in range(4): a(unp(ud+2*k, 76+k))
    a("""s_waitcnt lgkmcnt(0)
    s_barrier""")
    stamp(a, 'u ready', True)
    YA = 20
    FS = [44, 132]
    def loop(name, parts):
        ad = [(16, 17), (8, 9)]
        tiles = [(pi, j) for pi, (c, J) in enumerate(parts) for j in J]
        acc = {t: YA + 4*k for k, t in enumerate(tiles)}
        base = []; n = 0
        for c, J in parts:
            base.append(n); n += 2*(max(J)+1)
        def reads(fs):
            out = []
            for pi, (c, J) in enumerate(parts):
                for k in range(max(J)+1):
                    out.append(f"ds_read_b128 {v(FS[fs]+4*(base[pi]+2*k),4)}, v{ad[pi][0]} offset:{512*k}")
                    out.append(f"ds_read_b128 {v(FS[fs]+4*(base[pi]+2*k+1),4)}, v{ad[pi][1]} offset:{512*k}")
                out.append(f"v_add_u32 v{ad[pi][0]}, 64, v{ad[pi][0]}")
                out.append(f"v_add_u32 v{ad[pi][1]}, -64, v{ad[pi][1]}")
            return out
        def mfmas(fs):
            rem = {t: list(range(t[1]+1)) for t in tiles}
            todo = []; last = []
            while any(rem.values()):
                cand = [t for t in tiles if rem[t] and t not in last[-GAP:]] or [t for t in tiles if rem[t] and t not in last[-1:]] or [t for t in tiles if rem[t]]
                t = max(cand, key=lambda t: len(rem[t]))
                todo.append((t, rem[t].pop(0))); last.append(t)
            return [f"v_mfma_f32_16x16x32_bf16 {v(acc[t],4)}, {v(FS[fs]+4*(base[t[0]]+2*p),4)}, {v(FS[fs]+4*(base[t[0]]+2*(t[1]-p)+1),4)}, {v(acc[t],4)}" for t, p in todo]
        for pi, (c, J) in enumerate(parts):
            if isinstance(c, str):
                a(f"s_mul_i32 s70, {c}, {KSTR}\ns_mul_i32 s71, {c}, {USTR}\nv_add_u32 v{ad[pi][0]}, s70, v14\nv_add_u32 v{ad[pi][1]}, s71, v15")
            else:
                a(f"v_add_u32 v{ad[pi][0]}, {c*KSTR}, v14\nv_add_u32 v{ad[pi][1]}, {c*USTR}, v15")
        for t in reads(0): a(t)
        for r in range(4*len(tiles)): a(f"v_mov_b32 v{YA+r}, 0")
        a(f"s_mov_b32 s64, 4\n{name}:")
        for fs in (0, 1):
            a("s_waitcnt lgkmcnt(0)")
            fill = reads(1-fs); ms = mfmas(fs)
            n = len(ms) - 4; done = 0
            for i, m in enumerate(ms):
                a(m)
                want = min(len(fill), -(-len(fill)*(i+1)//n))
                while done < want: a(fill[done]); done += 1
        a(f"""s_sub_u32 s64, s64, 1
        s_cmp_lg_u32 s64, 0
        s_cbranch_scc1 {name}
        s_waitcnt lgkmcnt(0)
        s_barrier""")
        for pi, (c, J) in enumerate(parts):
            if isinstance(c, str): a(f"s_lshl_b32 s70, {c}, 12\nv_add_u32 v{ad[pi][0]}, s70, v19")
            for j in J:
                r = acc[(pi, j)]
                off = 512*j + (0 if isinstance(c, str) else 4096*c)
                adr = ad[pi][0] if isinstance(c, str) else 19
                a(f"""v_cvt_pk_bf16_f32 v{r}, v{r}, v{r+1}
                v_cvt_pk_bf16_f32 v{r+2}, v{r+2}, v{r+3}
                ds_write_b32 v{adr}, v{r} offset:{off}
                ds_write_b32 v{adr}, v{r+2} offset:{off+16}""")
    a(f"""s_lshr_b32 s62, {sW}, 1
    s_cmp_eq_u32 {sW}, 1
    s_cbranch_scc1 Lcv_w1
    s_cmp_eq_u32 {sW}, 3
    s_cbranch_scc1 Lcv_w3""")
    loop("Lcv_l0", [("s62", [7, 6, 5, 1])])
    a("s_branch Lcv_bar2\nLcv_w1:")
    loop("Lcv_l1", [(0, [4, 3, 2, 0]), (1, [4, 3])])
    a("s_branch Lcv_bar2\nLcv_w3:\ns_cmp_eq_u32 s57, 1\ns_cbranch_scc1 Lcv_w3b")
    loop("Lcv_l3a", [(1, [2, 0]), (2, [7, 5, 2, 0])])
    a("s_branch Lcv_bar2\nLcv_w3b:")
    loop("Lcv_l3b", [(1, [2, 0]), (2, [6, 4, 3, 1])])
    a(f"""Lcv_bar2:
    s_waitcnt lgkmcnt(0)
    s_barrier""")
    stamp(a, 'conv done', True)
    for c in range(3): a.ds(f"ds_read_b128 {v(32+4*c,4)}, v224 offset:{c*4096}", ('y', c))
    a(f"""s_lshr_b32 s70, {sW}, 1
    s_xor_b32 s70, s70, s57
    s_cmp_eq_u32 s70, 0
    s_cselect_b32 s66, -1, 0
    s_cselect_b32 s67, 0, -1""")
    for c, sch in enumerate(("s58", "s59", "s61")):
        a.wait(lg=[('y', c)])
        y = 32 + 4*c; t = 48 + 8*c; ud = UD + 8*c
        for k in range(4): a(unp(t+2*k, y+k))
        for k in range(4): a(f"v_pk_add_f32 {v(t+2*k,2)}, {v(t+2*k,2)}, {v(ud+2*k,2)}")
        for k in range(4): a(f"v_cvt_pk_bf16_f32 v{y+k}, v{t+2*k}, v{t+2*k+1}")
        a(f"""s_lshl_b32 s70, {sch}, 12
        s_add_u32 s70, s70, {AT}""")
        if c == 2: a("s_mov_b64 exec, s[66:67]")
        a(f"buffer_store_dwordx4 {v(y,4)}, v224, {SWS}, s70 offen sc1")
        if c == 2: a("s_mov_b64 exec, -1")
    a("s_waitcnt vmcnt(0)")
    stamp(a, 'y stored'); stamp_flush(a, 50)
    a(f"""s_barrier
    s_cmp_eq_u32 {sW}, 1
    s_cbranch_scc1 Lcv_ep
    s_cmp_lg_u32 {sW}, 0
    s_cbranch_scc1 Lend
    s_lshl_b32 s70, {sI}, 7
    s_add_u32 s70, s70, {FL_Y}""")
    flag_store(a, "s70", 4, 5)
    a(f"""s_endpgm
    Lcv_ep:
    s_cmp_lg_u32 {sI}, 0
    s_cbranch_scc1 Lend""")
    if EXP != "nogemm": poll256(a, FL_ACT + 4096, 512, slp=8, grp=True)
    poll256(a, FL_Y, 128, slp=8)
    flag_store(a, "0", 4, 5)
    a("s_endpgm")

HEADER = open(os.path.join(os.path.dirname(os.path.abspath(__file__)), "..", "cdna_kernels",
              "parallel_sum__ssm_conv_s4__dense_activation_mish__prompt.s.ref")).read().split("; Override")[0]

def build():
    a = Asm()
    prologue(a)
    gemm(a)
    a.vm.clear(); a.lg.clear()
    ssm(a)
    a("Lend:\ns_endpgm")
    body = a.finalize()
    return f"""{HEADER}; @launch grid=(512,1,1) block=(256,1,1) lds=81920
.amdgcn_target "amdgcn-amd-amdhsa--gfx950"
.text
.globl {KN}
.p2align 8
.type {KN},@function
{KN}:
{body}.section .rodata,"a"
.p2align 6
.amdhsa_kernel {KN}
  .amdhsa_next_free_vgpr 256
  .amdhsa_next_free_sgpr 102
  .amdhsa_accum_offset 256
  .amdhsa_group_segment_fixed_size 0
  .amdhsa_kernarg_size 128
  .amdhsa_user_sgpr_count 2
  .amdhsa_user_sgpr_kernarg_segment_ptr 1
  .amdhsa_system_sgpr_workgroup_id_x 1
.end_amdhsa_kernel
"""

if __name__ == "__main__":
    out = sys.argv[1] if len(sys.argv) > 1 else "k.s"
    open(out, "w").write(build())
    print("wrote", out)
```

```python
import sys, os
sys.path.insert(0, os.path.dirname(os.path.abspath(__file__)))
from asmlib import Asm

KN = "parallel_sum__ssm_conv_s4__dense_activation_mish__prompt_kernel"

FL_S   = 0x0000 + 0x8000
FL_Y   = 0x10000
FL_ACT = 0x18000
STATS  = 0x30000
CSUM   = 0x34000
FL_C   = 0x70000
FL_AUX = 0x48000 + 0x20000
GO     = 0x1000
XNT    = 0x100000
AT     = 0x400000
W2P    = 0x700000
ACT    = 0xA00000
WS_SIZE= 0x1000000
LOG2E = 0x3FB8AA3B
SPIN_MAX = int(os.environ.get('SPIN_MAX', '20000'))
ACT_DELAY = int(os.environ.get('ACT_DELAY', '5'))
DIAG = int(os.environ.get("DIAG", "0"))
EXP = os.environ.get("EXP", "")
STAMP = 0x40000
DIRW2 = int(os.environ.get('DIRW2', '0'))
ROT = int(os.environ.get('ROT', '0'))
TOUCHW1 = int(os.environ.get('TOUCHW1', '0'))
TOUCHW2 = int(os.environ.get('TOUCHW2', '0'))
TLB = int(os.environ.get('TLB', '0'))
S1 = int(os.environ.get('S1', '4'))
C0 = int(os.environ.get('C0', '4'))
C1 = int(os.environ.get('C1', '2'))
C2 = int(os.environ.get('C2', '10'))
TOUCH = int(os.environ.get('TOUCH', '1'))
GAP = int(os.environ.get('GAP', '2'))

P = dict(x=16, Are=18, Aim=20, Bre=22, Bim=24, Cre=26, Cim=28, ldt=30, D=32, w1=36, b1=38, w2=40, out=42, dbg=44, ws=46)
def sp(n): return f"s[{P[n]}:{P[n]+1}]"
SX, SW1, SWS, S4 = "s[4:7]", "s[8:11]", "s[12:15]", "s[48:51]"
sW, sTAG = "s3", "s52"

_st = {"n": 0}
def stamp(a, name=None, wait=False):
    if not DIAG: return
    k = _st["n"]; _st["n"] += 1
    assert k < 10, k
    a(f"{'s_memtime' if os.environ.get('CYC') else 's_memrealtime'} s[{82+2*k}:{83+2*k}]")
    if wait: a("s_waitcnt lgkmcnt(0)")
def stamp_reset(n=0): _st["n"] = n
def stamp_flush(a, tmp):
    if not DIAG: return
    a("s_waitcnt lgkmcnt(0)")
    a(f"s_lshl_b32 s80, s2, 2\ns_add_u32 s80, s80, {sW}\ns_lshl_b32 s80, s80, 6\ns_add_u32 s80, s80, {STAMP}\nv_mov_b32 v{tmp+1}, 0\ns_mov_b64 exec, 1")
    for k in range(10):
        a(f"v_mov_b32 v{tmp}, s{82+2*k}\nbuffer_store_dword v{tmp}, v{tmp+1}, {SWS}, s80 offen offset:{4*k}\ns_nop 1")
    a("s_mov_b64 exec, -1")

def v(i, n=1): return f"v{i}" if n == 1 else f"v[{i}:{i+n-1}]"

def srd(a, base, ptr, size):
    a(f"""s_mov_b32 s{base}, s{P[ptr]}
    s_mov_b32 s{base+1}, s{P[ptr]+1}
    s_mov_b32 s{base+2}, {size}
    s_mov_b32 s{base+3}, 0x20000""")

def spin(a, load, cmp, scnt="s60", slp=4):
    L = a.label("Lspin"); Lok = a.label("Lok")
    a(cmp)
    a(f"s_cbranch_scc1 {Lok}")
    a(f"s_mov_b32 {scnt}, {SPIN_MAX}")
    a(f"{L}:")
    a(f"s_sleep {slp}")
    a(load)
    a("s_waitcnt vmcnt(0)")
    a(cmp)
    a(f"s_cbranch_scc1 {Lok}")
    a(f"s_sub_u32 {scnt}, {scnt}, 1")
    a(f"s_cmp_lg_u32 {scnt}, 0")
    a(f"s_cbranch_scc1 {L}")
    a(f"{Lok}:")

def cmpn(regs):
    dst = ["vcc", "s[62:63]", "s[64:65]", "s[66:67]"][:len(regs)]
    t = "\n".join(f"v_cmp_ne_u32 {d}, {sTAG}, v{r}" for d, r in reversed(list(zip(dst, regs))))
    for d in dst[1:]: t += f"\ns_or_b64 vcc, vcc, {d}"
    return t + "\ns_cmp_eq_u64 vcc, 0"

def poll256_issue(a, base, stride, r=4, s0=72):
    a(f"v_mul_u32_u24 v{r+4}, {stride}, v0")
    for n in range(4): a(f"s_mov_b32 s{s0+n}, {base + 64*stride*n}")
    ld = "\n".join(f"buffer_load_dword v{r+n}, v{r+4}, {SWS}, s{s0+n} offen sc1" for n in range(4))
    a(ld)
    return ld
def poll256(a, base, stride, slp=4, r=4):
    ld = poll256_issue(a, base, stride, r)
    a("s_waitcnt vmcnt(0)")
    spin(a, ld, cmpn([r, r+1, r+2, r+3]), slp=slp)

def go_issue(a, r, s="s75"):
    a(f"""v_mov_b32 v{r+1}, 0
    s_and_b32 {s}, s2, 7
    s_lshl_b32 {s}, {s}, 7
    s_add_u32 {s}, {s}, {GO}""")
    return f"buffer_load_dword v{r}, v{r+1}, {SWS}, {s} offen sc1"
def go_wait(a, r):
    ld = go_issue(a, r)
    a(ld); a("s_waitcnt vmcnt(0)")
    spin(a, ld, cmpn([r]), slp=3)

def flag_store(a, soff, t0, t1, track=None):
    a(f"""v_mov_b32 v{t0}, {sTAG}
    v_mov_b32 v{t1}, 0
    s_mov_b64 exec, 1""")
    txt = f"buffer_store_dword v{t0}, v{t1}, {SWS}, {soff} offen sc1"
    if track is not None: a.vmem(txt, track)
    else: a(txt)
    a("s_mov_b64 exec, -1")

def prologue(a):
    a(f"""s_cmp_ge_u32 s2, 512
    s_cbranch_scc1 Lend
    s_load_dwordx16 s[16:31], s[0:1], 0
    s_load_dwordx16 s[32:47], s[0:1], 64""")
    if DIAG:
        for k in range(82, 102): a(f"s_mov_b32 s{k}, 0")
    stamp(a, "start")
    a(f"""v_lshrrev_b32 v1, 6, v0
    v_and_b32 v0, 63, v0
    v_readfirstlane_b32 {sW}, v1
    s_waitcnt lgkmcnt(0)
    s_load_dword s53, {sp('ws')}, 0""")
    srd(a, 4, 'x', 2621440)
    srd(a, 8, 'w1', 1966080)
    srd(a, 12, 'ws', WS_SIZE)
    a("""s_cmp_lt_u32 s2, 256
    s_cbranch_scc1 Lssm""")

def make_tag(a):
    a(f"""s_waitcnt lgkmcnt(0)
    s_mul_i32 {sTAG}, s53, 0x9E3779B1
    s_add_u32 {sTAG}, {sTAG}, 0x7F4A7C15""")

def gemm(a):
    vX0, vX1, vW0, vW1 = 1, 2, 3, 4
    xr = [5, 6, 7, 8]
    wrl, wrh = 9, 10
    vAS = 11
    c1, c2, c3 = 12, 13, 14
    vT = 15
    EXT = 16
    T = [22, 23, 24, 25]
    OUT = 26
    EQ = 34
    A0, A1 = 38, 39
    SUMA = 22
    def accof(s): return ACC + 16*((s+1) % 2)
    WF = 40
    ACC = 64
    XF = 96
    sRB, sFP, sTH, sFH = "s54", "s55", "s56", "s57"
    sM, sSO, sAS, sT0 = "s58", "s59", "s61", "s68"
    if EXP == "nogemm": a("s_endpgm")
    a(f"""s_setprio {os.environ.get('PG0','0')}
    s_and_b32 s68, s2, 7
    s_lshr_b32 s69, s2, 3
    s_and_b32 s69, s69, 31
    s_lshr_b32 {sRB}, s68, 1
    s_lshl_b32 {sRB}, {sRB}, 3
    s_and_b32 s70, s69, 7
    s_add_u32 {sRB}, {sRB}, s70
    s_and_b32 {sFP}, s68, 1
    s_lshl_b32 {sFP}, {sFP}, 2
    s_lshr_b32 s70, s69, 3
    s_add_u32 {sFP}, {sFP}, s70
    s_lshl_b32 {sM}, {sW}, 11
    v_lshrrev_b32 v22, 3, v0
    s_lshl_b32 s70, {sW}, 4
    v_add_u32 v22, s70, v22
    v_lshrrev_b32 v23, 4, v0
    v_and_b32 v24, 7, v0
    v_xor_b32 v25, v24, v23
    s_lshl_b32 s71, {sRB}, 6
    v_add_u32 v26, s71, v22
    v_mul_u32_u24 v26, 0x500, v26
    v_lshl_add_u32 v{vX0}, v25, 4, v26
    v_xor_b32 v25, 4, v25
    v_lshl_add_u32 v{vX1}, v25, 4, v26
    v_add_u32 v{vX1}, {8*1280-1024}, v{vX1}
    v_and_b32 v23, 1, v23
    v_lshlrev_b32 v23, 2, v23
    v_xor_b32 v25, v24, v23
    v_mul_u32_u24 v26, 0xc00, v22
    v_lshl_add_u32 v{vW0}, v25, 4, v26
    s_mul_i32 s70, {sFP}, 384
    v_add_u32 v{vW0}, s70, v{vW0}
    v_add_u32 v{vW1}, {8*3072-1024}, v{vW0}""")

    if ROT:
        a(f"""s_and_b32 s70, {sRB}, 7
        s_and_b32 s71, {sFP}, 3
        s_mul_i32 s71, s71, {3*ROT}
        s_mul_i32 s70, s70, {ROT}
        s_add_u32 s70, s70, s71
        s_cmp_ge_u32 s70, 10
        s_cselect_b32 s71, 10, 0
        s_sub_u32 s70, s70, s71""")
        for kc in range(10):
            a(f"""s_lshl_b32 s{16+kc}, s70, 7
            s_mul_i32 s{26+kc}, s70, 196608""")
            if kc < 9: a("s_add_u32 s70, s70, 1\ns_cmp_eq_u32 s70, 10\ns_cselect_b32 s70, 0, s70")
    else:
        for kc in range(5): a(f"s_movk_i32 s{16+kc}, {128*kc}\ns_mov_b32 s{26+kc}, {196608*kc}")

    def chunk_info(c):
        if c < 20:
            return ('X', 0, c//2) if c % 2 == 0 else ('W', 0, c//2)
        return ('W', 1 + (c-20)//10, (c-20) % 10)
    def dma_half(c, h):
        kind, s, kc = chunk_info(c)
        slot = c % 10
        if h == 0:
            a(f"s_add_u32 m0, {sM}, {slot*8192}")
            if kind == 'W' and s > 0 and kc == 0: a(f"v_add_u32 v{vW0}, 128, v{vW0}\nv_add_u32 v{vW1}, 128, v{vW1}")
        r, sr, so = ((vX0, vX1)[h], SX, 16+kc) if kind == 'X' else ((vW0, vW1)[h], SW1, 26+kc)
        a.vmem(f"buffer_load_dwordx4 v{r}, {sr}, s{so} offen {'offset:1024 ' if h else ''}lds", ('c', c))
    for c in range(10): dma_half(c, 0); dma_half(c, 1)
    if not ROT:
        for kc in range(5, 10): a(f"s_movk_i32 s{16+kc}, {128*kc}\ns_mov_b32 s{26+kc}, {196608*kc}")

    srd(a, 48, 'out', 2621440)
    a(f"""s_and_b32 {sTH}, {sW}, 1
    s_lshr_b32 {sFH}, {sW}, 1
    v_and_b32 v22, 31, v0
    v_lshrrev_b32 v23, 5, v0
    v_lshrrev_b32 v24, 1, v22
    v_and_b32 v24, 7, v24
    s_lshl_b32 s70, {sTH}, 12
    v_lshl_add_u32 v25, v22, 7, s70""")
    for j in range(4):
        a(f"""v_add_u32 v26, {2*j}, v23
        v_xor_b32 v26, v26, v24
        v_lshl_add_u32 v{xr[j]}, v26, 4, v25""")
    a(f"""v_lshrrev_b32 v26, 4, v22
    s_lshl_b32 s70, {sTH}, 1
    v_add_u32 v26, s70, v26
    v_mul_u32_u24 v26, 0xc000, v26
    v_lshl_add_u32 v26, v23, 8, v26
    v_and_b32 v27, 15, v0
    v_lshl_add_u32 v{vAS}, v27, 4, v26
    v_lshrrev_b32 v24, 2, v27
    v_and_b32 v25, 3, v0
    v_lshrrev_b32 v26, 4, v0
    v_and_b32 v26, 1, v26
    v_lshlrev_b32 v26, 1, v26
    v_lshrrev_b32 v28, 1, v25
    v_add_u32 v26, v26, v28
    s_lshl_b32 s70, {sFH}, 2
    v_add_u32 v26, s70, v26
    v_lshrrev_b32 v28, 1, v24
    v_lshlrev_b32 v28, 2, v28
    v_xor_b32 v26, v26, v28
    v_lshl_add_u32 v28, v23, 3, v24
    v_lshlrev_b32 v28, 7, v28
    v_lshl_add_u32 v28, v26, 4, v28
    v_and_b32 v25, 1, v25
    v_lshl_add_u32 v{wrl}, v25, 3, v28
    v_add_u32 v{wrh}, 0x10000, v{wrl}
    v_add_u32 v{vT}, -1, v23
    s_mul_i32 {sAS}, {sRB}, 192
    s_mul_i32 s70, {sFP}, 6
    s_add_u32 {sAS}, {sAS}, s70
    s_add_u32 {sAS}, {sAS}, {sFH}
    s_lshl_b32 {sAS}, {sAS}, 10
    s_add_u32 {sAS}, {sAS}, {ACT}
    s_mul_i32 s81, {sRB}, 3072
    s_lshl_b32 s71, {sFP}, 7
    s_add_u32 s81, s81, s71
    s_add_u32 s81, s81, {FL_ACT}""")
    a(f"""v_mov_b32 v{EXT}, 0
    v_mov_b32 v{EXT+1}, 0
    v_and_b32 v24, 7, v0
    v_lshrrev_b32 v25, 2, v24
    v_and_b32 v24, 3, v24
    s_and_b32 s70, {sFP}, 3
    s_mul_i32 s70, s70, 3
    s_add_u32 s70, s70, 1
    v_add_u32 v25, s70, v25
    v_lshlrev_b32 v25, 3, v25
    v_lshl_add_u32 v25, v24, 1, v25
    s_lshr_b32 s70, {sFP}, 2
    v_add_u32 v25, s70, v25
    v_lshlrev_b32 v{EQ}, 7, v25
    s_mul_i32 s70, {sFP}, 192
    s_lshl_b32 s71, {sFH}, 5
    s_add_u32 s70, s70, s71
    v_add_u32 v24, s70, v22
    v_lshlrev_b32 v{EQ+1}, 2, v24
    v_lshlrev_b32 v24, 1, v24
    v_mul_u32_u24 v25, 6144, v23
    v_add_u32 v{EQ+1}, v{EQ+1}, v25
    v_lshl_add_u32 v{EQ+2}, v23, 7, v24
    v_mov_b32 v{EXT+3}, 0
    s_mov_b32 s69, 0x3f803f80""")
    a.vmem(f"global_load_short_d16_hi v{EXT+3}, v24, {sp('b1')}", 'b10')
    for r in range(22, 34): a(f"v_mov_b32 v{r}, 0")
    make_tag(a)

    wf_next = [0]
    def wfrag_alloc():
        r = WF + 4*(wf_next[0] % 6); wf_next[0] += 1; return r
    def read_w(c, j):
        slot = c % 10
        r = wfrag_alloc()
        base, off = (wrl, slot*8192) if slot < 8 else (wrh, (slot-8)*8192)
        a.ds(f"ds_read_b64_tr_b16 {v(r,2)}, v{base} offset:{off + 128*16*j}", ('w', c, j))
        a.ds(f"ds_read_b64_tr_b16 {v(r+2,2)}, v{base} offset:{off + 128*(16*j+4)}", ('w', c, j))
        return r
    def mfma1(acc, wfr, xfr, first):
        a(f"v_mfma_f32_32x32x16_bf16 {v(acc,16)}, {v(wfr,4)}, {v(xfr,4)}, {'0' if first else v(acc,16)}")

    side = []
    def run_side(n):
        for _ in range(n):
            if side: side.pop(0)()

    def mish_items(s):
        acc = accof(s)
        items = []
        for qd in range(4):
            R = [acc + 4*qd + k for k in range(4)]
            def f1(R=R):
                for k in range(4): a(f"v_mul_f32 v{T[k]}, v{c1}, v{R[k]}")
                for k in range(4): a(f"v_exp_f32 v{T[k]}, v{T[k]}")
                for k in range(4): a(f"v_add_f32 v{T[k]}, 1.0, v{T[k]}")
                for k in range(4): a(f"v_fma_f32 v{T[k]}, v{T[k]}, v{T[k]}, 1.0")
            def f2(R=R, qd=qd):
                for k in range(4): a(f"v_rcp_f32 v{T[k]}, v{T[k]}")
                for k in range(4): a(f"v_fma_f32 v{T[k]}, v{T[k]}, v{c2}, v{c3}")
                for k in range(4): a(f"v_mul_f32 v{T[k]}, v{T[k]}, v{R[k]}")
                a(f"v_cvt_pk_bf16_f32 v{OUT+2*qd}, v{T[0]}, v{T[1]}\nv_cvt_pk_bf16_f32 v{OUT+2*qd+1}, v{T[2]}, v{T[3]}")
                if qd % 2 == 1:
                    gp = qd // 2
                    a(f"s_add_u32 {sT0}, {sAS}, {2048*s}")
                    a.vmem(f"buffer_store_dwordx4 {v(OUT+4*gp,4)}, v{vAS}, {SWS}, {sT0} offen offset:{512*gp} sc1", ('act', s))
            items += [f1, f2]
        return items

    SPLIT = ("v_and_b32 v{q1}, 0xffff0000, v{q}", "v_sub_f32 v{q}, v{q}, v{q1}", "v_and_b32 v{q2}, 0xffff0000, v{q}",
             "v_sub_f32 v{q}, v{q}, v{q2}", "v_lshrrev_b32 v{q1}, 16, v{q1}", "v_lshrrev_b32 v{q}, 16, v{q}",
             "v_or_b32 v{q1}, v{q1}, v{q2}", "v_or_b32 v{q}, v{q}, v{b}", "v_and_b32 v{d0}, v{m}, v{q1}", "v_and_b32 v{d1}, v{m}, v{q}")
    SUM4 = ("v_add_f32 v{q}, v{q}, v{q1}", "v_add_f32 v{q2}, v{q2}, v{q3}", "v_add_f32 v{q}, v{q}, v{q2}")
    def local_stats():
        a.wait(vm=['b10'])
        for tmpl in SUM4 + ("v_mov_b32 v{q1}, v{q}", "v_permlane32_swap_b32 v{q}, v{q1}", "v_add_f32 v{q}, v{q}, v{q1}"):
            for q in (22, 26, 30): a(tmpl.format(q=q, q1=q+1, q2=q+2, q3=q+3))
        INV640 = 0x3ACCCCCD
        L = a.label("Lvar")
        a(f"""v_mul_f32 v22, {INV640}, v22
        v_mul_f32 v26, {INV640}, v26
        v_mul_f32 v23, v22, v22
        v_sub_f32 v26, v26, v23
        v_mul_f32 v24, 0x41800000, v26
        v_sub_f32 v22, 0, v22
        v_cmp_nle_f32 vcc, v23, v24
        s_cbranch_vccz {L}
        v_mov_b32 v26, 0
        v_mov_b32 v27, 0""")
        for r in range(XF, XF+160):
            a(f"""v_lshlrev_b32 v24, 16, v{r}
            v_and_b32 v25, 0xffff0000, v{r}
            v_add_f32 v24, v24, v22
            v_add_f32 v25, v25, v22
            v_fmac_f32 v26, v24, v24
            v_fmac_f32 v27, v25, v25""")
        a(f"""v_add_f32 v26, v26, v27
        v_mov_b32 v27, v26
        v_permlane32_swap_b32 v26, v27
        v_add_f32 v26, v26, v27
        v_mul_f32 v26, {INV640}, v26
        {L}:
        v_cvt_pk_bf16_f32 v27, v26, v26
        v_cvt_pk_bf16_f32 v{EXT+4}, v22, v22
        v_and_b32 v27, 0xffff0000, v27
        v_add_f32 v27, 0x3727C5AC, v27
        v_cvt_pk_bf16_f32 v27, v27, v27
        v_and_b32 v27, 0xffff0000, v27
        v_sqrt_f32 v27, v27
        v_cvt_pk_bf16_f32 v{EXT+5}, v22, v27
        v_and_b32 v{c3}, 0xffff0000, v{EXT+5}
        v_rcp_f32 v{c3}, v{c3}""")
        for tmpl in SPLIT: a(tmpl.format(q=30, q1=31, q2=32, b=EXT+3, d0=EXT+2, d1=EXT+3, m=vT))
        a(f"""v_mul_f32 v{c1}, {LOG2E}, v{c3}
        v_mul_f32 v{c2}, -2.0, v{c3}""")
    def ext_items():
        def l0():
            a(f"v_mov_b32 v26, 0\ns_mov_b32 s70, {CSUM}\ns_mov_b32 s71, {CSUM+12288}")
            for s in (1, 2):
                a.vmem(f"buffer_load_dword v{20+2*s}, v{EQ+1}, {SWS}, s70 offen offset:{256*s} sc1", 'ext')
                a.vmem(f"buffer_load_dword v{21+2*s}, v{EQ+1}, {SWS}, s71 offen offset:{256*s} sc1", 'ext')
            a.vmem(f"global_load_short_d16_hi v26, v{EQ+2}, {sp('b1')} offset:128", 'ext')
        return [l0]
    def ext_build():
        a.wait(vm=['ext'])
        a(f"v_and_b32 v27, v{vT}, v26\nv_xor_b32 v28, v27, v26")
        for tmpl in ("v_add_f32 v{q}, v{q}, v{q1}", "v_and_b32 v{q1}, 0xffff0000, v{q}", "v_sub_f32 v{q}, v{q}, v{q1}", "v_and_b32 v{d0}, 0xffff0000, v{q}",
                     "v_sub_f32 v{q}, v{q}, v{d0}", "v_lshrrev_b32 v{q1}, 16, v{q1}", "v_lshrrev_b32 v{q}, 16, v{q}",
                     "v_or_b32 v{d0}, v{q1}, v{d0}", "v_or_b32 v{d1}, v{q}, v{b}"):
            for s in (1, 2):
                q = 20 + 2*s
                a(tmpl.format(q=q, q1=q+1, b=26+s, d0=EQ+2*s-2, d1=EQ+2*s-1))
    def ext_mfma(s):
        acc = accof(s)
        if s: a(f"v_mov_b32 v{EXT+2}, v{EQ+2*s-2}\nv_mov_b32 v{EXT+3}, v{EQ+2*s-1}")
        a(f"v_mfma_f32_32x32x16_bf16 {v(acc,16)}, {v(EXT,4)}, {v(EXT+2,4)}, {v(acc,16)}")

    G2A = XF; NA = 12
    G2W = XF + 96
    G2ACC = WF
    G2X = XF + 136
    G2M = XF + 146
    vA0, vA1, vD2, w2l, w2h, vO = vX0, vX1, xr[0], xr[1], xr[2], xr[3]
    sA2, sW2, sM2 = "s72", "s73", "s74"
    def g2_setup_a():
        a(f"""v_lshlrev_b32 v{vA0}, 4, v0
        s_lshl_b32 s70, {sTH}, 1
        s_add_u32 s71, s70, {sFH}
        s_mul_i32 s71, s71, 49152
        s_xor_b32 s76, {sFH}, 1
        s_add_u32 s70, s70, s76
        s_mul_i32 s70, s70, 49152
        s_lshl_b32 s76, {sFH}, 10
        s_add_u32 s70, s70, s76
        s_add_u32 s71, s71, s76
        s_mul_i32 {sM2}, {sW}, 2560
        v_add_u32 v{vD2}, {sM2}, v{vA0}
        v_add_u32 v{vA1}, s70, v{vA0}
        v_add_u32 v{vA0}, s71, v{vA0}
        s_mul_i32 {sA2}, {sRB}, {192*1024}
        s_add_u32 {sA2}, {sA2}, {ACT}
        s_mul_i32 {sW2}, {sFP}, 245760
        s_add_u32 {sW2}, {sW2}, {W2P}""")
    def g2_setup_b():
        t0, t1 = A0, A1
        a(f"""v_lshrrev_b32 v{t0}, 5, v0
        v_lshlrev_b32 v{t0}, 4, v{t0}
        v_lshrrev_b32 v{t1}, 2, v0
        v_and_b32 v{t1}, 7, v{t1}
        v_add_u32 v{t0}, v{t0}, v{t1}
        s_lshl_b32 s70, {sFH}, 5
        v_add_u32 v{t0}, s70, v{t0}
        v_mul_u32_u24 v{t0}, 160, v{t0}
        v_and_b32 v{t1}, 3, v0
        v_lshl_add_u32 v{w2l}, v{t1}, 3, v{t0}
        v_add_u32 v{w2h}, 71680, v{w2l}
        s_lshl_b32 s70, {sTH}, 1
        s_add_u32 s70, s70, {sFH}
        s_lshl_b32 s70, s70, 4
        s_lshl_b32 s71, {sRB}, 6
        s_add_u32 s70, s70, s71
        v_and_b32 v{t0}, 15, v0
        v_add_u32 v{t0}, s70, v{t0}
        v_mul_u32_u24 v{t0}, 0x500, v{t0}
        v_lshrrev_b32 v{t1}, 4, v0
        v_lshl_add_u32 v{t0}, v{t1}, 3, v{t0}
        s_mul_i32 s70, {sFP}, 160
        v_add_u32 v{vO}, s70, v{t0}""")
    def g2_setup_c():
        a(f"""s_and_b32 s70, {sFP}, 3
        s_lshl_b32 s70, s70, 1
        s_add_u32 s70, s70, {sRB}
        s_mul_i32 s70, s70, {ROT}""")
        for p in range(8):
            a(f"""s_and_b32 s70, s70, 7
            s_mul_i32 s71, s70, 6144
            s_add_u32 s{16+p}, s71, {sA2}
            s_mul_i32 s71, s70, {192*1280 if DIRW2 else 30720}
            s_add_u32 s{26+p}, s71, {'0' if DIRW2 else sW2}
            s_add_u32 s70, s70, 1""")
    def g2_setup_d():
        a(f"""s_mov_b32 s8, s{P['w2']}
        s_mov_b32 s9, s{P['w2']+1}
        s_mul_i32 s70, {sW}, 160
        s_mul_i32 s71, {sFP}, 160""")
        for h, r in enumerate((vD2, vW0, vW1)):
            a(f"""v_add_u32 v{A0}, s70, v0
            v_add_u32 v{A0}, {64*h}, v{A0}
            v_mul_u32_u24 v{A1}, 6554, v{A0}
            v_lshrrev_b32 v{A1}, 16, v{A1}
            v_mul_u32_u24 v{r}, 10, v{A1}
            v_sub_u32 v{A0}, v{A0}, v{r}
            v_mul_u32_u24 v{A1}, 0x500, v{A1}
            v_lshl_add_u32 v{r}, v{A0}, 4, v{A1}
            v_add_u32 v{r}, s71, v{r}""")
            if h: a(f"v_add_u32 v{r}, {-1024*h}, v{r}")
    def st_sp(sg): return sg // 8, sg % 8
    def dma_w2_piece(sg, h):
        s2, p = st_sp(sg)
        if h == 0:
            a(f"s_add_u32 m0, {sM2}, {(sg % 8)*10240}")
            if s2 > 0 and p == 0:
                if DIRW2:
                    for r in (vD2, vW0, vW1): a(f"v_add_u32 v{r}, {64*1280}, v{r}")
                else: a(f"v_add_u32 v{vD2}, 10240, v{vD2}")
        if h == 2: a("s_mov_b64 exec, 0xffffffff")
        if DIRW2: a.vmem(f"buffer_load_dwordx4 v{(vD2, vW0, vW1)[h]}, {SW1}, s{26+p} offen offset:{1024*h} lds", ('d2', sg))
        else: a.vmem(f"buffer_load_dwordx4 v{vD2}, {SWS}, s{26+p} offen offset:{1024*h} sc1 lds", ('d2', sg))
        if h == 2: a("s_mov_b64 exec, -1")
    def load_act(sg):
        s2, p = st_sp(sg)
        r = G2A + 8*(sg % NA)
        if s2 > 0 and p == 0: a(f"v_add_u32 v{vA0}, 2048, v{vA0}\nv_add_u32 v{vA1}, 2048, v{vA1}")
        a.vmem(f"buffer_load_dwordx4 {v(r,4)}, v{vA0}, {SWS}, s{16+p} offen {os.environ.get('ASC','sc1')}", ('a2', sg))
        a.vmem(f"buffer_load_dwordx4 {v(r+4,4)}, v{vA1}, {SWS}, s{16+p} offen {os.environ.get('ASC','sc1')}", ('a2', sg))
    def pregs(s2): return [(XF, XF+1), (XF+94, XF+95), (G2M+4, G2M+5)][s2]
    def pa_ld(s2):
        pv, pa = pregs(s2)
        return f"buffer_load_dword v{pv}, v{pa}, {SWS}, s{78+s2} offen sc1"
    def poll_act_issue(s2):
        pv, pa = pregs(s2)
        a(f"""v_and_b32 v{pa}, 7, v0
        v_lshlrev_b32 v{pa}, 7, v{pa}
        s_mul_i32 s{78+s2}, {sRB}, 3072
        s_add_u32 s{78+s2}, s{78+s2}, {FL_ACT + 1024*s2}""")
        w0_issue(pa_ld(s2), ('pa', s2))
    def poll_act_check(s2):
        w0_check(pa_ld(s2), [pregs(s2)[0]], ('pa', s2))
    def w0_issue(ld, tag):
        L = a.label("Lw0")
        a(f"s_cmp_lg_u32 {sW}, 0\ns_cbranch_scc1 {L}")
        a(ld)
        a(f"{L}:")
        a.vm.append(('VIRT', tag))
    def w0_check(ld, regs, tag):
        L = a.label("Lw0")
        a(f"s_cmp_lg_u32 {sW}, 0\ns_cbranch_scc1 {L}")
        q = list(a.vm); d = dict(a.done)
        a.wait(vm=[('VIRT', tag)])
        a.vm[:] = [t for t in q if t != ('VIRT', tag)]; a.done.clear(); a.done.update(d)
        spin(a, ld, cmpn(regs))
        a(f"{L}:")
    flagged = set(); act_age = {}
    def pre_barrier(tags, lg="all"):
        tags = list(tags)
        for ss in range(3):
            if ss in flagged: continue
            if a.vm.count(('act', ss)) + a.done.get(('act', ss), 0) == 2:
                act_age[ss] = act_age.get(ss, 0) + 1
                if act_age[ss] >= ACT_DELAY: tags.append(('act', ss))
        a.wait(vm=tags, lg=lg)
        a("s_barrier")
        for ss in range(3):
            if ss not in flagged and a.done.get(('act', ss), 0) == 2:
                a(f"s_add_u32 s70, s81, {1024*ss}")
                flag_store(a, "s70", A0, A1, ('fl', ss)); flagged.add(ss)

    steps = [(s, kc) for s in range(3) for kc in range(10)]
    next_dma = 10; w2_issued = 0; act_issued = 0
    pend = []
    for si, (s, kc) in enumerate(steps):
        cw = 2*kc + 1 if s == 0 else 10 + 10*s + kc
        pre_barrier([('c', cw)], lg=())
        if (DIAG == 1 and (s, kc) in ((0, 0), (1, 0), (1, 4), (2, 0))) or (DIAG == 2 and s == 1 and kc < 9) or (DIAG == 3 and s == 2 and kc != 0) or (DIAG == 5 and s == 0 and kc < 9): stamp(a, f'g1 {s},{kc}', True)
        dq = []
        if si >= 2:
            nrel = 2 if (s == 0 or (s == 1 and kc <= 1)) else 1
            for _ in range(nrel):
                if next_dma < 40:
                    dq += [(dma_half, next_dma, 0), (dma_half, next_dma, 1)]; next_dma += 1
        if s == 2 and kc >= 4:
            while w2_issued < 8 and -(-10240*(w2_issued+1)//8192) <= kc - 1:
                dq += [(dma_w2_piece, w2_issued, h) for h in range(3)]; w2_issued += 1
        def dma_some(n):
            for _ in range(n):
                if dq:
                    f, x1, x2 = dq.pop(0); f(x1, x2)
        prev = pend; pend = []
        acc = accof(s)
        xf = XF + 16*kc
        hi = (s == 0 and (2*kc) % 10 == 8)
        if hi:
            for j in range(4): a(f"v_add_u32 v{xr[j]}, 0x10000, v{xr[j]}")
        def rd(j):
            r = read_w(cw, j)
            if s == 0:
                slot = (2*kc) % 10
                off = slot*8192 if slot < 8 else (slot-8)*8192
                a.ds(f"ds_read_b128 {v(xf+4*j,4)}, v{xr[j]} offset:{off}", ('w', cw, j))
            pend.append((acc, r, xf + 4*j, kc == 0 and j == 0, ('w', cw, j)))
        def mf():
            if prev:
                m = prev.pop(0); a.wait(lg=[m[4]]); mfma1(*m[:4])
        per = -(-len(dq)//4)
        rd(0); rd(1)
        mf(); dma_some(per)
        mf(); rd(2); rd(3); dma_some(per)
        if hi:
            for j in range(4): a(f"v_add_u32 v{xr[j]}, 0xffff0000, v{xr[j]}")
        run_side(1)
        mf(); dma_some(per)
        run_side(2)
        mf(); dma_some(per)
        lds_ = f"buffer_load_dword v{A0}, v{EQ}, {SWS}, s75 offen sc1"
        ldw2 = "\n".join(f"s_mov_b32 s76, {FL_AUX + 8192*n}\nbuffer_load_dword v{XF+3+n}, v{XF+2}, {SWS}, s76 offen sc1" for n in range(4))
        if (s, kc) == (1, 7): g2_setup_a()
        if (s, kc) == (1, 8): g2_setup_b()
        if (s, kc) == (int(os.environ.get('PGS', '1')), 0): a(f"s_setprio {os.environ.get('PG','2')}")
        if s == 0:
            a.wait(lg="all")
            for m in pend:
                for k in range(4): a(f"v_dot2_f32_bf16 v{22+k}, v{m[2]+k}, s69, v{22+k}")
                for k in range(4): a(f"v_dot2_f32_bf16 v{26+k}, v{m[2]+k}, v{m[2]+k}, v{26+k}")
                for k in range(4): a(f"v_dot2_f32_bf16 v{30+k}, v{m[1]+k}, s69, v{30+k}")
        if (s, kc) == (0, 9): local_stats()
        if (s, kc) == (1, 0):
            ext_mfma(0); side.extend(mish_items(0))
        if (s, kc) == (1, 3):
            a(f"s_mov_b32 s75, {FL_S}")
            w0_issue(lds_, 'ps')
        if (s, kc) == (1, 5): w0_check(lds_, [A0], 'ps')
        if (s, kc) == (1, 6): run_side(100); side.extend(ext_items())
        if (s, kc) == (1, 9): ext_build()
        if (s, kc) == (2, 0):
            run_side(100); ext_mfma(1); side.extend(mish_items(1))
        if (s, kc) == (2, 1) and not DIRW2:
            a(f"v_lshlrev_b32 v{XF+2}, 7, v0")
            w0_issue(ldw2, 'pw')
        if (s, kc) == (2, 2):
            g2_setup_c()
            if DIRW2: g2_setup_d()
        if (s, kc) == (2, 3) and not DIRW2: w0_check(ldw2, [XF+3, XF+4, XF+5, XF+6], 'pw')
        if (s, kc) == (2, C0-2): poll_act_issue(0)
        if (s, kc) == (2, C0): poll_act_check(0)
        if s == 2 and kc > C0:
            n = min(8, 3*(kc-C0))
            while act_issued < n: load_act(act_issued); act_issued += 1

    a2pend = []
    XA = G2M + 8 - 10 + 10
    for sg in range(24):
        if DIAG == 6 and sg in (3, 4, 5): stamp(a, 'prewait')
        if DIAG == 6 and sg in (3, 4, 5):
            q = list(a.vm); d = dict(a.done)
            a.wait(vm=[('d2', sg), ('a2', sg)]); stamp(a, 'postwait')
            a.vm[:] = q; a.done.clear(); a.done.update(d)
        if DIAG == 7 and sg in (11, 12, 13): stamp(a, 'prewait')
        if DIAG == 7 and sg in (11, 12, 13):
            q = list(a.vm); d = dict(a.done)
            a.wait(vm=[('d2', sg), ('a2', sg)]); stamp(a, 'postwait')
            a.vm[:] = q; a.done.clear(); a.done.update(d)
        pre_barrier([('d2', sg), ('a2', sg)])
        if (DIAG == 6 and sg in (3, 4, 5)) or (DIAG == 7 and sg in (11, 12, 13)): stamp(a, 'postbar')
        if (DIAG == 1 and sg in (0, 8, 16, 23)) or (DIAG == 4 and sg < 9): stamp(a, f'g2 {sg}')
        if os.environ.get('PG2') and sg == 3: a(f"s_setprio {os.environ.get('PG2')}")
        dq = []
        if sg == 0:
            while w2_issued < 8:
                dq += [(w2_issued, h) for h in range(3)]; w2_issued += 1
        elif w2_issued < 24:
            dq += [(w2_issued, h) for h in range(3)]; w2_issued += 1
        wb = G2W + 20*(sg % 2)
        slot = sg % 8
        base, off = (w2l, slot*10240) if slot < 7 else (w2h, 0)
        prev = a2pend; a2pend = []
        if sg == 0:
            run_side(100)
            for m in pend:
                mfma1(*m[:4])
                if dq: dma_w2_piece(*dq.pop(0))
            pend = []
            ext_mfma(2)
            side.extend(mish_items(2))
        for dt in range(5):
            a.ds(f"ds_read_b64_tr_b16 {v(wb+4*dt,2)}, v{base} offset:{off + 32*dt}", ('w2', sg))
            a.ds(f"ds_read_b64_tr_b16 {v(wb+4*dt+2,2)}, v{base} offset:{off + 32*dt + 1280}", ('w2', sg))
            for _ in range(2):
                if prev: a(prev.pop(0))
            if dq: dma_w2_piece(*dq.pop(0))
            if dt in (0, 1, 2, 3): run_side(1)
        while dq: dma_w2_piece(*dq.pop(0))
        for dt in range(5):
            for tau in range(2):
                accr = G2ACC + 20*tau + 4*dt
                a2pend.append(f"v_mfma_f32_16x16x32_bf16 {v(accr,4)}, {v(wb+4*dt,4)}, {v(G2A+8*(sg%NA)+4*tau,4)}, {'0' if sg == 0 else v(accr,4)}")
        if sg >= 1:
            lim = min(sg + NA, 8 if sg <= C1 else 16 if sg <= C2 else 24, act_issued + 2)
            while act_issued < lim: load_act(act_issued); act_issued += 1
        if sg == C1 - 2: poll_act_issue(1)
        if sg == C1: poll_act_check(1)
        if sg == C2 - 2: poll_act_issue(2)
        if sg == C2: poll_act_check(2)
        if sg == 4:
            for dt in range(5):
                a.vmem(f"buffer_load_dwordx2 {v(G2X+2*dt,2)}, v{vO}, {SX}, 0 offen offset:{32*dt}", 'xfin')
        PV = G2M + 6
        ypoll = f"buffer_load_dword v{PV}, v{PV+1}, {SWS}, s75 offen sc1"
        if sg == 17:
            a(f"""v_and_b32 v{PV+1}, 31, v0
            v_lshlrev_b32 v{PV+1}, 7, v{PV+1}
            s_lshl_b32 s75, {sFP}, 12
            s_add_u32 s75, s75, {FL_Y}
            s_mul_i32 s70, {sW}, 160
            v_add_u32 v22, s70, v0
            v_lshrrev_b32 v23, 3, v22
            s_mul_i32 s70, {sFP}, 80
            v_add_u32 v23, s70, v23
            v_lshlrev_b32 v23, 12, v23
            v_and_b32 v22, 7, v22
            v_lshl_add_u32 v22, v22, 4, v23
            v_add_u32 v23, {32768-1024}, v22
            v_add_u32 v24, {65536-2048}, v22
            s_lshl_b32 s76, {sRB}, 7
            s_add_u32 s76, s76, {AT}
            v_lshrrev_b32 v25, 2, v0
            v_lshlrev_b32 v25, 7, v25
            v_and_b32 v26, 3, v0
            v_lshl_add_u32 v25, v26, 3, v25
            s_lshl_b32 s70, {sTH}, 1
            s_add_u32 s70, s70, {sFH}
            s_lshl_b32 s70, s70, 5
            v_add_u32 v25, s70, v25
            s_mul_i32 s70, {sW}, 5120
            s_xor_b32 s71, {sW}, 2
            s_mul_i32 s71, s71, 5120
            v_lshlrev_b32 v26, 4, v0
            v_add_u32 v27, s71, v26
            v_add_u32 v26, s70, v26""")
        if sg == 19: a.vmem(ypoll, 'py')
        def dma_at(tagit=True):
            f = a.vmem if tagit else (lambda t, g: a(t))
            a(f"s_mov_b32 m0, {sM2}")
            f(f"buffer_load_dwordx4 v22, {SWS}, s76 offen sc1 lds", 'at')
            f(f"buffer_load_dwordx4 v23, {SWS}, s76 offen offset:1024 sc1 lds", 'at')
            a("s_mov_b64 exec, 0xffffffff")
            f(f"buffer_load_dwordx4 v24, {SWS}, s76 offen offset:2048 sc1 lds", 'at')
            a("s_mov_b64 exec, -1")
        if sg == 21:
            a.wait(vm=['py'])
            a(cmpn([PV]))
            a("s_cselect_b32 s77, 1, 0")
            dma_at()
    a.wait(lg="all")
    for m in [m for i, m in enumerate(a2pend) if i % 2 == 1]: a(m)
    for m in [m for i, m in enumerate(a2pend) if i % 2 == 0]: a(m)
    for dt in range(5): a(f"ds_write_b128 v26, {v(G2ACC+20+4*dt,4)} offset:{10240+1024*dt}")
    L = a.label("Lyok")
    a(f"""s_cmp_eq_u32 s77, 1
    s_cbranch_scc1 {L}
    s_waitcnt vmcnt(0)
    v_not_b32 v{PV}, {sTAG}""")
    spin(a, ypoll, cmpn([PV]))
    dma_at(False)
    a(f"{L}:")
    a("s_waitcnt vmcnt(0) lgkmcnt(0)")
    a.vm.clear(); a.lg.clear()
    a("s_barrier")
    RX = G2A; AV = G2A + 20; TT = G2W
    for dt in range(5): a.ds(f"ds_read_b64_tr_b16 {v(AV+2*dt,2)}, v25 offset:{2048*dt}", ('av', dt))
    for dt in range(5): a.ds(f"ds_read_b128 {v(RX+4*dt,4)}, v27 offset:{10240+1024*dt}", ('rx', dt))
    def unp(d, s): return f"v_lshlrev_b32 v{d}, 16, v{s}\nv_and_b32 v{d+1}, 0xffff0000, v{s}"
    for dt in range(5):
        t = TT + 8*dt
        a(unp(t, G2X+2*dt)); a(unp(t+2, G2X+2*dt+1))
    for dt in range(5):
        t = TT + 8*dt; av = AV + 2*dt
        a.wait(lg=[('av', dt)])
        a(unp(t+4, av)); a(unp(t+6, av+1))
        a(f"""v_pk_add_f32 {v(t,2)}, {v(t,2)}, {v(t+4,2)}
        v_pk_add_f32 {v(t+2,2)}, {v(t+2,2)}, {v(t+6,2)}
        v_cvt_pk_bf16_f32 v{t+4}, v{t}, v{t+1}
        v_cvt_pk_bf16_f32 v{t+5}, v{t+2}, v{t+3}""")
        a(unp(t, t+4)); a(unp(t+2, t+5))
    for dt in range(5):
        t = TT + 8*dt; k = G2ACC + 4*dt; r = RX + 4*dt
        a.wait(lg=[('rx', dt)])
        a(f"""v_pk_add_f32 {v(k,2)}, {v(k,2)}, {v(r,2)}
        v_pk_add_f32 {v(k+2,2)}, {v(k+2,2)}, {v(r+2,2)}
        v_cvt_pk_bf16_f32 v{r}, v{k}, v{k+1}
        v_cvt_pk_bf16_f32 v{r+1}, v{k+2}, v{k+3}""")
        a(unp(k, r)); a(unp(k+2, r+1))
        a(f"""v_pk_add_f32 {v(t,2)}, {v(t,2)}, {v(k,2)}
        v_pk_add_f32 {v(t+2,2)}, {v(t+2,2)}, {v(k+2,2)}
        v_cvt_pk_bf16_f32 v{t+4}, v{t}, v{t+1}
        v_cvt_pk_bf16_f32 v{t+5}, v{t+2}, v{t+3}
        buffer_store_dwordx2 {v(t+4,2)}, v{vO}, {S4}, 0 offen offset:{32*dt}""")
    if DIAG: a("s_waitcnt vmcnt(0)")
    if DIAG == 1: stamp(a, 'end')
    stamp_flush(a, 22)
    a("s_endpgm")

UPAD = 448
UCS  = 4640
USTR = 4*UCS
KB0  = 3*USTR
K1OFF = 4224
KSTR = 2*K1OFF
CVOFF = 16
UIN = 200
def u_issue(a):
    a(f"""v_lshlrev_b32 v224, 4, v0
    s_lshl_b32 s70, {sW}, 10
    v_add_u32 v224, s70, v224
    v_lshlrev_b32 v225, 1, v224
    s_mov_b32 s70, {STATS}
    buffer_load_dwordx4 {v(UIN,4)}, v225, {SWS}, s70 offen sc1
    buffer_load_dwordx4 {v(UIN+4,4)}, v225, {SWS}, s70 offen offset:16 sc1""")
    for c, sch in enumerate(("s58", "s59", "s61")):
        a(f"""s_lshl_b32 s70, {sch}, 12
        s_add_u32 s70, s70, {XNT}
        buffer_load_dwordx4 {v(UIN+8+4*c,4)}, v224, {SWS}, s70 offen sc1""")

def ssm(a):
    sI = "s54"
    a(f"""Lssm:
    s_setprio 3
    s_mov_b32 {sI}, s2
    s_lshr_b32 s56, {sI}, 1
    s_mul_i32 s56, s56, 5
    s_and_b32 s57, {sI}, 1
    s_mul_i32 s58, s57, 3
    s_add_u32 s58, s58, s56
    s_add_u32 s59, s58, 1
    s_add_u32 s61, s56, 2""")
    for c, sch in enumerate(("s58", "s59", "s61")):
        a(f"s_lshl_b32 s70, {sch}, 1\ns_and_b32 s70, s70, -4\ns_load_dword s{34+c+(c>1)*6}, {sp('D')}, s70")
    a(f"""s_cmp_eq_u32 {sW}, 3
    s_cbranch_scc1 Laux""")
    kgen(a)
    a("s_branch Lconv")
    aux(a)
    conv(a)

def kgen(a):
    sCH, sKB = "s55", "s68"
    a(f"""s_cmp_eq_u32 {sW}, 0
    s_cselect_b32 {sCH}, s58, s59
    s_cmp_eq_u32 {sW}, 2
    s_cselect_b32 {sCH}, s61, {sCH}
    s_mul_i32 {sKB}, {sW}, {USTR}
    s_mul_i32 s70, {sCH}, 384
    v_mul_u32_u24 v1, 6, v0
    v_and_b32 v1, -4, v1
    v_add_u32 v1, s70, v1""")
    PR = 8
    names = ['Are', 'Aim', 'Bre', 'Bim', 'Cre', 'Cim']
    for k, n in enumerate(names):
        a.vmem(f"global_load_dwordx2 {v(30+2*k,2)}, v1, {sp(n)}", 'par')
    a(f"""s_lshl_b32 s70, {sCH}, 1
    s_and_b32 s70, s70, -4
    s_load_dword s69, {sp('ldt')}, s70
    v_and_b32 v2, 1, v0
    v_lshlrev_b32 v2, 4, v2""")
    a(f"""    s_mov_b32 m0, {sKB}
    v_and_b32 v6, 15, v0
    v_mul_u32_u24 v7, 288, v6
    v_lshrrev_b32 v4, 4, v0
    v_lshl_add_u32 v7, v4, 4, v7
    v_add_u32 v7, {sKB}, v7""")
    if TLB:
        a(f"""v_and_b32 v26, 7, v0
        v_lshlrev_b32 v26, 21, v26
        v_mov_b32 v27, 0
        s_mov_b64 exec, 0xff""")
        a.vmem(f"buffer_load_dword v106, v26, {SWS}, 0 offen offset:512", 'touch')
        a("s_mov_b64 exec, 1")
        for n in ('w2', 'out', 'b1'): a.vmem(f"global_load_dword v107, v27, {sp(n)}", 'touch')
        a("s_mov_b64 exec, -1")
    if TOUCHW1:
        a(f"""s_mul_i32 s70, {sW}, 80
        v_add_u32 v26, s70, v0
        v_add_u32 v27, 64, v26
        s_add_u32 s70, s70, 79
        v_min_u32 v27, s70, v27
        s_lshr_b32 s71, s2, 3
        s_mul_i32 s71, s71, {20*3072}
        s_and_b32 s70, s2, 1
        s_mul_i32 s70, s70, 1536
        s_add_u32 s71, s71, s70""")
        for r in (26, 27):
            a(f"""v_mul_u32_u24 v28, 5462, v{r}
            v_lshrrev_b32 v28, 16, v28
            v_mul_u32_u24 v29, 12, v28
            v_sub_u32 v29, v{r}, v29
            v_mul_u32_u24 v28, 0xc00, v28
            v_lshl_add_u32 v28, v29, 7, v28""")
            a.vmem(f"buffer_load_dword v{r}, v28, {SW1}, s71 offen", 'touch')
    RP = 192
    srd(a, 48, 'w2', 1966080)
    a(f"""s_mul_i32 s78, s2, {6*160}
    s_add_u32 s78, s78, {W2P}
    v_lshlrev_b32 v190, 4, v0
    s_cmp_lg_u32 {sW}, {7 if DIRW2 else 0}
    s_cbranch_scc1 Lkg_now2
    v_mul_u32_u24 v188, 6554, v0
    v_lshrrev_b32 v188, 16, v188
    v_mul_u32_u24 v189, 10, v188
    v_sub_u32 v189, v0, v189
    v_mul_u32_u24 v188, 0x500, v188
    v_lshl_add_u32 v188, v189, 4, v188
    s_mul_i32 s71, s2, {6*1280}
    s_mov_b32 exec_hi, 0x0fffffff""")
    for c in range(8):
        a(f"buffer_load_dwordx4 {v(RP+4*c,4)}, v188, {S4}, s71 offen offset:{160*c}")
    a("s_mov_b32 exec_hi, -1\nLkg_now2:")
    W2X = 0 if DIRW2 else 8
    def kwait(tag):
        q = list(a.vm); idx = max(k for k, t in enumerate(q) if t == tag); n = len(q) - 1 - idx
        L = a.label("Lkw")
        a(f"s_waitcnt vmcnt({n+W2X})\ns_cmp_eq_u32 {sW}, 0\ns_cbranch_scc1 {L}\ns_waitcnt vmcnt({n})\n{L}:")
    a(f"s_setprio {os.environ.get('PS','1')}")
    def W2T():
        a(f"""s_mul_i32 s70, {sW}, 80
        v_add_u32 v250, s70, v0
        v_add_u32 v251, 64, v250
        s_add_u32 s70, s70, 79
        v_min_u32 v251, s70, v251
        s_lshr_b32 s71, s2, 3
        s_mul_i32 s71, s71, {48*1280}
        s_and_b32 s70, s2, 1
        s_mul_i32 s70, s70, 640
        s_add_u32 s71, s71, s70""")
        for r in (250, 251):
            a(f"""v_mul_u32_u24 v252, 13108, v{r}
            v_lshrrev_b32 v252, 16, v252
            v_mul_u32_u24 v253, 5, v252
            v_sub_u32 v253, v{r}, v253
            v_mul_u32_u24 v252, 0x500, v252
            v_lshl_add_u32 v252, v253, 7, v252
            buffer_load_dword v{r}, v252, {S4}, s71 offen""")
    make_tag(a)
    stamp_reset(1)
    a(f"""s_bitcmp1_b32 {sCH}, 0
    s_cselect_b32 s70, 0, 16
    s_lshl_b32 s69, s69, s70
    s_and_b32 s69, s69, 0xffff0000
    v_mov_b32 v3, s69
    v_mul_f32 v4, {LOG2E}, v3
    s_mov_b32 s70, {LOG2E}
    v_fma_f32 v5, v3, s70, -v4
    v_fmac_f32 v5, 0x32A57060, v3
    v_exp_f32 v4, v4
    v_mul_f32 v5, 0x3F317218, v5
    v_fmac_f32 v4, v4, v5
    v_cvt_pk_bf16_f32 v4, v4, v4
    v_and_b32 v3, 0xffff0000, v4""")
    R = {r: 30 + 2*(r-1) for r in range(1, 8)}
    V = {b: 44 + 2*(b-1) for b in range(1, 16)}
    Wr, Pa, Pb = 74, 76, 78
    U = [80 + 2*i for i in range(8)]
    CVT = [96 + i for i in range(8)]
    zr, th = 104, 105
    FR = 112
    KACC = 176
    cv = [0]
    def p2(r): return f"v[{r}:{r+1}]"
    def cmuls(lst):
        if os.environ.get('NOPK'):
            for D, X, Y in lst: a(f"v_mul_f32 v{D}, v{X}, v{Y}\nv_mul_f32 v{D+1}, v{X}, v{Y+1}")
            for D, X, Y in lst: a(f"v_fma_f32 v{D}, -v{X+1}, v{Y+1}, v{D}\nv_fmac_f32 v{D+1}, v{X+1}, v{Y}")
            return
        for D, X, Y in lst:
            a(f"v_pk_mul_f32 {p2(D)}, {p2(X)}, {p2(Y)} op_sel:[0,0] op_sel_hi:[0,1]")
        for D, X, Y in lst:
            a(f"v_pk_fma_f32 {p2(D)}, {p2(X)}, {p2(Y)}, {p2(D)} op_sel:[1,1,0] op_sel_hi:[1,0,1] neg_lo:[1,0,0]")
    def emit(rows_regs, neg=False):
        ts = []
        for row, r in rows_regs:
            t = CVT[cv[0] % 8]; cv[0] += 1; ts.append((row, t))
            a(f"v_cvt_pk_bf16_f32 v{t}, v{r}, {'-' if neg else ''}v{r+1}")
        for row, t in ts:
            a(f"ds_write_addtid_b32 v{t} offset:{288*row}")
    for r in range(12): a(f"v_mov_b32 v{KACC+r}, 0")
    kwait('par')
    stamp(a, 'par', True)
    for k in range(6):
        lo, hi = 30+2*k, 31+2*k
        a(f"""v_alignbit_b32 v{lo}, v{hi}, v{lo}, v2
        v_lshrrev_b32 v{hi}, v2, v{hi}
        v_lshlrev_b32 v{PR+k}, 16, v{lo}
        v_and_b32 v{PR+6+k}, 0xffff0000, v{lo}
        v_lshlrev_b32 v{PR+12+k}, 16, v{hi}""")
    if TOUCHW2 == 2: W2T()
    a("s_mov_b32 s69, 3\nLkg:")
    a.vm.clear()
    q = PR
    a(f"""v_mul_f32 v{zr}, v3, v{q}
    v_mul_f32 v{th}, v3, v{q+1}
    v_mul_f32 v{q+2}, v3, v{q+2}
    v_mul_f32 v{q+3}, v3, v{q+3}
    v_mul_f32 v{zr}, {LOG2E}, v{zr}
    v_mul_f32 v{th}, 0.15915494, v{th}""")
    dst = [(R[1], None), (V[1], 0x41000000), (Wr, 0x43000000)]
    for k, (d, mulc) in enumerate(dst):
        e, ph = U[k], U[k]+1
        if mulc is None:
            a(f"v_exp_f32 v{e}, v{zr}\nv_fract_f32 v{ph}, v{th}")
        else:
            a(f"v_mul_f32 v{e}, {mulc}, v{zr}\nv_mul_f32 v{ph}, {mulc}, v{th}\nv_exp_f32 v{e}, v{e}\nv_fract_f32 v{ph}, v{ph}")
    for k, (d, mulc) in enumerate(dst):
        a(f"v_cos_f32 v{d}, v{U[k]+1}\nv_sin_f32 v{d+1}, v{U[k]+1}")
    cmuls([(Pa, q+4, q+2)])
    for k, (d, mulc) in enumerate(dst):
        a(f"v_mul_f32 v{d}, v{d}, v{U[k]}\nv_mul_f32 v{d+1}, v{d+1}, v{U[k]}")
    for k in range(0, 12, 2): a(f"v_pk_mul_f32 {p2(q+k)}, {p2(q+6+k)}, 1.0 op_sel_hi:[1,0]")
    a(f"v_mov_b32 v{CVT[7]}, 0x3f80")
    a(f"ds_write_addtid_b32 v{CVT[7]} offset:{288*41}")
    cmuls([(R[2], R[1], R[1]), (V[2], V[1], V[1]), (Pb, Pa, Wr)])
    emit([(0, Pa), (8, Pb)]); emit([(42, V[1]), (43, V[2])], neg=True)
    cmuls([(R[3], R[2], R[1]), (R[4], R[2], R[2]), (V[3], V[2], V[1]), (V[4], V[2], V[2]),
           (U[0], Pa, R[1]), (U[1], Pa, R[2]), (U[2], Pb, R[1]), (U[3], Pb, R[2])])
    emit([(1, U[0]), (2, U[1]), (9, U[2]), (10, U[3])]); emit([(44, V[3]), (45, V[4])], neg=True)
    cmuls([(R[5], R[4], R[1]), (R[6], R[4], R[2]), (R[7], R[4], R[3]),
           (V[5], V[4], V[1]), (V[6], V[4], V[2]), (V[7], V[4], V[3]), (V[8], V[4], V[4]),
           (U[0], Pa, R[3]), (U[1], Pa, R[4]), (U[2], Pb, R[3]), (U[3], Pb, R[4])])
    emit([(3, U[0]), (4, U[1]), (11, U[2]), (12, U[3])]); emit([(41+b, V[b]) for b in (5, 6, 7, 8)], neg=True)
    cmuls([(U[0], Pa, R[5]), (U[1], Pa, R[6]), (U[2], Pa, R[7]), (U[3], Pb, R[5]), (U[4], Pb, R[6]), (U[5], Pb, R[7])]
          + [(V[8+b], V[8], V[b]) for b in range(1, 8)] + [(U[6], Wr, Wr), (U[7], Pb, Wr)])
    W2, P2 = U[6], U[7]
    emit([(5, U[0]), (6, U[1]), (7, U[2]), (13, U[3]), (14, U[4]), (15, U[5])])
    cmuls([(Pa, Pb, W2), (U[0], P2, R[2]), (U[1], P2, R[4]), (U[2], P2, R[6])])
    cmuls([(Pb, P2, W2)])
    emit([(41+8+b, V[8+b]) for b in range(1, 8)], neg=True)
    emit([(16, P2), (17, U[0]), (18, U[1]), (19, U[2])])
    Pc, Pd = V[9], V[10]
    cmuls([(Pc, Pa, W2), (Pd, Pb, W2), (U[0], Pa, R[2]), (U[1], Pa, R[4]), (U[2], Pa, R[6]), (U[3], Pb, R[4])])
    emit([(20, Pa), (21, U[0]), (22, U[1]), (23, U[2]), (24, Pb), (25, U[3])])
    cmuls([(Pa, Pc, W2), (Pb, Pd, W2), (U[0], Pc, R[4]), (U[1], Pd, R[4])])
    emit([(26, Pc), (27, U[0]), (28, Pd), (29, U[1])])
    cmuls([(Pc, Pa, W2), (Pd, Pb, W2), (U[0], Pa, R[4]), (V[11], W2, W2)])
    emit([(30, Pa), (31, U[0]), (32, Pb)])
    W4 = V[11]
    cmuls([(Pa, Pc, W2), (U[0], Pb, W4), (U[1], Pc, W4), (U[2], Pd, W4)])
    emit([(33, Pc), (34, Pd)])
    cmuls([(U[3], Pa, W4), (U[4], U[0], W4)])
    emit([(35, Pa), (36, U[0]), (37, U[1]), (38, U[2])])
    emit([(39, U[3]), (40, U[4])])
    a("s_waitcnt lgkmcnt(0)")
    for ks in range(4):
        a.ds(f"ds_read_b128 {v(FR+16*ks+12,4)}, v7 offset:{288*41 + 64*ks}", ('fr', ks))
        for m in range(3):
            a.ds(f"ds_read_b128 {v(FR+16*ks+4*m,4)}, v7 offset:{288*16*m + 64*ks}", ('fr', ks))
    for ks in range(4):
        a.wait(lg=[('fr', ks)])
        for m in range(3):
            a(f"v_mfma_f32_16x16x32_bf16 {v(KACC+4*m,4)}, {v(FR+16*ks+4*m,4)}, {v(FR+16*ks+12,4)}, {v(KACC+4*m,4)}")
    a(f"""s_sub_u32 s69, s69, 1
    s_cmp_lg_u32 {sW}, {7 if DIRW2 else 0}
    s_cbranch_scc1 Lkg_n
    s_cmp_eq_u32 s69, 2
    s_cbranch_scc0 Lkg_f
    s_waitcnt vmcnt(0)
    s_mov_b32 exec_hi, 0x0fffffff""")
    for c in range(8):
        a(f"buffer_store_dwordx4 {v(RP+4*c,4)}, v190, {SWS}, s78 offen sc1")
        if c < 7: a("s_add_u32 s78, s78, 245760")
    a(f"""s_mov_b32 exec_hi, -1
    s_branch Lkg
    Lkg_f:
    s_cmp_eq_u32 s69, 1
    s_cbranch_scc0 Lkg_n
    s_lshl_b32 s70, s2, 7
    s_add_u32 s70, s70, {FL_AUX}
    s_waitcnt vmcnt(0)""")
    flag_store(a, "s70", 190, 191)
    a("""Lkg_n:
    s_cmp_lg_u32 s69, 0
    s_cbranch_scc1 Lkg""")
    stamp(a, 'tables', True)
    if TOUCHW2 == 1:
        W2T()
    go_wait(a, 20)
    u_issue(a)
    stamp(a, 'aux seen', True)
    a(f"""v_lshrrev_b32 v4, 4, v0
    v_lshrrev_b32 v8, 1, v4
    v_and_b32 v9, 1, v4
    v_lshlrev_b32 v10, 8, v8
    v_lshl_add_u32 v10, v6, 4, v10
    v_lshl_add_u32 v10, v9, 3, v10
    v_add_u32 v10, {sKB}, v10
    v_lshlrev_b32 v11, 7, v4
    v_add_u32 v11, 512, v11
    v_sub_u32 v12, 3, v8
    v_lshlrev_b32 v12, v12, v6
    v_add_u32 v11, v11, v12
    v_add_u32 v11, {sKB}, v11
    v_mul_u32_u24 v12, 60, v8
    v_add_u32 v12, 4, v12
    v_add_u32 v12, v11, v12
    v_lshlrev_b32 v13, 7, v4
    v_lshl_add_u32 v13, v6, 1, v13
    v_add_u32 v13, {sKB}, v13
    v_mov_b32 v14, 0
    v_mov_b32 v15, {sKB}""")
    for i in range(6): a(f"v_cvt_pk_bf16_f32 v{16+i}, v{KACC+2*i}, v{KACC+2*i+1}")
    a(f"""ds_write_b64 v10, v[16:17] offset:{CVOFF}
    ds_write_b32 v11, v18 offset:{CVOFF}
    ds_write_b32 v12, v19 offset:{CVOFF}
    ds_write_b16 v13, v20 offset:{CVOFF+1024}
    ds_write_b16_d16_hi v13, v20 offset:{CVOFF+1024+32}
    ds_write_b16 v13, v21 offset:{CVOFF+1024+64}
    ds_write_b16_d16_hi v13, v21 offset:{CVOFF+1024+96}
    ds_write_b32 v15, v14 offset:{CVOFF-4}
    v_and_b32 v8, 31, v0
    v_lshl_add_u32 v9, v8, 4, {sKB}
    v_lshl_add_u32 v10, v8, 3, {sKB}
    v_min_u32 v11, 1, v8
    v_lshl_add_u32 v11, v11, 1, v10
    v_lshl_add_u32 v12, v0, 2, {sKB}
    v_lshl_add_u32 v13, v0, 1, {sKB}
    s_mul_i32 s69, {sW}, {KSTR}
    s_add_u32 s69, s69, {KB0}
    v_lshl_add_u32 v14, v0, 4, s69
    v_mov_b32 v40, 0
    v_mov_b32 v41, 0
    v_mov_b32 v42, 0
    v_mov_b32 v43, 0
    s_waitcnt lgkmcnt(0)
    ds_read_b128 v[16:19], v9 offset:{CVOFF}
    ds_read_b32 v20, v9 offset:{CVOFF-4}
    ds_read_b64 v[22:23], v10 offset:{CVOFF+512}
    ds_read_b32 v24, v10 offset:{CVOFF+512+8}
    ds_read_u16 v25, v11 offset:{CVOFF+512-2}
    ds_read_b32 v26, v12 offset:{CVOFF+768}
    ds_read_b32 v27, v12 offset:{CVOFF+768+4}
    ds_read_u16 v28, v13 offset:{CVOFF+1024}
    ds_read_u16 v60, v13 offset:{CVOFF+1024+2}
    ds_read_u16 v29, v13 offset:{CVOFF+1024+128}
    ds_read_u16 v61, v13 offset:{CVOFF+1024+130}
    s_mov_b32 s70, 0xffff
    s_mov_b32 s71, 0x01000100
    s_mov_b32 s72, 0x03020302
    s_mov_b32 s75, 0x05040100
    v_and_b32 v30, 1, v0
    v_mul_u32_u24 v31, 0x0404, v30
    v_lshlrev_b32 v30, 16, v31
    v_add_u32 v30, 0x01000504, v30
    v_add_u32 v31, 0x01000100, v31
    s_mov_b64 exec, 0xff
    ds_write_b128 v14, v[40:43]
    ds_write_b128 v14, v[40:43] offset:{K1OFF}
    s_mov_b64 exec, 0xffffffff
    s_waitcnt lgkmcnt(2)
    v_alignbit_b32 v32, v19, v19, 16
    v_alignbit_b32 v33, v18, v18, 16
    v_alignbit_b32 v34, v17, v17, 16
    v_alignbit_b32 v35, v16, v16, 16
    v_bfi_b32 v36, s70, v19, v18
    v_bfi_b32 v37, s70, v18, v17
    v_bfi_b32 v38, s70, v17, v16
    v_bfi_b32 v39, s70, v16, v20
    ds_write_b128 v14, v[32:35] offset:{K1OFF+128}
    ds_write_b128 v14, v[36:39] offset:128
    v_bfi_b32 v44, s70, v24, v23
    v_perm_b32 v45, v23, v23, s71
    v_bfi_b32 v46, s70, v23, v22
    v_perm_b32 v47, v22, v22, s71
    v_alignbit_b32 v48, v23, v23, 16
    v_mov_b32 v49, v45
    v_alignbit_b32 v50, v22, v22, 16
    v_perm_b32 v51, v25, v22, s75
    ds_write_b128 v14, v[44:47] offset:{K1OFF+128+512}
    ds_write_b128 v14, v[48:51] offset:{128+512}
    s_mov_b64 exec, -1
    v_perm_b32 v64, v27, v27, s71
    v_perm_b32 v65, v26, v26, s72
    v_alignbit_b32 v66, v26, v26, 16
    v_perm_b32 v67, v26, v26, s71
    v_bfi_b32 v68, s70, v27, v26
    v_mov_b32 v69, v65
    v_mov_b32 v70, v67
    v_mov_b32 v71, v67
    ds_write_b128 v14, v[64:67] offset:{K1OFF+128+1024}
    ds_write_b128 v14, v[68:71] offset:{128+1024}""")
    for k, src in enumerate((28, 29)):
        b = 72 + 8*k; s1 = 60 + k
        a(f"""v_perm_b32 v{b}, v{s1}, v{s1}, s71
        v_perm_b32 v{b+1}, v{s1}, v{src}, v30
        v_perm_b32 v{b+2}, v{src}, v{src}, s71
        v_perm_b32 v{b+5}, v{s1}, v{src}, v31
        v_mov_b32 v{b+3}, v{b+2}
        v_mov_b32 v{b+4}, v{b}
        v_mov_b32 v{b+6}, v{b+2}
        v_mov_b32 v{b+7}, v{b+2}
        ds_write_b128 v14, {v(b,4)} offset:{K1OFF+128+2048+1024*k}
        ds_write_b128 v14, {v(b+4,4)} offset:{128+2048+1024*k}""")
    a.vm.clear(); a.lg.clear()

def aux(a):
    sI = "s54"
    sX8, sJ = "s55", "s56"
    a("Laux:")
    X = 16
    TB = 56
    TB2 = 212
    TM = 96
    CS = 116
    TP = 244
    def blk_addr(sidx, sld, sst):
        a(f"""s_mul_i32 s70, {sidx}, 6554
        s_lshr_b32 s70, s70, 16
        s_mul_i32 s71, s70, 10
        s_sub_u32 s71, {sidx}, s71
        s_lshr_b32 s72, {sX8}, 1
        s_lshl_b32 s72, s72, 3
        s_add_u32 s70, s70, s72
        s_mul_i32 {sld}, s70, {64*1280}
        s_lshl_b32 s72, s71, 7
        s_add_u32 {sld}, {sld}, s72
        s_lshl_b32 {sst}, s71, 18
        s_lshl_b32 s72, s70, 7
        s_add_u32 {sst}, {sst}, s72
        s_add_u32 {sst}, {sst}, {XNT}""")
    def blk_load(base, sld):
        for r in range(8):
            a(f"buffer_load_dwordx4 {v(base+4*r,4)}, v{(2,3,6)[r//3]}, {SX}, {sld} offen offset:{(r%3)*1280}")
    def blk_store(base, sst):
        for c in range(8):
            o = TP + 4*(c % 2)
            for k in range(4):
                a(f"v_perm_b32 v{o+k}, v{base+4*(2*k+1)+c//2}, v{base+4*(2*k)+c//2}, {'s75' if c % 2 else 's74'}")
            a(f"buffer_store_dwordx4 {v(o,4)}, v7, {SWS}, {sst} offen sc1")
            if c < 7: a(f"s_add_u32 {sst}, {sst}, 4096")
    a(f"""s_and_b32 {sX8}, {sI}, 7
    s_lshr_b32 {sJ}, {sI}, 3
    s_setprio {os.environ.get('PA','3')}
    s_lshr_b32 s81, 0xdb6, {sJ}
    s_and_b32 s81, s81, 1
    v_lshrrev_b32 v4, 3, v0
    v_and_b32 v5, 7, v0""")
    a(f"""s_cmp_eq_u32 s81, 0
    s_cbranch_scc1 Laux_nocs
    s_lshr_b32 s77, {sX8}, 1
    s_and_b32 s78, {sX8}, 1
    s_mul_i32 s78, s78, 12
    s_add_u32 s78, s78, {sJ}
    v_mul_u32_u24 v8, 0xc00, v4
    v_lshl_add_u32 v8, v5, 4, v8
    s_mul_i32 s72, s77, {160*3072}
    s_lshl_b32 s73, s78, 7
    s_add_u32 s72, s72, s73""")
    for n in range(20):
        a(f"buffer_load_dwordx4 {v(CS+4*n,4)}, v8, {SW1}, s72 offen")
        if n < 19: a(f"s_add_u32 s72, s72, 24576")
    a(f"""Laux_nocs:
    s_lshl_b32 s68, {sX8}, 8
    s_lshl_b32 s70, {sJ}, 3
    s_add_u32 s68, s68, s70
    s_mul_i32 s70, s68, 1280
    v_mul_u32_u24 v1, 0x500, v4
    v_lshl_add_u32 v1, v5, 4, v1""")
    for n in range(10):
        a(f"buffer_load_dwordx4 {v(X+4*n,4)}, v1, {SX}, s70 offen offset:{128*n}")
    a(f"""s_and_b32 s69, {sX8}, 1
    s_mul_i32 s69, s69, 40
    s_add_u32 s69, s69, {sJ}
    v_mul_u32_u24 v2, {8*1280}, v5
    v_lshl_add_u32 v2, v4, 4, v2
    v_add_u32 v3, {3*1280}, v2
    v_add_u32 v6, {6*1280}, v2
    v_lshlrev_b32 v7, 15, v4
    v_lshl_add_u32 v7, v5, 4, v7""")
    blk_addr("s69", "s73", "s79")
    blk_load(TB, "s73")
    a(f"""s_cmp_lt_u32 {sJ}, 24
    s_cbranch_scc1 Laux_b1
    s_add_u32 s69, s69, 8""")
    blk_addr("s69", "s73", "s80")
    blk_load(TB2, "s73")
    a("Laux_b1:")
    if TOUCH:
        a(f"""s_getpc_b64 s[62:63]
        Lpc:
        s_sub_u32 s62, s62, Lpc-{KN}
        s_subb_u32 s63, s63, 0
        v_min_u32 v8, 9, v0
        s_mul_i32 s70, {sJ}, 10
        v_add_u32 v8, s70, v8
        v_lshlrev_b32 v8, 7, v8
        v_min_u32 v8, Lend-{KN}, v8
        s_mov_b64 exec, 0x3ff
        global_load_dword v252, v8, s[62:63]
        s_mov_b64 exec, -1""")
    make_tag(a)
    a(f"""s_mov_b32 s74, 0x05040100
    s_mov_b32 s75, 0x07060302
    s_mov_b32 s70, 0x3f803f80
    v_and_b32 v8, 15, v0
    v_lshrrev_b32 v9, 1, v8
    v_and_b32 v10, 1, v8
    v_lshlrev_b32 v10, 4, v10
    v_mov_b32 v11, 0x3f80
    v_lshlrev_b32 v11, v10, v11""")
    for k in range(4):
        a(f"v_cmp_eq_u32 vcc, {k}, v9\nv_cndmask_b32 v{88+k}, 0, v11, vcc")
    a(f"""s_lshl_b32 s76, {sI}, 7
    s_cmp_eq_u32 s81, 0
    s_cbranch_scc1 Laux_nocs1
    s_waitcnt vmcnt({18+TOUCH})""")
    for n in range(20):
        a(f"v_mfma_f32_16x16x32_bf16 v[112:115], v[88:91], {v(CS+4*n,4)}, {'0' if n == 0 else 'v[112:115]'}")
    for k in range(4):
        a(f"v_add_f32_dpp v{112+k}, v{112+k}, v{112+k} row_ror:8 row_mask:0xf bank_mask:0xf")
    a(f"""v_lshrrev_b32 v9, 4, v0
    v_lshlrev_b32 v8, 5, v5
    v_lshl_add_u32 v8, v9, 4, v8
    s_lshl_b32 s72, s78, 8
    s_mul_i32 s73, s77, 6144
    s_add_u32 s72, s72, s73
    s_add_u32 s72, s72, {CSUM}
    s_mov_b64 exec, 0x00ff00ff
    buffer_store_dwordx4 v[112:115], v8, {SWS}, s72 offen sc1
    s_mov_b64 exec, -1
    s_waitcnt vmcnt({9+TOUCH})
    s_branch Laux_w
    Laux_nocs1:
    s_waitcnt vmcnt({16+TOUCH})
    s_cmp_ge_u32 {sJ}, 24
    s_cbranch_scc1 Laux_w
    s_waitcnt vmcnt({8+TOUCH})
    Laux_w:""")
    stamp_reset(1); stamp(a, 'aux loads')
    for k in range(4): a(f"v_dot2_f32_bf16 v{8+k}, v{X+k}, s70, 0")
    for k in range(4): a(f"v_dot2_f32_bf16 v{12+k}, v{X+k}, v{X+k}, 0")
    for n in range(1, 10):
        for k in range(4): a(f"v_dot2_f32_bf16 v{8+k}, v{X+4*n+k}, s70, v{8+k}")
        for k in range(4): a(f"v_dot2_f32_bf16 v{12+k}, v{X+4*n+k}, v{X+4*n+k}, v{12+k}")
    INV640 = 0x3ACCCCCD
    def red8(rs):
        for t in ("v_add_f32 v{r}, v{r}, v{r1}", "v_add_f32 v{r2}, v{r2}, v{r3}", "v_add_f32 v{r}, v{r}, v{r2}",
                  "v_add_f32_dpp v{r}, v{r}, v{r} quad_perm:[1,0,3,2] row_mask:0xf bank_mask:0xf",
                  "v_add_f32_dpp v{r}, v{r}, v{r} quad_perm:[2,3,0,1] row_mask:0xf bank_mask:0xf",
                  "v_add_f32_dpp v{r}, v{r}, v{r} row_half_mirror row_mask:0xf bank_mask:0xf",
                  "v_mul_f32 v{r}, %d, v{r}" % INV640):
            for r in rs: a(t.format(r=r, r1=r+1, r2=r+2, r3=r+3))
    red8([8, 12])
    a("""v_mul_f32 v9, v8, v8
    v_sub_f32 v12, v12, v9
    v_mul_f32 v10, 0x41800000, v12
    v_sub_f32 v8, 0, v8
    v_cmp_nle_f32 vcc, v9, v10
    s_cbranch_vccz Laux_var
    v_mov_b32 v9, v8""")
    for n in range(10):
        t = TM + 8*(n % 2)
        for k in range(4):
            a(f"v_lshlrev_b32 v{t+2*k}, 16, v{X+4*n+k}\nv_and_b32 v{t+2*k+1}, 0xffff0000, v{X+4*n+k}")
        for k in range(4): a(f"v_pk_add_f32 {v(t+2*k,2)}, {v(t+2*k,2)}, v[8:9]")
        for k in range(4):
            if n == 0 and k < 2: a(f"v_pk_mul_f32 {v(12+2*k,2)}, {v(t+2*k,2)}, {v(t+2*k,2)}")
            else: a(f"v_pk_fma_f32 {v(12+2*(k%2),2)}, {v(t+2*k,2)}, {v(t+2*k,2)}, {v(12+2*(k%2),2)}")
    red8([12])
    a(f"""Laux_var:
    v_cvt_pk_bf16_f32 v9, v12, v12
    v_and_b32 v9, 0xffff0000, v9
    v_add_f32 v9, 0x3727C5AC, v9
    v_cvt_pk_bf16_f32 v9, v9, v9
    v_and_b32 v9, 0xffff0000, v9
    v_sqrt_f32 v9, v9
    v_cvt_pk_bf16_f32 v9, v8, v9
    v_lshlrev_b32 v12, 2, v4
    s_lshl_b32 s70, s68, 2
    s_add_u32 s70, s70, {STATS}
    s_mov_b32 exec_lo, 0x01010101
    s_mov_b32 exec_hi, 0x01010101
    buffer_store_dword v9, v12, {SWS}, s70 offen sc1
    s_mov_b64 exec, -1
    s_waitcnt vmcnt(1)
    s_cmp_eq_u32 s81, 0
    s_cbranch_scc1 Laux_w2
    s_waitcnt vmcnt(2)
    Laux_w2:""".replace("s_waitcnt vmcnt(1)\n    s_cmp_eq_u32 s81, 0\n    s_cbranch_scc1 Laux_w2\n    s_waitcnt vmcnt(2)\n    Laux_w2:", "s_waitcnt vmcnt(1)"))
    TQ = 116
    for c in range(8):
        for k in range(4):
            a(f"v_perm_b32 v{TQ+4*c+k}, v{TB+4*(2*k+1)+c//2}, v{TB+4*(2*k)+c//2}, {'s75' if c % 2 else 's74'}")
    a(f"""s_add_u32 s70, s76, {FL_S}
    s_waitcnt vmcnt(0)""")
    flag_store(a, "s70", 8, 9)
    for c in range(8):
        a(f"buffer_store_dwordx4 {v(TQ+4*c,4)}, v7, {SWS}, s79 offen sc1")
        if c < 7: a(f"s_add_u32 s79, s79, 4096")
    a(f"""s_cmp_lt_u32 {sJ}, 24
    s_cbranch_scc1 Laux_b2""")
    blk_store(TB2, "s80")
    a(f"""Laux_b2:
    s_add_u32 s70, s76, {FL_C}
    s_waitcnt vmcnt(0)""")
    flag_store(a, "s70", 8, 9)
    stamp(a, 'stats flag')
    a(f"""s_cmp_lg_u32 {sJ}, 31
    s_cbranch_scc1 Laux_go""")
    poll256(a, FL_C, 128, r=20, slp=1)
    a(f"""s_lshl_b32 s70, {sX8}, 7
    s_add_u32 s70, s70, {GO}""")
    flag_store(a, "s70", 8, 9)
    a(f"Laux_go:\ns_setprio {os.environ.get('PS','1')}")
    go_wait(a, 20)
    u_issue(a)

def conv(a):
    sI = "s54"
    a("Lconv:")
    stamp_reset(4); stamp(a, 'Lconv', True)
    a(f"""v_and_b32 v10, 15, v0
    v_lshrrev_b32 v11, 4, v0
    v_and_b32 v12, 1, v0
    v_lshrrev_b32 v13, 1, v10
    v_mul_u32_u24 v14, {K1OFF}, v12
    v_sub_u32 v15, v13, v11
    v_lshl_add_u32 v14, v15, 4, v14
    v_add_u32 v14, {KB0+64}, v14
    v_and_b32 v12, 3, v0
    v_mul_u32_u24 v15, {UCS}, v12
    v_lshrrev_b32 v13, 2, v10
    v_lshl_add_u32 v15, v13, 7, v15
    v_lshl_add_u32 v15, v11, 4, v15
    v_add_u32 v15, {UPAD+48}, v15
    v_lshlrev_b32 v19, 7, v13
    v_lshl_add_u32 v19, v11, 5, v19
    v_lshl_add_u32 v19, v12, 2, v19
    v_mov_b32 v4, 0
    v_mov_b32 v5, 0
    v_lshlrev_b32 v6, 3, v0
    s_mul_i32 s70, {sW}, {UCS}
    v_add_u32 v6, s70, v6
    s_waitcnt lgkmcnt(0)
    s_barrier""")
    a("s_mov_b32 exec_hi, 0x00ffffff")
    for c in range(3): a(f"ds_write_b64 v6, v[4:5] offset:{c*USTR}")
    a("s_mov_b32 exec_hi, -1")
    NM, RS, UD = 44, 52, 226
    def unp(d, s): return f"v_lshlrev_b32 v{d}, 16, v{s}\nv_and_b32 v{d+1}, 0xffff0000, v{s}"
    a("s_waitcnt vmcnt(0)")
    for k in range(8): a(f"v_and_b32 v{RS+k}, 0xffff0000, v{UIN+k}")
    for k in range(8): a(f"v_rcp_f32 v{RS+k}, v{RS+k}\nv_lshlrev_b32 v{NM+k}, 16, v{UIN+k}")
    a("s_waitcnt lgkmcnt(0)\ns_barrier")
    for c in range(3):
        x = UIN + 8 + 4*c; t = 60; ud = UD + 8*c; o = c*USTR + UPAD
        for k in range(4): a(unp(t+2*k, x+k))
        for k in range(4): a(f"v_pk_add_f32 {v(t+2*k,2)}, {v(t+2*k,2)}, {v(NM+2*k,2)}")
        for k in range(4): a(f"v_cvt_pk_bf16_f32 v{x+k}, v{t+2*k}, v{t+2*k+1}")
        for k in range(4): a(unp(t+2*k, x+k))
        for k in range(4): a(f"v_pk_mul_f32 {v(t+2*k,2)}, {v(t+2*k,2)}, {v(RS+2*k,2)}")
        for k in range(4): a(f"v_cvt_pk_bf16_f32 v{x+k}, v{t+2*k}, v{t+2*k+1}")
        a(f"""v_cvt_pk_bf16_f32 v{68+2*c}, v{t+2}, v{t+3}
        v_cvt_pk_bf16_f32 v{69+2*c}, v{t+4}, v{t+5}
        ds_write_b128 v224, {v(x,4)} offset:{o+3*UCS-16}
        ds_write_b64 v224, {v(x,2)} offset:{o+UCS-8}
        ds_write_b64 v224, {v(x+2,2)} offset:{o+UCS}
        ds_write_b32 v224, v{x} offset:{o-4}
        ds_write_b64 v224, {v(68+2*c,2)} offset:{o}
        ds_write_b32 v224, v{x+3} offset:{o+8}
        ds_write_b32 v224, v{x} offset:{o+2*UCS-12}
        ds_write_b64 v224, {v(68+2*c,2)} offset:{o+2*UCS-8}
        ds_write_b32 v224, v{x+3} offset:{o+2*UCS}""")
    for c in range(3):
        x = UIN + 8 + 4*c; t = 60; ud = UD + 8*c
        for k in range(4): a(unp(t+2*k, x+k))
        sd = f"s{34+c+(c>1)*6}"
        a(f"s_bitcmp1_b32 {('s58','s59','s61')[c]}, 0\ns_cselect_b32 s70, 0, 16\ns_lshl_b32 {sd}, {sd}, s70\ns_and_b32 {sd}, {sd}, 0xffff0000")
        for k in range(8): a(f"v_mul_f32 v{t+k}, {sd}, v{t+k}")
        for k in range(4): a(f"v_cvt_pk_bf16_f32 v{76+k}, v{t+2*k}, v{t+2*k+1}")
        for k in range(4): a(unp(ud+2*k, 76+k))
    a("""s_waitcnt lgkmcnt(0)
    s_barrier""")
    stamp(a, 'u ready', True)
    YA = 20
    FS = [44, 132]
    def loop(name, parts):
        ad = [(16, 17), (8, 9)]
        tiles = [(pi, j) for pi, (c, J) in enumerate(parts) for j in J]
        acc = {t: YA + 4*k for k, t in enumerate(tiles)}
        base = []; n = 0
        for c, J in parts:
            base.append(n); n += 2*(max(J)+1)
        def reads(fs):
            out = []
            for pi, (c, J) in enumerate(parts):
                for k in range(max(J)+1):
                    out.append(f"ds_read_b128 {v(FS[fs]+4*(base[pi]+2*k),4)}, v{ad[pi][0]} offset:{512*k}")
                    out.append(f"ds_read_b128 {v(FS[fs]+4*(base[pi]+2*k+1),4)}, v{ad[pi][1]} offset:{512*k}")
                out.append(f"v_add_u32 v{ad[pi][0]}, 64, v{ad[pi][0]}")
                out.append(f"v_add_u32 v{ad[pi][1]}, -64, v{ad[pi][1]}")
            return out
        def mfmas(fs):
            rem = {t: list(range(t[1]+1)) for t in tiles}
            todo = []; last = []
            while any(rem.values()):
                cand = [t for t in tiles if rem[t] and t not in last[-GAP:]] or [t for t in tiles if rem[t] and t not in last[-1:]] or [t for t in tiles if rem[t]]
                t = max(cand, key=lambda t: len(rem[t]))
                todo.append((t, rem[t].pop(0))); last.append(t)
            return [f"v_mfma_f32_16x16x32_bf16 {v(acc[t],4)}, {v(FS[fs]+4*(base[t[0]]+2*p),4)}, {v(FS[fs]+4*(base[t[0]]+2*(t[1]-p)+1),4)}, {v(acc[t],4)}" for t, p in todo]
        for pi, (c, J) in enumerate(parts):
            if isinstance(c, str):
                a(f"s_mul_i32 s70, {c}, {KSTR}\ns_mul_i32 s71, {c}, {USTR}\nv_add_u32 v{ad[pi][0]}, s70, v14\nv_add_u32 v{ad[pi][1]}, s71, v15")
            else:
                a(f"v_add_u32 v{ad[pi][0]}, {c*KSTR}, v14\nv_add_u32 v{ad[pi][1]}, {c*USTR}, v15")
        for t in reads(0): a(t)
        for r in range(4*len(tiles)): a(f"v_mov_b32 v{YA+r}, 0")
        a(f"s_mov_b32 s64, 4\n{name}:")
        for fs in (0, 1):
            a("s_waitcnt lgkmcnt(0)")
            fill = reads(1-fs); ms = mfmas(fs)
            n = len(ms) - 4; done = 0
            for i, m in enumerate(ms):
                a(m)
                want = min(len(fill), -(-len(fill)*(i+1)//n))
                while done < want: a(fill[done]); done += 1
        a(f"""s_sub_u32 s64, s64, 1
        s_cmp_lg_u32 s64, 0
        s_cbranch_scc1 {name}
        s_waitcnt lgkmcnt(0)
        s_barrier""")
        for pi, (c, J) in enumerate(parts):
            if isinstance(c, str): a(f"s_lshl_b32 s70, {c}, 12\nv_add_u32 v{ad[pi][0]}, s70, v19")
            for j in J:
                r = acc[(pi, j)]
                off = 512*j + (0 if isinstance(c, str) else 4096*c)
                adr = ad[pi][0] if isinstance(c, str) else 19
                a(f"""v_cvt_pk_bf16_f32 v{r}, v{r}, v{r+1}
                v_cvt_pk_bf16_f32 v{r+2}, v{r+2}, v{r+3}
                ds_write_b32 v{adr}, v{r} offset:{off}
                ds_write_b32 v{adr}, v{r+2} offset:{off+16}""")
    a(f"""s_lshr_b32 s62, {sW}, 1
    s_cmp_eq_u32 {sW}, 1
    s_cbranch_scc1 Lcv_w1
    s_cmp_eq_u32 {sW}, 3
    s_cbranch_scc1 Lcv_w3""")
    loop("Lcv_l0", [("s62", [7, 6, 5, 1])])
    a("s_branch Lcv_bar2\nLcv_w1:")
    loop("Lcv_l1", [(0, [4, 3, 2, 0]), (1, [4, 3])])
    a("s_branch Lcv_bar2\nLcv_w3:\ns_cmp_eq_u32 s57, 1\ns_cbranch_scc1 Lcv_w3b")
    loop("Lcv_l3a", [(1, [2, 0]), (2, [7, 5, 2, 0])])
    a("s_branch Lcv_bar2\nLcv_w3b:")
    loop("Lcv_l3b", [(1, [2, 0]), (2, [6, 4, 3, 1])])
    a(f"""Lcv_bar2:
    s_waitcnt lgkmcnt(0)
    s_barrier""")
    stamp(a, 'conv done', True)
    for c in range(3): a.ds(f"ds_read_b128 {v(32+4*c,4)}, v224 offset:{c*4096}", ('y', c))
    a(f"""s_lshr_b32 s70, {sW}, 1
    s_xor_b32 s70, s70, s57
    s_cmp_eq_u32 s70, 0
    s_cselect_b32 s66, -1, 0
    s_cselect_b32 s67, 0, -1""")
    for c, sch in enumerate(("s58", "s59", "s61")):
        a.wait(lg=[('y', c)])
        y = 32 + 4*c; t = 48 + 8*c; ud = UD + 8*c
        for k in range(4): a(unp(t+2*k, y+k))
        for k in range(4): a(f"v_pk_add_f32 {v(t+2*k,2)}, {v(t+2*k,2)}, {v(ud+2*k,2)}")
        for k in range(4): a(f"v_cvt_pk_bf16_f32 v{y+k}, v{t+2*k}, v{t+2*k+1}")
        a(f"""s_lshl_b32 s70, {sch}, 12
        s_add_u32 s70, s70, {AT}""")
        if c == 2: a("s_mov_b64 exec, s[66:67]")
        a(f"buffer_store_dwordx4 {v(y,4)}, v224, {SWS}, s70 offen sc1")
        if c == 2: a("s_mov_b64 exec, -1")
    a("s_waitcnt vmcnt(0)")
    stamp(a, 'y stored'); stamp_flush(a, 50)
    a(f"""s_barrier
    s_cmp_eq_u32 {sW}, 1
    s_cbranch_scc1 Lcv_ep
    s_cmp_lg_u32 {sW}, 0
    s_cbranch_scc1 Lend
    s_lshl_b32 s70, {sI}, 7
    s_add_u32 s70, s70, {FL_Y}""")
    flag_store(a, "s70", 4, 5)
    a(f"""s_endpgm
    Lcv_ep:
    s_cmp_lg_u32 {sI}, 0
    s_cbranch_scc1 Lend""")
    if EXP != "nogemm": poll256(a, FL_ACT, 384, slp=8)
    poll256(a, FL_Y, 128, slp=8)
    flag_store(a, "0", 4, 5)
    a("s_endpgm")

HEADER = open(os.path.join(os.path.dirname(os.path.abspath(__file__)), "..", "cdna_kernels",
              "parallel_sum__ssm_conv_s4__dense_activation_mish__prompt.s.ref")).read().split("; Override")[0]

def build():
    a = Asm()
    prologue(a)
    gemm(a)
    a.vm.clear(); a.lg.clear()
    ssm(a)
    a("Lend:\ns_endpgm")
    body = a.finalize()
    return f"""{HEADER}; @launch grid=(512,1,1) block=(256,1,1) lds=81920
.amdgcn_target "amdgcn-amd-amdhsa--gfx950"
.text
.globl {KN}
.p2align 8
.type {KN},@function
{KN}:
{body}.section .rodata,"a"
.p2align 6
.amdhsa_kernel {KN}
  .amdhsa_next_free_vgpr 256
  .amdhsa_next_free_sgpr 102
  .amdhsa_accum_offset 256
  .amdhsa_group_segment_fixed_size 0
  .amdhsa_kernarg_size 128
  .amdhsa_user_sgpr_count 2
  .amdhsa_user_sgpr_kernarg_segment_ptr 1
  .amdhsa_system_sgpr_workgroup_id_x 1
.end_amdhsa_kernel
"""

if __name__ == "__main__":
    out = sys.argv[1] if len(sys.argv) > 1 else "k.s"
    open(out, "w").write(build())
    print("wrote", out)
```

```python
import sys, os
sys.path.insert(0, os.path.dirname(os.path.abspath(__file__)))
from asmlib import Asm

KN = "parallel_sum__ssm_conv_s4__dense_activation_mish__prompt_kernel"

FL_S   = 0x0000 + 0x8000
FL_Y   = 0x10000
FL_ACT = 0x18000
STATS  = 0x30000
CSUM   = 0x34000
FL_C   = 0x70000
FL_AUX = 0x48000 + 0x20000
GO     = 0x1000
XNT    = 0x100000
AT     = 0x400000
W2P    = 0x700000
ACT    = 0xA00000
WS_SIZE= 0x1000000
LOG2E = 0x3FB8AA3B
SPIN_MAX = int(os.environ.get('SPIN_MAX', '20000'))
ACT_DELAY = int(os.environ.get('ACT_DELAY', '5'))
DIAG = int(os.environ.get("DIAG", "0"))
EXP = os.environ.get("EXP", "")
STAMP = 0x40000
W2LATE = int(os.environ.get('W2LATE', '1'))
DIRW2 = int(os.environ.get('DIRW2', '0'))
ROT = int(os.environ.get('ROT', '0'))
TOUCHW1 = int(os.environ.get('TOUCHW1', '0'))
TOUCHW2 = int(os.environ.get('TOUCHW2', '0'))
TLB = int(os.environ.get('TLB', '0'))
S1 = int(os.environ.get('S1', '4'))
C0 = int(os.environ.get('C0', '4'))
C1 = int(os.environ.get('C1', '2'))
C2 = int(os.environ.get('C2', '10'))
TOUCH = int(os.environ.get('TOUCH', '1'))
GAP = int(os.environ.get('GAP', '2'))

P = dict(x=16, Are=18, Aim=20, Bre=22, Bim=24, Cre=26, Cim=28, ldt=30, D=32, w1=36, b1=38, w2=40, out=42, dbg=44, ws=46)
def sp(n): return f"s[{P[n]}:{P[n]+1}]"
SX, SW1, SWS, S4 = "s[4:7]", "s[8:11]", "s[12:15]", "s[48:51]"
sW, sTAG = "s3", "s52"

_st = {"n": 0}
def stamp(a, name=None, wait=False):
    if not DIAG: return
    k = _st["n"]; _st["n"] += 1
    assert k < 10, k
    a(f"{'s_memtime' if os.environ.get('CYC') else 's_memrealtime'} s[{82+2*k}:{83+2*k}]")
    if wait: a("s_waitcnt lgkmcnt(0)")
def stamp_reset(n=0): _st["n"] = n
def stamp_flush(a, tmp):
    if not DIAG: return
    a("s_waitcnt lgkmcnt(0)")
    a(f"s_lshl_b32 s80, s2, 2\ns_add_u32 s80, s80, {sW}\ns_lshl_b32 s80, s80, 6\ns_add_u32 s80, s80, {STAMP}\nv_mov_b32 v{tmp+1}, 0\ns_mov_b64 exec, 1")
    for k in range(10):
        a(f"v_mov_b32 v{tmp}, s{82+2*k}\nbuffer_store_dword v{tmp}, v{tmp+1}, {SWS}, s80 offen offset:{4*k}\ns_nop 1")
    a("s_mov_b64 exec, -1")

def v(i, n=1): return f"v{i}" if n == 1 else f"v[{i}:{i+n-1}]"

def srd(a, base, ptr, size):
    a(f"""s_mov_b32 s{base}, s{P[ptr]}
    s_mov_b32 s{base+1}, s{P[ptr]+1}
    s_mov_b32 s{base+2}, {size}
    s_mov_b32 s{base+3}, 0x20000""")

def spin(a, load, cmp, scnt="s60", slp=4):
    L = a.label("Lspin"); Lok = a.label("Lok")
    a(cmp)
    a(f"s_cbranch_scc1 {Lok}")
    a(f"s_mov_b32 {scnt}, {SPIN_MAX}")
    a(f"{L}:")
    a(f"s_sleep {slp}")
    a(load)
    a("s_waitcnt vmcnt(0)")
    a(cmp)
    a(f"s_cbranch_scc1 {Lok}")
    a(f"s_sub_u32 {scnt}, {scnt}, 1")
    a(f"s_cmp_lg_u32 {scnt}, 0")
    a(f"s_cbranch_scc1 {L}")
    a(f"{Lok}:")

def cmpn(regs):
    dst = ["vcc", "s[62:63]", "s[64:65]", "s[66:67]"][:len(regs)]
    t = "\n".join(f"v_cmp_ne_u32 {d}, {sTAG}, v{r}" for d, r in reversed(list(zip(dst, regs))))
    for d in dst[1:]: t += f"\ns_or_b64 vcc, vcc, {d}"
    return t + "\ns_cmp_eq_u64 vcc, 0"

def poll256_issue(a, base, stride, r=4, s0=72):
    a(f"v_mul_u32_u24 v{r+4}, {stride}, v0")
    for n in range(4): a(f"s_mov_b32 s{s0+n}, {base + 64*stride*n}")
    ld = "\n".join(f"buffer_load_dword v{r+n}, v{r+4}, {SWS}, s{s0+n} offen sc1" for n in range(4))
    a(ld)
    return ld
def poll256(a, base, stride, slp=4, r=4):
    ld = poll256_issue(a, base, stride, r)
    a("s_waitcnt vmcnt(0)")
    spin(a, ld, cmpn([r, r+1, r+2, r+3]), slp=slp)

def go_issue(a, r, s="s75"):
    a(f"""v_mov_b32 v{r+1}, 0
    s_and_b32 {s}, s2, 7
    s_lshl_b32 {s}, {s}, 7
    s_add_u32 {s}, {s}, {GO}""")
    return f"buffer_load_dword v{r}, v{r+1}, {SWS}, {s} offen sc1"
def go_wait(a, r):
    ld = go_issue(a, r)
    a(ld); a("s_waitcnt vmcnt(0)")
    spin(a, ld, cmpn([r]), slp=3)

def flag_store(a, soff, t0, t1, track=None):
    a(f"""v_mov_b32 v{t0}, {sTAG}
    v_mov_b32 v{t1}, 0
    s_mov_b64 exec, 1""")
    txt = f"buffer_store_dword v{t0}, v{t1}, {SWS}, {soff} offen sc1"
    if track is not None: a.vmem(txt, track)
    else: a(txt)
    a("s_mov_b64 exec, -1")

def prologue(a):
    a(f"""s_cmp_ge_u32 s2, 512
    s_cbranch_scc1 Lend
    s_load_dwordx16 s[16:31], s[0:1], 0
    s_load_dwordx16 s[32:47], s[0:1], 64""")
    if DIAG:
        for k in range(82, 102): a(f"s_mov_b32 s{k}, 0")
    stamp(a, "start")
    a(f"""v_lshrrev_b32 v1, 6, v0
    v_and_b32 v0, 63, v0
    v_readfirstlane_b32 {sW}, v1
    s_waitcnt lgkmcnt(0)
    s_load_dword s53, {sp('ws')}, 0""")
    srd(a, 4, 'x', 2621440)
    srd(a, 8, 'w1', 1966080)
    srd(a, 12, 'ws', WS_SIZE)
    a("""s_cmp_lt_u32 s2, 256
    s_cbranch_scc1 Lssm""")

def make_tag(a):
    a(f"""s_waitcnt lgkmcnt(0)
    s_mul_i32 {sTAG}, s53, 0x9E3779B1
    s_add_u32 {sTAG}, {sTAG}, 0x7F4A7C15""")

def gemm(a):
    vX0, vX1, vW0, vW1 = 1, 2, 3, 4
    xr = [5, 6, 7, 8]
    wrl, wrh = 9, 10
    vAS = 11
    c1, c2, c3 = 12, 13, 14
    vT = 15
    EXT = 16
    T = [22, 23, 24, 25]
    OUT = 26
    EQ = 34
    A0, A1 = 38, 39
    SUMA = 22
    def accof(s): return ACC + 16*((s+1) % 2)
    WF = 40
    ACC = 64
    XF = 96
    sRB, sFP, sTH, sFH = "s54", "s55", "s56", "s57"
    sM, sSO, sAS, sT0 = "s58", "s59", "s61", "s68"
    if EXP == "nogemm": a("s_endpgm")
    a(f"""s_setprio {os.environ.get('PG0','0')}
    s_and_b32 s68, s2, 7
    s_lshr_b32 s69, s2, 3
    s_and_b32 s69, s69, 31
    s_lshr_b32 {sRB}, s68, 1
    s_lshl_b32 {sRB}, {sRB}, 3
    s_and_b32 s70, s69, 7
    s_add_u32 {sRB}, {sRB}, s70
    s_and_b32 {sFP}, s68, 1
    s_lshl_b32 {sFP}, {sFP}, 2
    s_lshr_b32 s70, s69, 3
    s_add_u32 {sFP}, {sFP}, s70
    s_lshl_b32 {sM}, {sW}, 11
    v_lshrrev_b32 v22, 3, v0
    s_lshl_b32 s70, {sW}, 4
    v_add_u32 v22, s70, v22
    v_lshrrev_b32 v23, 4, v0
    v_and_b32 v24, 7, v0
    v_xor_b32 v25, v24, v23
    s_lshl_b32 s71, {sRB}, 6
    v_add_u32 v26, s71, v22
    v_mul_u32_u24 v26, 0x500, v26
    v_lshl_add_u32 v{vX0}, v25, 4, v26
    v_xor_b32 v25, 4, v25
    v_lshl_add_u32 v{vX1}, v25, 4, v26
    v_add_u32 v{vX1}, {8*1280-1024}, v{vX1}
    v_and_b32 v23, 1, v23
    v_lshlrev_b32 v23, 2, v23
    v_xor_b32 v25, v24, v23
    v_mul_u32_u24 v26, 0xc00, v22
    v_lshl_add_u32 v{vW0}, v25, 4, v26
    s_mul_i32 s70, {sFP}, 384
    v_add_u32 v{vW0}, s70, v{vW0}
    v_add_u32 v{vW1}, {8*3072-1024}, v{vW0}""")

    if ROT:
        a(f"""s_and_b32 s70, {sRB}, 7
        s_and_b32 s71, {sFP}, 3
        s_mul_i32 s71, s71, {3*ROT}
        s_mul_i32 s70, s70, {ROT}
        s_add_u32 s70, s70, s71
        s_cmp_ge_u32 s70, 10
        s_cselect_b32 s71, 10, 0
        s_sub_u32 s70, s70, s71""")
        for kc in range(10):
            a(f"""s_lshl_b32 s{16+kc}, s70, 7
            s_mul_i32 s{26+kc}, s70, 196608""")
            if kc < 9: a("s_add_u32 s70, s70, 1\ns_cmp_eq_u32 s70, 10\ns_cselect_b32 s70, 0, s70")
    else:
        for kc in range(5): a(f"s_movk_i32 s{16+kc}, {128*kc}\ns_mov_b32 s{26+kc}, {196608*kc}")

    def chunk_info(c):
        if c < 20:
            return ('X', 0, c//2) if c % 2 == 0 else ('W', 0, c//2)
        return ('W', 1 + (c-20)//10, (c-20) % 10)
    def dma_half(c, h):
        kind, s, kc = chunk_info(c)
        slot = c % 10
        if h == 0:
            a(f"s_add_u32 m0, {sM}, {slot*8192}")
            if kind == 'W' and s > 0 and kc == 0: a(f"v_add_u32 v{vW0}, 128, v{vW0}\nv_add_u32 v{vW1}, 128, v{vW1}")
        r, sr, so = ((vX0, vX1)[h], SX, 16+kc) if kind == 'X' else ((vW0, vW1)[h], SW1, 26+kc)
        a.vmem(f"buffer_load_dwordx4 v{r}, {sr}, s{so} offen {'offset:1024 ' if h else ''}lds", ('c', c))
    for c in range(10): dma_half(c, 0); dma_half(c, 1)
    if not ROT:
        for kc in range(5, 10): a(f"s_movk_i32 s{16+kc}, {128*kc}\ns_mov_b32 s{26+kc}, {196608*kc}")

    srd(a, 48, 'out', 2621440)
    a(f"""s_and_b32 {sTH}, {sW}, 1
    s_lshr_b32 {sFH}, {sW}, 1
    v_and_b32 v22, 31, v0
    v_lshrrev_b32 v23, 5, v0
    v_lshrrev_b32 v24, 1, v22
    v_and_b32 v24, 7, v24
    s_lshl_b32 s70, {sTH}, 12
    v_lshl_add_u32 v25, v22, 7, s70""")
    for j in range(4):
        a(f"""v_add_u32 v26, {2*j}, v23
        v_xor_b32 v26, v26, v24
        v_lshl_add_u32 v{xr[j]}, v26, 4, v25""")
    a(f"""v_lshrrev_b32 v26, 4, v22
    s_lshl_b32 s70, {sTH}, 1
    v_add_u32 v26, s70, v26
    v_mul_u32_u24 v26, 0xc000, v26
    v_lshl_add_u32 v26, v23, 8, v26
    v_and_b32 v27, 15, v0
    v_lshl_add_u32 v{vAS}, v27, 4, v26
    v_lshrrev_b32 v24, 2, v27
    v_and_b32 v25, 3, v0
    v_lshrrev_b32 v26, 4, v0
    v_and_b32 v26, 1, v26
    v_lshlrev_b32 v26, 1, v26
    v_lshrrev_b32 v28, 1, v25
    v_add_u32 v26, v26, v28
    s_lshl_b32 s70, {sFH}, 2
    v_add_u32 v26, s70, v26
    v_lshrrev_b32 v28, 1, v24
    v_lshlrev_b32 v28, 2, v28
    v_xor_b32 v26, v26, v28
    v_lshl_add_u32 v28, v23, 3, v24
    v_lshlrev_b32 v28, 7, v28
    v_lshl_add_u32 v28, v26, 4, v28
    v_and_b32 v25, 1, v25
    v_lshl_add_u32 v{wrl}, v25, 3, v28
    v_add_u32 v{wrh}, 0x10000, v{wrl}
    v_add_u32 v{vT}, -1, v23
    s_mul_i32 {sAS}, {sRB}, 192
    s_mul_i32 s70, {sFP}, 6
    s_add_u32 {sAS}, {sAS}, s70
    s_add_u32 {sAS}, {sAS}, {sFH}
    s_lshl_b32 {sAS}, {sAS}, 10
    s_add_u32 {sAS}, {sAS}, {ACT}
    s_mul_i32 s81, {sRB}, 3072
    s_lshl_b32 s71, {sFP}, 7
    s_add_u32 s81, s81, s71
    s_add_u32 s81, s81, {FL_ACT}""")
    a(f"""v_mov_b32 v{EXT}, 0
    v_mov_b32 v{EXT+1}, 0
    v_and_b32 v24, 7, v0
    v_lshrrev_b32 v25, 2, v24
    v_and_b32 v24, 3, v24
    s_and_b32 s70, {sFP}, 3
    s_mul_i32 s70, s70, 3
    s_add_u32 s70, s70, 1
    v_add_u32 v25, s70, v25
    v_lshlrev_b32 v25, 3, v25
    v_lshl_add_u32 v25, v24, 1, v25
    s_lshr_b32 s70, {sFP}, 2
    v_add_u32 v25, s70, v25
    v_lshlrev_b32 v{EQ}, 7, v25
    s_mul_i32 s70, {sFP}, 192
    s_lshl_b32 s71, {sFH}, 5
    s_add_u32 s70, s70, s71
    v_add_u32 v24, s70, v22
    v_lshlrev_b32 v{EQ+1}, 2, v24
    v_lshlrev_b32 v24, 1, v24
    v_mul_u32_u24 v25, 6144, v23
    v_add_u32 v{EQ+1}, v{EQ+1}, v25
    v_lshl_add_u32 v{EQ+2}, v23, 7, v24
    v_mov_b32 v{EXT+3}, 0
    s_mov_b32 s69, 0x3f803f80""")
    a.vmem(f"global_load_short_d16_hi v{EXT+3}, v24, {sp('b1')}", 'b10')
    for r in range(22, 34): a(f"v_mov_b32 v{r}, 0")
    make_tag(a)

    wf_next = [0]
    def wfrag_alloc():
        r = WF + 4*(wf_next[0] % 6); wf_next[0] += 1; return r
    def read_w(c, j):
        slot = c % 10
        r = wfrag_alloc()
        base, off = (wrl, slot*8192) if slot < 8 else (wrh, (slot-8)*8192)
        a.ds(f"ds_read_b64_tr_b16 {v(r,2)}, v{base} offset:{off + 128*16*j}", ('w', c, j))
        a.ds(f"ds_read_b64_tr_b16 {v(r+2,2)}, v{base} offset:{off + 128*(16*j+4)}", ('w', c, j))
        return r
    def mfma1(acc, wfr, xfr, first):
        a(f"v_mfma_f32_32x32x16_bf16 {v(acc,16)}, {v(wfr,4)}, {v(xfr,4)}, {'0' if first else v(acc,16)}")

    side = []
    def run_side(n):
        for _ in range(n):
            if side: side.pop(0)()

    def mish_items(s):
        acc = accof(s)
        items = []
        for qd in range(4):
            R = [acc + 4*qd + k for k in range(4)]
            def f1(R=R):
                for k in range(4): a(f"v_mul_f32 v{T[k]}, v{c1}, v{R[k]}")
                for k in range(4): a(f"v_exp_f32 v{T[k]}, v{T[k]}")
                for k in range(4): a(f"v_add_f32 v{T[k]}, 1.0, v{T[k]}")
                for k in range(4): a(f"v_fma_f32 v{T[k]}, v{T[k]}, v{T[k]}, 1.0")
            def f2(R=R, qd=qd):
                for k in range(4): a(f"v_rcp_f32 v{T[k]}, v{T[k]}")
                for k in range(4): a(f"v_fma_f32 v{T[k]}, v{T[k]}, v{c2}, v{c3}")
                for k in range(4): a(f"v_mul_f32 v{T[k]}, v{T[k]}, v{R[k]}")
                a(f"v_cvt_pk_bf16_f32 v{OUT+2*qd}, v{T[0]}, v{T[1]}\nv_cvt_pk_bf16_f32 v{OUT+2*qd+1}, v{T[2]}, v{T[3]}")
                if qd % 2 == 1:
                    gp = qd // 2
                    a(f"s_add_u32 {sT0}, {sAS}, {2048*s}")
                    a.vmem(f"buffer_store_dwordx4 {v(OUT+4*gp,4)}, v{vAS}, {SWS}, {sT0} offen offset:{512*gp} sc1", ('act', s))
            items += [f1, f2]
        return items

    SPLIT = ("v_and_b32 v{q1}, 0xffff0000, v{q}", "v_sub_f32 v{q}, v{q}, v{q1}", "v_and_b32 v{q2}, 0xffff0000, v{q}",
             "v_sub_f32 v{q}, v{q}, v{q2}", "v_lshrrev_b32 v{q1}, 16, v{q1}", "v_lshrrev_b32 v{q}, 16, v{q}",
             "v_or_b32 v{q1}, v{q1}, v{q2}", "v_or_b32 v{q}, v{q}, v{b}", "v_and_b32 v{d0}, v{m}, v{q1}", "v_and_b32 v{d1}, v{m}, v{q}")
    SUM4 = ("v_add_f32 v{q}, v{q}, v{q1}", "v_add_f32 v{q2}, v{q2}, v{q3}", "v_add_f32 v{q}, v{q}, v{q2}")
    def local_stats():
        a.wait(vm=['b10'])
        for tmpl in SUM4 + ("v_mov_b32 v{q1}, v{q}", "v_permlane32_swap_b32 v{q}, v{q1}", "v_add_f32 v{q}, v{q}, v{q1}"):
            for q in (22, 26, 30): a(tmpl.format(q=q, q1=q+1, q2=q+2, q3=q+3))
        INV640 = 0x3ACCCCCD
        L = a.label("Lvar")
        a(f"""v_mul_f32 v22, {INV640}, v22
        v_mul_f32 v26, {INV640}, v26
        v_mul_f32 v23, v22, v22
        v_sub_f32 v26, v26, v23
        v_mul_f32 v24, 0x41800000, v26
        v_sub_f32 v22, 0, v22
        v_cmp_nle_f32 vcc, v23, v24
        s_cbranch_vccz {L}
        v_mov_b32 v26, 0
        v_mov_b32 v27, 0""")
        for r in range(XF, XF+160):
            a(f"""v_lshlrev_b32 v24, 16, v{r}
            v_and_b32 v25, 0xffff0000, v{r}
            v_add_f32 v24, v24, v22
            v_add_f32 v25, v25, v22
            v_fmac_f32 v26, v24, v24
            v_fmac_f32 v27, v25, v25""")
        a(f"""v_add_f32 v26, v26, v27
        v_mov_b32 v27, v26
        v_permlane32_swap_b32 v26, v27
        v_add_f32 v26, v26, v27
        v_mul_f32 v26, {INV640}, v26
        {L}:
        v_cvt_pk_bf16_f32 v27, v26, v26
        v_cvt_pk_bf16_f32 v{EXT+4}, v22, v22
        v_and_b32 v27, 0xffff0000, v27
        v_add_f32 v27, 0x3727C5AC, v27
        v_cvt_pk_bf16_f32 v27, v27, v27
        v_and_b32 v27, 0xffff0000, v27
        v_sqrt_f32 v27, v27
        v_cvt_pk_bf16_f32 v{EXT+5}, v22, v27
        v_and_b32 v{c3}, 0xffff0000, v{EXT+5}
        v_rcp_f32 v{c3}, v{c3}""")
        for tmpl in SPLIT: a(tmpl.format(q=30, q1=31, q2=32, b=EXT+3, d0=EXT+2, d1=EXT+3, m=vT))
        a(f"""v_mul_f32 v{c1}, {LOG2E}, v{c3}
        v_mul_f32 v{c2}, -2.0, v{c3}""")
    def ext_items():
        def l0():
            a(f"v_mov_b32 v26, 0\ns_mov_b32 s70, {CSUM}\ns_mov_b32 s71, {CSUM+12288}")
            for s in (1, 2):
                a.vmem(f"buffer_load_dword v{20+2*s}, v{EQ+1}, {SWS}, s70 offen offset:{256*s} sc1", 'ext')
                a.vmem(f"buffer_load_dword v{21+2*s}, v{EQ+1}, {SWS}, s71 offen offset:{256*s} sc1", 'ext')
            a.vmem(f"global_load_short_d16_hi v26, v{EQ+2}, {sp('b1')} offset:128", 'ext')
        return [l0]
    def ext_build():
        a.wait(vm=['ext'])
        a(f"v_and_b32 v27, v{vT}, v26\nv_xor_b32 v28, v27, v26")
        for tmpl in ("v_add_f32 v{q}, v{q}, v{q1}", "v_and_b32 v{q1}, 0xffff0000, v{q}", "v_sub_f32 v{q}, v{q}, v{q1}", "v_and_b32 v{d0}, 0xffff0000, v{q}",
                     "v_sub_f32 v{q}, v{q}, v{d0}", "v_lshrrev_b32 v{q1}, 16, v{q1}", "v_lshrrev_b32 v{q}, 16, v{q}",
                     "v_or_b32 v{d0}, v{q1}, v{d0}", "v_or_b32 v{d1}, v{q}, v{b}"):
            for s in (1, 2):
                q = 20 + 2*s
                a(tmpl.format(q=q, q1=q+1, b=26+s, d0=EQ+2*s-2, d1=EQ+2*s-1))
    def ext_mfma(s):
        acc = accof(s)
        if s: a(f"v_mov_b32 v{EXT+2}, v{EQ+2*s-2}\nv_mov_b32 v{EXT+3}, v{EQ+2*s-1}")
        a(f"v_mfma_f32_32x32x16_bf16 {v(acc,16)}, {v(EXT,4)}, {v(EXT+2,4)}, {v(acc,16)}")

    G2A = XF; NA = 12
    G2W = XF + 96
    G2ACC = WF
    G2X = XF + 136
    G2M = XF + 146
    vA0, vA1, vD2, w2l, w2h, vO = vX0, vX1, xr[0], xr[1], xr[2], xr[3]
    sA2, sW2, sM2 = "s72", "s73", "s74"
    def g2_setup_a():
        a(f"""v_lshlrev_b32 v{vA0}, 4, v0
        s_lshl_b32 s70, {sTH}, 1
        s_add_u32 s71, s70, {sFH}
        s_mul_i32 s71, s71, 49152
        s_xor_b32 s76, {sFH}, 1
        s_add_u32 s70, s70, s76
        s_mul_i32 s70, s70, 49152
        s_lshl_b32 s76, {sFH}, 10
        s_add_u32 s70, s70, s76
        s_add_u32 s71, s71, s76
        s_mul_i32 {sM2}, {sW}, 2560
        v_add_u32 v{vD2}, {sM2}, v{vA0}
        v_add_u32 v{vA1}, s70, v{vA0}
        v_add_u32 v{vA0}, s71, v{vA0}
        s_mul_i32 {sA2}, {sRB}, {192*1024}
        s_add_u32 {sA2}, {sA2}, {ACT}
        s_mul_i32 {sW2}, {sFP}, 245760
        s_add_u32 {sW2}, {sW2}, {W2P}""")
    def g2_setup_b():
        t0, t1 = A0, A1
        a(f"""v_lshrrev_b32 v{t0}, 5, v0
        v_lshlrev_b32 v{t0}, 4, v{t0}
        v_lshrrev_b32 v{t1}, 2, v0
        v_and_b32 v{t1}, 7, v{t1}
        v_add_u32 v{t0}, v{t0}, v{t1}
        s_lshl_b32 s70, {sFH}, 5
        v_add_u32 v{t0}, s70, v{t0}
        v_mul_u32_u24 v{t0}, 160, v{t0}
        v_and_b32 v{t1}, 3, v0
        v_lshl_add_u32 v{w2l}, v{t1}, 3, v{t0}
        v_add_u32 v{w2h}, 71680, v{w2l}
        s_lshl_b32 s70, {sTH}, 1
        s_add_u32 s70, s70, {sFH}
        s_lshl_b32 s70, s70, 4
        s_lshl_b32 s71, {sRB}, 6
        s_add_u32 s70, s70, s71
        v_and_b32 v{t0}, 15, v0
        v_add_u32 v{t0}, s70, v{t0}
        v_mul_u32_u24 v{t0}, 0x500, v{t0}
        v_lshrrev_b32 v{t1}, 4, v0
        v_lshl_add_u32 v{t0}, v{t1}, 3, v{t0}
        s_mul_i32 s70, {sFP}, 160
        v_add_u32 v{vO}, s70, v{t0}""")
    def g2_setup_c():
        a(f"""s_and_b32 s70, {sFP}, 3
        s_lshl_b32 s70, s70, 1
        s_add_u32 s70, s70, {sRB}
        s_mul_i32 s70, s70, {ROT}""")
        for p in range(8):
            a(f"""s_and_b32 s70, s70, 7
            s_mul_i32 s71, s70, 6144
            s_add_u32 s{16+p}, s71, {sA2}
            s_mul_i32 s71, s70, {192*1280 if DIRW2 else 30720}
            s_add_u32 s{26+p}, s71, {'0' if DIRW2 else sW2}
            s_add_u32 s70, s70, 1""")
    def g2_setup_d():
        a(f"""s_mov_b32 s8, s{P['w2']}
        s_mov_b32 s9, s{P['w2']+1}
        s_mul_i32 s70, {sW}, 160
        s_mul_i32 s71, {sFP}, 160""")
        for h, r in enumerate((vD2, vW0, vW1)):
            a(f"""v_add_u32 v{A0}, s70, v0
            v_add_u32 v{A0}, {64*h}, v{A0}
            v_mul_u32_u24 v{A1}, 6554, v{A0}
            v_lshrrev_b32 v{A1}, 16, v{A1}
            v_mul_u32_u24 v{r}, 10, v{A1}
            v_sub_u32 v{A0}, v{A0}, v{r}
            v_mul_u32_u24 v{A1}, 0x500, v{A1}
            v_lshl_add_u32 v{r}, v{A0}, 4, v{A1}
            v_add_u32 v{r}, s71, v{r}""")
            if h: a(f"v_add_u32 v{r}, {-1024*h}, v{r}")
    def st_sp(sg): return sg // 8, sg % 8
    def dma_w2_piece(sg, h):
        s2, p = st_sp(sg)
        if h == 0:
            a(f"s_add_u32 m0, {sM2}, {(sg % 8)*10240}")
            if s2 > 0 and p == 0:
                if DIRW2:
                    for r in (vD2, vW0, vW1): a(f"v_add_u32 v{r}, {64*1280}, v{r}")
                else: a(f"v_add_u32 v{vD2}, 10240, v{vD2}")
        if h == 2: a("s_mov_b64 exec, 0xffffffff")
        if DIRW2: a.vmem(f"buffer_load_dwordx4 v{(vD2, vW0, vW1)[h]}, {SW1}, s{26+p} offen offset:{1024*h} lds", ('d2', sg))
        else: a.vmem(f"buffer_load_dwordx4 v{vD2}, {SWS}, s{26+p} offen offset:{1024*h} sc1 lds", ('d2', sg))
        if h == 2: a("s_mov_b64 exec, -1")
    def load_act(sg):
        s2, p = st_sp(sg)
        r = G2A + 8*(sg % NA)
        if s2 > 0 and p == 0: a(f"v_add_u32 v{vA0}, 2048, v{vA0}\nv_add_u32 v{vA1}, 2048, v{vA1}")
        a.vmem(f"buffer_load_dwordx4 {v(r,4)}, v{vA0}, {SWS}, s{16+p} offen {os.environ.get('ASC','sc1')}", ('a2', sg))
        a.vmem(f"buffer_load_dwordx4 {v(r+4,4)}, v{vA1}, {SWS}, s{16+p} offen {os.environ.get('ASC','sc1')}", ('a2', sg))
    def pregs(s2): return [(XF, XF+1), (XF+94, XF+95), (G2M+4, G2M+5)][s2]
    def pa_ld(s2):
        pv, pa = pregs(s2)
        return f"buffer_load_dword v{pv}, v{pa}, {SWS}, s{78+s2} offen sc1"
    def poll_act_issue(s2):
        pv, pa = pregs(s2)
        a(f"""v_and_b32 v{pa}, 7, v0
        v_lshlrev_b32 v{pa}, 7, v{pa}
        s_mul_i32 s{78+s2}, {sRB}, 3072
        s_add_u32 s{78+s2}, s{78+s2}, {FL_ACT + 1024*s2}""")
        w0_issue(pa_ld(s2), ('pa', s2))
    def poll_act_check(s2):
        w0_check(pa_ld(s2), [pregs(s2)[0]], ('pa', s2))
    def w0_issue(ld, tag):
        L = a.label("Lw0")
        a(f"s_cmp_lg_u32 {sW}, 0\ns_cbranch_scc1 {L}")
        a(ld)
        a(f"{L}:")
        a.vm.append(('VIRT', tag))
    def w0_check(ld, regs, tag):
        L = a.label("Lw0")
        a(f"s_cmp_lg_u32 {sW}, 0\ns_cbranch_scc1 {L}")
        q = list(a.vm); d = dict(a.done)
        a.wait(vm=[('VIRT', tag)])
        a.vm[:] = [t for t in q if t != ('VIRT', tag)]; a.done.clear(); a.done.update(d)
        spin(a, ld, cmpn(regs))
        a(f"{L}:")
    flagged = set(); act_age = {}
    def pre_barrier(tags, lg="all"):
        tags = list(tags)
        for ss in range(3):
            if ss in flagged: continue
            if a.vm.count(('act', ss)) + a.done.get(('act', ss), 0) == 2:
                act_age[ss] = act_age.get(ss, 0) + 1
                if act_age[ss] >= ACT_DELAY: tags.append(('act', ss))
        a.wait(vm=tags, lg=lg)
        a("s_barrier")
        for ss in range(3):
            if ss not in flagged and a.done.get(('act', ss), 0) == 2:
                a(f"s_add_u32 s70, s81, {1024*ss}")
                flag_store(a, "s70", A0, A1, ('fl', ss)); flagged.add(ss)

    steps = [(s, kc) for s in range(3) for kc in range(10)]
    next_dma = 10; w2_issued = 0; act_issued = 0
    pend = []
    for si, (s, kc) in enumerate(steps):
        cw = 2*kc + 1 if s == 0 else 10 + 10*s + kc
        pre_barrier([('c', cw)], lg=())
        if (DIAG == 1 and (s, kc) in ((0, 0), (1, 0), (1, 4), (2, 0))) or (DIAG == 2 and s == 1 and kc < 9) or (DIAG == 3 and s == 2 and kc != 0) or (DIAG == 5 and s == 0 and kc < 9): stamp(a, f'g1 {s},{kc}', True)
        dq = []
        if si >= 2:
            nrel = 2 if (s == 0 or (s == 1 and kc <= 1)) else 1
            for _ in range(nrel):
                if next_dma < 40:
                    dq += [(dma_half, next_dma, 0), (dma_half, next_dma, 1)]; next_dma += 1
        if s == 2 and kc >= 4:
            while w2_issued < 8 and -(-10240*(w2_issued+1)//8192) <= kc - 1:
                dq += [(dma_w2_piece, w2_issued, h) for h in range(3)]; w2_issued += 1
        def dma_some(n):
            for _ in range(n):
                if dq:
                    f, x1, x2 = dq.pop(0); f(x1, x2)
        prev = pend; pend = []
        acc = accof(s)
        xf = XF + 16*kc
        hi = (s == 0 and (2*kc) % 10 == 8)
        if hi:
            for j in range(4): a(f"v_add_u32 v{xr[j]}, 0x10000, v{xr[j]}")
        def rd(j):
            r = read_w(cw, j)
            if s == 0:
                slot = (2*kc) % 10
                off = slot*8192 if slot < 8 else (slot-8)*8192
                a.ds(f"ds_read_b128 {v(xf+4*j,4)}, v{xr[j]} offset:{off}", ('w', cw, j))
            pend.append((acc, r, xf + 4*j, kc == 0 and j == 0, ('w', cw, j)))
        def mf():
            if prev:
                m = prev.pop(0); a.wait(lg=[m[4]]); mfma1(*m[:4])
        per = -(-len(dq)//4)
        rd(0); rd(1)
        mf(); dma_some(per)
        mf(); rd(2); rd(3); dma_some(per)
        if hi:
            for j in range(4): a(f"v_add_u32 v{xr[j]}, 0xffff0000, v{xr[j]}")
        run_side(1)
        mf(); dma_some(per)
        run_side(2)
        mf(); dma_some(per)
        lds_ = f"buffer_load_dword v{A0}, v{EQ}, {SWS}, s75 offen sc1"
        ldw2 = "\n".join(f"s_mov_b32 s76, {FL_AUX + 8192*n}\nbuffer_load_dword v{XF+3+n}, v{XF+2}, {SWS}, s76 offen sc1" for n in range(4))
        if (s, kc) == (1, 7): g2_setup_a()
        if (s, kc) == (1, 8): g2_setup_b()
        if (s, kc) == (int(os.environ.get('PGS', '1')), 0): a(f"s_setprio {os.environ.get('PG','2')}")
        if s == 0:
            a.wait(lg="all")
            for m in pend:
                for k in range(4): a(f"v_dot2_f32_bf16 v{22+k}, v{m[2]+k}, s69, v{22+k}")
                for k in range(4): a(f"v_dot2_f32_bf16 v{26+k}, v{m[2]+k}, v{m[2]+k}, v{26+k}")
                for k in range(4): a(f"v_dot2_f32_bf16 v{30+k}, v{m[1]+k}, s69, v{30+k}")
        if (s, kc) == (0, 9): local_stats()
        if (s, kc) == (1, 0):
            ext_mfma(0); side.extend(mish_items(0))
        if (s, kc) == (1, 3):
            a(f"s_mov_b32 s75, {FL_S}")
            w0_issue(lds_, 'ps')
        if (s, kc) == (1, 5): w0_check(lds_, [A0], 'ps')
        if (s, kc) == (1, 6): run_side(100); side.extend(ext_items())
        if (s, kc) == (1, 9): ext_build()
        if (s, kc) == (2, 0):
            run_side(100); ext_mfma(1); side.extend(mish_items(1))
        if (s, kc) == (2, 1) and not DIRW2:
            a(f"v_lshlrev_b32 v{XF+2}, 7, v0")
            w0_issue(ldw2, 'pw')
        if (s, kc) == (2, 2):
            g2_setup_c()
            if DIRW2: g2_setup_d()
        if (s, kc) == (2, 3) and not DIRW2: w0_check(ldw2, [XF+3, XF+4, XF+5, XF+6], 'pw')
        if (s, kc) == (2, C0-2): poll_act_issue(0)
        if (s, kc) == (2, C0): poll_act_check(0)
        if s == 2 and kc > C0:
            n = min(8, 3*(kc-C0))
            while act_issued < n: load_act(act_issued); act_issued += 1

    a2pend = []
    XA = G2M + 8 - 10 + 10
    for sg in range(24):
        if DIAG == 6 and sg in (3, 4, 5): stamp(a, 'prewait')
        if DIAG == 6 and sg in (3, 4, 5):
            q = list(a.vm); d = dict(a.done)
            a.wait(vm=[('d2', sg), ('a2', sg)]); stamp(a, 'postwait')
            a.vm[:] = q; a.done.clear(); a.done.update(d)
        if DIAG == 7 and sg in (11, 12, 13): stamp(a, 'prewait')
        if DIAG == 7 and sg in (11, 12, 13):
            q = list(a.vm); d = dict(a.done)
            a.wait(vm=[('d2', sg), ('a2', sg)]); stamp(a, 'postwait')
            a.vm[:] = q; a.done.clear(); a.done.update(d)
        pre_barrier([('d2', sg), ('a2', sg)])
        if (DIAG == 6 and sg in (3, 4, 5)) or (DIAG == 7 and sg in (11, 12, 13)): stamp(a, 'postbar')
        if (DIAG == 1 and sg in (0, 8, 16, 23)) or (DIAG == 4 and sg < 9): stamp(a, f'g2 {sg}')
        if os.environ.get('PG2') and sg == 3: a(f"s_setprio {os.environ.get('PG2')}")
        dq = []
        if sg == 0:
            while w2_issued < 8:
                dq += [(w2_issued, h) for h in range(3)]; w2_issued += 1
        elif w2_issued < 24:
            dq += [(w2_issued, h) for h in range(3)]; w2_issued += 1
        wb = G2W + 20*(sg % 2)
        slot = sg % 8
        base, off = (w2l, slot*10240) if slot < 7 else (w2h, 0)
        prev = a2pend; a2pend = []
        if sg == 0:
            run_side(100)
            for m in pend:
                mfma1(*m[:4])
                if dq: dma_w2_piece(*dq.pop(0))
            pend = []
            ext_mfma(2)
            side.extend(mish_items(2))
        for dt in range(5):
            a.ds(f"ds_read_b64_tr_b16 {v(wb+4*dt,2)}, v{base} offset:{off + 32*dt}", ('w2', sg))
            a.ds(f"ds_read_b64_tr_b16 {v(wb+4*dt+2,2)}, v{base} offset:{off + 32*dt + 1280}", ('w2', sg))
            for _ in range(2):
                if prev: a(prev.pop(0))
            if dq: dma_w2_piece(*dq.pop(0))
            if dt in (0, 1, 2, 3): run_side(1)
        while dq: dma_w2_piece(*dq.pop(0))
        for dt in range(5):
            for tau in range(2):
                accr = G2ACC + 20*tau + 4*dt
                a2pend.append(f"v_mfma_f32_16x16x32_bf16 {v(accr,4)}, {v(wb+4*dt,4)}, {v(G2A+8*(sg%NA)+4*tau,4)}, {'0' if sg == 0 else v(accr,4)}")
        if sg >= 1:
            lim = min(sg + NA, 8 if sg <= C1 else 16 if sg <= C2 else 24, act_issued + 2)
            while act_issued < lim: load_act(act_issued); act_issued += 1
        if sg == C1 - 2: poll_act_issue(1)
        if sg == C1: poll_act_check(1)
        if sg == C2 - 2: poll_act_issue(2)
        if sg == C2: poll_act_check(2)
        if sg == 4:
            for dt in range(5):
                a.vmem(f"buffer_load_dwordx2 {v(G2X+2*dt,2)}, v{vO}, {SX}, 0 offen offset:{32*dt}", 'xfin')
        PV = G2M + 6
        ypoll = f"buffer_load_dword v{PV}, v{PV+1}, {SWS}, s75 offen sc1"
        if sg == 17:
            a(f"""v_and_b32 v{PV+1}, 31, v0
            v_lshlrev_b32 v{PV+1}, 7, v{PV+1}
            s_lshl_b32 s75, {sFP}, 12
            s_add_u32 s75, s75, {FL_Y}
            s_mul_i32 s70, {sW}, 160
            v_add_u32 v22, s70, v0
            v_lshrrev_b32 v23, 3, v22
            s_mul_i32 s70, {sFP}, 80
            v_add_u32 v23, s70, v23
            v_lshlrev_b32 v23, 12, v23
            v_and_b32 v22, 7, v22
            v_lshl_add_u32 v22, v22, 4, v23
            v_add_u32 v23, {32768-1024}, v22
            v_add_u32 v24, {65536-2048}, v22
            s_lshl_b32 s76, {sRB}, 7
            s_add_u32 s76, s76, {AT}
            v_lshrrev_b32 v25, 2, v0
            v_lshlrev_b32 v25, 7, v25
            v_and_b32 v26, 3, v0
            v_lshl_add_u32 v25, v26, 3, v25
            s_lshl_b32 s70, {sTH}, 1
            s_add_u32 s70, s70, {sFH}
            s_lshl_b32 s70, s70, 5
            v_add_u32 v25, s70, v25
            s_mul_i32 s70, {sW}, 5120
            s_xor_b32 s71, {sW}, 2
            s_mul_i32 s71, s71, 5120
            v_lshlrev_b32 v26, 4, v0
            v_add_u32 v27, s71, v26
            v_add_u32 v26, s70, v26""")
        if sg == 19: a.vmem(ypoll, 'py')
        def dma_at(tagit=True):
            f = a.vmem if tagit else (lambda t, g: a(t))
            a(f"s_mov_b32 m0, {sM2}")
            f(f"buffer_load_dwordx4 v22, {SWS}, s76 offen sc1 lds", 'at')
            f(f"buffer_load_dwordx4 v23, {SWS}, s76 offen offset:1024 sc1 lds", 'at')
            a("s_mov_b64 exec, 0xffffffff")
            f(f"buffer_load_dwordx4 v24, {SWS}, s76 offen offset:2048 sc1 lds", 'at')
            a("s_mov_b64 exec, -1")
        if sg == 21:
            a.wait(vm=['py'])
            a(cmpn([PV]))
            a("s_cselect_b32 s77, 1, 0")
            dma_at()
    a.wait(lg="all")
    for m in [m for i, m in enumerate(a2pend) if i % 2 == 1]: a(m)
    for m in [m for i, m in enumerate(a2pend) if i % 2 == 0]: a(m)
    for dt in range(5): a(f"ds_write_b128 v26, {v(G2ACC+20+4*dt,4)} offset:{10240+1024*dt}")
    L = a.label("Lyok")
    a(f"""s_cmp_eq_u32 s77, 1
    s_cbranch_scc1 {L}
    s_waitcnt vmcnt(0)
    v_not_b32 v{PV}, {sTAG}""")
    spin(a, ypoll, cmpn([PV]))
    dma_at(False)
    a(f"{L}:")
    a("s_waitcnt vmcnt(0) lgkmcnt(0)")
    a.vm.clear(); a.lg.clear()
    a("s_barrier")
    RX = G2A; AV = G2A + 20; TT = G2W
    for dt in range(5): a.ds(f"ds_read_b64_tr_b16 {v(AV+2*dt,2)}, v25 offset:{2048*dt}", ('av', dt))
    for dt in range(5): a.ds(f"ds_read_b128 {v(RX+4*dt,4)}, v27 offset:{10240+1024*dt}", ('rx', dt))
    def unp(d, s): return f"v_lshlrev_b32 v{d}, 16, v{s}\nv_and_b32 v{d+1}, 0xffff0000, v{s}"
    for dt in range(5):
        t = TT + 8*dt
        a(unp(t, G2X+2*dt)); a(unp(t+2, G2X+2*dt+1))
    for dt in range(5):
        t = TT + 8*dt; av = AV + 2*dt
        a.wait(lg=[('av', dt)])
        a(unp(t+4, av)); a(unp(t+6, av+1))
        a(f"""v_pk_add_f32 {v(t,2)}, {v(t,2)}, {v(t+4,2)}
        v_pk_add_f32 {v(t+2,2)}, {v(t+2,2)}, {v(t+6,2)}
        v_cvt_pk_bf16_f32 v{t+4}, v{t}, v{t+1}
        v_cvt_pk_bf16_f32 v{t+5}, v{t+2}, v{t+3}""")
        a(unp(t, t+4)); a(unp(t+2, t+5))
    for dt in range(5):
        t = TT + 8*dt; k = G2ACC + 4*dt; r = RX + 4*dt
        a.wait(lg=[('rx', dt)])
        a(f"""v_pk_add_f32 {v(k,2)}, {v(k,2)}, {v(r,2)}
        v_pk_add_f32 {v(k+2,2)}, {v(k+2,2)}, {v(r+2,2)}
        v_cvt_pk_bf16_f32 v{r}, v{k}, v{k+1}
        v_cvt_pk_bf16_f32 v{r+1}, v{k+2}, v{k+3}""")
        a(unp(k, r)); a(unp(k+2, r+1))
        a(f"""v_pk_add_f32 {v(t,2)}, {v(t,2)}, {v(k,2)}
        v_pk_add_f32 {v(t+2,2)}, {v(t+2,2)}, {v(k+2,2)}
        v_cvt_pk_bf16_f32 v{t+4}, v{t}, v{t+1}
        v_cvt_pk_bf16_f32 v{t+5}, v{t+2}, v{t+3}
        buffer_store_dwordx2 {v(t+4,2)}, v{vO}, {S4}, 0 offen offset:{32*dt}""")
    if DIAG: a("s_waitcnt vmcnt(0)")
    if DIAG == 1: stamp(a, 'end')
    stamp_flush(a, 22)
    a("s_endpgm")

UPAD = 448
UCS  = 4640
USTR = 4*UCS
KB0  = 3*USTR
K1OFF = 4224
KSTR = 2*K1OFF
CVOFF = 16
UIN = 200
def u_issue(a):
    a(f"""v_lshlrev_b32 v224, 4, v0
    s_lshl_b32 s70, {sW}, 10
    v_add_u32 v224, s70, v224
    v_lshlrev_b32 v225, 1, v224
    s_mov_b32 s70, {STATS}
    buffer_load_dwordx4 {v(UIN,4)}, v225, {SWS}, s70 offen sc1
    buffer_load_dwordx4 {v(UIN+4,4)}, v225, {SWS}, s70 offen offset:16 sc1""")
    for c, sch in enumerate(("s58", "s59", "s61")):
        a(f"""s_lshl_b32 s70, {sch}, 12
        s_add_u32 s70, s70, {XNT}
        buffer_load_dwordx4 {v(UIN+8+4*c,4)}, v224, {SWS}, s70 offen sc1""")

def ssm(a):
    sI = "s54"
    a(f"""Lssm:
    s_setprio 3
    s_mov_b32 {sI}, s2
    s_lshr_b32 s56, {sI}, 1
    s_mul_i32 s56, s56, 5
    s_and_b32 s57, {sI}, 1
    s_mul_i32 s58, s57, 3
    s_add_u32 s58, s58, s56
    s_add_u32 s59, s58, 1
    s_add_u32 s61, s56, 2""")
    for c, sch in enumerate(("s58", "s59", "s61")):
        a(f"s_lshl_b32 s70, {sch}, 1\ns_and_b32 s70, s70, -4\ns_load_dword s{34+c+(c>1)*6}, {sp('D')}, s70")
    a(f"""s_cmp_eq_u32 {sW}, 3
    s_cbranch_scc1 Laux""")
    kgen(a)
    a("s_branch Lconv")
    aux(a)
    conv(a)

def kgen(a):
    sCH, sKB = "s55", "s68"
    a(f"""s_cmp_eq_u32 {sW}, 0
    s_cselect_b32 {sCH}, s58, s59
    s_cmp_eq_u32 {sW}, 2
    s_cselect_b32 {sCH}, s61, {sCH}
    s_mul_i32 {sKB}, {sW}, {USTR}
    s_mul_i32 s70, {sCH}, 384
    v_mul_u32_u24 v1, 6, v0
    v_and_b32 v1, -4, v1
    v_add_u32 v1, s70, v1""")
    PR = 8
    names = ['Are', 'Aim', 'Bre', 'Bim', 'Cre', 'Cim']
    for k, n in enumerate(names):
        a.vmem(f"global_load_dwordx2 {v(30+2*k,2)}, v1, {sp(n)}", 'par')
    a(f"""s_lshl_b32 s70, {sCH}, 1
    s_and_b32 s70, s70, -4
    s_load_dword s69, {sp('ldt')}, s70
    v_and_b32 v2, 1, v0
    v_lshlrev_b32 v2, 4, v2""")
    a(f"""    s_mov_b32 m0, {sKB}
    v_and_b32 v6, 15, v0
    v_mul_u32_u24 v7, 288, v6
    v_lshrrev_b32 v4, 4, v0
    v_lshl_add_u32 v7, v4, 4, v7
    v_add_u32 v7, {sKB}, v7""")
    if TLB:
        a(f"""v_and_b32 v26, 7, v0
        v_lshlrev_b32 v26, 21, v26
        v_mov_b32 v27, 0
        s_mov_b64 exec, 0xff""")
        a.vmem(f"buffer_load_dword v106, v26, {SWS}, 0 offen offset:512", 'touch')
        a("s_mov_b64 exec, 1")
        for n in ('w2', 'out', 'b1'): a.vmem(f"global_load_dword v107, v27, {sp(n)}", 'touch')
        a("s_mov_b64 exec, -1")
    if TOUCHW1:
        a(f"""s_mul_i32 s70, {sW}, 80
        v_add_u32 v26, s70, v0
        v_add_u32 v27, 64, v26
        s_add_u32 s70, s70, 79
        v_min_u32 v27, s70, v27
        s_lshr_b32 s71, s2, 3
        s_mul_i32 s71, s71, {20*3072}
        s_and_b32 s70, s2, 1
        s_mul_i32 s70, s70, 1536
        s_add_u32 s71, s71, s70""")
        for r in (26, 27):
            a(f"""v_mul_u32_u24 v28, 5462, v{r}
            v_lshrrev_b32 v28, 16, v28
            v_mul_u32_u24 v29, 12, v28
            v_sub_u32 v29, v{r}, v29
            v_mul_u32_u24 v28, 0xc00, v28
            v_lshl_add_u32 v28, v29, 7, v28""")
            a.vmem(f"buffer_load_dword v{r}, v28, {SW1}, s71 offen", 'touch')
    RP = 192
    srd(a, 48, 'w2', 1966080)
    a(f"""s_mul_i32 s78, s2, {6*160}
    s_add_u32 s78, s78, {W2P}
    v_lshlrev_b32 v190, 4, v0
    v_mov_b32 v188, 0
    s_mov_b32 s79, 0
    s_cmp_lg_u32 {sW}, {7 if DIRW2 else 0}
    s_cbranch_scc1 Lkg_now2
    v_mul_u32_u24 v188, 6554, v0
    v_lshrrev_b32 v188, 16, v188
    v_mul_u32_u24 v189, 10, v188
    v_sub_u32 v189, v0, v189
    v_mul_u32_u24 v188, 0x500, v188
    v_lshl_add_u32 v188, v189, 4, v188
    s_mul_i32 s71, s2, {6*1280}
    s_mov_b32 exec_hi, 0x0fffffff""")
    a("s_mov_b32 s79, s71")
    def w2loads():
        for c in range(8):
            a(f"buffer_load_dwordx4 {v(RP+4*c,4)}, v188, {S4}, s79 offen offset:{160*c}")
    if not W2LATE: w2loads()
    a("s_mov_b32 exec_hi, -1\nLkg_now2:")
    W2X = 0 if DIRW2 or W2LATE else 8
    def kwait(tag):
        q = list(a.vm); idx = max(k for k, t in enumerate(q) if t == tag); n = len(q) - 1 - idx
        L = a.label("Lkw")
        a(f"s_waitcnt vmcnt({n+W2X})\ns_cmp_eq_u32 {sW}, 0\ns_cbranch_scc1 {L}\ns_waitcnt vmcnt({n})\n{L}:")
    a(f"s_setprio {os.environ.get('PS','1')}")
    def W2T():
        a(f"""s_mul_i32 s70, {sW}, 80
        v_add_u32 v250, s70, v0
        v_add_u32 v251, 64, v250
        s_add_u32 s70, s70, 79
        v_min_u32 v251, s70, v251
        s_lshr_b32 s71, s2, 3
        s_mul_i32 s71, s71, {48*1280}
        s_and_b32 s70, s2, 1
        s_mul_i32 s70, s70, 640
        s_add_u32 s71, s71, s70""")
        for r in (250, 251):
            a(f"""v_mul_u32_u24 v252, 13108, v{r}
            v_lshrrev_b32 v252, 16, v252
            v_mul_u32_u24 v253, 5, v252
            v_sub_u32 v253, v{r}, v253
            v_mul_u32_u24 v252, 0x500, v252
            v_lshl_add_u32 v252, v253, 7, v252
            buffer_load_dword v{r}, v252, {S4}, s71 offen""")
    make_tag(a)
    stamp_reset(1)
    a(f"""s_bitcmp1_b32 {sCH}, 0
    s_cselect_b32 s70, 0, 16
    s_lshl_b32 s69, s69, s70
    s_and_b32 s69, s69, 0xffff0000
    v_mov_b32 v3, s69
    v_mul_f32 v4, {LOG2E}, v3
    s_mov_b32 s70, {LOG2E}
    v_fma_f32 v5, v3, s70, -v4
    v_fmac_f32 v5, 0x32A57060, v3
    v_exp_f32 v4, v4
    v_mul_f32 v5, 0x3F317218, v5
    v_fmac_f32 v4, v4, v5
    v_cvt_pk_bf16_f32 v4, v4, v4
    v_and_b32 v3, 0xffff0000, v4""")
    R = {r: 30 + 2*(r-1) for r in range(1, 8)}
    V = {b: 44 + 2*(b-1) for b in range(1, 16)}
    Wr, Pa, Pb = 74, 76, 78
    U = [80 + 2*i for i in range(8)]
    CVT = [96 + i for i in range(8)]
    zr, th = 104, 105
    FR = 112
    KACC = 176
    cv = [0]
    def p2(r): return f"v[{r}:{r+1}]"
    def cmuls(lst):
        if os.environ.get('NOPK'):
            for D, X, Y in lst: a(f"v_mul_f32 v{D}, v{X}, v{Y}\nv_mul_f32 v{D+1}, v{X}, v{Y+1}")
            for D, X, Y in lst: a(f"v_fma_f32 v{D}, -v{X+1}, v{Y+1}, v{D}\nv_fmac_f32 v{D+1}, v{X+1}, v{Y}")
            return
        for D, X, Y in lst:
            a(f"v_pk_mul_f32 {p2(D)}, {p2(X)}, {p2(Y)} op_sel:[0,0] op_sel_hi:[0,1]")
        for D, X, Y in lst:
            a(f"v_pk_fma_f32 {p2(D)}, {p2(X)}, {p2(Y)}, {p2(D)} op_sel:[1,1,0] op_sel_hi:[1,0,1] neg_lo:[1,0,0]")
    def emit(rows_regs, neg=False):
        ts = []
        for row, r in rows_regs:
            t = CVT[cv[0] % 8]; cv[0] += 1; ts.append((row, t))
            a(f"v_cvt_pk_bf16_f32 v{t}, v{r}, {'-' if neg else ''}v{r+1}")
        for row, t in ts:
            a(f"ds_write_addtid_b32 v{t} offset:{288*row}")
    for r in range(12): a(f"v_mov_b32 v{KACC+r}, 0")
    kwait('par')
    stamp(a, 'par', True)
    for k in range(6):
        lo, hi = 30+2*k, 31+2*k
        a(f"""v_alignbit_b32 v{lo}, v{hi}, v{lo}, v2
        v_lshrrev_b32 v{hi}, v2, v{hi}
        v_lshlrev_b32 v{PR+k}, 16, v{lo}
        v_and_b32 v{PR+6+k}, 0xffff0000, v{lo}
        v_lshlrev_b32 v{PR+12+k}, 16, v{hi}""")
    if TOUCHW2 == 2: W2T()
    a("s_mov_b32 s69, 3\nLkg:")
    a.vm.clear()
    q = PR
    a(f"""v_mul_f32 v{zr}, v3, v{q}
    v_mul_f32 v{th}, v3, v{q+1}
    v_mul_f32 v{q+2}, v3, v{q+2}
    v_mul_f32 v{q+3}, v3, v{q+3}
    v_mul_f32 v{zr}, {LOG2E}, v{zr}
    v_mul_f32 v{th}, 0.15915494, v{th}""")
    dst = [(R[1], None), (V[1], 0x41000000), (Wr, 0x43000000)]
    for k, (d, mulc) in enumerate(dst):
        e, ph = U[k], U[k]+1
        if mulc is None:
            a(f"v_exp_f32 v{e}, v{zr}\nv_fract_f32 v{ph}, v{th}")
        else:
            a(f"v_mul_f32 v{e}, {mulc}, v{zr}\nv_mul_f32 v{ph}, {mulc}, v{th}\nv_exp_f32 v{e}, v{e}\nv_fract_f32 v{ph}, v{ph}")
    for k, (d, mulc) in enumerate(dst):
        a(f"v_cos_f32 v{d}, v{U[k]+1}\nv_sin_f32 v{d+1}, v{U[k]+1}")
    cmuls([(Pa, q+4, q+2)])
    for k, (d, mulc) in enumerate(dst):
        a(f"v_mul_f32 v{d}, v{d}, v{U[k]}\nv_mul_f32 v{d+1}, v{d+1}, v{U[k]}")
    for k in range(0, 12, 2): a(f"v_pk_mul_f32 {p2(q+k)}, {p2(q+6+k)}, 1.0 op_sel_hi:[1,0]")
    a(f"v_mov_b32 v{CVT[7]}, 0x3f80")
    a(f"ds_write_addtid_b32 v{CVT[7]} offset:{288*41}")
    cmuls([(R[2], R[1], R[1]), (V[2], V[1], V[1]), (Pb, Pa, Wr)])
    emit([(0, Pa), (8, Pb)]); emit([(42, V[1]), (43, V[2])], neg=True)
    cmuls([(R[3], R[2], R[1]), (R[4], R[2], R[2]), (V[3], V[2], V[1]), (V[4], V[2], V[2]),
           (U[0], Pa, R[1]), (U[1], Pa, R[2]), (U[2], Pb, R[1]), (U[3], Pb, R[2])])
    emit([(1, U[0]), (2, U[1]), (9, U[2]), (10, U[3])]); emit([(44, V[3]), (45, V[4])], neg=True)
    cmuls([(R[5], R[4], R[1]), (R[6], R[4], R[2]), (R[7], R[4], R[3]),
           (V[5], V[4], V[1]), (V[6], V[4], V[2]), (V[7], V[4], V[3]), (V[8], V[4], V[4]),
           (U[0], Pa, R[3]), (U[1], Pa, R[4]), (U[2], Pb, R[3]), (U[3], Pb, R[4])])
    emit([(3, U[0]), (4, U[1]), (11, U[2]), (12, U[3])]); emit([(41+b, V[b]) for b in (5, 6, 7, 8)], neg=True)
    cmuls([(U[0], Pa, R[5]), (U[1], Pa, R[6]), (U[2], Pa, R[7]), (U[3], Pb, R[5]), (U[4], Pb, R[6]), (U[5], Pb, R[7])]
          + [(V[8+b], V[8], V[b]) for b in range(1, 8)] + [(U[6], Wr, Wr), (U[7], Pb, Wr)])
    W2, P2 = U[6], U[7]
    emit([(5, U[0]), (6, U[1]), (7, U[2]), (13, U[3]), (14, U[4]), (15, U[5])])
    cmuls([(Pa, Pb, W2), (U[0], P2, R[2]), (U[1], P2, R[4]), (U[2], P2, R[6])])
    cmuls([(Pb, P2, W2)])
    emit([(41+8+b, V[8+b]) for b in range(1, 8)], neg=True)
    emit([(16, P2), (17, U[0]), (18, U[1]), (19, U[2])])
    Pc, Pd = V[9], V[10]
    cmuls([(Pc, Pa, W2), (Pd, Pb, W2), (U[0], Pa, R[2]), (U[1], Pa, R[4]), (U[2], Pa, R[6]), (U[3], Pb, R[4])])
    emit([(20, Pa), (21, U[0]), (22, U[1]), (23, U[2]), (24, Pb), (25, U[3])])
    cmuls([(Pa, Pc, W2), (Pb, Pd, W2), (U[0], Pc, R[4]), (U[1], Pd, R[4])])
    emit([(26, Pc), (27, U[0]), (28, Pd), (29, U[1])])
    cmuls([(Pc, Pa, W2), (Pd, Pb, W2), (U[0], Pa, R[4]), (V[11], W2, W2)])
    emit([(30, Pa), (31, U[0]), (32, Pb)])
    W4 = V[11]
    cmuls([(Pa, Pc, W2), (U[0], Pb, W4), (U[1], Pc, W4), (U[2], Pd, W4)])
    emit([(33, Pc), (34, Pd)])
    cmuls([(U[3], Pa, W4), (U[4], U[0], W4)])
    emit([(35, Pa), (36, U[0]), (37, U[1]), (38, U[2])])
    emit([(39, U[3]), (40, U[4])])
    a("s_waitcnt lgkmcnt(0)")
    for ks in range(4):
        a.ds(f"ds_read_b128 {v(FR+16*ks+12,4)}, v7 offset:{288*41 + 64*ks}", ('fr', ks))
        for m in range(3):
            a.ds(f"ds_read_b128 {v(FR+16*ks+4*m,4)}, v7 offset:{288*16*m + 64*ks}", ('fr', ks))
    for ks in range(4):
        a.wait(lg=[('fr', ks)])
        for m in range(3):
            a(f"v_mfma_f32_16x16x32_bf16 {v(KACC+4*m,4)}, {v(FR+16*ks+4*m,4)}, {v(FR+16*ks+12,4)}, {v(KACC+4*m,4)}")
    a(f"""s_sub_u32 s69, s69, 1
    s_cmp_lg_u32 {sW}, {7 if DIRW2 else 0}
    s_cbranch_scc1 Lkg_n
    s_cmp_eq_u32 s69, {2-W2LATE}
    s_cbranch_scc0 Lkg_f
    s_waitcnt vmcnt(0)
    s_mov_b32 exec_hi, 0x0fffffff""")
    for c in range(8):
        a(f"buffer_store_dwordx4 {v(RP+4*c,4)}, v190, {SWS}, s78 offen sc1")
        if c < 7: a("s_add_u32 s78, s78, 245760")
    a(f"""s_mov_b32 exec_hi, -1
    s_branch Lkg
    Lkg_f:""")
    if W2LATE:
        a("s_cmp_eq_u32 s69, 2\ns_cbranch_scc0 Lkg_g\ns_mov_b32 exec_hi, 0x0fffffff")
        w2loads()
        a("s_mov_b32 exec_hi, -1\ns_branch Lkg\nLkg_g:")
    a(f"""s_cmp_eq_u32 s69, {1-W2LATE}
    s_cbranch_scc0 Lkg_n
    s_lshl_b32 s70, s2, 7
    s_add_u32 s70, s70, {FL_AUX}
    s_waitcnt vmcnt(0)""")
    flag_store(a, "s70", 190, 191)
    a("""Lkg_n:
    s_cmp_lg_u32 s69, 0
    s_cbranch_scc1 Lkg""")
    stamp(a, 'tables', True)
    if TOUCHW2 == 1:
        W2T()
    go_wait(a, 20)
    u_issue(a)
    stamp(a, 'aux seen', True)
    a(f"""v_lshrrev_b32 v4, 4, v0
    v_lshrrev_b32 v8, 1, v4
    v_and_b32 v9, 1, v4
    v_lshlrev_b32 v10, 8, v8
    v_lshl_add_u32 v10, v6, 4, v10
    v_lshl_add_u32 v10, v9, 3, v10
    v_add_u32 v10, {sKB}, v10
    v_lshlrev_b32 v11, 7, v4
    v_add_u32 v11, 512, v11
    v_sub_u32 v12, 3, v8
    v_lshlrev_b32 v12, v12, v6
    v_add_u32 v11, v11, v12
    v_add_u32 v11, {sKB}, v11
    v_mul_u32_u24 v12, 60, v8
    v_add_u32 v12, 4, v12
    v_add_u32 v12, v11, v12
    v_lshlrev_b32 v13, 7, v4
    v_lshl_add_u32 v13, v6, 1, v13
    v_add_u32 v13, {sKB}, v13
    v_mov_b32 v14, 0
    v_mov_b32 v15, {sKB}""")
    for i in range(6): a(f"v_cvt_pk_bf16_f32 v{16+i}, v{KACC+2*i}, v{KACC+2*i+1}")
    a(f"""ds_write_b64 v10, v[16:17] offset:{CVOFF}
    ds_write_b32 v11, v18 offset:{CVOFF}
    ds_write_b32 v12, v19 offset:{CVOFF}
    ds_write_b16 v13, v20 offset:{CVOFF+1024}
    ds_write_b16_d16_hi v13, v20 offset:{CVOFF+1024+32}
    ds_write_b16 v13, v21 offset:{CVOFF+1024+64}
    ds_write_b16_d16_hi v13, v21 offset:{CVOFF+1024+96}
    ds_write_b32 v15, v14 offset:{CVOFF-4}
    v_and_b32 v8, 31, v0
    v_lshl_add_u32 v9, v8, 4, {sKB}
    v_lshl_add_u32 v10, v8, 3, {sKB}
    v_min_u32 v11, 1, v8
    v_lshl_add_u32 v11, v11, 1, v10
    v_lshl_add_u32 v12, v0, 2, {sKB}
    v_lshl_add_u32 v13, v0, 1, {sKB}
    s_mul_i32 s69, {sW}, {KSTR}
    s_add_u32 s69, s69, {KB0}
    v_lshl_add_u32 v14, v0, 4, s69
    v_mov_b32 v40, 0
    v_mov_b32 v41, 0
    v_mov_b32 v42, 0
    v_mov_b32 v43, 0
    s_waitcnt lgkmcnt(0)
    ds_read_b128 v[16:19], v9 offset:{CVOFF}
    ds_read_b32 v20, v9 offset:{CVOFF-4}
    ds_read_b64 v[22:23], v10 offset:{CVOFF+512}
    ds_read_b32 v24, v10 offset:{CVOFF+512+8}
    ds_read_u16 v25, v11 offset:{CVOFF+512-2}
    ds_read_b32 v26, v12 offset:{CVOFF+768}
    ds_read_b32 v27, v12 offset:{CVOFF+768+4}
    ds_read_u16 v28, v13 offset:{CVOFF+1024}
    ds_read_u16 v60, v13 offset:{CVOFF+1024+2}
    ds_read_u16 v29, v13 offset:{CVOFF+1024+128}
    ds_read_u16 v61, v13 offset:{CVOFF+1024+130}
    s_mov_b32 s70, 0xffff
    s_mov_b32 s71, 0x01000100
    s_mov_b32 s72, 0x03020302
    s_mov_b32 s75, 0x05040100
    v_and_b32 v30, 1, v0
    v_mul_u32_u24 v31, 0x0404, v30
    v_lshlrev_b32 v30, 16, v31
    v_add_u32 v30, 0x01000504, v30
    v_add_u32 v31, 0x01000100, v31
    s_mov_b64 exec, 0xff
    ds_write_b128 v14, v[40:43]
    ds_write_b128 v14, v[40:43] offset:{K1OFF}
    s_mov_b64 exec, 0xffffffff
    s_waitcnt lgkmcnt(2)
    v_alignbit_b32 v32, v19, v19, 16
    v_alignbit_b32 v33, v18, v18, 16
    v_alignbit_b32 v34, v17, v17, 16
    v_alignbit_b32 v35, v16, v16, 16
    v_bfi_b32 v36, s70, v19, v18
    v_bfi_b32 v37, s70, v18, v17
    v_bfi_b32 v38, s70, v17, v16
    v_bfi_b32 v39, s70, v16, v20
    ds_write_b128 v14, v[32:35] offset:{K1OFF+128}
    ds_write_b128 v14, v[36:39] offset:128
    v_bfi_b32 v44, s70, v24, v23
    v_perm_b32 v45, v23, v23, s71
    v_bfi_b32 v46, s70, v23, v22
    v_perm_b32 v47, v22, v22, s71
    v_alignbit_b32 v48, v23, v23, 16
    v_mov_b32 v49, v45
    v_alignbit_b32 v50, v22, v22, 16
    v_perm_b32 v51, v25, v22, s75
    ds_write_b128 v14, v[44:47] offset:{K1OFF+128+512}
    ds_write_b128 v14, v[48:51] offset:{128+512}
    s_mov_b64 exec, -1
    v_perm_b32 v64, v27, v27, s71
    v_perm_b32 v65, v26, v26, s72
    v_alignbit_b32 v66, v26, v26, 16
    v_perm_b32 v67, v26, v26, s71
    v_bfi_b32 v68, s70, v27, v26
    v_mov_b32 v69, v65
    v_mov_b32 v70, v67
    v_mov_b32 v71, v67
    ds_write_b128 v14, v[64:67] offset:{K1OFF+128+1024}
    ds_write_b128 v14, v[68:71] offset:{128+1024}""")
    for k, src in enumerate((28, 29)):
        b = 72 + 8*k; s1 = 60 + k
        a(f"""v_perm_b32 v{b}, v{s1}, v{s1}, s71
        v_perm_b32 v{b+1}, v{s1}, v{src}, v30
        v_perm_b32 v{b+2}, v{src}, v{src}, s71
        v_perm_b32 v{b+5}, v{s1}, v{src}, v31
        v_mov_b32 v{b+3}, v{b+2}
        v_mov_b32 v{b+4}, v{b}
        v_mov_b32 v{b+6}, v{b+2}
        v_mov_b32 v{b+7}, v{b+2}
        ds_write_b128 v14, {v(b,4)} offset:{K1OFF+128+2048+1024*k}
        ds_write_b128 v14, {v(b+4,4)} offset:{128+2048+1024*k}""")
    a.vm.clear(); a.lg.clear()

def aux(a):
    sI = "s54"
    sX8, sJ = "s55", "s56"
    a("Laux:")
    X = 16
    TB = 56
    TB2 = 212
    TM = 96
    CS = 116
    TP = 244
    def blk_addr(sidx, sld, sst):
        a(f"""s_mul_i32 s70, {sidx}, 6554
        s_lshr_b32 s70, s70, 16
        s_mul_i32 s71, s70, 10
        s_sub_u32 s71, {sidx}, s71
        s_lshr_b32 s72, {sX8}, 1
        s_lshl_b32 s72, s72, 3
        s_add_u32 s70, s70, s72
        s_mul_i32 {sld}, s70, {64*1280}
        s_lshl_b32 s72, s71, 7
        s_add_u32 {sld}, {sld}, s72
        s_lshl_b32 {sst}, s71, 18
        s_lshl_b32 s72, s70, 7
        s_add_u32 {sst}, {sst}, s72
        s_add_u32 {sst}, {sst}, {XNT}""")
    def blk_load(base, sld):
        for r in range(8):
            a(f"buffer_load_dwordx4 {v(base+4*r,4)}, v{(2,3,6)[r//3]}, {SX}, {sld} offen offset:{(r%3)*1280}")
    def blk_store(base, sst):
        for c in range(8):
            o = TP + 4*(c % 2)
            for k in range(4):
                a(f"v_perm_b32 v{o+k}, v{base+4*(2*k+1)+c//2}, v{base+4*(2*k)+c//2}, {'s75' if c % 2 else 's74'}")
            a(f"buffer_store_dwordx4 {v(o,4)}, v7, {SWS}, {sst} offen sc1")
            if c < 7: a(f"s_add_u32 {sst}, {sst}, 4096")
    a(f"""s_and_b32 {sX8}, {sI}, 7
    s_lshr_b32 {sJ}, {sI}, 3
    s_setprio {os.environ.get('PA','3')}
    s_lshr_b32 s81, 0xdb6, {sJ}
    s_and_b32 s81, s81, 1
    v_lshrrev_b32 v4, 3, v0
    v_and_b32 v5, 7, v0""")
    a(f"""s_cmp_eq_u32 s81, 0
    s_cbranch_scc1 Laux_nocs
    s_lshr_b32 s77, {sX8}, 1
    s_and_b32 s78, {sX8}, 1
    s_mul_i32 s78, s78, 12
    s_add_u32 s78, s78, {sJ}
    v_mul_u32_u24 v8, 0xc00, v4
    v_lshl_add_u32 v8, v5, 4, v8
    s_mul_i32 s72, s77, {160*3072}
    s_lshl_b32 s73, s78, 7
    s_add_u32 s72, s72, s73""")
    for n in range(20):
        a(f"buffer_load_dwordx4 {v(CS+4*n,4)}, v8, {SW1}, s72 offen")
        if n < 19: a(f"s_add_u32 s72, s72, 24576")
    a(f"""Laux_nocs:
    s_lshl_b32 s68, {sX8}, 8
    s_lshl_b32 s70, {sJ}, 3
    s_add_u32 s68, s68, s70
    s_mul_i32 s70, s68, 1280
    v_mul_u32_u24 v1, 0x500, v4
    v_lshl_add_u32 v1, v5, 4, v1""")
    for n in range(10):
        a(f"buffer_load_dwordx4 {v(X+4*n,4)}, v1, {SX}, s70 offen offset:{128*n}")
    a(f"""s_and_b32 s69, {sX8}, 1
    s_mul_i32 s69, s69, 40
    s_add_u32 s69, s69, {sJ}
    v_mul_u32_u24 v2, {8*1280}, v5
    v_lshl_add_u32 v2, v4, 4, v2
    v_add_u32 v3, {3*1280}, v2
    v_add_u32 v6, {6*1280}, v2
    v_lshlrev_b32 v7, 15, v4
    v_lshl_add_u32 v7, v5, 4, v7""")
    blk_addr("s69", "s73", "s79")
    blk_load(TB, "s73")
    a(f"""s_cmp_lt_u32 {sJ}, 24
    s_cbranch_scc1 Laux_b1
    s_add_u32 s69, s69, 8""")
    blk_addr("s69", "s73", "s80")
    blk_load(TB2, "s73")
    a("Laux_b1:")
    if TOUCH:
        a(f"""s_getpc_b64 s[62:63]
        Lpc:
        s_sub_u32 s62, s62, Lpc-{KN}
        s_subb_u32 s63, s63, 0
        v_min_u32 v8, 9, v0
        s_mul_i32 s70, {sJ}, 10
        v_add_u32 v8, s70, v8
        v_lshlrev_b32 v8, 7, v8
        v_min_u32 v8, Lend-{KN}, v8
        s_mov_b64 exec, 0x3ff
        global_load_dword v252, v8, s[62:63]
        s_mov_b64 exec, -1""")
    make_tag(a)
    a(f"""s_mov_b32 s74, 0x05040100
    s_mov_b32 s75, 0x07060302
    s_mov_b32 s70, 0x3f803f80
    v_and_b32 v8, 15, v0
    v_lshrrev_b32 v9, 1, v8
    v_and_b32 v10, 1, v8
    v_lshlrev_b32 v10, 4, v10
    v_mov_b32 v11, 0x3f80
    v_lshlrev_b32 v11, v10, v11""")
    for k in range(4):
        a(f"v_cmp_eq_u32 vcc, {k}, v9\nv_cndmask_b32 v{88+k}, 0, v11, vcc")
    a(f"""s_lshl_b32 s76, {sI}, 7
    s_cmp_eq_u32 s81, 0
    s_cbranch_scc1 Laux_nocs1
    s_waitcnt vmcnt({18+TOUCH})""")
    for n in range(20):
        a(f"v_mfma_f32_16x16x32_bf16 v[112:115], v[88:91], {v(CS+4*n,4)}, {'0' if n == 0 else 'v[112:115]'}")
    for k in range(4):
        a(f"v_add_f32_dpp v{112+k}, v{112+k}, v{112+k} row_ror:8 row_mask:0xf bank_mask:0xf")
    a(f"""v_lshrrev_b32 v9, 4, v0
    v_lshlrev_b32 v8, 5, v5
    v_lshl_add_u32 v8, v9, 4, v8
    s_lshl_b32 s72, s78, 8
    s_mul_i32 s73, s77, 6144
    s_add_u32 s72, s72, s73
    s_add_u32 s72, s72, {CSUM}
    s_mov_b64 exec, 0x00ff00ff
    buffer_store_dwordx4 v[112:115], v8, {SWS}, s72 offen sc1
    s_mov_b64 exec, -1
    s_waitcnt vmcnt({9+TOUCH})
    s_branch Laux_w
    Laux_nocs1:
    s_waitcnt vmcnt({16+TOUCH})
    s_cmp_ge_u32 {sJ}, 24
    s_cbranch_scc1 Laux_w
    s_waitcnt vmcnt({8+TOUCH})
    Laux_w:""")
    stamp_reset(1); stamp(a, 'aux loads')
    for k in range(4): a(f"v_dot2_f32_bf16 v{8+k}, v{X+k}, s70, 0")
    for k in range(4): a(f"v_dot2_f32_bf16 v{12+k}, v{X+k}, v{X+k}, 0")
    for n in range(1, 10):
        for k in range(4): a(f"v_dot2_f32_bf16 v{8+k}, v{X+4*n+k}, s70, v{8+k}")
        for k in range(4): a(f"v_dot2_f32_bf16 v{12+k}, v{X+4*n+k}, v{X+4*n+k}, v{12+k}")
    INV640 = 0x3ACCCCCD
    def red8(rs):
        for t in ("v_add_f32 v{r}, v{r}, v{r1}", "v_add_f32 v{r2}, v{r2}, v{r3}", "v_add_f32 v{r}, v{r}, v{r2}",
                  "v_add_f32_dpp v{r}, v{r}, v{r} quad_perm:[1,0,3,2] row_mask:0xf bank_mask:0xf",
                  "v_add_f32_dpp v{r}, v{r}, v{r} quad_perm:[2,3,0,1] row_mask:0xf bank_mask:0xf",
                  "v_add_f32_dpp v{r}, v{r}, v{r} row_half_mirror row_mask:0xf bank_mask:0xf",
                  "v_mul_f32 v{r}, %d, v{r}" % INV640):
            for r in rs: a(t.format(r=r, r1=r+1, r2=r+2, r3=r+3))
    red8([8, 12])
    a("""v_mul_f32 v9, v8, v8
    v_sub_f32 v12, v12, v9
    v_mul_f32 v10, 0x41800000, v12
    v_sub_f32 v8, 0, v8
    v_cmp_nle_f32 vcc, v9, v10
    s_cbranch_vccz Laux_var
    v_mov_b32 v9, v8""")
    for n in range(10):
        t = TM + 8*(n % 2)
        for k in range(4):
            a(f"v_lshlrev_b32 v{t+2*k}, 16, v{X+4*n+k}\nv_and_b32 v{t+2*k+1}, 0xffff0000, v{X+4*n+k}")
        for k in range(4): a(f"v_pk_add_f32 {v(t+2*k,2)}, {v(t+2*k,2)}, v[8:9]")
        for k in range(4):
            if n == 0 and k < 2: a(f"v_pk_mul_f32 {v(12+2*k,2)}, {v(t+2*k,2)}, {v(t+2*k,2)}")
            else: a(f"v_pk_fma_f32 {v(12+2*(k%2),2)}, {v(t+2*k,2)}, {v(t+2*k,2)}, {v(12+2*(k%2),2)}")
    red8([12])
    a(f"""Laux_var:
    v_cvt_pk_bf16_f32 v9, v12, v12
    v_and_b32 v9, 0xffff0000, v9
    v_add_f32 v9, 0x3727C5AC, v9
    v_cvt_pk_bf16_f32 v9, v9, v9
    v_and_b32 v9, 0xffff0000, v9
    v_sqrt_f32 v9, v9
    v_cvt_pk_bf16_f32 v9, v8, v9
    v_lshlrev_b32 v12, 2, v4
    s_lshl_b32 s70, s68, 2
    s_add_u32 s70, s70, {STATS}
    s_mov_b32 exec_lo, 0x01010101
    s_mov_b32 exec_hi, 0x01010101
    buffer_store_dword v9, v12, {SWS}, s70 offen sc1
    s_mov_b64 exec, -1
    s_waitcnt vmcnt(1)
    s_cmp_eq_u32 s81, 0
    s_cbranch_scc1 Laux_w2
    s_waitcnt vmcnt(2)
    Laux_w2:""".replace("s_waitcnt vmcnt(1)\n    s_cmp_eq_u32 s81, 0\n    s_cbranch_scc1 Laux_w2\n    s_waitcnt vmcnt(2)\n    Laux_w2:", "s_waitcnt vmcnt(1)"))
    TQ = 116
    for c in range(8):
        for k in range(4):
            a(f"v_perm_b32 v{TQ+4*c+k}, v{TB+4*(2*k+1)+c//2}, v{TB+4*(2*k)+c//2}, {'s75' if c % 2 else 's74'}")
    a(f"""s_add_u32 s70, s76, {FL_S}
    s_waitcnt vmcnt(0)""")
    flag_store(a, "s70", 8, 9)
    for c in range(8):
        a(f"buffer_store_dwordx4 {v(TQ+4*c,4)}, v7, {SWS}, s79 offen sc1")
        if c < 7: a(f"s_add_u32 s79, s79, 4096")
    a(f"""s_cmp_lt_u32 {sJ}, 24
    s_cbranch_scc1 Laux_b2""")
    blk_store(TB2, "s80")
    a(f"""Laux_b2:
    s_add_u32 s70, s76, {FL_C}
    s_waitcnt vmcnt(0)""")
    flag_store(a, "s70", 8, 9)
    stamp(a, 'stats flag')
    a(f"""s_cmp_lg_u32 {sJ}, 31
    s_cbranch_scc1 Laux_go""")
    poll256(a, FL_C, 128, r=20, slp=1)
    a(f"""s_lshl_b32 s70, {sX8}, 7
    s_add_u32 s70, s70, {GO}""")
    flag_store(a, "s70", 8, 9)
    a(f"Laux_go:\ns_setprio {os.environ.get('PS','1')}")
    go_wait(a, 20)
    u_issue(a)

def conv(a):
    sI = "s54"
    a("Lconv:")
    stamp_reset(4); stamp(a, 'Lconv', True)
    a(f"""v_and_b32 v10, 15, v0
    v_lshrrev_b32 v11, 4, v0
    v_and_b32 v12, 1, v0
    v_lshrrev_b32 v13, 1, v10
    v_mul_u32_u24 v14, {K1OFF}, v12
    v_sub_u32 v15, v13, v11
    v_lshl_add_u32 v14, v15, 4, v14
    v_add_u32 v14, {KB0+64}, v14
    v_and_b32 v12, 3, v0
    v_mul_u32_u24 v15, {UCS}, v12
    v_lshrrev_b32 v13, 2, v10
    v_lshl_add_u32 v15, v13, 7, v15
    v_lshl_add_u32 v15, v11, 4, v15
    v_add_u32 v15, {UPAD+48}, v15
    v_lshlrev_b32 v19, 7, v13
    v_lshl_add_u32 v19, v11, 5, v19
    v_lshl_add_u32 v19, v12, 2, v19
    v_mov_b32 v4, 0
    v_mov_b32 v5, 0
    v_lshlrev_b32 v6, 3, v0
    s_mul_i32 s70, {sW}, {UCS}
    v_add_u32 v6, s70, v6
    s_waitcnt lgkmcnt(0)
    s_barrier""")
    a("s_mov_b32 exec_hi, 0x00ffffff")
    for c in range(3): a(f"ds_write_b64 v6, v[4:5] offset:{c*USTR}")
    a("s_mov_b32 exec_hi, -1")
    NM, RS, UD = 44, 52, 226
    def unp(d, s): return f"v_lshlrev_b32 v{d}, 16, v{s}\nv_and_b32 v{d+1}, 0xffff0000, v{s}"
    a("s_waitcnt vmcnt(0)")
    for k in range(8): a(f"v_and_b32 v{RS+k}, 0xffff0000, v{UIN+k}")
    for k in range(8): a(f"v_rcp_f32 v{RS+k}, v{RS+k}\nv_lshlrev_b32 v{NM+k}, 16, v{UIN+k}")
    a("s_waitcnt lgkmcnt(0)\ns_barrier")
    for c in range(3):
        x = UIN + 8 + 4*c; t = 60; ud = UD + 8*c; o = c*USTR + UPAD
        for k in range(4): a(unp(t+2*k, x+k))
        for k in range(4): a(f"v_pk_add_f32 {v(t+2*k,2)}, {v(t+2*k,2)}, {v(NM+2*k,2)}")
        for k in range(4): a(f"v_cvt_pk_bf16_f32 v{x+k}, v{t+2*k}, v{t+2*k+1}")
        for k in range(4): a(unp(t+2*k, x+k))
        for k in range(4): a(f"v_pk_mul_f32 {v(t+2*k,2)}, {v(t+2*k,2)}, {v(RS+2*k,2)}")
        for k in range(4): a(f"v_cvt_pk_bf16_f32 v{x+k}, v{t+2*k}, v{t+2*k+1}")
        a(f"""v_cvt_pk_bf16_f32 v{68+2*c}, v{t+2}, v{t+3}
        v_cvt_pk_bf16_f32 v{69+2*c}, v{t+4}, v{t+5}
        ds_write_b128 v224, {v(x,4)} offset:{o+3*UCS-16}
        ds_write_b64 v224, {v(x,2)} offset:{o+UCS-8}
        ds_write_b64 v224, {v(x+2,2)} offset:{o+UCS}
        ds_write_b32 v224, v{x} offset:{o-4}
        ds_write_b64 v224, {v(68+2*c,2)} offset:{o}
        ds_write_b32 v224, v{x+3} offset:{o+8}
        ds_write_b32 v224, v{x} offset:{o+2*UCS-12}
        ds_write_b64 v224, {v(68+2*c,2)} offset:{o+2*UCS-8}
        ds_write_b32 v224, v{x+3} offset:{o+2*UCS}""")
    for c in range(3):
        x = UIN + 8 + 4*c; t = 60; ud = UD + 8*c
        for k in range(4): a(unp(t+2*k, x+k))
        sd = f"s{34+c+(c>1)*6}"
        a(f"s_bitcmp1_b32 {('s58','s59','s61')[c]}, 0\ns_cselect_b32 s70, 0, 16\ns_lshl_b32 {sd}, {sd}, s70\ns_and_b32 {sd}, {sd}, 0xffff0000")
        for k in range(8): a(f"v_mul_f32 v{t+k}, {sd}, v{t+k}")
        for k in range(4): a(f"v_cvt_pk_bf16_f32 v{76+k}, v{t+2*k}, v{t+2*k+1}")
        for k in range(4): a(unp(ud+2*k, 76+k))
    a("""s_waitcnt lgkmcnt(0)
    s_barrier""")
    stamp(a, 'u ready', True)
    YA = 20
    FS = [44, 132]
    def loop(name, parts):
        ad = [(16, 17), (8, 9)]
        tiles = [(pi, j) for pi, (c, J) in enumerate(parts) for j in J]
        acc = {t: YA + 4*k for k, t in enumerate(tiles)}
        base = []; n = 0
        for c, J in parts:
            base.append(n); n += 2*(max(J)+1)
        def reads(fs):
            out = []
            for pi, (c, J) in enumerate(parts):
                for k in range(max(J)+1):
                    out.append(f"ds_read_b128 {v(FS[fs]+4*(base[pi]+2*k),4)}, v{ad[pi][0]} offset:{512*k}")
                    out.append(f"ds_read_b128 {v(FS[fs]+4*(base[pi]+2*k+1),4)}, v{ad[pi][1]} offset:{512*k}")
                out.append(f"v_add_u32 v{ad[pi][0]}, 64, v{ad[pi][0]}")
                out.append(f"v_add_u32 v{ad[pi][1]}, -64, v{ad[pi][1]}")
            return out
        def mfmas(fs):
            rem = {t: list(range(t[1]+1)) for t in tiles}
            todo = []; last = []
            while any(rem.values()):
                cand = [t for t in tiles if rem[t] and t not in last[-GAP:]] or [t for t in tiles if rem[t] and t not in last[-1:]] or [t for t in tiles if rem[t]]
                t = max(cand, key=lambda t: len(rem[t]))
                todo.append((t, rem[t].pop(0))); last.append(t)
            return [f"v_mfma_f32_16x16x32_bf16 {v(acc[t],4)}, {v(FS[fs]+4*(base[t[0]]+2*p),4)}, {v(FS[fs]+4*(base[t[0]]+2*(t[1]-p)+1),4)}, {v(acc[t],4)}" for t, p in todo]
        for pi, (c, J) in enumerate(parts):
            if isinstance(c, str):
                a(f"s_mul_i32 s70, {c}, {KSTR}\ns_mul_i32 s71, {c}, {USTR}\nv_add_u32 v{ad[pi][0]}, s70, v14\nv_add_u32 v{ad[pi][1]}, s71, v15")
            else:
                a(f"v_add_u32 v{ad[pi][0]}, {c*KSTR}, v14\nv_add_u32 v{ad[pi][1]}, {c*USTR}, v15")
        for t in reads(0): a(t)
        for r in range(4*len(tiles)): a(f"v_mov_b32 v{YA+r}, 0")
        a(f"s_mov_b32 s64, 4\n{name}:")
        for fs in (0, 1):
            a("s_waitcnt lgkmcnt(0)")
            fill = reads(1-fs); ms = mfmas(fs)
            n = len(ms) - 4; done = 0
            for i, m in enumerate(ms):
                a(m)
                want = min(len(fill), -(-len(fill)*(i+1)//n))
                while done < want: a(fill[done]); done += 1
        a(f"""s_sub_u32 s64, s64, 1
        s_cmp_lg_u32 s64, 0
        s_cbranch_scc1 {name}
        s_waitcnt lgkmcnt(0)
        s_barrier""")
        for pi, (c, J) in enumerate(parts):
            if isinstance(c, str): a(f"s_lshl_b32 s70, {c}, 12\nv_add_u32 v{ad[pi][0]}, s70, v19")
            for j in J:
                r = acc[(pi, j)]
                off = 512*j + (0 if isinstance(c, str) else 4096*c)
                adr = ad[pi][0] if isinstance(c, str) else 19
                a(f"""v_cvt_pk_bf16_f32 v{r}, v{r}, v{r+1}
                v_cvt_pk_bf16_f32 v{r+2}, v{r+2}, v{r+3}
                ds_write_b32 v{adr}, v{r} offset:{off}
                ds_write_b32 v{adr}, v{r+2} offset:{off+16}""")
    a(f"""s_lshr_b32 s62, {sW}, 1
    s_cmp_eq_u32 {sW}, 1
    s_cbranch_scc1 Lcv_w1
    s_cmp_eq_u32 {sW}, 3
    s_cbranch_scc1 Lcv_w3""")
    loop("Lcv_l0", [("s62", [7, 6, 5, 1])])
    a("s_branch Lcv_bar2\nLcv_w1:")
    loop("Lcv_l1", [(0, [4, 3, 2, 0]), (1, [4, 3])])
    a("s_branch Lcv_bar2\nLcv_w3:\ns_cmp_eq_u32 s57, 1\ns_cbranch_scc1 Lcv_w3b")
    loop("Lcv_l3a", [(1, [2, 0]), (2, [7, 5, 2, 0])])
    a("s_branch Lcv_bar2\nLcv_w3b:")
    loop("Lcv_l3b", [(1, [2, 0]), (2, [6, 4, 3, 1])])
    a(f"""Lcv_bar2:
    s_waitcnt lgkmcnt(0)
    s_barrier""")
    stamp(a, 'conv done', True)
    for c in range(3): a.ds(f"ds_read_b128 {v(32+4*c,4)}, v224 offset:{c*4096}", ('y', c))
    a(f"""s_lshr_b32 s70, {sW}, 1
    s_xor_b32 s70, s70, s57
    s_cmp_eq_u32 s70, 0
    s_cselect_b32 s66, -1, 0
    s_cselect_b32 s67, 0, -1""")
    for c, sch in enumerate(("s58", "s59", "s61")):
        a.wait(lg=[('y', c)])
        y = 32 + 4*c; t = 48 + 8*c; ud = UD + 8*c
        for k in range(4): a(unp(t+2*k, y+k))
        for k in range(4): a(f"v_pk_add_f32 {v(t+2*k,2)}, {v(t+2*k,2)}, {v(ud+2*k,2)}")
        for k in range(4): a(f"v_cvt_pk_bf16_f32 v{y+k}, v{t+2*k}, v{t+2*k+1}")
        a(f"""s_lshl_b32 s70, {sch}, 12
        s_add_u32 s70, s70, {AT}""")
        if c == 2: a("s_mov_b64 exec, s[66:67]")
        a(f"buffer_store_dwordx4 {v(y,4)}, v224, {SWS}, s70 offen sc1")
        if c == 2: a("s_mov_b64 exec, -1")
    a("s_waitcnt vmcnt(0)")
    stamp(a, 'y stored'); stamp_flush(a, 50)
    a(f"""s_barrier
    s_cmp_eq_u32 {sW}, 1
    s_cbranch_scc1 Lcv_ep
    s_cmp_lg_u32 {sW}, 0
    s_cbranch_scc1 Lend
    s_lshl_b32 s70, {sI}, 7
    s_add_u32 s70, s70, {FL_Y}""")
    flag_store(a, "s70", 4, 5)
    a(f"""s_endpgm
    Lcv_ep:
    s_cmp_lg_u32 {sI}, 0
    s_cbranch_scc1 Lend""")
    if EXP != "nogemm": poll256(a, FL_ACT, 384, slp=8)
    poll256(a, FL_Y, 128, slp=8)
    flag_store(a, "0", 4, 5)
    a("s_endpgm")

HEADER = open(os.path.join(os.path.dirname(os.path.abspath(__file__)), "..", "cdna_kernels",
              "parallel_sum__ssm_conv_s4__dense_activation_mish__prompt.s.ref")).read().split("; Override")[0]

def build():
    a = Asm()
    prologue(a)
    gemm(a)
    a.vm.clear(); a.lg.clear()
    ssm(a)
    a("Lend:\ns_endpgm")
    body = a.finalize()
    return f"""{HEADER}; @launch grid=(512,1,1) block=(256,1,1) lds=81920
.amdgcn_target "amdgcn-amd-amdhsa--gfx950"
.text
.globl {KN}
.p2align 8
.type {KN},@function
{KN}:
{body}.section .rodata,"a"
.p2align 6
.amdhsa_kernel {KN}
  .amdhsa_next_free_vgpr 256
  .amdhsa_next_free_sgpr 102
  .amdhsa_accum_offset 256
  .amdhsa_group_segment_fixed_size 0
  .amdhsa_kernarg_size 128
  .amdhsa_user_sgpr_count 2
  .amdhsa_user_sgpr_kernarg_segment_ptr 1
  .amdhsa_system_sgpr_workgroup_id_x 1
.end_amdhsa_kernel
"""

if __name__ == "__main__":
    out = sys.argv[1] if len(sys.argv) > 1 else "k.s"
    open(out, "w").write(build())
    print("wrote", out)
```

```python
import sys, os
sys.path.insert(0, os.path.dirname(os.path.abspath(__file__)))
from asmlib import Asm

KN = "parallel_sum__ssm_conv_s4__dense_activation_mish__prompt_kernel"

FL_S   = 0x0000 + 0x8000
FL_Y   = 0x10000
FL_ACT = 0x18000
STATS  = 0x30000
CSUM   = 0x34000
FL_C   = 0x70000
FL_AUX = 0x48000 + 0x20000
GO     = 0x1000
XNT    = 0x100000
AT     = 0x400000
W2P    = 0x700000
ACT    = 0xA00000
WS_SIZE= 0x1000000
LOG2E = 0x3FB8AA3B
SPIN_MAX = int(os.environ.get('SPIN_MAX', '20000'))
ACT_DELAY = int(os.environ.get('ACT_DELAY', '5'))
DIAG = int(os.environ.get("DIAG", "0"))
EXP = os.environ.get("EXP", "")
STAMP = 0x40000
DIRW2 = int(os.environ.get('DIRW2', '1'))
ROT = int(os.environ.get('ROT', '1'))
TOUCHW1 = int(os.environ.get('TOUCHW1', '0'))
TOUCHW2 = int(os.environ.get('TOUCHW2', '1'))
TLB = int(os.environ.get('TLB', '1'))
S1 = int(os.environ.get('S1', '4'))
C0 = int(os.environ.get('C0', '6'))
C1 = int(os.environ.get('C1', '2'))
C2 = int(os.environ.get('C2', '9'))
TOUCH = int(os.environ.get('TOUCH', '1'))
GAP = int(os.environ.get('GAP', '2'))

P = dict(x=16, Are=18, Aim=20, Bre=22, Bim=24, Cre=26, Cim=28, ldt=30, D=32, w1=36, b1=38, w2=40, out=42, dbg=44, ws=46)
def sp(n): return f"s[{P[n]}:{P[n]+1}]"
SX, SW1, SWS, S4 = "s[4:7]", "s[8:11]", "s[12:15]", "s[48:51]"
sW, sTAG = "s3", "s52"

_st = {"n": 0}
def stamp(a, name=None, wait=False):
    if not DIAG: return
    k = _st["n"]; _st["n"] += 1
    assert k < 10, k
    a(f"{'s_memtime' if os.environ.get('CYC') else 's_memrealtime'} s[{82+2*k}:{83+2*k}]")
    if wait: a("s_waitcnt lgkmcnt(0)")
def stamp_reset(n=0): _st["n"] = n
def stamp_flush(a, tmp):
    if not DIAG: return
    a("s_waitcnt lgkmcnt(0)")
    a(f"s_lshl_b32 s80, s2, 2\ns_add_u32 s80, s80, {sW}\ns_lshl_b32 s80, s80, 6\ns_add_u32 s80, s80, {STAMP}\nv_mov_b32 v{tmp+1}, 0\ns_mov_b64 exec, 1")
    for k in range(10):
        a(f"v_mov_b32 v{tmp}, s{82+2*k}\nbuffer_store_dword v{tmp}, v{tmp+1}, {SWS}, s80 offen offset:{4*k}\ns_nop 1")
    a("s_mov_b64 exec, -1")

def v(i, n=1): return f"v{i}" if n == 1 else f"v[{i}:{i+n-1}]"

def srd(a, base, ptr, size):
    a(f"""s_mov_b32 s{base}, s{P[ptr]}
    s_mov_b32 s{base+1}, s{P[ptr]+1}
    s_mov_b32 s{base+2}, {size}
    s_mov_b32 s{base+3}, 0x20000""")

def spin(a, load, cmp, scnt="s60", slp=4):
    L = a.label("Lspin"); Lok = a.label("Lok")
    a(cmp)
    a(f"s_cbranch_scc1 {Lok}")
    a(f"s_mov_b32 {scnt}, {SPIN_MAX}")
    a(f"{L}:")
    a(f"s_sleep {slp}")
    a(load)
    a("s_waitcnt vmcnt(0)")
    a(cmp)
    a(f"s_cbranch_scc1 {Lok}")
    a(f"s_sub_u32 {scnt}, {scnt}, 1")
    a(f"s_cmp_lg_u32 {scnt}, 0")
    a(f"s_cbranch_scc1 {L}")
    a(f"{Lok}:")

def cmpn(regs):
    dst = ["vcc", "s[62:63]", "s[64:65]", "s[66:67]"][:len(regs)]
    t = "\n".join(f"v_cmp_ne_u32 {d}, {sTAG}, v{r}" for d, r in reversed(list(zip(dst, regs))))
    for d in dst[1:]: t += f"\ns_or_b64 vcc, vcc, {d}"
    return t + "\ns_cmp_eq_u64 vcc, 0"

def poll256_issue(a, base, stride, r=4, s0=72):
    a(f"v_mul_u32_u24 v{r+4}, {stride}, v0")
    for n in range(4): a(f"s_mov_b32 s{s0+n}, {base + 64*stride*n}")
    ld = "\n".join(f"buffer_load_dword v{r+n}, v{r+4}, {SWS}, s{s0+n} offen sc1" for n in range(4))
    a(ld)
    return ld
def poll256(a, base, stride, slp=4, r=4):
    ld = poll256_issue(a, base, stride, r)
    a("s_waitcnt vmcnt(0)")
    spin(a, ld, cmpn([r, r+1, r+2, r+3]), slp=slp)

def go_issue(a, r, s="s75"):
    a(f"""v_mov_b32 v{r+1}, 0
    s_and_b32 {s}, s2, 7
    s_lshl_b32 {s}, {s}, 7
    s_add_u32 {s}, {s}, {GO}""")
    return f"buffer_load_dword v{r}, v{r+1}, {SWS}, {s} offen sc1"
def go_wait(a, r):
    ld = go_issue(a, r)
    a(ld); a("s_waitcnt vmcnt(0)")
    spin(a, ld, cmpn([r]), slp=3)

def flag_store(a, soff, t0, t1, track=None):
    a(f"""v_mov_b32 v{t0}, {sTAG}
    v_mov_b32 v{t1}, 0
    s_mov_b64 exec, 1""")
    txt = f"buffer_store_dword v{t0}, v{t1}, {SWS}, {soff} offen sc1"
    if track is not None: a.vmem(txt, track)
    else: a(txt)
    a("s_mov_b64 exec, -1")

def prologue(a):
    a(f"""s_cmp_ge_u32 s2, 512
    s_cbranch_scc1 Lend
    s_load_dwordx16 s[16:31], s[0:1], 0
    s_load_dwordx16 s[32:47], s[0:1], 64""")
    if DIAG:
        for k in range(82, 102): a(f"s_mov_b32 s{k}, 0")
    stamp(a, "start")
    a(f"""v_lshrrev_b32 v1, 6, v0
    v_and_b32 v0, 63, v0
    v_readfirstlane_b32 {sW}, v1
    s_waitcnt lgkmcnt(0)
    s_load_dword s53, {sp('ws')}, 0""")
    srd(a, 4, 'x', 2621440)
    srd(a, 8, 'w1', 1966080)
    srd(a, 12, 'ws', WS_SIZE)
    a("""s_cmp_lt_u32 s2, 256
    s_cbranch_scc1 Lssm""")

def make_tag(a):
    a(f"""s_waitcnt lgkmcnt(0)
    s_mul_i32 {sTAG}, s53, 0x9E3779B1
    s_add_u32 {sTAG}, {sTAG}, 0x7F4A7C15""")

def gemm(a):
    vX0, vX1, vW0, vW1 = 1, 2, 3, 4
    xr = [5, 6, 7, 8]
    wrl, wrh = 9, 10
    vAS = 11
    c1, c2, c3 = 12, 13, 14
    vT = 15
    EXT = 16
    T = [22, 23, 24, 25]
    OUT = 26
    EQ = 34
    A0, A1 = 38, 39
    SUMA = 22
    def accof(s): return ACC + 16*((s+1) % 2)
    WF = 40
    ACC = 64
    XF = 96
    sRB, sFP, sTH, sFH = "s54", "s55", "s56", "s57"
    sM, sSO, sAS, sT0 = "s58", "s59", "s61", "s68"
    if EXP == "nogemm": a("s_endpgm")
    a(f"""s_setprio {os.environ.get('PG0','2')}
    s_and_b32 s68, s2, 7
    s_lshr_b32 s69, s2, 3
    s_and_b32 s69, s69, 31
    s_lshr_b32 {sRB}, s68, 1
    s_lshl_b32 {sRB}, {sRB}, 3
    s_and_b32 s70, s69, 7
    s_add_u32 {sRB}, {sRB}, s70
    s_and_b32 {sFP}, s68, 1
    s_lshl_b32 {sFP}, {sFP}, 2
    s_lshr_b32 s70, s69, 3
    s_add_u32 {sFP}, {sFP}, s70
    s_lshl_b32 {sM}, {sW}, 11
    v_lshrrev_b32 v22, 3, v0
    s_lshl_b32 s70, {sW}, 4
    v_add_u32 v22, s70, v22
    v_lshrrev_b32 v23, 4, v0
    v_and_b32 v24, 7, v0
    v_xor_b32 v25, v24, v23
    s_lshl_b32 s71, {sRB}, 6
    v_add_u32 v26, s71, v22
    v_mul_u32_u24 v26, 0x500, v26
    v_lshl_add_u32 v{vX0}, v25, 4, v26
    v_xor_b32 v25, 4, v25
    v_lshl_add_u32 v{vX1}, v25, 4, v26
    v_add_u32 v{vX1}, {8*1280-1024}, v{vX1}
    v_and_b32 v23, 1, v23
    v_lshlrev_b32 v23, 2, v23
    v_xor_b32 v25, v24, v23
    v_mul_u32_u24 v26, 0xc00, v22
    v_lshl_add_u32 v{vW0}, v25, 4, v26
    s_mul_i32 s70, {sFP}, 384
    v_add_u32 v{vW0}, s70, v{vW0}
    v_add_u32 v{vW1}, {8*3072-1024}, v{vW0}""")

    a(f"""s_and_b32 s70, {sRB}, 7
    s_and_b32 s71, {sFP}, 3
    s_mul_i32 s71, s71, {3*ROT}
    s_mul_i32 s70, s70, {ROT}
    s_add_u32 s70, s70, s71
    s_cmp_ge_u32 s70, 10
    s_cselect_b32 s71, 10, 0
    s_sub_u32 s70, s70, s71""")
    for kc in range(10):
        a(f"""s_lshl_b32 s{16+kc}, s70, 7
        s_mul_i32 s{26+kc}, s70, 196608""")
        if kc < 9: a("s_add_u32 s70, s70, 1\ns_cmp_eq_u32 s70, 10\ns_cselect_b32 s70, 0, s70")

    def chunk_info(c):
        if c < 20:
            return ('X', 0, c//2) if c % 2 == 0 else ('W', 0, c//2)
        return ('W', 1 + (c-20)//10, (c-20) % 10)
    def dma_half(c, h):
        kind, s, kc = chunk_info(c)
        slot = c % 10
        if h == 0:
            a(f"s_add_u32 m0, {sM}, {slot*8192}")
            if kind == 'W' and s > 0 and kc == 0: a(f"v_add_u32 v{vW0}, 128, v{vW0}\nv_add_u32 v{vW1}, 128, v{vW1}")
        r, sr, so = ((vX0, vX1)[h], SX, 16+kc) if kind == 'X' else ((vW0, vW1)[h], SW1, 26+kc)
        a.vmem(f"buffer_load_dwordx4 v{r}, {sr}, s{so} offen {'offset:1024 ' if h else ''}lds", ('c', c))
    for c in range(10): dma_half(c, 0); dma_half(c, 1)

    srd(a, 48, 'out', 2621440)
    a(f"""s_and_b32 {sTH}, {sW}, 1
    s_lshr_b32 {sFH}, {sW}, 1
    v_and_b32 v22, 31, v0
    v_lshrrev_b32 v23, 5, v0
    v_lshrrev_b32 v24, 1, v22
    v_and_b32 v24, 7, v24
    s_lshl_b32 s70, {sTH}, 12
    v_lshl_add_u32 v25, v22, 7, s70""")
    for j in range(4):
        a(f"""v_add_u32 v26, {2*j}, v23
        v_xor_b32 v26, v26, v24
        v_lshl_add_u32 v{xr[j]}, v26, 4, v25""")
    a(f"""v_lshrrev_b32 v26, 4, v22
    s_lshl_b32 s70, {sTH}, 1
    v_add_u32 v26, s70, v26
    v_mul_u32_u24 v26, 0xc000, v26
    v_lshl_add_u32 v26, v23, 8, v26
    v_and_b32 v27, 15, v0
    v_lshl_add_u32 v{vAS}, v27, 4, v26
    v_lshrrev_b32 v24, 2, v27
    v_and_b32 v25, 3, v0
    v_lshrrev_b32 v26, 4, v0
    v_and_b32 v26, 1, v26
    v_lshlrev_b32 v26, 1, v26
    v_lshrrev_b32 v28, 1, v25
    v_add_u32 v26, v26, v28
    s_lshl_b32 s70, {sFH}, 2
    v_add_u32 v26, s70, v26
    v_lshrrev_b32 v28, 1, v24
    v_lshlrev_b32 v28, 2, v28
    v_xor_b32 v26, v26, v28
    v_lshl_add_u32 v28, v23, 3, v24
    v_lshlrev_b32 v28, 7, v28
    v_lshl_add_u32 v28, v26, 4, v28
    v_and_b32 v25, 1, v25
    v_lshl_add_u32 v{wrl}, v25, 3, v28
    v_add_u32 v{wrh}, 0x10000, v{wrl}
    v_add_u32 v{vT}, -1, v23
    s_mul_i32 {sAS}, {sRB}, 192
    s_mul_i32 s70, {sFP}, 6
    s_add_u32 {sAS}, {sAS}, s70
    s_add_u32 {sAS}, {sAS}, {sFH}
    s_lshl_b32 {sAS}, {sAS}, 10
    s_add_u32 {sAS}, {sAS}, {ACT}
    s_mul_i32 s81, {sRB}, 3072
    s_lshl_b32 s71, {sFP}, 7
    s_add_u32 s81, s81, s71
    s_add_u32 s81, s81, {FL_ACT}""")
    a(f"""v_mov_b32 v{EXT}, 0
    v_mov_b32 v{EXT+1}, 0
    v_and_b32 v24, 7, v0
    v_lshrrev_b32 v25, 2, v24
    v_and_b32 v24, 3, v24
    s_and_b32 s70, {sFP}, 3
    s_mul_i32 s70, s70, 3
    s_add_u32 s70, s70, 1
    v_add_u32 v25, s70, v25
    v_lshlrev_b32 v25, 3, v25
    v_lshl_add_u32 v25, v24, 1, v25
    s_lshr_b32 s70, {sFP}, 2
    v_add_u32 v25, s70, v25
    v_lshlrev_b32 v{EQ}, 7, v25
    s_mul_i32 s70, {sFP}, 192
    s_lshl_b32 s71, {sFH}, 5
    s_add_u32 s70, s70, s71
    v_add_u32 v24, s70, v22
    v_lshlrev_b32 v{EQ+1}, 2, v24
    v_lshlrev_b32 v24, 1, v24
    v_mul_u32_u24 v25, 6144, v23
    v_add_u32 v{EQ+1}, v{EQ+1}, v25
    v_lshl_add_u32 v{EQ+2}, v23, 7, v24
    v_mov_b32 v{EXT+3}, 0
    s_mov_b32 s69, 0x3f803f80""")
    a.vmem(f"global_load_short_d16_hi v{EXT+3}, v24, {sp('b1')}", 'b10')
    for r in range(22, 34): a(f"v_mov_b32 v{r}, 0")
    make_tag(a)

    wf_next = [0]
    def wfrag_alloc():
        r = WF + 4*(wf_next[0] % 6); wf_next[0] += 1; return r
    def read_w(c, j):
        slot = c % 10
        r = wfrag_alloc()
        base, off = (wrl, slot*8192) if slot < 8 else (wrh, (slot-8)*8192)
        a.ds(f"ds_read_b64_tr_b16 {v(r,2)}, v{base} offset:{off + 128*16*j}", ('w', c, j))
        a.ds(f"ds_read_b64_tr_b16 {v(r+2,2)}, v{base} offset:{off + 128*(16*j+4)}", ('w', c, j))
        return r
    def mfma1(acc, wfr, xfr, first):
        a(f"v_mfma_f32_32x32x16_bf16 {v(acc,16)}, {v(wfr,4)}, {v(xfr,4)}, {'0' if first else v(acc,16)}")

    side = []
    def run_side(n):
        for _ in range(n):
            if side: side.pop(0)()

    def mish_items(s):
        acc = accof(s)
        items = []
        for qd in range(4):
            R = [acc + 4*qd + k for k in range(4)]
            def f1(R=R):
                for k in range(4): a(f"v_mul_f32 v{T[k]}, v{c1}, v{R[k]}")
                for k in range(4): a(f"v_exp_f32 v{T[k]}, v{T[k]}")
                for k in range(4): a(f"v_add_f32 v{T[k]}, 1.0, v{T[k]}")
                for k in range(4): a(f"v_fma_f32 v{T[k]}, v{T[k]}, v{T[k]}, 1.0")
            def f2(R=R, qd=qd):
                for k in range(4): a(f"v_rcp_f32 v{T[k]}, v{T[k]}")
                for k in range(4): a(f"v_fma_f32 v{T[k]}, v{T[k]}, v{c2}, v{c3}")
                for k in range(4): a(f"v_mul_f32 v{T[k]}, v{T[k]}, v{R[k]}")
                a(f"v_cvt_pk_bf16_f32 v{OUT+2*qd}, v{T[0]}, v{T[1]}\nv_cvt_pk_bf16_f32 v{OUT+2*qd+1}, v{T[2]}, v{T[3]}")
                if qd % 2 == 1:
                    gp = qd // 2
                    a(f"s_add_u32 {sT0}, {sAS}, {2048*s}")
                    a.vmem(f"buffer_store_dwordx4 {v(OUT+4*gp,4)}, v{vAS}, {SWS}, {sT0} offen offset:{512*gp} sc1", ('act', s))
            items += [f1, f2]
        return items

    SPLIT = ("v_and_b32 v{q1}, 0xffff0000, v{q}", "v_sub_f32 v{q}, v{q}, v{q1}", "v_and_b32 v{q2}, 0xffff0000, v{q}",
             "v_sub_f32 v{q}, v{q}, v{q2}", "v_lshrrev_b32 v{q1}, 16, v{q1}", "v_lshrrev_b32 v{q}, 16, v{q}",
             "v_or_b32 v{q1}, v{q1}, v{q2}", "v_or_b32 v{q}, v{q}, v{b}", "v_and_b32 v{d0}, v{m}, v{q1}", "v_and_b32 v{d1}, v{m}, v{q}")
    SUM4 = ("v_add_f32 v{q}, v{q}, v{q1}", "v_add_f32 v{q2}, v{q2}, v{q3}", "v_add_f32 v{q}, v{q}, v{q2}")
    def local_stats():
        a.wait(vm=['b10'])
        for tmpl in SUM4 + ("v_mov_b32 v{q1}, v{q}", "v_permlane32_swap_b32 v{q}, v{q1}", "v_add_f32 v{q}, v{q}, v{q1}"):
            for q in (22, 26, 30): a(tmpl.format(q=q, q1=q+1, q2=q+2, q3=q+3))
        INV640 = 0x3ACCCCCD
        L = a.label("Lvar")
        a(f"""v_mul_f32 v22, {INV640}, v22
        v_mul_f32 v26, {INV640}, v26
        v_mul_f32 v23, v22, v22
        v_sub_f32 v26, v26, v23
        v_mul_f32 v24, 0x41800000, v26
        v_sub_f32 v22, 0, v22
        v_cmp_nle_f32 vcc, v23, v24
        s_cbranch_vccz {L}
        v_mov_b32 v26, 0
        v_mov_b32 v27, 0""")
        for r in range(XF, XF+160):
            a(f"""v_lshlrev_b32 v24, 16, v{r}
            v_and_b32 v25, 0xffff0000, v{r}
            v_add_f32 v24, v24, v22
            v_add_f32 v25, v25, v22
            v_fmac_f32 v26, v24, v24
            v_fmac_f32 v27, v25, v25""")
        a(f"""v_add_f32 v26, v26, v27
        v_mov_b32 v27, v26
        v_permlane32_swap_b32 v26, v27
        v_add_f32 v26, v26, v27
        v_mul_f32 v26, {INV640}, v26
        {L}:
        v_cvt_pk_bf16_f32 v27, v26, v26
        v_cvt_pk_bf16_f32 v{EXT+4}, v22, v22
        v_and_b32 v27, 0xffff0000, v27
        v_add_f32 v27, 0x3727C5AC, v27
        v_cvt_pk_bf16_f32 v27, v27, v27
        v_and_b32 v27, 0xffff0000, v27
        v_sqrt_f32 v27, v27
        v_cvt_pk_bf16_f32 v{EXT+5}, v22, v27
        v_and_b32 v{c3}, 0xffff0000, v{EXT+5}
        v_rcp_f32 v{c3}, v{c3}""")
        for tmpl in SPLIT: a(tmpl.format(q=30, q1=31, q2=32, b=EXT+3, d0=EXT+2, d1=EXT+3, m=vT))
        a(f"""v_mul_f32 v{c1}, {LOG2E}, v{c3}
        v_mul_f32 v{c2}, -2.0, v{c3}""")
    def ext_items():
        def l0():
            a(f"v_mov_b32 v26, 0\ns_mov_b32 s70, {CSUM}\ns_mov_b32 s71, {CSUM+12288}")
            for s in (1, 2):
                a.vmem(f"buffer_load_dword v{20+2*s}, v{EQ+1}, {SWS}, s70 offen offset:{256*s} sc1", 'ext')
                a.vmem(f"buffer_load_dword v{21+2*s}, v{EQ+1}, {SWS}, s71 offen offset:{256*s} sc1", 'ext')
            a.vmem(f"global_load_short_d16_hi v26, v{EQ+2}, {sp('b1')} offset:128", 'ext')
        return [l0]
    def ext_build():
        a.wait(vm=['ext'])
        a(f"v_and_b32 v27, v{vT}, v26\nv_xor_b32 v28, v27, v26")
        for tmpl in ("v_add_f32 v{q}, v{q}, v{q1}", "v_and_b32 v{q1}, 0xffff0000, v{q}", "v_sub_f32 v{q}, v{q}, v{q1}", "v_and_b32 v{d0}, 0xffff0000, v{q}",
                     "v_sub_f32 v{q}, v{q}, v{d0}", "v_lshrrev_b32 v{q1}, 16, v{q1}", "v_lshrrev_b32 v{q}, 16, v{q}",
                     "v_or_b32 v{d0}, v{q1}, v{d0}", "v_or_b32 v{d1}, v{q}, v{b}"):
            for s in (1, 2):
                q = 20 + 2*s
                a(tmpl.format(q=q, q1=q+1, b=26+s, d0=EQ+2*s-2, d1=EQ+2*s-1))
    def ext_mfma(s):
        acc = accof(s)
        if s: a(f"v_mov_b32 v{EXT+2}, v{EQ+2*s-2}\nv_mov_b32 v{EXT+3}, v{EQ+2*s-1}")
        a(f"v_mfma_f32_32x32x16_bf16 {v(acc,16)}, {v(EXT,4)}, {v(EXT+2,4)}, {v(acc,16)}")

    G2A = XF; NA = 12
    G2W = XF + 96
    G2ACC = WF
    G2X = XF + 136
    G2M = XF + 146
    vA0, vA1, vD2, w2l, w2h, vO = vX0, vX1, xr[0], xr[1], xr[2], xr[3]
    sA2, sW2, sM2 = "s72", "s73", "s74"
    def g2_setup_a():
        a(f"""v_lshlrev_b32 v{vA0}, 4, v0
        s_lshl_b32 s70, {sTH}, 1
        s_add_u32 s71, s70, {sFH}
        s_mul_i32 s71, s71, 49152
        s_xor_b32 s76, {sFH}, 1
        s_add_u32 s70, s70, s76
        s_mul_i32 s70, s70, 49152
        s_lshl_b32 s76, {sFH}, 10
        s_add_u32 s70, s70, s76
        s_add_u32 s71, s71, s76
        s_mul_i32 {sM2}, {sW}, 2560
        v_add_u32 v{vD2}, {sM2}, v{vA0}
        v_add_u32 v{vA1}, s70, v{vA0}
        v_add_u32 v{vA0}, s71, v{vA0}
        s_mul_i32 {sA2}, {sRB}, {192*1024}
        s_add_u32 {sA2}, {sA2}, {ACT}
        s_mul_i32 {sW2}, {sFP}, 245760
        s_add_u32 {sW2}, {sW2}, {W2P}""")
    def g2_setup_b():
        t0, t1 = A0, A1
        a(f"""v_lshrrev_b32 v{t0}, 5, v0
        v_lshlrev_b32 v{t0}, 4, v{t0}
        v_lshrrev_b32 v{t1}, 2, v0
        v_and_b32 v{t1}, 7, v{t1}
        v_add_u32 v{t0}, v{t0}, v{t1}
        s_lshl_b32 s70, {sFH}, 5
        v_add_u32 v{t0}, s70, v{t0}
        v_mul_u32_u24 v{t0}, 160, v{t0}
        v_and_b32 v{t1}, 3, v0
        v_lshl_add_u32 v{w2l}, v{t1}, 3, v{t0}
        v_add_u32 v{w2h}, 71680, v{w2l}
        s_lshl_b32 s70, {sTH}, 1
        s_add_u32 s70, s70, {sFH}
        s_lshl_b32 s70, s70, 4
        s_lshl_b32 s71, {sRB}, 6
        s_add_u32 s70, s70, s71
        v_and_b32 v{t0}, 15, v0
        v_add_u32 v{t0}, s70, v{t0}
        v_mul_u32_u24 v{t0}, 0x500, v{t0}
        v_lshrrev_b32 v{t1}, 4, v0
        v_lshl_add_u32 v{t0}, v{t1}, 3, v{t0}
        s_mul_i32 s70, {sFP}, 160
        v_add_u32 v{vO}, s70, v{t0}""")
    def g2_setup_c():
        a(f"""s_and_b32 s70, {sFP}, 3
        s_lshl_b32 s70, s70, 1
        s_add_u32 s70, s70, {sRB}
        s_mul_i32 s70, s70, {ROT}""")
        for p in range(8):
            a(f"""s_and_b32 s70, s70, 7
            s_mul_i32 s71, s70, 6144
            s_add_u32 s{16+p}, s71, {sA2}
            s_mul_i32 s71, s70, {192*1280 if DIRW2 else 30720}
            s_add_u32 s{26+p}, s71, {'0' if DIRW2 else sW2}
            s_add_u32 s70, s70, 1""")
    def g2_setup_d():
        a(f"""s_mov_b32 s8, s{P['w2']}
        s_mov_b32 s9, s{P['w2']+1}
        s_mul_i32 s70, {sW}, 160
        s_mul_i32 s71, {sFP}, 160""")
        for h, r in enumerate((vD2, vW0, vW1)):
            a(f"""v_add_u32 v{A0}, s70, v0
            v_add_u32 v{A0}, {64*h}, v{A0}
            v_mul_u32_u24 v{A1}, 6554, v{A0}
            v_lshrrev_b32 v{A1}, 16, v{A1}
            v_mul_u32_u24 v{r}, 10, v{A1}
            v_sub_u32 v{A0}, v{A0}, v{r}
            v_mul_u32_u24 v{A1}, 0x500, v{A1}
            v_lshl_add_u32 v{r}, v{A0}, 4, v{A1}
            v_add_u32 v{r}, s71, v{r}""")
            if h: a(f"v_add_u32 v{r}, {-1024*h}, v{r}")
    def st_sp(sg): return sg // 8, sg % 8
    def dma_w2_piece(sg, h):
        s2, p = st_sp(sg)
        if h == 0:
            a(f"s_add_u32 m0, {sM2}, {(sg % 8)*10240}")
            if s2 > 0 and p == 0:
                if DIRW2:
                    for r in (vD2, vW0, vW1): a(f"v_add_u32 v{r}, {64*1280}, v{r}")
                else: a(f"v_add_u32 v{vD2}, 10240, v{vD2}")
        if h == 2: a("s_mov_b64 exec, 0xffffffff")
        if DIRW2: a.vmem(f"buffer_load_dwordx4 v{(vD2, vW0, vW1)[h]}, {SW1}, s{26+p} offen offset:{1024*h} lds", ('d2', sg))
        else: a.vmem(f"buffer_load_dwordx4 v{vD2}, {SWS}, s{26+p} offen offset:{1024*h} sc1 lds", ('d2', sg))
        if h == 2: a("s_mov_b64 exec, -1")
    def load_act(sg):
        s2, p = st_sp(sg)
        r = G2A + 8*(sg % NA)
        if s2 > 0 and p == 0: a(f"v_add_u32 v{vA0}, 2048, v{vA0}\nv_add_u32 v{vA1}, 2048, v{vA1}")
        a.vmem(f"buffer_load_dwordx4 {v(r,4)}, v{vA0}, {SWS}, s{16+p} offen {os.environ.get('ASC','sc1')}", ('a2', sg))
        a.vmem(f"buffer_load_dwordx4 {v(r+4,4)}, v{vA1}, {SWS}, s{16+p} offen {os.environ.get('ASC','sc1')}", ('a2', sg))
    def pregs(s2): return [(XF, XF+1), (XF+94, XF+95), (G2M+4, G2M+5)][s2]
    def pa_ld(s2):
        pv, pa = pregs(s2)
        return f"buffer_load_dword v{pv}, v{pa}, {SWS}, s{78+s2} offen sc1"
    def poll_act_issue(s2):
        pv, pa = pregs(s2)
        a(f"""v_and_b32 v{pa}, 7, v0
        v_lshlrev_b32 v{pa}, 7, v{pa}
        s_mul_i32 s{78+s2}, {sRB}, 3072
        s_add_u32 s{78+s2}, s{78+s2}, {FL_ACT + 1024*s2}""")
        w0_issue(pa_ld(s2), ('pa', s2))
    def poll_act_check(s2):
        w0_check(pa_ld(s2), [pregs(s2)[0]], ('pa', s2))
    def w0_issue(ld, tag):
        L = a.label("Lw0")
        a(f"s_cmp_lg_u32 {sW}, 0\ns_cbranch_scc1 {L}")
        a(ld)
        a(f"{L}:")
        a.vm.append(('VIRT', tag))
    def w0_check(ld, regs, tag):
        L = a.label("Lw0")
        a(f"s_cmp_lg_u32 {sW}, 0\ns_cbranch_scc1 {L}")
        q = list(a.vm); d = dict(a.done)
        a.wait(vm=[('VIRT', tag)])
        a.vm[:] = [t for t in q if t != ('VIRT', tag)]; a.done.clear(); a.done.update(d)
        spin(a, ld, cmpn(regs))
        a(f"{L}:")
    flagged = set(); act_age = {}
    def pre_barrier(tags, lg="all"):
        tags = list(tags)
        for ss in range(3):
            if ss in flagged: continue
            if a.vm.count(('act', ss)) + a.done.get(('act', ss), 0) == 2:
                act_age[ss] = act_age.get(ss, 0) + 1
                if act_age[ss] >= ACT_DELAY: tags.append(('act', ss))
        a.wait(vm=tags, lg=lg)
        a("s_barrier")
        for ss in range(3):
            if ss not in flagged and a.done.get(('act', ss), 0) == 2:
                a(f"s_add_u32 s70, s81, {1024*ss}")
                flag_store(a, "s70", A0, A1, ('fl', ss)); flagged.add(ss)

    steps = [(s, kc) for s in range(3) for kc in range(10)]
    next_dma = 10; w2_issued = 0; act_issued = 0
    pend = []
    for si, (s, kc) in enumerate(steps):
        cw = 2*kc + 1 if s == 0 else 10 + 10*s + kc
        pre_barrier([('c', cw)], lg=())
        if (DIAG == 1 and (s, kc) in ((0, 0), (1, 0), (1, 4), (2, 0))) or (DIAG == 2 and s == 1 and kc < 9) or (DIAG == 3 and s == 2 and kc != 0) or (DIAG == 5 and s == 0 and kc < 9): stamp(a, f'g1 {s},{kc}', True)
        dq = []
        if si >= 2:
            nrel = 2 if (s == 0 or (s == 1 and kc <= 1)) else 1
            for _ in range(nrel):
                if next_dma < 40:
                    dq += [(dma_half, next_dma, 0), (dma_half, next_dma, 1)]; next_dma += 1
        if s == 2 and kc >= 4:
            while w2_issued < 8 and -(-10240*(w2_issued+1)//8192) <= kc - 1:
                dq += [(dma_w2_piece, w2_issued, h) for h in range(3)]; w2_issued += 1
        def dma_some(n):
            for _ in range(n):
                if dq:
                    f, x1, x2 = dq.pop(0); f(x1, x2)
        prev = pend; pend = []
        acc = accof(s)
        xf = XF + 16*kc
        hi = (s == 0 and (2*kc) % 10 == 8)
        if hi:
            for j in range(4): a(f"v_add_u32 v{xr[j]}, 0x10000, v{xr[j]}")
        def rd(j):
            r = read_w(cw, j)
            if s == 0:
                slot = (2*kc) % 10
                off = slot*8192 if slot < 8 else (slot-8)*8192
                a.ds(f"ds_read_b128 {v(xf+4*j,4)}, v{xr[j]} offset:{off}", ('w', cw, j))
            pend.append((acc, r, xf + 4*j, kc == 0 and j == 0, ('w', cw, j)))
        def mf():
            if prev:
                m = prev.pop(0); a.wait(lg=[m[4]]); mfma1(*m[:4])
        per = -(-len(dq)//4)
        rd(0); rd(1)
        mf(); dma_some(per)
        mf(); rd(2); rd(3); dma_some(per)
        if hi:
            for j in range(4): a(f"v_add_u32 v{xr[j]}, 0xffff0000, v{xr[j]}")
        run_side(1)
        mf(); dma_some(per)
        run_side(2)
        mf(); dma_some(per)
        lds_ = f"buffer_load_dword v{A0}, v{EQ}, {SWS}, s75 offen sc1"
        ldw2 = "\n".join(f"s_mov_b32 s76, {FL_AUX + 8192*n}\nbuffer_load_dword v{XF+3+n}, v{XF+2}, {SWS}, s76 offen sc1" for n in range(4))
        if (s, kc) == (1, 7): g2_setup_a()
        if (s, kc) == (1, 8): g2_setup_b()
        if (s, kc) == (int(os.environ.get('PGS', '1')), 0): a(f"s_setprio {os.environ.get('PG','2')}")
        if s == 0:
            a.wait(lg="all")
            for m in pend:
                for k in range(4): a(f"v_dot2_f32_bf16 v{22+k}, v{m[2]+k}, s69, v{22+k}")
                for k in range(4): a(f"v_dot2_f32_bf16 v{26+k}, v{m[2]+k}, v{m[2]+k}, v{26+k}")
                for k in range(4): a(f"v_dot2_f32_bf16 v{30+k}, v{m[1]+k}, s69, v{30+k}")
        if (s, kc) == (0, 9): local_stats()
        if (s, kc) == (1, 0):
            ext_mfma(0); side.extend(mish_items(0))
        if (s, kc) == (1, 3):
            a(f"s_mov_b32 s75, {FL_S}")
            w0_issue(lds_, 'ps')
        if (s, kc) == (1, 5): w0_check(lds_, [A0], 'ps')
        if (s, kc) == (1, 6): run_side(100); side.extend(ext_items())
        if (s, kc) == (1, 9): ext_build()
        if (s, kc) == (2, 0):
            run_side(100); ext_mfma(1); side.extend(mish_items(1))
        if (s, kc) == (2, 1) and not DIRW2:
            a(f"v_lshlrev_b32 v{XF+2}, 7, v0")
            w0_issue(ldw2, 'pw')
        if (s, kc) == (2, 2):
            g2_setup_c()
            if DIRW2: g2_setup_d()
        if (s, kc) == (2, 3) and not DIRW2: w0_check(ldw2, [XF+3, XF+4, XF+5, XF+6], 'pw')
        if (s, kc) == (2, C0-2): poll_act_issue(0)
        if (s, kc) == (2, C0): poll_act_check(0)
        if s == 2 and kc > C0:
            n = min(8, 3*(kc-C0))
            while act_issued < n: load_act(act_issued); act_issued += 1

    a2pend = []
    XA = G2M + 8 - 10 + 10
    for sg in range(24):
        if DIAG == 6 and sg in (3, 4, 5): stamp(a, 'prewait')
        if DIAG == 6 and sg in (3, 4, 5):
            q = list(a.vm); d = dict(a.done)
            a.wait(vm=[('d2', sg), ('a2', sg)]); stamp(a, 'postwait')
            a.vm[:] = q; a.done.clear(); a.done.update(d)
        if DIAG == 7 and sg in (11, 12, 13): stamp(a, 'prewait')
        if DIAG == 7 and sg in (11, 12, 13):
            q = list(a.vm); d = dict(a.done)
            a.wait(vm=[('d2', sg), ('a2', sg)]); stamp(a, 'postwait')
            a.vm[:] = q; a.done.clear(); a.done.update(d)
        pre_barrier([('d2', sg), ('a2', sg)])
        if (DIAG == 6 and sg in (3, 4, 5)) or (DIAG == 7 and sg in (11, 12, 13)): stamp(a, 'postbar')
        if (DIAG == 1 and sg in (0, 8, 16, 23)) or (DIAG == 4 and sg < 9): stamp(a, f'g2 {sg}')
        if os.environ.get('PG2') and sg == 3: a(f"s_setprio {os.environ.get('PG2')}")
        dq = []
        if sg == 0:
            while w2_issued < 8:
                dq += [(w2_issued, h) for h in range(3)]; w2_issued += 1
        elif w2_issued < 24:
            dq += [(w2_issued, h) for h in range(3)]; w2_issued += 1
        wb = G2W + 20*(sg % 2)
        slot = sg % 8
        base, off = (w2l, slot*10240) if slot < 7 else (w2h, 0)
        prev = a2pend; a2pend = []
        if sg == 0:
            run_side(100)
            for m in pend:
                mfma1(*m[:4])
                if dq: dma_w2_piece(*dq.pop(0))
            pend = []
            ext_mfma(2)
            side.extend(mish_items(2))
        for dt in range(5):
            a.ds(f"ds_read_b64_tr_b16 {v(wb+4*dt,2)}, v{base} offset:{off + 32*dt}", ('w2', sg))
            a.ds(f"ds_read_b64_tr_b16 {v(wb+4*dt+2,2)}, v{base} offset:{off + 32*dt + 1280}", ('w2', sg))
            for _ in range(2):
                if prev: a(prev.pop(0))
            if dq: dma_w2_piece(*dq.pop(0))
            if dt in (0, 1, 2, 3): run_side(1)
        while dq: dma_w2_piece(*dq.pop(0))
        for dt in range(5):
            for tau in range(2):
                accr = G2ACC + 20*tau + 4*dt
                a2pend.append(f"v_mfma_f32_16x16x32_bf16 {v(accr,4)}, {v(wb+4*dt,4)}, {v(G2A+8*(sg%NA)+4*tau,4)}, {'0' if sg == 0 else v(accr,4)}")
        if sg >= 1:
            lim = min(sg + NA, 8 if sg <= C1 else 16 if sg <= C2 else 24, act_issued + 2)
            while act_issued < lim: load_act(act_issued); act_issued += 1
        if sg == C1 - 2: poll_act_issue(1)
        if sg == C1: poll_act_check(1)
        if sg == C2 - 2: poll_act_issue(2)
        if sg == C2: poll_act_check(2)
        if sg == 4:
            for dt in range(5):
                a.vmem(f"buffer_load_dwordx2 {v(G2X+2*dt,2)}, v{vO}, {SX}, 0 offen offset:{32*dt}", 'xfin')
        PV = G2M + 6
        ypoll = f"buffer_load_dword v{PV}, v{PV+1}, {SWS}, s75 offen sc1"
        if sg == 17:
            a(f"""v_and_b32 v{PV+1}, 31, v0
            v_lshlrev_b32 v{PV+1}, 7, v{PV+1}
            s_lshl_b32 s75, {sFP}, 12
            s_add_u32 s75, s75, {FL_Y}
            s_mul_i32 s70, {sW}, 160
            v_add_u32 v22, s70, v0
            v_lshrrev_b32 v23, 3, v22
            s_mul_i32 s70, {sFP}, 80
            v_add_u32 v23, s70, v23
            v_lshlrev_b32 v23, 12, v23
            v_and_b32 v22, 7, v22
            v_lshl_add_u32 v22, v22, 4, v23
            v_add_u32 v23, {32768-1024}, v22
            v_add_u32 v24, {65536-2048}, v22
            s_lshl_b32 s76, {sRB}, 7
            s_add_u32 s76, s76, {AT}
            v_lshrrev_b32 v25, 2, v0
            v_lshlrev_b32 v25, 7, v25
            v_and_b32 v26, 3, v0
            v_lshl_add_u32 v25, v26, 3, v25
            s_lshl_b32 s70, {sTH}, 1
            s_add_u32 s70, s70, {sFH}
            s_lshl_b32 s70, s70, 5
            v_add_u32 v25, s70, v25
            s_mul_i32 s70, {sW}, 5120
            s_xor_b32 s71, {sW}, 2
            s_mul_i32 s71, s71, 5120
            v_lshlrev_b32 v26, 4, v0
            v_add_u32 v27, s71, v26
            v_add_u32 v26, s70, v26""")
        if sg == 19: a.vmem(ypoll, 'py')
        def dma_at(tagit=True):
            f = a.vmem if tagit else (lambda t, g: a(t))
            a(f"s_mov_b32 m0, {sM2}")
            f(f"buffer_load_dwordx4 v22, {SWS}, s76 offen sc1 lds", 'at')
            f(f"buffer_load_dwordx4 v23, {SWS}, s76 offen offset:1024 sc1 lds", 'at')
            a("s_mov_b64 exec, 0xffffffff")
            f(f"buffer_load_dwordx4 v24, {SWS}, s76 offen offset:2048 sc1 lds", 'at')
            a("s_mov_b64 exec, -1")
        if sg == 21:
            a.wait(vm=['py'])
            a(cmpn([PV]))
            a("s_cselect_b32 s77, 1, 0")
            dma_at()
    a.wait(lg="all")
    for m in [m for i, m in enumerate(a2pend) if i % 2 == 1]: a(m)
    for m in [m for i, m in enumerate(a2pend) if i % 2 == 0]: a(m)
    for dt in range(5): a(f"ds_write_b128 v26, {v(G2ACC+20+4*dt,4)} offset:{10240+1024*dt}")
    L = a.label("Lyok")
    a(f"""s_cmp_eq_u32 s77, 1
    s_cbranch_scc1 {L}
    s_waitcnt vmcnt(0)
    v_not_b32 v{PV}, {sTAG}""")
    spin(a, ypoll, cmpn([PV]))
    dma_at(False)
    a(f"{L}:")
    a("s_waitcnt vmcnt(0) lgkmcnt(0)")
    a.vm.clear(); a.lg.clear()
    a("s_barrier")
    RX = G2A; AV = G2A + 20; TT = G2W
    for dt in range(5): a.ds(f"ds_read_b64_tr_b16 {v(AV+2*dt,2)}, v25 offset:{2048*dt}", ('av', dt))
    for dt in range(5): a.ds(f"ds_read_b128 {v(RX+4*dt,4)}, v27 offset:{10240+1024*dt}", ('rx', dt))
    def unp(d, s): return f"v_lshlrev_b32 v{d}, 16, v{s}\nv_and_b32 v{d+1}, 0xffff0000, v{s}"
    for dt in range(5):
        t = TT + 8*dt
        a(unp(t, G2X+2*dt)); a(unp(t+2, G2X+2*dt+1))
    for dt in range(5):
        t = TT + 8*dt; av = AV + 2*dt
        a.wait(lg=[('av', dt)])
        a(unp(t+4, av)); a(unp(t+6, av+1))
        a(f"""v_pk_add_f32 {v(t,2)}, {v(t,2)}, {v(t+4,2)}
        v_pk_add_f32 {v(t+2,2)}, {v(t+2,2)}, {v(t+6,2)}
        v_cvt_pk_bf16_f32 v{t+4}, v{t}, v{t+1}
        v_cvt_pk_bf16_f32 v{t+5}, v{t+2}, v{t+3}""")
        a(unp(t, t+4)); a(unp(t+2, t+5))
    for dt in range(5):
        t = TT + 8*dt; k = G2ACC + 4*dt; r = RX + 4*dt
        a.wait(lg=[('rx', dt)])
        a(f"""v_pk_add_f32 {v(k,2)}, {v(k,2)}, {v(r,2)}
        v_pk_add_f32 {v(k+2,2)}, {v(k+2,2)}, {v(r+2,2)}
        v_cvt_pk_bf16_f32 v{r}, v{k}, v{k+1}
        v_cvt_pk_bf16_f32 v{r+1}, v{k+2}, v{k+3}""")
        a(unp(k, r)); a(unp(k+2, r+1))
        a(f"""v_pk_add_f32 {v(t,2)}, {v(t,2)}, {v(k,2)}
        v_pk_add_f32 {v(t+2,2)}, {v(t+2,2)}, {v(k+2,2)}
        v_cvt_pk_bf16_f32 v{t+4}, v{t}, v{t+1}
        v_cvt_pk_bf16_f32 v{t+5}, v{t+2}, v{t+3}
        buffer_store_dwordx2 {v(t+4,2)}, v{vO}, {S4}, 0 offen offset:{32*dt}""")
    if DIAG: a("s_waitcnt vmcnt(0)")
    if DIAG == 1: stamp(a, 'end')
    stamp_flush(a, 22)
    a("s_endpgm")

UPAD = 448
UCS  = 4640
USTR = 4*UCS
KB0  = 3*USTR
K1OFF = 4224
KSTR = 2*K1OFF
CVOFF = 16
UIN = 200
def u_issue(a):
    a(f"""v_lshlrev_b32 v224, 4, v0
    s_lshl_b32 s70, {sW}, 10
    v_add_u32 v224, s70, v224
    v_lshlrev_b32 v225, 1, v224
    s_mov_b32 s70, {STATS}
    buffer_load_dwordx4 {v(UIN,4)}, v225, {SWS}, s70 offen sc1
    buffer_load_dwordx4 {v(UIN+4,4)}, v225, {SWS}, s70 offen offset:16 sc1""")
    for c, sch in enumerate(("s58", "s59", "s61")):
        a(f"""s_lshl_b32 s70, {sch}, 12
        s_add_u32 s70, s70, {XNT}
        buffer_load_dwordx4 {v(UIN+8+4*c,4)}, v224, {SWS}, s70 offen sc1""")

def ssm(a):
    sI = "s54"
    a(f"""Lssm:
    s_setprio 3
    s_mov_b32 {sI}, s2
    s_lshr_b32 s56, {sI}, 1
    s_mul_i32 s56, s56, 5
    s_and_b32 s57, {sI}, 1
    s_mul_i32 s58, s57, 3
    s_add_u32 s58, s58, s56
    s_add_u32 s59, s58, 1
    s_add_u32 s61, s56, 2""")
    for c, sch in enumerate(("s58", "s59", "s61")):
        a(f"s_lshl_b32 s70, {sch}, 1\ns_and_b32 s70, s70, -4\ns_load_dword s{34+c+(c>1)*6}, {sp('D')}, s70")
    a(f"""s_cmp_eq_u32 {sW}, 3
    s_cbranch_scc1 Laux""")
    kgen(a)
    a("s_branch Lconv")
    aux(a)
    conv(a)

def kgen(a):
    sCH, sKB = "s55", "s68"
    a(f"""s_cmp_eq_u32 {sW}, 0
    s_cselect_b32 {sCH}, s58, s59
    s_cmp_eq_u32 {sW}, 2
    s_cselect_b32 {sCH}, s61, {sCH}
    s_mul_i32 {sKB}, {sW}, {USTR}
    s_mul_i32 s70, {sCH}, 384
    v_mul_u32_u24 v1, 6, v0
    v_and_b32 v1, -4, v1
    v_add_u32 v1, s70, v1""")
    PR = 8
    names = ['Are', 'Aim', 'Bre', 'Bim', 'Cre', 'Cim']
    for k, n in enumerate(names):
        a.vmem(f"global_load_dwordx2 {v(30+2*k,2)}, v1, {sp(n)}", 'par')
    a(f"""s_lshl_b32 s70, {sCH}, 1
    s_and_b32 s70, s70, -4
    s_load_dword s69, {sp('ldt')}, s70
    v_and_b32 v2, 1, v0
    v_lshlrev_b32 v2, 4, v2""")
    a(f"""    s_mov_b32 m0, {sKB}
    v_and_b32 v6, 15, v0
    v_mul_u32_u24 v7, 288, v6
    v_lshrrev_b32 v4, 4, v0
    v_lshl_add_u32 v7, v4, 4, v7
    v_add_u32 v7, {sKB}, v7""")
    if TLB:
        a(f"""v_and_b32 v26, 7, v0
        v_lshlrev_b32 v26, 21, v26
        v_mov_b32 v27, 0
        s_mov_b64 exec, 0xff""")
        a.vmem(f"buffer_load_dword v106, v26, {SWS}, 0 offen offset:512", 'touch')
        a("s_mov_b64 exec, 1")
        for n in ('w2', 'out', 'b1'): a.vmem(f"global_load_dword v107, v27, {sp(n)}", 'touch')
        a("s_mov_b64 exec, -1")
    if TOUCHW1:
        a(f"""s_mul_i32 s70, {sW}, 80
        v_add_u32 v26, s70, v0
        v_add_u32 v27, 64, v26
        s_add_u32 s70, s70, 79
        v_min_u32 v27, s70, v27
        s_lshr_b32 s71, s2, 3
        s_mul_i32 s71, s71, {20*3072}
        s_and_b32 s70, s2, 1
        s_mul_i32 s70, s70, 1536
        s_add_u32 s71, s71, s70""")
        for r in (26, 27):
            a(f"""v_mul_u32_u24 v28, 5462, v{r}
            v_lshrrev_b32 v28, 16, v28
            v_mul_u32_u24 v29, 12, v28
            v_sub_u32 v29, v{r}, v29
            v_mul_u32_u24 v28, 0xc00, v28
            v_lshl_add_u32 v28, v29, 7, v28""")
            a.vmem(f"buffer_load_dword v{r}, v28, {SW1}, s71 offen", 'touch')
    RP = 192
    srd(a, 48, 'w2', 1966080)
    a(f"""s_mul_i32 s78, s2, {6*160}
    s_add_u32 s78, s78, {W2P}
    v_lshlrev_b32 v190, 4, v0
    s_cmp_lg_u32 {sW}, {7 if DIRW2 else 0}
    s_cbranch_scc1 Lkg_now2
    v_mul_u32_u24 v188, 6554, v0
    v_lshrrev_b32 v188, 16, v188
    v_mul_u32_u24 v189, 10, v188
    v_sub_u32 v189, v0, v189
    v_mul_u32_u24 v188, 0x500, v188
    v_lshl_add_u32 v188, v189, 4, v188
    s_mul_i32 s71, s2, {6*1280}
    s_mov_b32 exec_hi, 0x0fffffff""")
    for c in range(8):
        a(f"buffer_load_dwordx4 {v(RP+4*c,4)}, v188, {S4}, s71 offen offset:{160*c}")
    a("s_mov_b32 exec_hi, -1\nLkg_now2:")
    W2X = 0 if DIRW2 else 8
    def kwait(tag):
        q = list(a.vm); idx = max(k for k, t in enumerate(q) if t == tag); n = len(q) - 1 - idx
        L = a.label("Lkw")
        a(f"s_waitcnt vmcnt({n+W2X})\ns_cmp_eq_u32 {sW}, 0\ns_cbranch_scc1 {L}\ns_waitcnt vmcnt({n})\n{L}:")
    a(f"s_setprio {os.environ.get('PS','0')}")
    def W2T():
        a(f"""s_mul_i32 s70, {sW}, 80
        v_add_u32 v250, s70, v0
        v_add_u32 v251, 64, v250
        s_add_u32 s70, s70, 79
        v_min_u32 v251, s70, v251
        s_lshr_b32 s71, s2, 3
        s_mul_i32 s71, s71, {48*1280}
        s_and_b32 s70, s2, 1
        s_mul_i32 s70, s70, 640
        s_add_u32 s71, s71, s70""")
        for r in (250, 251):
            a(f"""v_mul_u32_u24 v252, 13108, v{r}
            v_lshrrev_b32 v252, 16, v252
            v_mul_u32_u24 v253, 5, v252
            v_sub_u32 v253, v{r}, v253
            v_mul_u32_u24 v252, 0x500, v252
            v_lshl_add_u32 v252, v253, 7, v252
            buffer_load_dword v{r}, v252, {S4}, s71 offen""")
    make_tag(a)
    stamp_reset(1)
    a(f"""s_bitcmp1_b32 {sCH}, 0
    s_cselect_b32 s70, 0, 16
    s_lshl_b32 s69, s69, s70
    s_and_b32 s69, s69, 0xffff0000
    v_mov_b32 v3, s69
    v_mul_f32 v4, {LOG2E}, v3
    s_mov_b32 s70, {LOG2E}
    v_fma_f32 v5, v3, s70, -v4
    v_fmac_f32 v5, 0x32A57060, v3
    v_exp_f32 v4, v4
    v_mul_f32 v5, 0x3F317218, v5
    v_fmac_f32 v4, v4, v5
    v_cvt_pk_bf16_f32 v4, v4, v4
    v_and_b32 v3, 0xffff0000, v4""")
    R = {r: 30 + 2*(r-1) for r in range(1, 8)}
    V = {b: 44 + 2*(b-1) for b in range(1, 16)}
    Wr, Pa, Pb = 74, 76, 78
    U = [80 + 2*i for i in range(8)]
    CVT = [96 + i for i in range(8)]
    zr, th = 104, 105
    FR = 112
    KACC = 176
    cv = [0]
    def p2(r): return f"v[{r}:{r+1}]"
    def cmuls(lst):
        if os.environ.get('NOPK'):
            for D, X, Y in lst: a(f"v_mul_f32 v{D}, v{X}, v{Y}\nv_mul_f32 v{D+1}, v{X}, v{Y+1}")
            for D, X, Y in lst: a(f"v_fma_f32 v{D}, -v{X+1}, v{Y+1}, v{D}\nv_fmac_f32 v{D+1}, v{X+1}, v{Y}")
            return
        for D, X, Y in lst:
            a(f"v_pk_mul_f32 {p2(D)}, {p2(X)}, {p2(Y)} op_sel:[0,0] op_sel_hi:[0,1]")
        for D, X, Y in lst:
            a(f"v_pk_fma_f32 {p2(D)}, {p2(X)}, {p2(Y)}, {p2(D)} op_sel:[1,1,0] op_sel_hi:[1,0,1] neg_lo:[1,0,0]")
    def emit(rows_regs, neg=False):
        ts = []
        for row, r in rows_regs:
            t = CVT[cv[0] % 8]; cv[0] += 1; ts.append((row, t))
            a(f"v_cvt_pk_bf16_f32 v{t}, v{r}, {'-' if neg else ''}v{r+1}")
        for row, t in ts:
            a(f"ds_write_addtid_b32 v{t} offset:{288*row}")
    for r in range(12): a(f"v_mov_b32 v{KACC+r}, 0")
    kwait('par')
    stamp(a, 'par', True)
    for k in range(6):
        lo, hi = 30+2*k, 31+2*k
        a(f"""v_alignbit_b32 v{lo}, v{hi}, v{lo}, v2
        v_lshrrev_b32 v{hi}, v2, v{hi}
        v_lshlrev_b32 v{PR+k}, 16, v{lo}
        v_and_b32 v{PR+6+k}, 0xffff0000, v{lo}
        v_lshlrev_b32 v{PR+12+k}, 16, v{hi}""")
    if TOUCHW2 == 2: W2T()
    a("s_mov_b32 s69, 3\nLkg:")
    a.vm.clear()
    q = PR
    a(f"""v_mul_f32 v{zr}, v3, v{q}
    v_mul_f32 v{th}, v3, v{q+1}
    v_mul_f32 v{q+2}, v3, v{q+2}
    v_mul_f32 v{q+3}, v3, v{q+3}
    v_mul_f32 v{zr}, {LOG2E}, v{zr}
    v_mul_f32 v{th}, 0.15915494, v{th}""")
    dst = [(R[1], None), (V[1], 0x41000000), (Wr, 0x43000000)]
    for k, (d, mulc) in enumerate(dst):
        e, ph = U[k], U[k]+1
        if mulc is None:
            a(f"v_exp_f32 v{e}, v{zr}\nv_fract_f32 v{ph}, v{th}")
        else:
            a(f"v_mul_f32 v{e}, {mulc}, v{zr}\nv_mul_f32 v{ph}, {mulc}, v{th}\nv_exp_f32 v{e}, v{e}\nv_fract_f32 v{ph}, v{ph}")
    for k, (d, mulc) in enumerate(dst):
        a(f"v_cos_f32 v{d}, v{U[k]+1}\nv_sin_f32 v{d+1}, v{U[k]+1}")
    cmuls([(Pa, q+4, q+2)])
    for k, (d, mulc) in enumerate(dst):
        a(f"v_mul_f32 v{d}, v{d}, v{U[k]}\nv_mul_f32 v{d+1}, v{d+1}, v{U[k]}")
    for k in range(0, 12, 2): a(f"v_pk_mul_f32 {p2(q+k)}, {p2(q+6+k)}, 1.0 op_sel_hi:[1,0]")
    a(f"v_mov_b32 v{CVT[7]}, 0x3f80")
    a(f"ds_write_addtid_b32 v{CVT[7]} offset:{288*41}")
    cmuls([(R[2], R[1], R[1]), (V[2], V[1], V[1]), (Pb, Pa, Wr)])
    emit([(0, Pa), (8, Pb)]); emit([(42, V[1]), (43, V[2])], neg=True)
    cmuls([(R[3], R[2], R[1]), (R[4], R[2], R[2]), (V[3], V[2], V[1]), (V[4], V[2], V[2]),
           (U[0], Pa, R[1]), (U[1], Pa, R[2]), (U[2], Pb, R[1]), (U[3], Pb, R[2])])
    emit([(1, U[0]), (2, U[1]), (9, U[2]), (10, U[3])]); emit([(44, V[3]), (45, V[4])], neg=True)
    cmuls([(R[5], R[4], R[1]), (R[6], R[4], R[2]), (R[7], R[4], R[3]),
           (V[5], V[4], V[1]), (V[6], V[4], V[2]), (V[7], V[4], V[3]), (V[8], V[4], V[4]),
           (U[0], Pa, R[3]), (U[1], Pa, R[4]), (U[2], Pb, R[3]), (U[3], Pb, R[4])])
    emit([(3, U[0]), (4, U[1]), (11, U[2]), (12, U[3])]); emit([(41+b, V[b]) for b in (5, 6, 7, 8)], neg=True)
    cmuls([(U[0], Pa, R[5]), (U[1], Pa, R[6]), (U[2], Pa, R[7]), (U[3], Pb, R[5]), (U[4], Pb, R[6]), (U[5], Pb, R[7])]
          + [(V[8+b], V[8], V[b]) for b in range(1, 8)] + [(U[6], Wr, Wr), (U[7], Pb, Wr)])
    W2, P2 = U[6], U[7]
    emit([(5, U[0]), (6, U[1]), (7, U[2]), (13, U[3]), (14, U[4]), (15, U[5])])
    cmuls([(Pa, Pb, W2), (U[0], P2, R[2]), (U[1], P2, R[4]), (U[2], P2, R[6])])
    cmuls([(Pb, P2, W2)])
    emit([(41+8+b, V[8+b]) for b in range(1, 8)], neg=True)
    emit([(16, P2), (17, U[0]), (18, U[1]), (19, U[2])])
    Pc, Pd = V[9], V[10]
    cmuls([(Pc, Pa, W2), (Pd, Pb, W2), (U[0], Pa, R[2]), (U[1], Pa, R[4]), (U[2], Pa, R[6]), (U[3], Pb, R[4])])
    emit([(20, Pa), (21, U[0]), (22, U[1]), (23, U[2]), (24, Pb), (25, U[3])])
    cmuls([(Pa, Pc, W2), (Pb, Pd, W2), (U[0], Pc, R[4]), (U[1], Pd, R[4])])
    emit([(26, Pc), (27, U[0]), (28, Pd), (29, U[1])])
    cmuls([(Pc, Pa, W2), (Pd, Pb, W2), (U[0], Pa, R[4]), (V[11], W2, W2)])
    emit([(30, Pa), (31, U[0]), (32, Pb)])
    W4 = V[11]
    cmuls([(Pa, Pc, W2), (U[0], Pb, W4), (U[1], Pc, W4), (U[2], Pd, W4)])
    emit([(33, Pc), (34, Pd)])
    cmuls([(U[3], Pa, W4), (U[4], U[0], W4)])
    emit([(35, Pa), (36, U[0]), (37, U[1]), (38, U[2])])
    emit([(39, U[3]), (40, U[4])])
    a("s_waitcnt lgkmcnt(0)")
    for ks in range(4):
        a.ds(f"ds_read_b128 {v(FR+16*ks+12,4)}, v7 offset:{288*41 + 64*ks}", ('fr', ks))
        for m in range(3):
            a.ds(f"ds_read_b128 {v(FR+16*ks+4*m,4)}, v7 offset:{288*16*m + 64*ks}", ('fr', ks))
    for ks in range(4):
        a.wait(lg=[('fr', ks)])
        for m in range(3):
            a(f"v_mfma_f32_16x16x32_bf16 {v(KACC+4*m,4)}, {v(FR+16*ks+4*m,4)}, {v(FR+16*ks+12,4)}, {v(KACC+4*m,4)}")
    a(f"""s_sub_u32 s69, s69, 1
    s_cmp_lg_u32 {sW}, {7 if DIRW2 else 0}
    s_cbranch_scc1 Lkg_n
    s_cmp_eq_u32 s69, 2
    s_cbranch_scc0 Lkg_f
    s_waitcnt vmcnt(0)
    s_mov_b32 exec_hi, 0x0fffffff""")
    for c in range(8):
        a(f"buffer_store_dwordx4 {v(RP+4*c,4)}, v190, {SWS}, s78 offen sc1")
        if c < 7: a("s_add_u32 s78, s78, 245760")
    a(f"""s_mov_b32 exec_hi, -1
    s_branch Lkg
    Lkg_f:
    s_cmp_eq_u32 s69, 1
    s_cbranch_scc0 Lkg_n
    s_lshl_b32 s70, s2, 7
    s_add_u32 s70, s70, {FL_AUX}
    s_waitcnt vmcnt(0)""")
    flag_store(a, "s70", 190, 191)
    a("""Lkg_n:
    s_cmp_lg_u32 s69, 0
    s_cbranch_scc1 Lkg""")
    stamp(a, 'tables', True)
    if TOUCHW2 == 1:
        W2T()
    go_wait(a, 20)
    u_issue(a)
    stamp(a, 'aux seen', True)
    a(f"""v_lshrrev_b32 v4, 4, v0
    v_lshrrev_b32 v8, 1, v4
    v_and_b32 v9, 1, v4
    v_lshlrev_b32 v10, 8, v8
    v_lshl_add_u32 v10, v6, 4, v10
    v_lshl_add_u32 v10, v9, 3, v10
    v_add_u32 v10, {sKB}, v10
    v_lshlrev_b32 v11, 7, v4
    v_add_u32 v11, 512, v11
    v_sub_u32 v12, 3, v8
    v_lshlrev_b32 v12, v12, v6
    v_add_u32 v11, v11, v12
    v_add_u32 v11, {sKB}, v11
    v_mul_u32_u24 v12, 60, v8
    v_add_u32 v12, 4, v12
    v_add_u32 v12, v11, v12
    v_lshlrev_b32 v13, 7, v4
    v_lshl_add_u32 v13, v6, 1, v13
    v_add_u32 v13, {sKB}, v13
    v_mov_b32 v14, 0
    v_mov_b32 v15, {sKB}""")
    for i in range(6): a(f"v_cvt_pk_bf16_f32 v{16+i}, v{KACC+2*i}, v{KACC+2*i+1}")
    a(f"""ds_write_b64 v10, v[16:17] offset:{CVOFF}
    ds_write_b32 v11, v18 offset:{CVOFF}
    ds_write_b32 v12, v19 offset:{CVOFF}
    ds_write_b16 v13, v20 offset:{CVOFF+1024}
    ds_write_b16_d16_hi v13, v20 offset:{CVOFF+1024+32}
    ds_write_b16 v13, v21 offset:{CVOFF+1024+64}
    ds_write_b16_d16_hi v13, v21 offset:{CVOFF+1024+96}
    ds_write_b32 v15, v14 offset:{CVOFF-4}
    v_and_b32 v8, 31, v0
    v_lshl_add_u32 v9, v8, 4, {sKB}
    v_lshl_add_u32 v10, v8, 3, {sKB}
    v_min_u32 v11, 1, v8
    v_lshl_add_u32 v11, v11, 1, v10
    v_lshl_add_u32 v12, v0, 2, {sKB}
    v_lshl_add_u32 v13, v0, 1, {sKB}
    s_mul_i32 s69, {sW}, {KSTR}
    s_add_u32 s69, s69, {KB0}
    v_lshl_add_u32 v14, v0, 4, s69
    v_mov_b32 v40, 0
    v_mov_b32 v41, 0
    v_mov_b32 v42, 0
    v_mov_b32 v43, 0
    s_waitcnt lgkmcnt(0)
    ds_read_b128 v[16:19], v9 offset:{CVOFF}
    ds_read_b32 v20, v9 offset:{CVOFF-4}
    ds_read_b64 v[22:23], v10 offset:{CVOFF+512}
    ds_read_b32 v24, v10 offset:{CVOFF+512+8}
    ds_read_u16 v25, v11 offset:{CVOFF+512-2}
    ds_read_b32 v26, v12 offset:{CVOFF+768}
    ds_read_b32 v27, v12 offset:{CVOFF+768+4}
    ds_read_u16 v28, v13 offset:{CVOFF+1024}
    ds_read_u16 v60, v13 offset:{CVOFF+1024+2}
    ds_read_u16 v29, v13 offset:{CVOFF+1024+128}
    ds_read_u16 v61, v13 offset:{CVOFF+1024+130}
    s_mov_b32 s70, 0xffff
    s_mov_b32 s71, 0x01000100
    s_mov_b32 s72, 0x03020302
    s_mov_b32 s75, 0x05040100
    v_and_b32 v30, 1, v0
    v_mul_u32_u24 v31, 0x0404, v30
    v_lshlrev_b32 v30, 16, v31
    v_add_u32 v30, 0x01000504, v30
    v_add_u32 v31, 0x01000100, v31
    s_mov_b64 exec, 0xff
    ds_write_b128 v14, v[40:43]
    ds_write_b128 v14, v[40:43] offset:{K1OFF}
    s_mov_b64 exec, 0xffffffff
    s_waitcnt lgkmcnt(2)
    v_alignbit_b32 v32, v19, v19, 16
    v_alignbit_b32 v33, v18, v18, 16
    v_alignbit_b32 v34, v17, v17, 16
    v_alignbit_b32 v35, v16, v16, 16
    v_bfi_b32 v36, s70, v19, v18
    v_bfi_b32 v37, s70, v18, v17
    v_bfi_b32 v38, s70, v17, v16
    v_bfi_b32 v39, s70, v16, v20
    ds_write_b128 v14, v[32:35] offset:{K1OFF+128}
    ds_write_b128 v14, v[36:39] offset:128
    v_bfi_b32 v44, s70, v24, v23
    v_perm_b32 v45, v23, v23, s71
    v_bfi_b32 v46, s70, v23, v22
    v_perm_b32 v47, v22, v22, s71
    v_alignbit_b32 v48, v23, v23, 16
    v_mov_b32 v49, v45
    v_alignbit_b32 v50, v22, v22, 16
    v_perm_b32 v51, v25, v22, s75
    ds_write_b128 v14, v[44:47] offset:{K1OFF+128+512}
    ds_write_b128 v14, v[48:51] offset:{128+512}
    s_mov_b64 exec, -1
    v_perm_b32 v64, v27, v27, s71
    v_perm_b32 v65, v26, v26, s72
    v_alignbit_b32 v66, v26, v26, 16
    v_perm_b32 v67, v26, v26, s71
    v_bfi_b32 v68, s70, v27, v26
    v_mov_b32 v69, v65
    v_mov_b32 v70, v67
    v_mov_b32 v71, v67
    ds_write_b128 v14, v[64:67] offset:{K1OFF+128+1024}
    ds_write_b128 v14, v[68:71] offset:{128+1024}""")
    for k, src in enumerate((28, 29)):
        b = 72 + 8*k; s1 = 60 + k
        a(f"""v_perm_b32 v{b}, v{s1}, v{s1}, s71
        v_perm_b32 v{b+1}, v{s1}, v{src}, v30
        v_perm_b32 v{b+2}, v{src}, v{src}, s71
        v_perm_b32 v{b+5}, v{s1}, v{src}, v31
        v_mov_b32 v{b+3}, v{b+2}
        v_mov_b32 v{b+4}, v{b}
        v_mov_b32 v{b+6}, v{b+2}
        v_mov_b32 v{b+7}, v{b+2}
        ds_write_b128 v14, {v(b,4)} offset:{K1OFF+128+2048+1024*k}
        ds_write_b128 v14, {v(b+4,4)} offset:{128+2048+1024*k}""")
    a.vm.clear(); a.lg.clear()

def aux(a):
    sI = "s54"
    sX8, sJ = "s55", "s56"
    a("Laux:")
    X = 16
    TB = 56
    TB2 = 212
    TM = 96
    CS = 116
    TP = 244
    def blk_addr(sidx, sld, sst):
        a(f"""s_mul_i32 s70, {sidx}, 6554
        s_lshr_b32 s70, s70, 16
        s_mul_i32 s71, s70, 10
        s_sub_u32 s71, {sidx}, s71
        s_lshr_b32 s72, {sX8}, 1
        s_lshl_b32 s72, s72, 3
        s_add_u32 s70, s70, s72
        s_mul_i32 {sld}, s70, {64*1280}
        s_lshl_b32 s72, s71, 7
        s_add_u32 {sld}, {sld}, s72
        s_lshl_b32 {sst}, s71, 18
        s_lshl_b32 s72, s70, 7
        s_add_u32 {sst}, {sst}, s72
        s_add_u32 {sst}, {sst}, {XNT}""")
    def blk_load(base, sld):
        for r in range(8):
            a(f"buffer_load_dwordx4 {v(base+4*r,4)}, v{(2,3,6)[r//3]}, {SX}, {sld} offen offset:{(r%3)*1280}")
    def blk_store(base, sst):
        for c in range(8):
            o = TP + 4*(c % 2)
            for k in range(4):
                a(f"v_perm_b32 v{o+k}, v{base+4*(2*k+1)+c//2}, v{base+4*(2*k)+c//2}, {'s75' if c % 2 else 's74'}")
            a(f"buffer_store_dwordx4 {v(o,4)}, v7, {SWS}, {sst} offen sc1")
            if c < 7: a(f"s_add_u32 {sst}, {sst}, 4096")
    a(f"""s_and_b32 {sX8}, {sI}, 7
    s_lshr_b32 {sJ}, {sI}, 3
    s_setprio {os.environ.get('PA','1')}
    s_lshr_b32 s81, 0xdb6, {sJ}
    s_and_b32 s81, s81, 1
    v_lshrrev_b32 v4, 3, v0
    v_and_b32 v5, 7, v0""")
    a(f"""s_cmp_eq_u32 s81, 0
    s_cbranch_scc1 Laux_nocs
    s_lshr_b32 s77, {sX8}, 1
    s_and_b32 s78, {sX8}, 1
    s_mul_i32 s78, s78, 12
    s_add_u32 s78, s78, {sJ}
    v_mul_u32_u24 v8, 0xc00, v4
    v_lshl_add_u32 v8, v5, 4, v8
    s_mul_i32 s72, s77, {160*3072}
    s_lshl_b32 s73, s78, 7
    s_add_u32 s72, s72, s73""")
    for n in range(20):
        a(f"buffer_load_dwordx4 {v(CS+4*n,4)}, v8, {SW1}, s72 offen")
        if n < 19: a(f"s_add_u32 s72, s72, 24576")
    a(f"""Laux_nocs:
    s_lshl_b32 s68, {sX8}, 8
    s_lshl_b32 s70, {sJ}, 3
    s_add_u32 s68, s68, s70
    s_mul_i32 s70, s68, 1280
    v_mul_u32_u24 v1, 0x500, v4
    v_lshl_add_u32 v1, v5, 4, v1""")
    for n in range(10):
        a(f"buffer_load_dwordx4 {v(X+4*n,4)}, v1, {SX}, s70 offen offset:{128*n}")
    a(f"""s_and_b32 s69, {sX8}, 1
    s_mul_i32 s69, s69, 40
    s_add_u32 s69, s69, {sJ}
    v_mul_u32_u24 v2, {8*1280}, v5
    v_lshl_add_u32 v2, v4, 4, v2
    v_add_u32 v3, {3*1280}, v2
    v_add_u32 v6, {6*1280}, v2
    v_lshlrev_b32 v7, 15, v4
    v_lshl_add_u32 v7, v5, 4, v7""")
    blk_addr("s69", "s73", "s79")
    blk_load(TB, "s73")
    a(f"""s_cmp_lt_u32 {sJ}, 24
    s_cbranch_scc1 Laux_b1
    s_add_u32 s69, s69, 8""")
    blk_addr("s69", "s73", "s80")
    blk_load(TB2, "s73")
    a("Laux_b1:")
    if TOUCH:
        a(f"""s_getpc_b64 s[62:63]
        Lpc:
        s_sub_u32 s62, s62, Lpc-{KN}
        s_subb_u32 s63, s63, 0
        v_min_u32 v8, 9, v0
        s_mul_i32 s70, {sJ}, 10
        v_add_u32 v8, s70, v8
        v_lshlrev_b32 v8, 7, v8
        v_min_u32 v8, Lend-{KN}, v8
        s_mov_b64 exec, 0x3ff
        global_load_dword v252, v8, s[62:63]
        s_mov_b64 exec, -1""")
    make_tag(a)
    a(f"""s_mov_b32 s74, 0x05040100
    s_mov_b32 s75, 0x07060302
    s_mov_b32 s70, 0x3f803f80
    v_and_b32 v8, 15, v0
    v_lshrrev_b32 v9, 1, v8
    v_and_b32 v10, 1, v8
    v_lshlrev_b32 v10, 4, v10
    v_mov_b32 v11, 0x3f80
    v_lshlrev_b32 v11, v10, v11""")
    for k in range(4):
        a(f"v_cmp_eq_u32 vcc, {k}, v9\nv_cndmask_b32 v{88+k}, 0, v11, vcc")
    a(f"""s_lshl_b32 s76, {sI}, 7
    s_cmp_eq_u32 s81, 0
    s_cbranch_scc1 Laux_nocs1
    s_waitcnt vmcnt({18+TOUCH})""")
    for n in range(20):
        a(f"v_mfma_f32_16x16x32_bf16 v[112:115], v[88:91], {v(CS+4*n,4)}, {'0' if n == 0 else 'v[112:115]'}")
    for k in range(4):
        a(f"v_add_f32_dpp v{112+k}, v{112+k}, v{112+k} row_ror:8 row_mask:0xf bank_mask:0xf")
    a(f"""v_lshrrev_b32 v9, 4, v0
    v_lshlrev_b32 v8, 5, v5
    v_lshl_add_u32 v8, v9, 4, v8
    s_lshl_b32 s72, s78, 8
    s_mul_i32 s73, s77, 6144
    s_add_u32 s72, s72, s73
    s_add_u32 s72, s72, {CSUM}
    s_mov_b64 exec, 0x00ff00ff
    buffer_store_dwordx4 v[112:115], v8, {SWS}, s72 offen sc1
    s_mov_b64 exec, -1
    s_waitcnt vmcnt({9+TOUCH})
    s_branch Laux_w
    Laux_nocs1:
    s_waitcnt vmcnt({16+TOUCH})
    s_cmp_ge_u32 {sJ}, 24
    s_cbranch_scc1 Laux_w
    s_waitcnt vmcnt({8+TOUCH})
    Laux_w:""")
    stamp_reset(1); stamp(a, 'aux loads')
    for k in range(4): a(f"v_dot2_f32_bf16 v{8+k}, v{X+k}, s70, 0")
    for k in range(4): a(f"v_dot2_f32_bf16 v{12+k}, v{X+k}, v{X+k}, 0")
    for n in range(1, 10):
        for k in range(4): a(f"v_dot2_f32_bf16 v{8+k}, v{X+4*n+k}, s70, v{8+k}")
        for k in range(4): a(f"v_dot2_f32_bf16 v{12+k}, v{X+4*n+k}, v{X+4*n+k}, v{12+k}")
    INV640 = 0x3ACCCCCD
    def red8(rs):
        for t in ("v_add_f32 v{r}, v{r}, v{r1}", "v_add_f32 v{r2}, v{r2}, v{r3}", "v_add_f32 v{r}, v{r}, v{r2}",
                  "v_add_f32_dpp v{r}, v{r}, v{r} quad_perm:[1,0,3,2] row_mask:0xf bank_mask:0xf",
                  "v_add_f32_dpp v{r}, v{r}, v{r} quad_perm:[2,3,0,1] row_mask:0xf bank_mask:0xf",
                  "v_add_f32_dpp v{r}, v{r}, v{r} row_half_mirror row_mask:0xf bank_mask:0xf",
                  "v_mul_f32 v{r}, %d, v{r}" % INV640):
            for r in rs: a(t.format(r=r, r1=r+1, r2=r+2, r3=r+3))
    red8([8, 12])
    a("""v_mul_f32 v9, v8, v8
    v_sub_f32 v12, v12, v9
    v_mul_f32 v10, 0x41800000, v12
    v_sub_f32 v8, 0, v8
    v_cmp_nle_f32 vcc, v9, v10
    s_cbranch_vccz Laux_var
    v_mov_b32 v9, v8""")
    for n in range(10):
        t = TM + 8*(n % 2)
        for k in range(4):
            a(f"v_lshlrev_b32 v{t+2*k}, 16, v{X+4*n+k}\nv_and_b32 v{t+2*k+1}, 0xffff0000, v{X+4*n+k}")
        for k in range(4): a(f"v_pk_add_f32 {v(t+2*k,2)}, {v(t+2*k,2)}, v[8:9]")
        for k in range(4):
            if n == 0 and k < 2: a(f"v_pk_mul_f32 {v(12+2*k,2)}, {v(t+2*k,2)}, {v(t+2*k,2)}")
            else: a(f"v_pk_fma_f32 {v(12+2*(k%2),2)}, {v(t+2*k,2)}, {v(t+2*k,2)}, {v(12+2*(k%2),2)}")
    red8([12])
    a(f"""Laux_var:
    v_cvt_pk_bf16_f32 v9, v12, v12
    v_and_b32 v9, 0xffff0000, v9
    v_add_f32 v9, 0x3727C5AC, v9
    v_cvt_pk_bf16_f32 v9, v9, v9
    v_and_b32 v9, 0xffff0000, v9
    v_sqrt_f32 v9, v9
    v_cvt_pk_bf16_f32 v9, v8, v9
    v_lshlrev_b32 v12, 2, v4
    s_lshl_b32 s70, s68, 2
    s_add_u32 s70, s70, {STATS}
    s_mov_b32 exec_lo, 0x01010101
    s_mov_b32 exec_hi, 0x01010101
    buffer_store_dword v9, v12, {SWS}, s70 offen sc1
    s_mov_b64 exec, -1
    s_waitcnt vmcnt(1)
    s_cmp_eq_u32 s81, 0
    s_cbranch_scc1 Laux_w2
    s_waitcnt vmcnt(2)
    Laux_w2:""".replace("s_waitcnt vmcnt(1)\n    s_cmp_eq_u32 s81, 0\n    s_cbranch_scc1 Laux_w2\n    s_waitcnt vmcnt(2)\n    Laux_w2:", "s_waitcnt vmcnt(1)"))
    TQ = 116
    for c in range(8):
        for k in range(4):
            a(f"v_perm_b32 v{TQ+4*c+k}, v{TB+4*(2*k+1)+c//2}, v{TB+4*(2*k)+c//2}, {'s75' if c % 2 else 's74'}")
    a(f"""s_add_u32 s70, s76, {FL_S}
    s_waitcnt vmcnt(0)""")
    flag_store(a, "s70", 8, 9)
    for c in range(8):
        a(f"buffer_store_dwordx4 {v(TQ+4*c,4)}, v7, {SWS}, s79 offen sc1")
        if c < 7: a(f"s_add_u32 s79, s79, 4096")
    a(f"""s_cmp_lt_u32 {sJ}, 24
    s_cbranch_scc1 Laux_b2""")
    blk_store(TB2, "s80")
    a(f"""Laux_b2:
    s_add_u32 s70, s76, {FL_C}
    s_waitcnt vmcnt(0)""")
    flag_store(a, "s70", 8, 9)
    stamp(a, 'stats flag')
    a(f"""s_cmp_lg_u32 {sJ}, 31
    s_cbranch_scc1 Laux_go""")
    poll256(a, FL_C, 128, r=20, slp=1)
    a(f"""s_lshl_b32 s70, {sX8}, 7
    s_add_u32 s70, s70, {GO}""")
    flag_store(a, "s70", 8, 9)
    a(f"Laux_go:\ns_setprio {os.environ.get('PS','0')}")
    go_wait(a, 20)
    u_issue(a)

def conv(a):
    sI = "s54"
    a("Lconv:")
    stamp_reset(4); stamp(a, 'Lconv', True)
    a(f"""v_and_b32 v10, 15, v0
    v_lshrrev_b32 v11, 4, v0
    v_and_b32 v12, 1, v0
    v_lshrrev_b32 v13, 1, v10
    v_mul_u32_u24 v14, {K1OFF}, v12
    v_sub_u32 v15, v13, v11
    v_lshl_add_u32 v14, v15, 4, v14
    v_add_u32 v14, {KB0+64}, v14
    v_and_b32 v12, 3, v0
    v_mul_u32_u24 v15, {UCS}, v12
    v_lshrrev_b32 v13, 2, v10
    v_lshl_add_u32 v15, v13, 7, v15
    v_lshl_add_u32 v15, v11, 4, v15
    v_add_u32 v15, {UPAD+48}, v15
    v_lshlrev_b32 v19, 7, v13
    v_lshl_add_u32 v19, v11, 5, v19
    v_lshl_add_u32 v19, v12, 2, v19
    v_mov_b32 v4, 0
    v_mov_b32 v5, 0
    v_lshlrev_b32 v6, 3, v0
    s_mul_i32 s70, {sW}, {UCS}
    v_add_u32 v6, s70, v6
    s_waitcnt lgkmcnt(0)
    s_barrier""")
    a("s_mov_b32 exec_hi, 0x00ffffff")
    for c in range(3): a(f"ds_write_b64 v6, v[4:5] offset:{c*USTR}")
    a("s_mov_b32 exec_hi, -1")
    NM, RS, UD = 44, 52, 226
    def unp(d, s): return f"v_lshlrev_b32 v{d}, 16, v{s}\nv_and_b32 v{d+1}, 0xffff0000, v{s}"
    a("s_waitcnt vmcnt(0)")
    for k in range(8): a(f"v_and_b32 v{RS+k}, 0xffff0000, v{UIN+k}")
    for k in range(8): a(f"v_rcp_f32 v{RS+k}, v{RS+k}\nv_lshlrev_b32 v{NM+k}, 16, v{UIN+k}")
    a("s_waitcnt lgkmcnt(0)\ns_barrier")
    for c in range(3):
        x = UIN + 8 + 4*c; t = 60; ud = UD + 8*c; o = c*USTR + UPAD
        for k in range(4): a(unp(t+2*k, x+k))
        for k in range(4): a(f"v_pk_add_f32 {v(t+2*k,2)}, {v(t+2*k,2)}, {v(NM+2*k,2)}")
        for k in range(4): a(f"v_cvt_pk_bf16_f32 v{x+k}, v{t+2*k}, v{t+2*k+1}")
        for k in range(4): a(unp(t+2*k, x+k))
        for k in range(4): a(f"v_pk_mul_f32 {v(t+2*k,2)}, {v(t+2*k,2)}, {v(RS+2*k,2)}")
        for k in range(4): a(f"v_cvt_pk_bf16_f32 v{x+k}, v{t+2*k}, v{t+2*k+1}")
        a(f"""v_cvt_pk_bf16_f32 v{68+2*c}, v{t+2}, v{t+3}
        v_cvt_pk_bf16_f32 v{69+2*c}, v{t+4}, v{t+5}
        ds_write_b128 v224, {v(x,4)} offset:{o+3*UCS-16}
        ds_write_b64 v224, {v(x,2)} offset:{o+UCS-8}
        ds_write_b64 v224, {v(x+2,2)} offset:{o+UCS}
        ds_write_b32 v224, v{x} offset:{o-4}
        ds_write_b64 v224, {v(68+2*c,2)} offset:{o}
        ds_write_b32 v224, v{x+3} offset:{o+8}
        ds_write_b32 v224, v{x} offset:{o+2*UCS-12}
        ds_write_b64 v224, {v(68+2*c,2)} offset:{o+2*UCS-8}
        ds_write_b32 v224, v{x+3} offset:{o+2*UCS}""")
    for c in range(3):
        x = UIN + 8 + 4*c; t = 60; ud = UD + 8*c
        for k in range(4): a(unp(t+2*k, x+k))
        sd = f"s{34+c+(c>1)*6}"
        a(f"s_bitcmp1_b32 {('s58','s59','s61')[c]}, 0\ns_cselect_b32 s70, 0, 16\ns_lshl_b32 {sd}, {sd}, s70\ns_and_b32 {sd}, {sd}, 0xffff0000")
        for k in range(8): a(f"v_mul_f32 v{t+k}, {sd}, v{t+k}")
        for k in range(4): a(f"v_cvt_pk_bf16_f32 v{76+k}, v{t+2*k}, v{t+2*k+1}")
        for k in range(4): a(unp(ud+2*k, 76+k))
    a("""s_waitcnt lgkmcnt(0)
    s_barrier""")
    stamp(a, 'u ready', True)
    YA = 20
    FS = [44, 132]
    def loop(name, parts):
        ad = [(16, 17), (8, 9)]
        tiles = [(pi, j) for pi, (c, J) in enumerate(parts) for j in J]
        acc = {t: YA + 4*k for k, t in enumerate(tiles)}
        base = []; n = 0
        for c, J in parts:
            base.append(n); n += 2*(max(J)+1)
        def reads(fs):
            out = []
            for pi, (c, J) in enumerate(parts):
                for k in range(max(J)+1):
                    out.append(f"ds_read_b128 {v(FS[fs]+4*(base[pi]+2*k),4)}, v{ad[pi][0]} offset:{512*k}")
                    out.append(f"ds_read_b128 {v(FS[fs]+4*(base[pi]+2*k+1),4)}, v{ad[pi][1]} offset:{512*k}")
                out.append(f"v_add_u32 v{ad[pi][0]}, 64, v{ad[pi][0]}")
                out.append(f"v_add_u32 v{ad[pi][1]}, -64, v{ad[pi][1]}")
            return out
        def mfmas(fs):
            rem = {t: list(range(t[1]+1)) for t in tiles}
            todo = []; last = []
            while any(rem.values()):
                cand = [t for t in tiles if rem[t] and t not in last[-GAP:]] or [t for t in tiles if rem[t] and t not in last[-1:]] or [t for t in tiles if rem[t]]
                t = max(cand, key=lambda t: len(rem[t]))
                todo.append((t, rem[t].pop(0))); last.append(t)
            return [f"v_mfma_f32_16x16x32_bf16 {v(acc[t],4)}, {v(FS[fs]+4*(base[t[0]]+2*p),4)}, {v(FS[fs]+4*(base[t[0]]+2*(t[1]-p)+1),4)}, {v(acc[t],4)}" for t, p in todo]
        for pi, (c, J) in enumerate(parts):
            if isinstance(c, str):
                a(f"s_mul_i32 s70, {c}, {KSTR}\ns_mul_i32 s71, {c}, {USTR}\nv_add_u32 v{ad[pi][0]}, s70, v14\nv_add_u32 v{ad[pi][1]}, s71, v15")
            else:
                a(f"v_add_u32 v{ad[pi][0]}, {c*KSTR}, v14\nv_add_u32 v{ad[pi][1]}, {c*USTR}, v15")
        for t in reads(0): a(t)
        for r in range(4*len(tiles)): a(f"v_mov_b32 v{YA+r}, 0")
        a(f"s_mov_b32 s64, 4\n{name}:")
        for fs in (0, 1):
            a("s_waitcnt lgkmcnt(0)")
            fill = reads(1-fs); ms = mfmas(fs)
            n = len(ms) - 4; done = 0
            for i, m in enumerate(ms):
                a(m)
                want = min(len(fill), -(-len(fill)*(i+1)//n))
                while done < want: a(fill[done]); done += 1
        a(f"""s_sub_u32 s64, s64, 1
        s_cmp_lg_u32 s64, 0
        s_cbranch_scc1 {name}
        s_waitcnt lgkmcnt(0)
        s_barrier""")
        for pi, (c, J) in enumerate(parts):
            if isinstance(c, str): a(f"s_lshl_b32 s70, {c}, 12\nv_add_u32 v{ad[pi][0]}, s70, v19")
            for j in J:
                r = acc[(pi, j)]
                off = 512*j + (0 if isinstance(c, str) else 4096*c)
                adr = ad[pi][0] if isinstance(c, str) else 19
                a(f"""v_cvt_pk_bf16_f32 v{r}, v{r}, v{r+1}
                v_cvt_pk_bf16_f32 v{r+2}, v{r+2}, v{r+3}
                ds_write_b32 v{adr}, v{r} offset:{off}
                ds_write_b32 v{adr}, v{r+2} offset:{off+16}""")
    a(f"""s_lshr_b32 s62, {sW}, 1
    s_cmp_eq_u32 {sW}, 1
    s_cbranch_scc1 Lcv_w1
    s_cmp_eq_u32 {sW}, 3
    s_cbranch_scc1 Lcv_w3""")
    loop("Lcv_l0", [("s62", [7, 6, 5, 1])])
    a("s_branch Lcv_bar2\nLcv_w1:")
    loop("Lcv_l1", [(0, [4, 3, 2, 0]), (1, [4, 3])])
    a("s_branch Lcv_bar2\nLcv_w3:\ns_cmp_eq_u32 s57, 1\ns_cbranch_scc1 Lcv_w3b")
    loop("Lcv_l3a", [(1, [2, 0]), (2, [7, 5, 2, 0])])
    a("s_branch Lcv_bar2\nLcv_w3b:")
    loop("Lcv_l3b", [(1, [2, 0]), (2, [6, 4, 3, 1])])
    a(f"""Lcv_bar2:
    s_waitcnt lgkmcnt(0)
    s_barrier""")
    stamp(a, 'conv done', True)
    for c in range(3): a.ds(f"ds_read_b128 {v(32+4*c,4)}, v224 offset:{c*4096}", ('y', c))
    a(f"""s_lshr_b32 s70, {sW}, 1
    s_xor_b32 s70, s70, s57
    s_cmp_eq_u32 s70, 0
    s_cselect_b32 s66, -1, 0
    s_cselect_b32 s67, 0, -1""")
    for c, sch in enumerate(("s58", "s59", "s61")):
        a.wait(lg=[('y', c)])
        y = 32 + 4*c; t = 48 + 8*c; ud = UD + 8*c
        for k in range(4): a(unp(t+2*k, y+k))
        for k in range(4): a(f"v_pk_add_f32 {v(t+2*k,2)}, {v(t+2*k,2)}, {v(ud+2*k,2)}")
        for k in range(4): a(f"v_cvt_pk_bf16_f32 v{y+k}, v{t+2*k}, v{t+2*k+1}")
        a(f"""s_lshl_b32 s70, {sch}, 12
        s_add_u32 s70, s70, {AT}""")
        if c == 2: a("s_mov_b64 exec, s[66:67]")
        a(f"buffer_store_dwordx4 {v(y,4)}, v224, {SWS}, s70 offen sc1")
        if c == 2: a("s_mov_b64 exec, -1")
    a("s_waitcnt vmcnt(0)")
    stamp(a, 'y stored'); stamp_flush(a, 50)
    a(f"""s_barrier
    s_cmp_eq_u32 {sW}, 1
    s_cbranch_scc1 Lcv_ep
    s_cmp_lg_u32 {sW}, 0
    s_cbranch_scc1 Lend
    s_lshl_b32 s70, {sI}, 7
    s_add_u32 s70, s70, {FL_Y}""")
    flag_store(a, "s70", 4, 5)
    a(f"""s_endpgm
    Lcv_ep:
    s_cmp_lg_u32 {sI}, 0
    s_cbranch_scc1 Lend""")
    if EXP != "nogemm": poll256(a, FL_ACT, 384, slp=8)
    poll256(a, FL_Y, 128, slp=8)
    flag_store(a, "0", 4, 5)
    a("s_endpgm")

HEADER = open(os.path.join(os.path.dirname(os.path.abspath(__file__)), "..", "cdna_kernels",
              "parallel_sum__ssm_conv_s4__dense_activation_mish__prompt.s.ref")).read().split("; Override")[0]

def build():
    a = Asm()
    prologue(a)
    gemm(a)
    a.vm.clear(); a.lg.clear()
    ssm(a)
    a("Lend:\ns_endpgm")
    body = a.finalize()
    return f"""{HEADER}; @launch grid=(512,1,1) block=(256,1,1) lds=81920
.amdgcn_target "amdgcn-amd-amdhsa--gfx950"
.text
.globl {KN}
.p2align 8
.type {KN},@function
{KN}:
{body}.section .rodata,"a"
.p2align 6
.amdhsa_kernel {KN}
  .amdhsa_next_free_vgpr 256
  .amdhsa_next_free_sgpr 102
  .amdhsa_accum_offset 256
  .amdhsa_group_segment_fixed_size 0
  .amdhsa_kernarg_size 128
  .amdhsa_user_sgpr_count 2
  .amdhsa_user_sgpr_kernarg_segment_ptr 1
  .amdhsa_system_sgpr_workgroup_id_x 1
.end_amdhsa_kernel
"""

if __name__ == "__main__":
    out = sys.argv[1] if len(sys.argv) > 1 else "k.s"
    open(out, "w").write(build())
    print("wrote", out)
```

```python
import sys, os
sys.path.insert(0, os.path.dirname(os.path.abspath(__file__)))
from asmlib import Asm

KN = "parallel_sum__ssm_conv_s4__dense_activation_mish__prompt_kernel"

FL_S   = 0x0000 + 0x8000
FL_Y   = 0x10000
FL_ACT = 0x18000
STATS  = 0x30000
CSUM   = 0x34000
FL_C   = 0x70000
FL_AUX = 0x48000 + 0x20000
GO     = 0x1000
XNT    = 0x100000
AT     = 0x400000
W2P    = 0x700000
ACT    = 0xA00000
WS_SIZE= 0x1000000
LOG2E = 0x3FB8AA3B
SPIN_MAX = int(os.environ.get('SPIN_MAX', '20000'))
ACT_DELAY = int(os.environ.get('ACT_DELAY', '4'))
DIAG = int(os.environ.get("DIAG", "0"))
EXP = os.environ.get("EXP", "")
STAMP = 0x40000
W2AUX = int(os.environ.get('W2AUX', '1'))
W2LATE = int(os.environ.get('W2LATE', '1'))
DIRW2 = int(os.environ.get('DIRW2', '0'))
ROT = int(os.environ.get('ROT', '0'))
TOUCHW1 = int(os.environ.get('TOUCHW1', '0'))
TOUCHW2 = int(os.environ.get('TOUCHW2', '0'))
TLB = int(os.environ.get('TLB', '0'))
S1 = int(os.environ.get('S1', '4'))
C0 = int(os.environ.get('C0', '4'))
C1 = int(os.environ.get('C1', '2'))
C2 = int(os.environ.get('C2', '10'))
TOUCH = int(os.environ.get('TOUCH', '1'))
GAP = int(os.environ.get('GAP', '2'))

P = dict(x=16, Are=18, Aim=20, Bre=22, Bim=24, Cre=26, Cim=28, ldt=30, D=32, w1=36, b1=38, w2=40, out=42, dbg=44, ws=46)
def sp(n): return f"s[{P[n]}:{P[n]+1}]"
SX, SW1, SWS, S4 = "s[4:7]", "s[8:11]", "s[12:15]", "s[48:51]"
sW, sTAG = "s3", "s52"

_st = {"n": 0}
def stamp(a, name=None, wait=False):
    if not DIAG: return
    k = _st["n"]; _st["n"] += 1
    assert k < 10, k
    a(f"{'s_memtime' if os.environ.get('CYC') else 's_memrealtime'} s[{82+2*k}:{83+2*k}]")
    if wait: a("s_waitcnt lgkmcnt(0)")
def stamp_reset(n=0): _st["n"] = n
def stamp_flush(a, tmp):
    if not DIAG: return
    a("s_waitcnt lgkmcnt(0)")
    a(f"s_lshl_b32 s80, s2, 2\ns_add_u32 s80, s80, {sW}\ns_lshl_b32 s80, s80, 6\ns_add_u32 s80, s80, {STAMP}\nv_mov_b32 v{tmp+1}, 0\ns_mov_b64 exec, 1")
    for k in range(10):
        a(f"v_mov_b32 v{tmp}, s{82+2*k}\nbuffer_store_dword v{tmp}, v{tmp+1}, {SWS}, s80 offen offset:{4*k}\ns_nop 1")
    a("s_mov_b64 exec, -1")

def v(i, n=1): return f"v{i}" if n == 1 else f"v[{i}:{i+n-1}]"

def srd(a, base, ptr, size):
    a(f"""s_mov_b32 s{base}, s{P[ptr]}
    s_mov_b32 s{base+1}, s{P[ptr]+1}
    s_mov_b32 s{base+2}, {size}
    s_mov_b32 s{base+3}, 0x20000""")

def spin(a, load, cmp, scnt="s60", slp=4):
    L = a.label("Lspin"); Lok = a.label("Lok")
    a(cmp)
    a(f"s_cbranch_scc1 {Lok}")
    a(f"s_mov_b32 {scnt}, {SPIN_MAX}")
    a(f"{L}:")
    a(f"s_sleep {slp}")
    a(load)
    a("s_waitcnt vmcnt(0)")
    a(cmp)
    a(f"s_cbranch_scc1 {Lok}")
    a(f"s_sub_u32 {scnt}, {scnt}, 1")
    a(f"s_cmp_lg_u32 {scnt}, 0")
    a(f"s_cbranch_scc1 {L}")
    a(f"{Lok}:")

def cmpn(regs):
    dst = ["vcc", "s[62:63]", "s[64:65]", "s[66:67]"][:len(regs)]
    t = "\n".join(f"v_cmp_ne_u32 {d}, {sTAG}, v{r}" for d, r in reversed(list(zip(dst, regs))))
    for d in dst[1:]: t += f"\ns_or_b64 vcc, vcc, {d}"
    return t + "\ns_cmp_eq_u64 vcc, 0"

def poll256_issue(a, base, stride, r=4, s0=72):
    a(f"v_mul_u32_u24 v{r+4}, {stride}, v0")
    for n in range(4): a(f"s_mov_b32 s{s0+n}, {base + 64*stride*n}")
    ld = "\n".join(f"buffer_load_dword v{r+n}, v{r+4}, {SWS}, s{s0+n} offen sc1" for n in range(4))
    a(ld)
    return ld
def poll256(a, base, stride, slp=4, r=4):
    ld = poll256_issue(a, base, stride, r)
    a("s_waitcnt vmcnt(0)")
    spin(a, ld, cmpn([r, r+1, r+2, r+3]), slp=slp)

def go_issue(a, r, s="s75"):
    a(f"""v_mov_b32 v{r+1}, 0
    s_and_b32 {s}, s2, 7
    s_lshl_b32 {s}, {s}, 7
    s_add_u32 {s}, {s}, {GO}""")
    return f"buffer_load_dword v{r}, v{r+1}, {SWS}, {s} offen sc1"
def go_wait(a, r):
    ld = go_issue(a, r)
    a(ld); a("s_waitcnt vmcnt(0)")
    spin(a, ld, cmpn([r]), slp=3)

def flag_store(a, soff, t0, t1, track=None):
    a(f"""v_mov_b32 v{t0}, {sTAG}
    v_mov_b32 v{t1}, 0
    s_mov_b64 exec, 1""")
    txt = f"buffer_store_dword v{t0}, v{t1}, {SWS}, {soff} offen sc1"
    if track is not None: a.vmem(txt, track)
    else: a(txt)
    a("s_mov_b64 exec, -1")

def prologue(a):
    a(f"""s_cmp_ge_u32 s2, 512
    s_cbranch_scc1 Lend
    s_load_dwordx16 s[16:31], s[0:1], 0
    s_load_dwordx16 s[32:47], s[0:1], 64""")
    if DIAG:
        for k in range(82, 102): a(f"s_mov_b32 s{k}, 0")
    stamp(a, "start")
    a(f"""v_lshrrev_b32 v1, 6, v0
    v_and_b32 v0, 63, v0
    v_readfirstlane_b32 {sW}, v1
    s_waitcnt lgkmcnt(0)
    s_load_dword s53, {sp('ws')}, 0""")
    srd(a, 4, 'x', 2621440)
    srd(a, 8, 'w1', 1966080)
    srd(a, 12, 'ws', WS_SIZE)
    a("""s_cmp_lt_u32 s2, 256
    s_cbranch_scc1 Lssm""")

def make_tag(a):
    a(f"""s_waitcnt lgkmcnt(0)
    s_mul_i32 {sTAG}, s53, 0x9E3779B1
    s_add_u32 {sTAG}, {sTAG}, 0x7F4A7C15""")

def gemm(a):
    vX0, vX1, vW0, vW1 = 1, 2, 3, 4
    xr = [5, 6, 7, 8]
    wrl, wrh = 9, 10
    vAS = 11
    c1, c2, c3 = 12, 13, 14
    vT = 15
    EXT = 16
    T = [22, 23, 24, 25]
    OUT = 26
    EQ = 34
    A0, A1 = 38, 39
    SUMA = 22
    def accof(s): return ACC + 16*((s+1) % 2)
    WF = 40
    ACC = 64
    XF = 96
    sRB, sFP, sTH, sFH = "s54", "s55", "s56", "s57"
    sM, sSO, sAS, sT0 = "s58", "s59", "s61", "s68"
    if EXP == "nogemm": a("s_endpgm")
    a(f"""s_setprio {os.environ.get('PG0','0')}
    s_and_b32 s68, s2, 7
    s_lshr_b32 s69, s2, 3
    s_and_b32 s69, s69, 31
    s_lshr_b32 {sRB}, s68, 1
    s_lshl_b32 {sRB}, {sRB}, 3
    s_and_b32 s70, s69, 7
    s_add_u32 {sRB}, {sRB}, s70
    s_and_b32 {sFP}, s68, 1
    s_lshl_b32 {sFP}, {sFP}, 2
    s_lshr_b32 s70, s69, 3
    s_add_u32 {sFP}, {sFP}, s70
    s_lshl_b32 {sM}, {sW}, 11
    v_lshrrev_b32 v22, 3, v0
    s_lshl_b32 s70, {sW}, 4
    v_add_u32 v22, s70, v22
    v_lshrrev_b32 v23, 4, v0
    v_and_b32 v24, 7, v0
    v_xor_b32 v25, v24, v23
    s_lshl_b32 s71, {sRB}, 6
    v_add_u32 v26, s71, v22
    v_mul_u32_u24 v26, 0x500, v26
    v_lshl_add_u32 v{vX0}, v25, 4, v26
    v_xor_b32 v25, 4, v25
    v_lshl_add_u32 v{vX1}, v25, 4, v26
    v_add_u32 v{vX1}, {8*1280-1024}, v{vX1}
    v_and_b32 v23, 1, v23
    v_lshlrev_b32 v23, 2, v23
    v_xor_b32 v25, v24, v23
    v_mul_u32_u24 v26, 0xc00, v22
    v_lshl_add_u32 v{vW0}, v25, 4, v26
    s_mul_i32 s70, {sFP}, 384
    v_add_u32 v{vW0}, s70, v{vW0}
    v_add_u32 v{vW1}, {8*3072-1024}, v{vW0}""")

    if ROT:
        a(f"""s_and_b32 s70, {sRB}, 7
        s_and_b32 s71, {sFP}, 3
        s_mul_i32 s71, s71, {3*ROT}
        s_mul_i32 s70, s70, {ROT}
        s_add_u32 s70, s70, s71
        s_cmp_ge_u32 s70, 10
        s_cselect_b32 s71, 10, 0
        s_sub_u32 s70, s70, s71""")
        for kc in range(10):
            a(f"""s_lshl_b32 s{16+kc}, s70, 7
            s_mul_i32 s{26+kc}, s70, 196608""")
            if kc < 9: a("s_add_u32 s70, s70, 1\ns_cmp_eq_u32 s70, 10\ns_cselect_b32 s70, 0, s70")
    else:
        for kc in range(5): a(f"s_movk_i32 s{16+kc}, {128*kc}\ns_mov_b32 s{26+kc}, {196608*kc}")

    def chunk_info(c):
        if c < 20:
            return ('X', 0, c//2) if c % 2 == 0 else ('W', 0, c//2)
        return ('W', 1 + (c-20)//10, (c-20) % 10)
    def dma_half(c, h):
        kind, s, kc = chunk_info(c)
        slot = c % 10
        if h == 0:
            a(f"s_add_u32 m0, {sM}, {slot*8192}")
            if kind == 'W' and s > 0 and kc == 0: a(f"v_add_u32 v{vW0}, 128, v{vW0}\nv_add_u32 v{vW1}, 128, v{vW1}")
        r, sr, so = ((vX0, vX1)[h], SX, 16+kc) if kind == 'X' else ((vW0, vW1)[h], SW1, 26+kc)
        a.vmem(f"buffer_load_dwordx4 v{r}, {sr}, s{so} offen {'offset:1024 ' if h else ''}lds", ('c', c))
    for c in range(10): dma_half(c, 0); dma_half(c, 1)
    if not ROT:
        for kc in range(5, 10): a(f"s_movk_i32 s{16+kc}, {128*kc}\ns_mov_b32 s{26+kc}, {196608*kc}")

    srd(a, 48, 'out', 2621440)
    a(f"""s_and_b32 {sTH}, {sW}, 1
    s_lshr_b32 {sFH}, {sW}, 1
    v_and_b32 v22, 31, v0
    v_lshrrev_b32 v23, 5, v0
    v_lshrrev_b32 v24, 1, v22
    v_and_b32 v24, 7, v24
    s_lshl_b32 s70, {sTH}, 12
    v_lshl_add_u32 v25, v22, 7, s70""")
    for j in range(4):
        a(f"""v_add_u32 v26, {2*j}, v23
        v_xor_b32 v26, v26, v24
        v_lshl_add_u32 v{xr[j]}, v26, 4, v25""")
    a(f"""v_lshrrev_b32 v26, 4, v22
    s_lshl_b32 s70, {sTH}, 1
    v_add_u32 v26, s70, v26
    v_mul_u32_u24 v26, 0xc000, v26
    v_lshl_add_u32 v26, v23, 8, v26
    v_and_b32 v27, 15, v0
    v_lshl_add_u32 v{vAS}, v27, 4, v26
    v_lshrrev_b32 v24, 2, v27
    v_and_b32 v25, 3, v0
    v_lshrrev_b32 v26, 4, v0
    v_and_b32 v26, 1, v26
    v_lshlrev_b32 v26, 1, v26
    v_lshrrev_b32 v28, 1, v25
    v_add_u32 v26, v26, v28
    s_lshl_b32 s70, {sFH}, 2
    v_add_u32 v26, s70, v26
    v_lshrrev_b32 v28, 1, v24
    v_lshlrev_b32 v28, 2, v28
    v_xor_b32 v26, v26, v28
    v_lshl_add_u32 v28, v23, 3, v24
    v_lshlrev_b32 v28, 7, v28
    v_lshl_add_u32 v28, v26, 4, v28
    v_and_b32 v25, 1, v25
    v_lshl_add_u32 v{wrl}, v25, 3, v28
    v_add_u32 v{wrh}, 0x10000, v{wrl}
    v_add_u32 v{vT}, -1, v23
    s_mul_i32 {sAS}, {sRB}, 192
    s_mul_i32 s70, {sFP}, 6
    s_add_u32 {sAS}, {sAS}, s70
    s_add_u32 {sAS}, {sAS}, {sFH}
    s_lshl_b32 {sAS}, {sAS}, 10
    s_add_u32 {sAS}, {sAS}, {ACT}
    s_mul_i32 s81, {sRB}, 3072
    s_lshl_b32 s71, {sFP}, 7
    s_add_u32 s81, s81, s71
    s_add_u32 s81, s81, {FL_ACT}""")
    a(f"""v_mov_b32 v{EXT}, 0
    v_mov_b32 v{EXT+1}, 0
    v_and_b32 v24, 7, v0
    v_lshrrev_b32 v25, 2, v24
    v_and_b32 v24, 3, v24
    s_and_b32 s70, {sFP}, 3
    s_mul_i32 s70, s70, 3
    s_add_u32 s70, s70, 1
    v_add_u32 v25, s70, v25
    v_lshlrev_b32 v25, 3, v25
    v_lshl_add_u32 v25, v24, 1, v25
    s_lshr_b32 s70, {sFP}, 2
    v_add_u32 v25, s70, v25
    v_lshlrev_b32 v{EQ}, 7, v25
    s_mul_i32 s70, {sFP}, 192
    s_lshl_b32 s71, {sFH}, 5
    s_add_u32 s70, s70, s71
    v_add_u32 v24, s70, v22
    v_lshlrev_b32 v{EQ+1}, 2, v24
    v_lshlrev_b32 v24, 1, v24
    v_mul_u32_u24 v25, 6144, v23
    v_add_u32 v{EQ+1}, v{EQ+1}, v25
    v_lshl_add_u32 v{EQ+2}, v23, 7, v24
    v_mov_b32 v{EXT+3}, 0
    s_mov_b32 s69, 0x3f803f80""")
    a.vmem(f"global_load_short_d16_hi v{EXT+3}, v24, {sp('b1')}", 'b10')
    for r in range(22, 34): a(f"v_mov_b32 v{r}, 0")
    make_tag(a)

    wf_next = [0]
    def wfrag_alloc():
        r = WF + 4*(wf_next[0] % 6); wf_next[0] += 1; return r
    def read_w(c, j):
        slot = c % 10
        r = wfrag_alloc()
        base, off = (wrl, slot*8192) if slot < 8 else (wrh, (slot-8)*8192)
        a.ds(f"ds_read_b64_tr_b16 {v(r,2)}, v{base} offset:{off + 128*16*j}", ('w', c, j))
        a.ds(f"ds_read_b64_tr_b16 {v(r+2,2)}, v{base} offset:{off + 128*(16*j+4)}", ('w', c, j))
        return r
    def mfma1(acc, wfr, xfr, first):
        a(f"v_mfma_f32_32x32x16_bf16 {v(acc,16)}, {v(wfr,4)}, {v(xfr,4)}, {'0' if first else v(acc,16)}")

    side = []
    def run_side(n):
        for _ in range(n):
            if side: side.pop(0)()

    def mish_items(s):
        acc = accof(s)
        items = []
        for qd in range(4):
            R = [acc + 4*qd + k for k in range(4)]
            def f1(R=R):
                for k in range(4): a(f"v_mul_f32 v{T[k]}, v{c1}, v{R[k]}")
                for k in range(4): a(f"v_exp_f32 v{T[k]}, v{T[k]}")
                for k in range(4): a(f"v_add_f32 v{T[k]}, 1.0, v{T[k]}")
                for k in range(4): a(f"v_fma_f32 v{T[k]}, v{T[k]}, v{T[k]}, 1.0")
            def f2(R=R, qd=qd):
                for k in range(4): a(f"v_rcp_f32 v{T[k]}, v{T[k]}")
                for k in range(4): a(f"v_fma_f32 v{T[k]}, v{T[k]}, v{c2}, v{c3}")
                for k in range(4): a(f"v_mul_f32 v{T[k]}, v{T[k]}, v{R[k]}")
                a(f"v_cvt_pk_bf16_f32 v{OUT+2*qd}, v{T[0]}, v{T[1]}\nv_cvt_pk_bf16_f32 v{OUT+2*qd+1}, v{T[2]}, v{T[3]}")
                if qd % 2 == 1:
                    gp = qd // 2
                    a(f"s_add_u32 {sT0}, {sAS}, {2048*s}")
                    a.vmem(f"buffer_store_dwordx4 {v(OUT+4*gp,4)}, v{vAS}, {SWS}, {sT0} offen offset:{512*gp} sc1", ('act', s))
            items += [f1, f2]
        return items

    SPLIT = ("v_and_b32 v{q1}, 0xffff0000, v{q}", "v_sub_f32 v{q}, v{q}, v{q1}", "v_and_b32 v{q2}, 0xffff0000, v{q}",
             "v_sub_f32 v{q}, v{q}, v{q2}", "v_lshrrev_b32 v{q1}, 16, v{q1}", "v_lshrrev_b32 v{q}, 16, v{q}",
             "v_or_b32 v{q1}, v{q1}, v{q2}", "v_or_b32 v{q}, v{q}, v{b}", "v_and_b32 v{d0}, v{m}, v{q1}", "v_and_b32 v{d1}, v{m}, v{q}")
    SUM4 = ("v_add_f32 v{q}, v{q}, v{q1}", "v_add_f32 v{q2}, v{q2}, v{q3}", "v_add_f32 v{q}, v{q}, v{q2}")
    def local_stats():
        a.wait(vm=['b10'])
        for tmpl in SUM4 + ("v_mov_b32 v{q1}, v{q}", "v_permlane32_swap_b32 v{q}, v{q1}", "v_add_f32 v{q}, v{q}, v{q1}"):
            for q in (22, 26, 30): a(tmpl.format(q=q, q1=q+1, q2=q+2, q3=q+3))
        INV640 = 0x3ACCCCCD
        L = a.label("Lvar")
        a(f"""v_mul_f32 v22, {INV640}, v22
        v_mul_f32 v26, {INV640}, v26
        v_mul_f32 v23, v22, v22
        v_sub_f32 v26, v26, v23
        v_mul_f32 v24, 0x41800000, v26
        v_sub_f32 v22, 0, v22
        v_cmp_nle_f32 vcc, v23, v24
        s_cbranch_vccz {L}
        v_mov_b32 v26, 0
        v_mov_b32 v27, 0""")
        for r in range(XF, XF+160):
            a(f"""v_lshlrev_b32 v24, 16, v{r}
            v_and_b32 v25, 0xffff0000, v{r}
            v_add_f32 v24, v24, v22
            v_add_f32 v25, v25, v22
            v_fmac_f32 v26, v24, v24
            v_fmac_f32 v27, v25, v25""")
        a(f"""v_add_f32 v26, v26, v27
        v_mov_b32 v27, v26
        v_permlane32_swap_b32 v26, v27
        v_add_f32 v26, v26, v27
        v_mul_f32 v26, {INV640}, v26
        {L}:
        v_cvt_pk_bf16_f32 v27, v26, v26
        v_cvt_pk_bf16_f32 v{EXT+4}, v22, v22
        v_and_b32 v27, 0xffff0000, v27
        v_add_f32 v27, 0x3727C5AC, v27
        v_cvt_pk_bf16_f32 v27, v27, v27
        v_and_b32 v27, 0xffff0000, v27
        v_sqrt_f32 v27, v27
        v_cvt_pk_bf16_f32 v{EXT+5}, v22, v27
        v_and_b32 v{c3}, 0xffff0000, v{EXT+5}
        v_rcp_f32 v{c3}, v{c3}""")
        for tmpl in SPLIT: a(tmpl.format(q=30, q1=31, q2=32, b=EXT+3, d0=EXT+2, d1=EXT+3, m=vT))
        a(f"""v_mul_f32 v{c1}, {LOG2E}, v{c3}
        v_mul_f32 v{c2}, -2.0, v{c3}""")
    def ext_items():
        def l0():
            a(f"v_mov_b32 v26, 0\ns_mov_b32 s70, {CSUM}\ns_mov_b32 s71, {CSUM+12288}")
            for s in (1, 2):
                a.vmem(f"buffer_load_dword v{20+2*s}, v{EQ+1}, {SWS}, s70 offen offset:{256*s} sc1", 'ext')
                a.vmem(f"buffer_load_dword v{21+2*s}, v{EQ+1}, {SWS}, s71 offen offset:{256*s} sc1", 'ext')
            a.vmem(f"global_load_short_d16_hi v26, v{EQ+2}, {sp('b1')} offset:128", 'ext')
        return [l0]
    def ext_build():
        a.wait(vm=['ext'])
        a(f"v_and_b32 v27, v{vT}, v26\nv_xor_b32 v28, v27, v26")
        for tmpl in ("v_add_f32 v{q}, v{q}, v{q1}", "v_and_b32 v{q1}, 0xffff0000, v{q}", "v_sub_f32 v{q}, v{q}, v{q1}", "v_and_b32 v{d0}, 0xffff0000, v{q}",
                     "v_sub_f32 v{q}, v{q}, v{d0}", "v_lshrrev_b32 v{q1}, 16, v{q1}", "v_lshrrev_b32 v{q}, 16, v{q}",
                     "v_or_b32 v{d0}, v{q1}, v{d0}", "v_or_b32 v{d1}, v{q}, v{b}"):
            for s in (1, 2):
                q = 20 + 2*s
                a(tmpl.format(q=q, q1=q+1, b=26+s, d0=EQ+2*s-2, d1=EQ+2*s-1))
    def ext_mfma(s):
        acc = accof(s)
        if s: a(f"v_mov_b32 v{EXT+2}, v{EQ+2*s-2}\nv_mov_b32 v{EXT+3}, v{EQ+2*s-1}")
        a(f"v_mfma_f32_32x32x16_bf16 {v(acc,16)}, {v(EXT,4)}, {v(EXT+2,4)}, {v(acc,16)}")

    G2A = XF; NA = 12
    G2W = XF + 96
    G2ACC = WF
    G2X = XF + 136
    G2M = XF + 146
    vA0, vA1, vD2, w2l, w2h, vO = vX0, vX1, xr[0], xr[1], xr[2], xr[3]
    sA2, sW2, sM2 = "s72", "s73", "s74"
    def g2_setup_a():
        a(f"""v_lshlrev_b32 v{vA0}, 4, v0
        s_lshl_b32 s70, {sTH}, 1
        s_add_u32 s71, s70, {sFH}
        s_mul_i32 s71, s71, 49152
        s_xor_b32 s76, {sFH}, 1
        s_add_u32 s70, s70, s76
        s_mul_i32 s70, s70, 49152
        s_lshl_b32 s76, {sFH}, 10
        s_add_u32 s70, s70, s76
        s_add_u32 s71, s71, s76
        s_mul_i32 {sM2}, {sW}, 2560
        v_add_u32 v{vD2}, {sM2}, v{vA0}
        v_add_u32 v{vA1}, s70, v{vA0}
        v_add_u32 v{vA0}, s71, v{vA0}
        s_mul_i32 {sA2}, {sRB}, {192*1024}
        s_add_u32 {sA2}, {sA2}, {ACT}
        s_mul_i32 {sW2}, {sFP}, 245760
        s_add_u32 {sW2}, {sW2}, {W2P}""")
    def g2_setup_b():
        t0, t1 = A0, A1
        a(f"""v_lshrrev_b32 v{t0}, 5, v0
        v_lshlrev_b32 v{t0}, 4, v{t0}
        v_lshrrev_b32 v{t1}, 2, v0
        v_and_b32 v{t1}, 7, v{t1}
        v_add_u32 v{t0}, v{t0}, v{t1}
        s_lshl_b32 s70, {sFH}, 5
        v_add_u32 v{t0}, s70, v{t0}
        v_mul_u32_u24 v{t0}, 160, v{t0}
        v_and_b32 v{t1}, 3, v0
        v_lshl_add_u32 v{w2l}, v{t1}, 3, v{t0}
        v_add_u32 v{w2h}, 71680, v{w2l}
        s_lshl_b32 s70, {sTH}, 1
        s_add_u32 s70, s70, {sFH}
        s_lshl_b32 s70, s70, 4
        s_lshl_b32 s71, {sRB}, 6
        s_add_u32 s70, s70, s71
        v_and_b32 v{t0}, 15, v0
        v_add_u32 v{t0}, s70, v{t0}
        v_mul_u32_u24 v{t0}, 0x500, v{t0}
        v_lshrrev_b32 v{t1}, 4, v0
        v_lshl_add_u32 v{t0}, v{t1}, 3, v{t0}
        s_mul_i32 s70, {sFP}, 160
        v_add_u32 v{vO}, s70, v{t0}""")
    def g2_setup_c():
        a(f"""s_and_b32 s70, {sFP}, 3
        s_lshl_b32 s70, s70, 1
        s_add_u32 s70, s70, {sRB}
        s_mul_i32 s70, s70, {ROT}""")
        for p in range(8):
            a(f"""s_and_b32 s70, s70, 7
            s_mul_i32 s71, s70, 6144
            s_add_u32 s{16+p}, s71, {sA2}
            s_mul_i32 s71, s70, {192*1280 if DIRW2 else 30720}
            s_add_u32 s{26+p}, s71, {'0' if DIRW2 else sW2}
            s_add_u32 s70, s70, 1""")
    def g2_setup_d():
        a(f"""s_mov_b32 s8, s{P['w2']}
        s_mov_b32 s9, s{P['w2']+1}
        s_mul_i32 s70, {sW}, 160
        s_mul_i32 s71, {sFP}, 160""")
        for h, r in enumerate((vD2, vW0, vW1)):
            a(f"""v_add_u32 v{A0}, s70, v0
            v_add_u32 v{A0}, {64*h}, v{A0}
            v_mul_u32_u24 v{A1}, 6554, v{A0}
            v_lshrrev_b32 v{A1}, 16, v{A1}
            v_mul_u32_u24 v{r}, 10, v{A1}
            v_sub_u32 v{A0}, v{A0}, v{r}
            v_mul_u32_u24 v{A1}, 0x500, v{A1}
            v_lshl_add_u32 v{r}, v{A0}, 4, v{A1}
            v_add_u32 v{r}, s71, v{r}""")
            if h: a(f"v_add_u32 v{r}, {-1024*h}, v{r}")
    def st_sp(sg): return sg // 8, sg % 8
    def dma_w2_piece(sg, h):
        s2, p = st_sp(sg)
        if h == 0:
            a(f"s_add_u32 m0, {sM2}, {(sg % 8)*10240}")
            if s2 > 0 and p == 0:
                if DIRW2:
                    for r in (vD2, vW0, vW1): a(f"v_add_u32 v{r}, {64*1280}, v{r}")
                else: a(f"v_add_u32 v{vD2}, 10240, v{vD2}")
        if h == 2: a("s_mov_b64 exec, 0xffffffff")
        if DIRW2: a.vmem(f"buffer_load_dwordx4 v{(vD2, vW0, vW1)[h]}, {SW1}, s{26+p} offen offset:{1024*h} lds", ('d2', sg))
        else: a.vmem(f"buffer_load_dwordx4 v{vD2}, {SWS}, s{26+p} offen offset:{1024*h} sc1 lds", ('d2', sg))
        if h == 2: a("s_mov_b64 exec, -1")
    def load_act(sg):
        s2, p = st_sp(sg)
        r = G2A + 8*(sg % NA)
        if s2 > 0 and p == 0: a(f"v_add_u32 v{vA0}, 2048, v{vA0}\nv_add_u32 v{vA1}, 2048, v{vA1}")
        a.vmem(f"buffer_load_dwordx4 {v(r,4)}, v{vA0}, {SWS}, s{16+p} offen {os.environ.get('ASC','sc1')}", ('a2', sg))
        a.vmem(f"buffer_load_dwordx4 {v(r+4,4)}, v{vA1}, {SWS}, s{16+p} offen {os.environ.get('ASC','sc1')}", ('a2', sg))
    def pregs(s2): return [(XF, XF+1), (XF+94, XF+95), (G2M+4, G2M+5)][s2]
    def pa_ld(s2):
        pv, pa = pregs(s2)
        return f"buffer_load_dword v{pv}, v{pa}, {SWS}, s{78+s2} offen sc1"
    def poll_act_issue(s2):
        pv, pa = pregs(s2)
        a(f"""v_and_b32 v{pa}, 7, v0
        v_lshlrev_b32 v{pa}, 7, v{pa}
        s_mul_i32 s{78+s2}, {sRB}, 3072
        s_add_u32 s{78+s2}, s{78+s2}, {FL_ACT + 1024*s2}""")
        w0_issue(pa_ld(s2), ('pa', s2))
    def poll_act_check(s2):
        w0_check(pa_ld(s2), [pregs(s2)[0]], ('pa', s2))
    def w0_issue(ld, tag):
        L = a.label("Lw0")
        a(f"s_cmp_lg_u32 {sW}, 0\ns_cbranch_scc1 {L}")
        a(ld)
        a(f"{L}:")
        a.vm.append(('VIRT', tag))
    def w0_check(ld, regs, tag):
        L = a.label("Lw0")
        a(f"s_cmp_lg_u32 {sW}, 0\ns_cbranch_scc1 {L}")
        q = list(a.vm); d = dict(a.done)
        a.wait(vm=[('VIRT', tag)])
        a.vm[:] = [t for t in q if t != ('VIRT', tag)]; a.done.clear(); a.done.update(d)
        spin(a, ld, cmpn(regs))
        a(f"{L}:")
    flagged = set(); act_age = {}
    def pre_barrier(tags, lg="all"):
        tags = list(tags)
        for ss in range(3):
            if ss in flagged: continue
            if a.vm.count(('act', ss)) + a.done.get(('act', ss), 0) == 2:
                act_age[ss] = act_age.get(ss, 0) + 1
                if act_age[ss] >= ACT_DELAY: tags.append(('act', ss))
        a.wait(vm=tags, lg=lg)
        a("s_barrier")
        for ss in range(3):
            if ss not in flagged and a.done.get(('act', ss), 0) == 2:
                a(f"s_add_u32 s70, s81, {1024*ss}")
                flag_store(a, "s70", A0, A1, ('fl', ss)); flagged.add(ss)

    steps = [(s, kc) for s in range(3) for kc in range(10)]
    next_dma = 10; w2_issued = 0; act_issued = 0
    pend = []
    for si, (s, kc) in enumerate(steps):
        cw = 2*kc + 1 if s == 0 else 10 + 10*s + kc
        pre_barrier([('c', cw)], lg=())
        if (DIAG == 1 and (s, kc) in ((0, 0), (1, 0), (1, 4), (2, 0))) or (DIAG == 2 and s == 1 and kc < 9) or (DIAG == 3 and s == 2 and kc != 0) or (DIAG == 5 and s == 0 and kc < 9): stamp(a, f'g1 {s},{kc}', True)
        dq = []
        if si >= 2:
            nrel = 2 if (s == 0 or (s == 1 and kc <= 1)) else 1
            for _ in range(nrel):
                if next_dma < 40:
                    dq += [(dma_half, next_dma, 0), (dma_half, next_dma, 1)]; next_dma += 1
        if s == 2 and kc >= 4:
            while w2_issued < 8 and -(-10240*(w2_issued+1)//8192) <= kc - 1:
                dq += [(dma_w2_piece, w2_issued, h) for h in range(3)]; w2_issued += 1
        def dma_some(n):
            for _ in range(n):
                if dq:
                    f, x1, x2 = dq.pop(0); f(x1, x2)
        prev = pend; pend = []
        acc = accof(s)
        xf = XF + 16*kc
        hi = (s == 0 and (2*kc) % 10 == 8)
        if hi:
            for j in range(4): a(f"v_add_u32 v{xr[j]}, 0x10000, v{xr[j]}")
        def rd(j):
            r = read_w(cw, j)
            if s == 0:
                slot = (2*kc) % 10
                off = slot*8192 if slot < 8 else (slot-8)*8192
                a.ds(f"ds_read_b128 {v(xf+4*j,4)}, v{xr[j]} offset:{off}", ('w', cw, j))
            pend.append((acc, r, xf + 4*j, kc == 0 and j == 0, ('w', cw, j)))
        def mf():
            if prev:
                m = prev.pop(0); a.wait(lg=[m[4]]); mfma1(*m[:4])
        per = -(-len(dq)//4)
        rd(0); rd(1)
        mf(); dma_some(per)
        mf(); rd(2); rd(3); dma_some(per)
        if hi:
            for j in range(4): a(f"v_add_u32 v{xr[j]}, 0xffff0000, v{xr[j]}")
        run_side(1)
        mf(); dma_some(per)
        run_side(2)
        mf(); dma_some(per)
        lds_ = f"buffer_load_dword v{A0}, v{EQ}, {SWS}, s75 offen sc1"
        ldw2 = "\n".join(f"s_mov_b32 s76, {FL_AUX + 8192*n}\nbuffer_load_dword v{XF+3+n}, v{XF+2}, {SWS}, s76 offen sc1" for n in range(2 if W2AUX else 4))
        if (s, kc) == (1, 7): g2_setup_a()
        if (s, kc) == (1, 8): g2_setup_b()
        if (s, kc) == (int(os.environ.get('PGS', '1')), 0): a(f"s_setprio {os.environ.get('PG','2')}")
        if s == 0:
            a.wait(lg="all")
            for m in pend:
                for k in range(4): a(f"v_dot2_f32_bf16 v{22+k}, v{m[2]+k}, s69, v{22+k}")
                for k in range(4): a(f"v_dot2_f32_bf16 v{26+k}, v{m[2]+k}, v{m[2]+k}, v{26+k}")
                for k in range(4): a(f"v_dot2_f32_bf16 v{30+k}, v{m[1]+k}, s69, v{30+k}")
        if (s, kc) == (0, 9): local_stats()
        if (s, kc) == (1, 0):
            ext_mfma(0); side.extend(mish_items(0))
        if (s, kc) == (1, 3):
            a(f"s_mov_b32 s75, {FL_S}")
            w0_issue(lds_, 'ps')
        if (s, kc) == (1, 5): w0_check(lds_, [A0], 'ps')
        if (s, kc) == (1, 6): run_side(100); side.extend(ext_items())
        if (s, kc) == (1, 9): ext_build()
        if (s, kc) == (2, 0):
            run_side(100); ext_mfma(1); side.extend(mish_items(1))
        if (s, kc) == (2, 1) and not DIRW2:
            a(f"v_lshlrev_b32 v{XF+2}, 7, v0")
            w0_issue(ldw2, 'pw')
        if (s, kc) == (2, 2):
            g2_setup_c()
            if DIRW2: g2_setup_d()
        if (s, kc) == (2, 3) and not DIRW2: w0_check(ldw2, [XF+3, XF+4] if W2AUX else [XF+3, XF+4, XF+5, XF+6], 'pw')
        if (s, kc) == (2, C0-2): poll_act_issue(0)
        if (s, kc) == (2, C0): poll_act_check(0)
        if s == 2 and kc > C0:
            n = min(8, 3*(kc-C0))
            while act_issued < n: load_act(act_issued); act_issued += 1

    a2pend = []
    XA = G2M + 8 - 10 + 10
    for sg in range(24):
        if DIAG == 6 and sg in (3, 4, 5): stamp(a, 'prewait')
        if DIAG == 6 and sg in (3, 4, 5):
            q = list(a.vm); d = dict(a.done)
            a.wait(vm=[('d2', sg), ('a2', sg)]); stamp(a, 'postwait')
            a.vm[:] = q; a.done.clear(); a.done.update(d)
        if DIAG == 7 and sg in (11, 12, 13): stamp(a, 'prewait')
        if DIAG == 7 and sg in (11, 12, 13):
            q = list(a.vm); d = dict(a.done)
            a.wait(vm=[('d2', sg), ('a2', sg)]); stamp(a, 'postwait')
            a.vm[:] = q; a.done.clear(); a.done.update(d)
        pre_barrier([('d2', sg), ('a2', sg)])
        if (DIAG == 6 and sg in (3, 4, 5)) or (DIAG == 7 and sg in (11, 12, 13)): stamp(a, 'postbar')
        if (DIAG == 1 and sg in (0, 8, 16, 23)) or (DIAG == 4 and sg < 9): stamp(a, f'g2 {sg}')
        if os.environ.get('PG2') and sg == 3: a(f"s_setprio {os.environ.get('PG2')}")
        dq = []
        if sg == 0:
            while w2_issued < 8:
                dq += [(w2_issued, h) for h in range(3)]; w2_issued += 1
        elif w2_issued < 24:
            dq += [(w2_issued, h) for h in range(3)]; w2_issued += 1
        wb = G2W + 20*(sg % 2)
        slot = sg % 8
        base, off = (w2l, slot*10240) if slot < 7 else (w2h, 0)
        prev = a2pend; a2pend = []
        if sg == 0:
            run_side(100)
            for m in pend:
                mfma1(*m[:4])
                if dq: dma_w2_piece(*dq.pop(0))
            pend = []
            ext_mfma(2)
            side.extend(mish_items(2))
        for dt in range(5):
            a.ds(f"ds_read_b64_tr_b16 {v(wb+4*dt,2)}, v{base} offset:{off + 32*dt}", ('w2', sg))
            a.ds(f"ds_read_b64_tr_b16 {v(wb+4*dt+2,2)}, v{base} offset:{off + 32*dt + 1280}", ('w2', sg))
            for _ in range(2):
                if prev: a(prev.pop(0))
            if dq: dma_w2_piece(*dq.pop(0))
            if dt in (0, 1, 2, 3): run_side(1)
        while dq: dma_w2_piece(*dq.pop(0))
        for dt in range(5):
            for tau in range(2):
                accr = G2ACC + 20*tau + 4*dt
                a2pend.append(f"v_mfma_f32_16x16x32_bf16 {v(accr,4)}, {v(wb+4*dt,4)}, {v(G2A+8*(sg%NA)+4*tau,4)}, {'0' if sg == 0 else v(accr,4)}")
        if sg >= 1:
            lim = min(sg + NA, 8 if sg <= C1 else 16 if sg <= C2 else 24, act_issued + 2)
            while act_issued < lim: load_act(act_issued); act_issued += 1
        if sg == C1 - 2: poll_act_issue(1)
        if sg == C1: poll_act_check(1)
        if sg == C2 - 2: poll_act_issue(2)
        if sg == C2: poll_act_check(2)
        if sg == 4:
            for dt in range(5):
                a.vmem(f"buffer_load_dwordx2 {v(G2X+2*dt,2)}, v{vO}, {SX}, 0 offen offset:{32*dt}", 'xfin')
        PV = G2M + 6
        ypoll = f"buffer_load_dword v{PV}, v{PV+1}, {SWS}, s75 offen sc1"
        if sg == 17:
            a(f"""v_and_b32 v{PV+1}, 31, v0
            v_lshlrev_b32 v{PV+1}, 7, v{PV+1}
            s_lshl_b32 s75, {sFP}, 12
            s_add_u32 s75, s75, {FL_Y}
            s_mul_i32 s70, {sW}, 160
            v_add_u32 v22, s70, v0
            v_lshrrev_b32 v23, 3, v22
            s_mul_i32 s70, {sFP}, 80
            v_add_u32 v23, s70, v23
            v_lshlrev_b32 v23, 12, v23
            v_and_b32 v22, 7, v22
            v_lshl_add_u32 v22, v22, 4, v23
            v_add_u32 v23, {32768-1024}, v22
            v_add_u32 v24, {65536-2048}, v22
            s_lshl_b32 s76, {sRB}, 7
            s_add_u32 s76, s76, {AT}
            v_lshrrev_b32 v25, 2, v0
            v_lshlrev_b32 v25, 7, v25
            v_and_b32 v26, 3, v0
            v_lshl_add_u32 v25, v26, 3, v25
            s_lshl_b32 s70, {sTH}, 1
            s_add_u32 s70, s70, {sFH}
            s_lshl_b32 s70, s70, 5
            v_add_u32 v25, s70, v25
            s_mul_i32 s70, {sW}, 5120
            s_xor_b32 s71, {sW}, 2
            s_mul_i32 s71, s71, 5120
            v_lshlrev_b32 v26, 4, v0
            v_add_u32 v27, s71, v26
            v_add_u32 v26, s70, v26""")
        if sg == 19: a.vmem(ypoll, 'py')
        def dma_at(tagit=True):
            f = a.vmem if tagit else (lambda t, g: a(t))
            a(f"s_mov_b32 m0, {sM2}")
            f(f"buffer_load_dwordx4 v22, {SWS}, s76 offen sc1 lds", 'at')
            f(f"buffer_load_dwordx4 v23, {SWS}, s76 offen offset:1024 sc1 lds", 'at')
            a("s_mov_b64 exec, 0xffffffff")
            f(f"buffer_load_dwordx4 v24, {SWS}, s76 offen offset:2048 sc1 lds", 'at')
            a("s_mov_b64 exec, -1")
        if sg == 21:
            a.wait(vm=['py'])
            a(cmpn([PV]))
            a("s_cselect_b32 s77, 1, 0")
            dma_at()
    a.wait(lg="all")
    for m in [m for i, m in enumerate(a2pend) if i % 2 == 1]: a(m)
    for m in [m for i, m in enumerate(a2pend) if i % 2 == 0]: a(m)
    for dt in range(5): a(f"ds_write_b128 v26, {v(G2ACC+20+4*dt,4)} offset:{10240+1024*dt}")
    L = a.label("Lyok")
    a(f"""s_cmp_eq_u32 s77, 1
    s_cbranch_scc1 {L}
    s_waitcnt vmcnt(0)
    v_not_b32 v{PV}, {sTAG}""")
    spin(a, ypoll, cmpn([PV]))
    dma_at(False)
    a(f"{L}:")
    a("s_waitcnt vmcnt(0) lgkmcnt(0)")
    a.vm.clear(); a.lg.clear()
    a("s_barrier")
    RX = G2A; AV = G2A + 20; TT = G2W
    for dt in range(5): a.ds(f"ds_read_b64_tr_b16 {v(AV+2*dt,2)}, v25 offset:{2048*dt}", ('av', dt))
    for dt in range(5): a.ds(f"ds_read_b128 {v(RX+4*dt,4)}, v27 offset:{10240+1024*dt}", ('rx', dt))
    def unp(d, s): return f"v_lshlrev_b32 v{d}, 16, v{s}\nv_and_b32 v{d+1}, 0xffff0000, v{s}"
    for dt in range(5):
        t = TT + 8*dt
        a(unp(t, G2X+2*dt)); a(unp(t+2, G2X+2*dt+1))
    for dt in range(5):
        t = TT + 8*dt; av = AV + 2*dt
        a.wait(lg=[('av', dt)])
        a(unp(t+4, av)); a(unp(t+6, av+1))
        a(f"""v_pk_add_f32 {v(t,2)}, {v(t,2)}, {v(t+4,2)}
        v_pk_add_f32 {v(t+2,2)}, {v(t+2,2)}, {v(t+6,2)}
        v_cvt_pk_bf16_f32 v{t+4}, v{t}, v{t+1}
        v_cvt_pk_bf16_f32 v{t+5}, v{t+2}, v{t+3}""")
        a(unp(t, t+4)); a(unp(t+2, t+5))
    for dt in range(5):
        t = TT + 8*dt; k = G2ACC + 4*dt; r = RX + 4*dt
        a.wait(lg=[('rx', dt)])
        a(f"""v_pk_add_f32 {v(k,2)}, {v(k,2)}, {v(r,2)}
        v_pk_add_f32 {v(k+2,2)}, {v(k+2,2)}, {v(r+2,2)}
        v_cvt_pk_bf16_f32 v{r}, v{k}, v{k+1}
        v_cvt_pk_bf16_f32 v{r+1}, v{k+2}, v{k+3}""")
        a(unp(k, r)); a(unp(k+2, r+1))
        a(f"""v_pk_add_f32 {v(t,2)}, {v(t,2)}, {v(k,2)}
        v_pk_add_f32 {v(t+2,2)}, {v(t+2,2)}, {v(k+2,2)}
        v_cvt_pk_bf16_f32 v{t+4}, v{t}, v{t+1}
        v_cvt_pk_bf16_f32 v{t+5}, v{t+2}, v{t+3}
        buffer_store_dwordx2 {v(t+4,2)}, v{vO}, {S4}, 0 offen offset:{32*dt}""")
    if DIAG: a("s_waitcnt vmcnt(0)")
    if DIAG == 1: stamp(a, 'end')
    stamp_flush(a, 22)
    a("s_endpgm")

UPAD = 448
UCS  = 4640
USTR = 4*UCS
KB0  = 3*USTR
K1OFF = 4224
KSTR = 2*K1OFF
CVOFF = 16
UIN = 200
def u_issue(a):
    a(f"""v_lshlrev_b32 v224, 4, v0
    s_lshl_b32 s70, {sW}, 10
    v_add_u32 v224, s70, v224
    v_lshlrev_b32 v225, 1, v224
    s_mov_b32 s70, {STATS}
    buffer_load_dwordx4 {v(UIN,4)}, v225, {SWS}, s70 offen sc1
    buffer_load_dwordx4 {v(UIN+4,4)}, v225, {SWS}, s70 offen offset:16 sc1""")
    for c, sch in enumerate(("s58", "s59", "s61")):
        a(f"""s_lshl_b32 s70, {sch}, 12
        s_add_u32 s70, s70, {XNT}
        buffer_load_dwordx4 {v(UIN+8+4*c,4)}, v224, {SWS}, s70 offen sc1""")

def ssm(a):
    sI = "s54"
    a(f"""Lssm:
    s_setprio 3
    s_mov_b32 {sI}, s2
    s_lshr_b32 s56, {sI}, 1
    s_mul_i32 s56, s56, 5
    s_and_b32 s57, {sI}, 1
    s_mul_i32 s58, s57, 3
    s_add_u32 s58, s58, s56
    s_add_u32 s59, s58, 1
    s_add_u32 s61, s56, 2""")
    for c, sch in enumerate(("s58", "s59", "s61")):
        a(f"s_lshl_b32 s70, {sch}, 1\ns_and_b32 s70, s70, -4\ns_load_dword s{34+c+(c>1)*6}, {sp('D')}, s70")
    a(f"""s_cmp_eq_u32 {sW}, 3
    s_cbranch_scc1 Laux""")
    kgen(a)
    a("s_branch Lconv")
    aux(a)
    conv(a)

def kgen(a):
    sCH, sKB = "s55", "s68"
    a(f"""s_cmp_eq_u32 {sW}, 0
    s_cselect_b32 {sCH}, s58, s59
    s_cmp_eq_u32 {sW}, 2
    s_cselect_b32 {sCH}, s61, {sCH}
    s_mul_i32 {sKB}, {sW}, {USTR}
    s_mul_i32 s70, {sCH}, 384
    v_mul_u32_u24 v1, 6, v0
    v_and_b32 v1, -4, v1
    v_add_u32 v1, s70, v1""")
    PR = 8
    names = ['Are', 'Aim', 'Bre', 'Bim', 'Cre', 'Cim']
    for k, n in enumerate(names):
        a.vmem(f"global_load_dwordx2 {v(30+2*k,2)}, v1, {sp(n)}", 'par')
    a(f"""s_lshl_b32 s70, {sCH}, 1
    s_and_b32 s70, s70, -4
    s_load_dword s69, {sp('ldt')}, s70
    v_and_b32 v2, 1, v0
    v_lshlrev_b32 v2, 4, v2""")
    a(f"""    s_mov_b32 m0, {sKB}
    v_and_b32 v6, 15, v0
    v_mul_u32_u24 v7, 288, v6
    v_lshrrev_b32 v4, 4, v0
    v_lshl_add_u32 v7, v4, 4, v7
    v_add_u32 v7, {sKB}, v7""")
    if TLB:
        a(f"""v_and_b32 v26, 7, v0
        v_lshlrev_b32 v26, 21, v26
        v_mov_b32 v27, 0
        s_mov_b64 exec, 0xff""")
        a.vmem(f"buffer_load_dword v106, v26, {SWS}, 0 offen offset:512", 'touch')
        a("s_mov_b64 exec, 1")
        for n in ('w2', 'out', 'b1'): a.vmem(f"global_load_dword v107, v27, {sp(n)}", 'touch')
        a("s_mov_b64 exec, -1")
    if TOUCHW1:
        a(f"""s_mul_i32 s70, {sW}, 80
        v_add_u32 v26, s70, v0
        v_add_u32 v27, 64, v26
        s_add_u32 s70, s70, 79
        v_min_u32 v27, s70, v27
        s_lshr_b32 s71, s2, 3
        s_mul_i32 s71, s71, {20*3072}
        s_and_b32 s70, s2, 1
        s_mul_i32 s70, s70, 1536
        s_add_u32 s71, s71, s70""")
        for r in (26, 27):
            a(f"""v_mul_u32_u24 v28, 5462, v{r}
            v_lshrrev_b32 v28, 16, v28
            v_mul_u32_u24 v29, 12, v28
            v_sub_u32 v29, v{r}, v29
            v_mul_u32_u24 v28, 0xc00, v28
            v_lshl_add_u32 v28, v29, 7, v28""")
            a.vmem(f"buffer_load_dword v{r}, v28, {SW1}, s71 offen", 'touch')
    RP = 192
    srd(a, 48, 'w2', 1966080)
    a(f"""s_mul_i32 s78, s2, {6*160}
    s_add_u32 s78, s78, {W2P}
    v_lshlrev_b32 v190, 4, v0
    v_mov_b32 v188, 0
    s_mov_b32 s79, 0
    s_cmp_lg_u32 {sW}, {7 if DIRW2 or W2AUX else 0}
    s_cbranch_scc1 Lkg_now2
    v_mul_u32_u24 v188, 6554, v0
    v_lshrrev_b32 v188, 16, v188
    v_mul_u32_u24 v189, 10, v188
    v_sub_u32 v189, v0, v189
    v_mul_u32_u24 v188, 0x500, v188
    v_lshl_add_u32 v188, v189, 4, v188
    s_mul_i32 s71, s2, {6*1280}
    s_mov_b32 exec_hi, 0x0fffffff""")
    a("s_mov_b32 s79, s71")
    def w2loads():
        for c in range(8):
            a(f"buffer_load_dwordx4 {v(RP+4*c,4)}, v188, {S4}, s79 offen offset:{160*c}")
    if not W2LATE: w2loads()
    a("s_mov_b32 exec_hi, -1\nLkg_now2:")
    W2X = 0 if DIRW2 or W2LATE or W2AUX else 8
    def kwait(tag):
        q = list(a.vm); idx = max(k for k, t in enumerate(q) if t == tag); n = len(q) - 1 - idx
        L = a.label("Lkw")
        a(f"s_waitcnt vmcnt({n+W2X})\ns_cmp_eq_u32 {sW}, 0\ns_cbranch_scc1 {L}\ns_waitcnt vmcnt({n})\n{L}:")
    a(f"s_setprio {os.environ.get('PS','1')}")
    def W2T():
        a(f"""s_mul_i32 s70, {sW}, 80
        v_add_u32 v250, s70, v0
        v_add_u32 v251, 64, v250
        s_add_u32 s70, s70, 79
        v_min_u32 v251, s70, v251
        s_lshr_b32 s71, s2, 3
        s_mul_i32 s71, s71, {48*1280}
        s_and_b32 s70, s2, 1
        s_mul_i32 s70, s70, 640
        s_add_u32 s71, s71, s70""")
        for r in (250, 251):
            a(f"""v_mul_u32_u24 v252, 13108, v{r}
            v_lshrrev_b32 v252, 16, v252
            v_mul_u32_u24 v253, 5, v252
            v_sub_u32 v253, v{r}, v253
            v_mul_u32_u24 v252, 0x500, v252
            v_lshl_add_u32 v252, v253, 7, v252
            buffer_load_dword v{r}, v252, {S4}, s71 offen""")
    make_tag(a)
    stamp_reset(1)
    a(f"""s_bitcmp1_b32 {sCH}, 0
    s_cselect_b32 s70, 0, 16
    s_lshl_b32 s69, s69, s70
    s_and_b32 s69, s69, 0xffff0000
    v_mov_b32 v3, s69
    v_mul_f32 v4, {LOG2E}, v3
    s_mov_b32 s70, {LOG2E}
    v_fma_f32 v5, v3, s70, -v4
    v_fmac_f32 v5, 0x32A57060, v3
    v_exp_f32 v4, v4
    v_mul_f32 v5, 0x3F317218, v5
    v_fmac_f32 v4, v4, v5
    v_cvt_pk_bf16_f32 v4, v4, v4
    v_and_b32 v3, 0xffff0000, v4""")
    R = {r: 30 + 2*(r-1) for r in range(1, 8)}
    V = {b: 44 + 2*(b-1) for b in range(1, 16)}
    Wr, Pa, Pb = 74, 76, 78
    U = [80 + 2*i for i in range(8)]
    CVT = [96 + i for i in range(8)]
    zr, th = 104, 105
    FR = 112
    KACC = 176
    cv = [0]
    def p2(r): return f"v[{r}:{r+1}]"
    def cmuls(lst):
        if os.environ.get('NOPK'):
            for D, X, Y in lst: a(f"v_mul_f32 v{D}, v{X}, v{Y}\nv_mul_f32 v{D+1}, v{X}, v{Y+1}")
            for D, X, Y in lst: a(f"v_fma_f32 v{D}, -v{X+1}, v{Y+1}, v{D}\nv_fmac_f32 v{D+1}, v{X+1}, v{Y}")
            return
        for D, X, Y in lst:
            a(f"v_pk_mul_f32 {p2(D)}, {p2(X)}, {p2(Y)} op_sel:[0,0] op_sel_hi:[0,1]")
        for D, X, Y in lst:
            a(f"v_pk_fma_f32 {p2(D)}, {p2(X)}, {p2(Y)}, {p2(D)} op_sel:[1,1,0] op_sel_hi:[1,0,1] neg_lo:[1,0,0]")
    def emit(rows_regs, neg=False):
        ts = []
        for row, r in rows_regs:
            t = CVT[cv[0] % 8]; cv[0] += 1; ts.append((row, t))
            a(f"v_cvt_pk_bf16_f32 v{t}, v{r}, {'-' if neg else ''}v{r+1}")
        for row, t in ts:
            a(f"ds_write_addtid_b32 v{t} offset:{288*row}")
    for r in range(12): a(f"v_mov_b32 v{KACC+r}, 0")
    kwait('par')
    stamp(a, 'par', True)
    for k in range(6):
        lo, hi = 30+2*k, 31+2*k
        a(f"""v_alignbit_b32 v{lo}, v{hi}, v{lo}, v2
        v_lshrrev_b32 v{hi}, v2, v{hi}
        v_lshlrev_b32 v{PR+k}, 16, v{lo}
        v_and_b32 v{PR+6+k}, 0xffff0000, v{lo}
        v_lshlrev_b32 v{PR+12+k}, 16, v{hi}""")
    if TOUCHW2 == 2: W2T()
    a("s_mov_b32 s69, 3\nLkg:")
    a.vm.clear()
    q = PR
    a(f"""v_mul_f32 v{zr}, v3, v{q}
    v_mul_f32 v{th}, v3, v{q+1}
    v_mul_f32 v{q+2}, v3, v{q+2}
    v_mul_f32 v{q+3}, v3, v{q+3}
    v_mul_f32 v{zr}, {LOG2E}, v{zr}
    v_mul_f32 v{th}, 0.15915494, v{th}""")
    dst = [(R[1], None), (V[1], 0x41000000), (Wr, 0x43000000)]
    for k, (d, mulc) in enumerate(dst):
        e, ph = U[k], U[k]+1
        if mulc is None:
            a(f"v_exp_f32 v{e}, v{zr}\nv_fract_f32 v{ph}, v{th}")
        else:
            a(f"v_mul_f32 v{e}, {mulc}, v{zr}\nv_mul_f32 v{ph}, {mulc}, v{th}\nv_exp_f32 v{e}, v{e}\nv_fract_f32 v{ph}, v{ph}")
    for k, (d, mulc) in enumerate(dst):
        a(f"v_cos_f32 v{d}, v{U[k]+1}\nv_sin_f32 v{d+1}, v{U[k]+1}")
    cmuls([(Pa, q+4, q+2)])
    for k, (d, mulc) in enumerate(dst):
        a(f"v_mul_f32 v{d}, v{d}, v{U[k]}\nv_mul_f32 v{d+1}, v{d+1}, v{U[k]}")
    for k in range(0, 12, 2): a(f"v_pk_mul_f32 {p2(q+k)}, {p2(q+6+k)}, 1.0 op_sel_hi:[1,0]")
    a(f"v_mov_b32 v{CVT[7]}, 0x3f80")
    a(f"ds_write_addtid_b32 v{CVT[7]} offset:{288*41}")
    cmuls([(R[2], R[1], R[1]), (V[2], V[1], V[1]), (Pb, Pa, Wr)])
    emit([(0, Pa), (8, Pb)]); emit([(42, V[1]), (43, V[2])], neg=True)
    cmuls([(R[3], R[2], R[1]), (R[4], R[2], R[2]), (V[3], V[2], V[1]), (V[4], V[2], V[2]),
           (U[0], Pa, R[1]), (U[1], Pa, R[2]), (U[2], Pb, R[1]), (U[3], Pb, R[2])])
    emit([(1, U[0]), (2, U[1]), (9, U[2]), (10, U[3])]); emit([(44, V[3]), (45, V[4])], neg=True)
    cmuls([(R[5], R[4], R[1]), (R[6], R[4], R[2]), (R[7], R[4], R[3]),
           (V[5], V[4], V[1]), (V[6], V[4], V[2]), (V[7], V[4], V[3]), (V[8], V[4], V[4]),
           (U[0], Pa, R[3]), (U[1], Pa, R[4]), (U[2], Pb, R[3]), (U[3], Pb, R[4])])
    emit([(3, U[0]), (4, U[1]), (11, U[2]), (12, U[3])]); emit([(41+b, V[b]) for b in (5, 6, 7, 8)], neg=True)
    cmuls([(U[0], Pa, R[5]), (U[1], Pa, R[6]), (U[2], Pa, R[7]), (U[3], Pb, R[5]), (U[4], Pb, R[6]), (U[5], Pb, R[7])]
          + [(V[8+b], V[8], V[b]) for b in range(1, 8)] + [(U[6], Wr, Wr), (U[7], Pb, Wr)])
    W2, P2 = U[6], U[7]
    emit([(5, U[0]), (6, U[1]), (7, U[2]), (13, U[3]), (14, U[4]), (15, U[5])])
    cmuls([(Pa, Pb, W2), (U[0], P2, R[2]), (U[1], P2, R[4]), (U[2], P2, R[6])])
    cmuls([(Pb, P2, W2)])
    emit([(41+8+b, V[8+b]) for b in range(1, 8)], neg=True)
    emit([(16, P2), (17, U[0]), (18, U[1]), (19, U[2])])
    Pc, Pd = V[9], V[10]
    cmuls([(Pc, Pa, W2), (Pd, Pb, W2), (U[0], Pa, R[2]), (U[1], Pa, R[4]), (U[2], Pa, R[6]), (U[3], Pb, R[4])])
    emit([(20, Pa), (21, U[0]), (22, U[1]), (23, U[2]), (24, Pb), (25, U[3])])
    cmuls([(Pa, Pc, W2), (Pb, Pd, W2), (U[0], Pc, R[4]), (U[1], Pd, R[4])])
    emit([(26, Pc), (27, U[0]), (28, Pd), (29, U[1])])
    cmuls([(Pc, Pa, W2), (Pd, Pb, W2), (U[0], Pa, R[4]), (V[11], W2, W2)])
    emit([(30, Pa), (31, U[0]), (32, Pb)])
    W4 = V[11]
    cmuls([(Pa, Pc, W2), (U[0], Pb, W4), (U[1], Pc, W4), (U[2], Pd, W4)])
    emit([(33, Pc), (34, Pd)])
    cmuls([(U[3], Pa, W4), (U[4], U[0], W4)])
    emit([(35, Pa), (36, U[0]), (37, U[1]), (38, U[2])])
    emit([(39, U[3]), (40, U[4])])
    a("s_waitcnt lgkmcnt(0)")
    for ks in range(4):
        a.ds(f"ds_read_b128 {v(FR+16*ks+12,4)}, v7 offset:{288*41 + 64*ks}", ('fr', ks))
        for m in range(3):
            a.ds(f"ds_read_b128 {v(FR+16*ks+4*m,4)}, v7 offset:{288*16*m + 64*ks}", ('fr', ks))
    for ks in range(4):
        a.wait(lg=[('fr', ks)])
        for m in range(3):
            a(f"v_mfma_f32_16x16x32_bf16 {v(KACC+4*m,4)}, {v(FR+16*ks+4*m,4)}, {v(FR+16*ks+12,4)}, {v(KACC+4*m,4)}")
    a(f"""s_sub_u32 s69, s69, 1
    s_cmp_lg_u32 {sW}, {7 if DIRW2 or W2AUX else 0}
    s_cbranch_scc1 Lkg_n
    s_cmp_eq_u32 s69, {2-W2LATE}
    s_cbranch_scc0 Lkg_f
    s_waitcnt vmcnt(0)
    s_mov_b32 exec_hi, 0x0fffffff""")
    for c in range(8):
        a(f"buffer_store_dwordx4 {v(RP+4*c,4)}, v190, {SWS}, s78 offen sc1")
        if c < 7: a("s_add_u32 s78, s78, 245760")
    a(f"""s_mov_b32 exec_hi, -1
    s_branch Lkg
    Lkg_f:""")
    if W2LATE:
        a("s_cmp_eq_u32 s69, 2\ns_cbranch_scc0 Lkg_g\ns_mov_b32 exec_hi, 0x0fffffff")
        w2loads()
        a("s_mov_b32 exec_hi, -1\ns_branch Lkg\nLkg_g:")
    a(f"""s_cmp_eq_u32 s69, {1-W2LATE}
    s_cbranch_scc0 Lkg_n
    s_lshl_b32 s70, s2, 7
    s_add_u32 s70, s70, {FL_AUX}
    s_waitcnt vmcnt(0)""")
    flag_store(a, "s70", 190, 191)
    a("""Lkg_n:
    s_cmp_lg_u32 s69, 0
    s_cbranch_scc1 Lkg""")
    stamp(a, 'tables', True)
    if TOUCHW2 == 1:
        W2T()
    go_wait(a, 20)
    u_issue(a)
    stamp(a, 'aux seen', True)
    a(f"""v_lshrrev_b32 v4, 4, v0
    v_lshrrev_b32 v8, 1, v4
    v_and_b32 v9, 1, v4
    v_lshlrev_b32 v10, 8, v8
    v_lshl_add_u32 v10, v6, 4, v10
    v_lshl_add_u32 v10, v9, 3, v10
    v_add_u32 v10, {sKB}, v10
    v_lshlrev_b32 v11, 7, v4
    v_add_u32 v11, 512, v11
    v_sub_u32 v12, 3, v8
    v_lshlrev_b32 v12, v12, v6
    v_add_u32 v11, v11, v12
    v_add_u32 v11, {sKB}, v11
    v_mul_u32_u24 v12, 60, v8
    v_add_u32 v12, 4, v12
    v_add_u32 v12, v11, v12
    v_lshlrev_b32 v13, 7, v4
    v_lshl_add_u32 v13, v6, 1, v13
    v_add_u32 v13, {sKB}, v13
    v_mov_b32 v14, 0
    v_mov_b32 v15, {sKB}""")
    for i in range(6): a(f"v_cvt_pk_bf16_f32 v{16+i}, v{KACC+2*i}, v{KACC+2*i+1}")
    a(f"""ds_write_b64 v10, v[16:17] offset:{CVOFF}
    ds_write_b32 v11, v18 offset:{CVOFF}
    ds_write_b32 v12, v19 offset:{CVOFF}
    ds_write_b16 v13, v20 offset:{CVOFF+1024}
    ds_write_b16_d16_hi v13, v20 offset:{CVOFF+1024+32}
    ds_write_b16 v13, v21 offset:{CVOFF+1024+64}
    ds_write_b16_d16_hi v13, v21 offset:{CVOFF+1024+96}
    ds_write_b32 v15, v14 offset:{CVOFF-4}
    v_and_b32 v8, 31, v0
    v_lshl_add_u32 v9, v8, 4, {sKB}
    v_lshl_add_u32 v10, v8, 3, {sKB}
    v_min_u32 v11, 1, v8
    v_lshl_add_u32 v11, v11, 1, v10
    v_lshl_add_u32 v12, v0, 2, {sKB}
    v_lshl_add_u32 v13, v0, 1, {sKB}
    s_mul_i32 s69, {sW}, {KSTR}
    s_add_u32 s69, s69, {KB0}
    v_lshl_add_u32 v14, v0, 4, s69
    v_mov_b32 v40, 0
    v_mov_b32 v41, 0
    v_mov_b32 v42, 0
    v_mov_b32 v43, 0
    s_waitcnt lgkmcnt(0)
    ds_read_b128 v[16:19], v9 offset:{CVOFF}
    ds_read_b32 v20, v9 offset:{CVOFF-4}
    ds_read_b64 v[22:23], v10 offset:{CVOFF+512}
    ds_read_b32 v24, v10 offset:{CVOFF+512+8}
    ds_read_u16 v25, v11 offset:{CVOFF+512-2}
    ds_read_b32 v26, v12 offset:{CVOFF+768}
    ds_read_b32 v27, v12 offset:{CVOFF+768+4}
    ds_read_u16 v28, v13 offset:{CVOFF+1024}
    ds_read_u16 v60, v13 offset:{CVOFF+1024+2}
    ds_read_u16 v29, v13 offset:{CVOFF+1024+128}
    ds_read_u16 v61, v13 offset:{CVOFF+1024+130}
    s_mov_b32 s70, 0xffff
    s_mov_b32 s71, 0x01000100
    s_mov_b32 s72, 0x03020302
    s_mov_b32 s75, 0x05040100
    v_and_b32 v30, 1, v0
    v_mul_u32_u24 v31, 0x0404, v30
    v_lshlrev_b32 v30, 16, v31
    v_add_u32 v30, 0x01000504, v30
    v_add_u32 v31, 0x01000100, v31
    s_mov_b64 exec, 0xff
    ds_write_b128 v14, v[40:43]
    ds_write_b128 v14, v[40:43] offset:{K1OFF}
    s_mov_b64 exec, 0xffffffff
    s_waitcnt lgkmcnt(2)
    v_alignbit_b32 v32, v19, v19, 16
    v_alignbit_b32 v33, v18, v18, 16
    v_alignbit_b32 v34, v17, v17, 16
    v_alignbit_b32 v35, v16, v16, 16
    v_bfi_b32 v36, s70, v19, v18
    v_bfi_b32 v37, s70, v18, v17
    v_bfi_b32 v38, s70, v17, v16
    v_bfi_b32 v39, s70, v16, v20
    ds_write_b128 v14, v[32:35] offset:{K1OFF+128}
    ds_write_b128 v14, v[36:39] offset:128
    v_bfi_b32 v44, s70, v24, v23
    v_perm_b32 v45, v23, v23, s71
    v_bfi_b32 v46, s70, v23, v22
    v_perm_b32 v47, v22, v22, s71
    v_alignbit_b32 v48, v23, v23, 16
    v_mov_b32 v49, v45
    v_alignbit_b32 v50, v22, v22, 16
    v_perm_b32 v51, v25, v22, s75
    ds_write_b128 v14, v[44:47] offset:{K1OFF+128+512}
    ds_write_b128 v14, v[48:51] offset:{128+512}
    s_mov_b64 exec, -1
    v_perm_b32 v64, v27, v27, s71
    v_perm_b32 v65, v26, v26, s72
    v_alignbit_b32 v66, v26, v26, 16
    v_perm_b32 v67, v26, v26, s71
    v_bfi_b32 v68, s70, v27, v26
    v_mov_b32 v69, v65
    v_mov_b32 v70, v67
    v_mov_b32 v71, v67
    ds_write_b128 v14, v[64:67] offset:{K1OFF+128+1024}
    ds_write_b128 v14, v[68:71] offset:{128+1024}""")
    for k, src in enumerate((28, 29)):
        b = 72 + 8*k; s1 = 60 + k
        a(f"""v_perm_b32 v{b}, v{s1}, v{s1}, s71
        v_perm_b32 v{b+1}, v{s1}, v{src}, v30
        v_perm_b32 v{b+2}, v{src}, v{src}, s71
        v_perm_b32 v{b+5}, v{s1}, v{src}, v31
        v_mov_b32 v{b+3}, v{b+2}
        v_mov_b32 v{b+4}, v{b}
        v_mov_b32 v{b+6}, v{b+2}
        v_mov_b32 v{b+7}, v{b+2}
        ds_write_b128 v14, {v(b,4)} offset:{K1OFF+128+2048+1024*k}
        ds_write_b128 v14, {v(b+4,4)} offset:{128+2048+1024*k}""")
    a.vm.clear(); a.lg.clear()

def aux(a):
    sI = "s54"
    sX8, sJ = "s55", "s56"
    a("Laux:")
    X = 16
    TB = 56
    TB2 = 212
    TM = 96
    CS = 116
    TP = 244
    def blk_addr(sidx, sld, sst):
        a(f"""s_mul_i32 s70, {sidx}, 6554
        s_lshr_b32 s70, s70, 16
        s_mul_i32 s71, s70, 10
        s_sub_u32 s71, {sidx}, s71
        s_lshr_b32 s72, {sX8}, 1
        s_lshl_b32 s72, s72, 3
        s_add_u32 s70, s70, s72
        s_mul_i32 {sld}, s70, {64*1280}
        s_lshl_b32 s72, s71, 7
        s_add_u32 {sld}, {sld}, s72
        s_lshl_b32 {sst}, s71, 18
        s_lshl_b32 s72, s70, 7
        s_add_u32 {sst}, {sst}, s72
        s_add_u32 {sst}, {sst}, {XNT}""")
    def blk_load(base, sld):
        for r in range(8):
            a(f"buffer_load_dwordx4 {v(base+4*r,4)}, v{(2,3,6)[r//3]}, {SX}, {sld} offen offset:{(r%3)*1280}")
    def blk_store(base, sst):
        for c in range(8):
            o = TP + 4*(c % 2)
            for k in range(4):
                a(f"v_perm_b32 v{o+k}, v{base+4*(2*k+1)+c//2}, v{base+4*(2*k)+c//2}, {'s75' if c % 2 else 's74'}")
            a(f"buffer_store_dwordx4 {v(o,4)}, v7, {SWS}, {sst} offen sc1")
            if c < 7: a(f"s_add_u32 {sst}, {sst}, 4096")
    a(f"""s_and_b32 {sX8}, {sI}, 7
    s_lshr_b32 {sJ}, {sI}, 3
    s_setprio {os.environ.get('PA','3')}
    s_lshr_b32 s81, 0xdb6, {sJ}
    s_and_b32 s81, s81, 1
    v_lshrrev_b32 v4, 3, v0
    v_and_b32 v5, 7, v0""")
    a(f"""s_cmp_eq_u32 s81, 0
    s_cbranch_scc1 Laux_nocs
    s_lshr_b32 s77, {sX8}, 1
    s_and_b32 s78, {sX8}, 1
    s_mul_i32 s78, s78, 12
    s_add_u32 s78, s78, {sJ}
    v_mul_u32_u24 v8, 0xc00, v4
    v_lshl_add_u32 v8, v5, 4, v8
    s_mul_i32 s72, s77, {160*3072}
    s_lshl_b32 s73, s78, 7
    s_add_u32 s72, s72, s73""")
    for n in range(20):
        a(f"buffer_load_dwordx4 {v(CS+4*n,4)}, v8, {SW1}, s72 offen")
        if n < 19: a(f"s_add_u32 s72, s72, 24576")
    a(f"""Laux_nocs:
    s_lshl_b32 s68, {sX8}, 8
    s_lshl_b32 s70, {sJ}, 3
    s_add_u32 s68, s68, s70
    s_mul_i32 s70, s68, 1280
    v_mul_u32_u24 v1, 0x500, v4
    v_lshl_add_u32 v1, v5, 4, v1""")
    for n in range(10):
        a(f"buffer_load_dwordx4 {v(X+4*n,4)}, v1, {SX}, s70 offen offset:{128*n}")
    a(f"""s_and_b32 s69, {sX8}, 1
    s_mul_i32 s69, s69, 40
    s_add_u32 s69, s69, {sJ}
    v_mul_u32_u24 v2, {8*1280}, v5
    v_lshl_add_u32 v2, v4, 4, v2
    v_add_u32 v3, {3*1280}, v2
    v_add_u32 v6, {6*1280}, v2
    v_lshlrev_b32 v7, 15, v4
    v_lshl_add_u32 v7, v5, 4, v7""")
    blk_addr("s69", "s73", "s79")
    blk_load(TB, "s73")
    a(f"""s_cmp_lt_u32 {sJ}, 24
    s_cbranch_scc1 Laux_b1
    s_add_u32 s69, s69, 8""")
    blk_addr("s69", "s73", "s80")
    blk_load(TB2, "s73")
    a("Laux_b1:")
    if TOUCH:
        a(f"""s_getpc_b64 s[62:63]
        Lpc:
        s_sub_u32 s62, s62, Lpc-{KN}
        s_subb_u32 s63, s63, 0
        v_min_u32 v8, 9, v0
        s_mul_i32 s70, {sJ}, 10
        v_add_u32 v8, s70, v8
        v_lshlrev_b32 v8, 7, v8
        v_min_u32 v8, Lend-{KN}, v8
        s_mov_b64 exec, 0x3ff
        global_load_dword v252, v8, s[62:63]
        s_mov_b64 exec, -1""")
    make_tag(a)
    a(f"""s_mov_b32 s74, 0x05040100
    s_mov_b32 s75, 0x07060302
    s_mov_b32 s70, 0x3f803f80
    v_and_b32 v8, 15, v0
    v_lshrrev_b32 v9, 1, v8
    v_and_b32 v10, 1, v8
    v_lshlrev_b32 v10, 4, v10
    v_mov_b32 v11, 0x3f80
    v_lshlrev_b32 v11, v10, v11""")
    for k in range(4):
        a(f"v_cmp_eq_u32 vcc, {k}, v9\nv_cndmask_b32 v{88+k}, 0, v11, vcc")
    a(f"""s_lshl_b32 s76, {sI}, 7
    s_cmp_eq_u32 s81, 0
    s_cbranch_scc1 Laux_nocs1
    s_waitcnt vmcnt({18+TOUCH})""")
    for n in range(20):
        a(f"v_mfma_f32_16x16x32_bf16 v[112:115], v[88:91], {v(CS+4*n,4)}, {'0' if n == 0 else 'v[112:115]'}")
    for k in range(4):
        a(f"v_add_f32_dpp v{112+k}, v{112+k}, v{112+k} row_ror:8 row_mask:0xf bank_mask:0xf")
    a(f"""v_lshrrev_b32 v9, 4, v0
    v_lshlrev_b32 v8, 5, v5
    v_lshl_add_u32 v8, v9, 4, v8
    s_lshl_b32 s72, s78, 8
    s_mul_i32 s73, s77, 6144
    s_add_u32 s72, s72, s73
    s_add_u32 s72, s72, {CSUM}
    s_mov_b64 exec, 0x00ff00ff
    buffer_store_dwordx4 v[112:115], v8, {SWS}, s72 offen sc1
    s_mov_b64 exec, -1
    s_waitcnt vmcnt({9+TOUCH})
    s_branch Laux_w
    Laux_nocs1:
    s_waitcnt vmcnt({16+TOUCH})
    s_cmp_ge_u32 {sJ}, 24
    s_cbranch_scc1 Laux_w
    s_waitcnt vmcnt({8+TOUCH})
    Laux_w:""")
    stamp_reset(1); stamp(a, 'aux loads')
    for k in range(4): a(f"v_dot2_f32_bf16 v{8+k}, v{X+k}, s70, 0")
    for k in range(4): a(f"v_dot2_f32_bf16 v{12+k}, v{X+k}, v{X+k}, 0")
    for n in range(1, 10):
        for k in range(4): a(f"v_dot2_f32_bf16 v{8+k}, v{X+4*n+k}, s70, v{8+k}")
        for k in range(4): a(f"v_dot2_f32_bf16 v{12+k}, v{X+4*n+k}, v{X+4*n+k}, v{12+k}")
    INV640 = 0x3ACCCCCD
    def red8(rs):
        for t in ("v_add_f32 v{r}, v{r}, v{r1}", "v_add_f32 v{r2}, v{r2}, v{r3}", "v_add_f32 v{r}, v{r}, v{r2}",
                  "v_add_f32_dpp v{r}, v{r}, v{r} quad_perm:[1,0,3,2] row_mask:0xf bank_mask:0xf",
                  "v_add_f32_dpp v{r}, v{r}, v{r} quad_perm:[2,3,0,1] row_mask:0xf bank_mask:0xf",
                  "v_add_f32_dpp v{r}, v{r}, v{r} row_half_mirror row_mask:0xf bank_mask:0xf",
                  "v_mul_f32 v{r}, %d, v{r}" % INV640):
            for r in rs: a(t.format(r=r, r1=r+1, r2=r+2, r3=r+3))
    red8([8, 12])
    a("""v_mul_f32 v9, v8, v8
    v_sub_f32 v12, v12, v9
    v_mul_f32 v10, 0x41800000, v12
    v_sub_f32 v8, 0, v8
    v_cmp_nle_f32 vcc, v9, v10
    s_cbranch_vccz Laux_var
    v_mov_b32 v9, v8""")
    for n in range(10):
        t = TM + 8*(n % 2)
        for k in range(4):
            a(f"v_lshlrev_b32 v{t+2*k}, 16, v{X+4*n+k}\nv_and_b32 v{t+2*k+1}, 0xffff0000, v{X+4*n+k}")
        for k in range(4): a(f"v_pk_add_f32 {v(t+2*k,2)}, {v(t+2*k,2)}, v[8:9]")
        for k in range(4):
            if n == 0 and k < 2: a(f"v_pk_mul_f32 {v(12+2*k,2)}, {v(t+2*k,2)}, {v(t+2*k,2)}")
            else: a(f"v_pk_fma_f32 {v(12+2*(k%2),2)}, {v(t+2*k,2)}, {v(t+2*k,2)}, {v(12+2*(k%2),2)}")
    red8([12])
    a(f"""Laux_var:
    v_cvt_pk_bf16_f32 v9, v12, v12
    v_and_b32 v9, 0xffff0000, v9
    v_add_f32 v9, 0x3727C5AC, v9
    v_cvt_pk_bf16_f32 v9, v9, v9
    v_and_b32 v9, 0xffff0000, v9
    v_sqrt_f32 v9, v9
    v_cvt_pk_bf16_f32 v9, v8, v9
    v_lshlrev_b32 v12, 2, v4
    s_lshl_b32 s70, s68, 2
    s_add_u32 s70, s70, {STATS}
    s_mov_b32 exec_lo, 0x01010101
    s_mov_b32 exec_hi, 0x01010101
    buffer_store_dword v9, v12, {SWS}, s70 offen sc1
    s_mov_b64 exec, -1
    s_waitcnt vmcnt(1)
    s_cmp_eq_u32 s81, 0
    s_cbranch_scc1 Laux_w2
    s_waitcnt vmcnt(2)
    Laux_w2:""".replace("s_waitcnt vmcnt(1)\n    s_cmp_eq_u32 s81, 0\n    s_cbranch_scc1 Laux_w2\n    s_waitcnt vmcnt(2)\n    Laux_w2:", "s_waitcnt vmcnt(1)"))
    TQ = 116
    for c in range(8):
        for k in range(4):
            a(f"v_perm_b32 v{TQ+4*c+k}, v{TB+4*(2*k+1)+c//2}, v{TB+4*(2*k)+c//2}, {'s75' if c % 2 else 's74'}")
    a(f"""s_add_u32 s70, s76, {FL_S}
    s_waitcnt vmcnt(0)""")
    flag_store(a, "s70", 8, 9)
    for c in range(8):
        a(f"buffer_store_dwordx4 {v(TQ+4*c,4)}, v7, {SWS}, s79 offen sc1")
        if c < 7: a(f"s_add_u32 s79, s79, 4096")
    a(f"""s_cmp_lt_u32 {sJ}, 24
    s_cbranch_scc1 Laux_b2""")
    blk_store(TB2, "s80")
    a(f"""Laux_b2:
    s_add_u32 s70, s76, {FL_C}
    s_waitcnt vmcnt(0)""")
    flag_store(a, "s70", 8, 9)
    stamp(a, 'stats flag')
    if W2AUX:
        RP = 116
        srd(a, 48, 'w2', 1966080)
        a(f"""s_add_u32 s70, {sJ}, -12
    s_cmp_ge_u32 s70, 16
    s_cbranch_scc1 Laux_now2
    s_lshl_b32 s71, {sX8}, 4
    s_add_u32 s70, s70, s71
    s_mul_i32 s71, s70, {12*1280}
    s_mul_i32 s77, s70, {12*160}
    s_add_u32 s77, s77, {W2P}
    s_lshl_b32 s78, s70, 7
    s_add_u32 s78, s78, {FL_AUX}
    v_mul_u32_u24 v8, 6554, v0
    v_lshrrev_b32 v8, 16, v8
    v_mul_u32_u24 v9, 10, v8
    v_sub_u32 v9, v0, v9
    v_mul_u32_u24 v8, 0x500, v8
    v_lshl_add_u32 v8, v9, 4, v8
    v_add_u32 v10, 64, v0
    v_mul_u32_u24 v11, 6554, v10
    v_lshrrev_b32 v11, 16, v11
    v_mul_u32_u24 v9, 10, v11
    v_sub_u32 v9, v10, v9
    v_mul_u32_u24 v11, 0x500, v11
    v_lshl_add_u32 v9, v9, 4, v11
""")
        for c in range(8):
            a(f"buffer_load_dwordx4 {v(RP+8*c,4)}, v8, {S4}, s71 offen offset:{160*c}")
        a("s_mov_b32 exec_hi, 0x00ffffff")
        for c in range(8):
            a(f"buffer_load_dwordx4 {v(RP+8*c+4,4)}, v9, {S4}, s71 offen offset:{160*c}")
        a("s_mov_b64 exec, -1\nv_lshlrev_b32 v8, 4, v0\ns_waitcnt vmcnt(0)")
        for c in range(8):
            a(f"buffer_store_dwordx4 {v(RP+8*c,4)}, v8, {SWS}, s77 offen sc1")
            a("s_mov_b32 exec_hi, 0x00ffffff")
            a(f"buffer_store_dwordx4 {v(RP+8*c+4,4)}, v8, {SWS}, s77 offen offset:1024 sc1")
            a("s_mov_b32 exec_hi, -1")
            if c < 7: a("s_add_u32 s77, s77, 245760")
        a("s_waitcnt vmcnt(0)")
        flag_store(a, "s78", 8, 9)
        a("Laux_now2:")
    a(f"""s_cmp_lg_u32 {sJ}, 31
    s_cbranch_scc1 Laux_go""")
    poll256(a, FL_C, 128, r=20, slp=1)
    a(f"""s_lshl_b32 s70, {sX8}, 7
    s_add_u32 s70, s70, {GO}""")
    flag_store(a, "s70", 8, 9)
    a(f"Laux_go:\ns_setprio {os.environ.get('PS','1')}")
    go_wait(a, 20)
    u_issue(a)

def conv(a):
    sI = "s54"
    a("Lconv:")
    stamp_reset(4); stamp(a, 'Lconv', True)
    a(f"""v_and_b32 v10, 15, v0
    v_lshrrev_b32 v11, 4, v0
    v_and_b32 v12, 1, v0
    v_lshrrev_b32 v13, 1, v10
    v_mul_u32_u24 v14, {K1OFF}, v12
    v_sub_u32 v15, v13, v11
    v_lshl_add_u32 v14, v15, 4, v14
    v_add_u32 v14, {KB0+64}, v14
    v_and_b32 v12, 3, v0
    v_mul_u32_u24 v15, {UCS}, v12
    v_lshrrev_b32 v13, 2, v10
    v_lshl_add_u32 v15, v13, 7, v15
    v_lshl_add_u32 v15, v11, 4, v15
    v_add_u32 v15, {UPAD+48}, v15
    v_lshlrev_b32 v19, 7, v13
    v_lshl_add_u32 v19, v11, 5, v19
    v_lshl_add_u32 v19, v12, 2, v19
    v_mov_b32 v4, 0
    v_mov_b32 v5, 0
    v_lshlrev_b32 v6, 3, v0
    s_mul_i32 s70, {sW}, {UCS}
    v_add_u32 v6, s70, v6
    s_waitcnt lgkmcnt(0)
    s_barrier""")
    a("s_mov_b32 exec_hi, 0x00ffffff")
    for c in range(3): a(f"ds_write_b64 v6, v[4:5] offset:{c*USTR}")
    a("s_mov_b32 exec_hi, -1")
    NM, RS, UD = 44, 52, 226
    def unp(d, s): return f"v_lshlrev_b32 v{d}, 16, v{s}\nv_and_b32 v{d+1}, 0xffff0000, v{s}"
    a("s_waitcnt vmcnt(0)")
    for k in range(8): a(f"v_and_b32 v{RS+k}, 0xffff0000, v{UIN+k}")
    for k in range(8): a(f"v_rcp_f32 v{RS+k}, v{RS+k}\nv_lshlrev_b32 v{NM+k}, 16, v{UIN+k}")
    a("s_waitcnt lgkmcnt(0)\ns_barrier")
    for c in range(3):
        x = UIN + 8 + 4*c; t = 60; ud = UD + 8*c; o = c*USTR + UPAD
        for k in range(4): a(unp(t+2*k, x+k))
        for k in range(4): a(f"v_pk_add_f32 {v(t+2*k,2)}, {v(t+2*k,2)}, {v(NM+2*k,2)}")
        for k in range(4): a(f"v_cvt_pk_bf16_f32 v{x+k}, v{t+2*k}, v{t+2*k+1}")
        for k in range(4): a(unp(t+2*k, x+k))
        for k in range(4): a(f"v_pk_mul_f32 {v(t+2*k,2)}, {v(t+2*k,2)}, {v(RS+2*k,2)}")
        for k in range(4): a(f"v_cvt_pk_bf16_f32 v{x+k}, v{t+2*k}, v{t+2*k+1}")
        a(f"""v_cvt_pk_bf16_f32 v{68+2*c}, v{t+2}, v{t+3}
        v_cvt_pk_bf16_f32 v{69+2*c}, v{t+4}, v{t+5}
        ds_write_b128 v224, {v(x,4)} offset:{o+3*UCS-16}
        ds_write_b64 v224, {v(x,2)} offset:{o+UCS-8}
        ds_write_b64 v224, {v(x+2,2)} offset:{o+UCS}
        ds_write_b32 v224, v{x} offset:{o-4}
        ds_write_b64 v224, {v(68+2*c,2)} offset:{o}
        ds_write_b32 v224, v{x+3} offset:{o+8}
        ds_write_b32 v224, v{x} offset:{o+2*UCS-12}
        ds_write_b64 v224, {v(68+2*c,2)} offset:{o+2*UCS-8}
        ds_write_b32 v224, v{x+3} offset:{o+2*UCS}""")
    for c in range(3):
        x = UIN + 8 + 4*c; t = 60; ud = UD + 8*c
        for k in range(4): a(unp(t+2*k, x+k))
        sd = f"s{34+c+(c>1)*6}"
        a(f"s_bitcmp1_b32 {('s58','s59','s61')[c]}, 0\ns_cselect_b32 s70, 0, 16\ns_lshl_b32 {sd}, {sd}, s70\ns_and_b32 {sd}, {sd}, 0xffff0000")
        for k in range(8): a(f"v_mul_f32 v{t+k}, {sd}, v{t+k}")
        for k in range(4): a(f"v_cvt_pk_bf16_f32 v{76+k}, v{t+2*k}, v{t+2*k+1}")
        for k in range(4): a(unp(ud+2*k, 76+k))
    a("""s_waitcnt lgkmcnt(0)
    s_barrier""")
    stamp(a, 'u ready', True)
    YA = 20
    FS = [44, 132]
    def loop(name, parts):
        ad = [(16, 17), (8, 9)]
        tiles = [(pi, j) for pi, (c, J) in enumerate(parts) for j in J]
        acc = {t: YA + 4*k for k, t in enumerate(tiles)}
        base = []; n = 0
        for c, J in parts:
            base.append(n); n += 2*(max(J)+1)
        def reads(fs):
            out = []
            for pi, (c, J) in enumerate(parts):
                for k in range(max(J)+1):
                    out.append(f"ds_read_b128 {v(FS[fs]+4*(base[pi]+2*k),4)}, v{ad[pi][0]} offset:{512*k}")
                    out.append(f"ds_read_b128 {v(FS[fs]+4*(base[pi]+2*k+1),4)}, v{ad[pi][1]} offset:{512*k}")
                out.append(f"v_add_u32 v{ad[pi][0]}, 64, v{ad[pi][0]}")
                out.append(f"v_add_u32 v{ad[pi][1]}, -64, v{ad[pi][1]}")
            return out
        def mfmas(fs):
            rem = {t: list(range(t[1]+1)) for t in tiles}
            todo = []; last = []
            while any(rem.values()):
                cand = [t for t in tiles if rem[t] and t not in last[-GAP:]] or [t for t in tiles if rem[t] and t not in last[-1:]] or [t for t in tiles if rem[t]]
                t = max(cand, key=lambda t: len(rem[t]))
                todo.append((t, rem[t].pop(0))); last.append(t)
            return [f"v_mfma_f32_16x16x32_bf16 {v(acc[t],4)}, {v(FS[fs]+4*(base[t[0]]+2*p),4)}, {v(FS[fs]+4*(base[t[0]]+2*(t[1]-p)+1),4)}, {v(acc[t],4)}" for t, p in todo]
        for pi, (c, J) in enumerate(parts):
            if isinstance(c, str):
                a(f"s_mul_i32 s70, {c}, {KSTR}\ns_mul_i32 s71, {c}, {USTR}\nv_add_u32 v{ad[pi][0]}, s70, v14\nv_add_u32 v{ad[pi][1]}, s71, v15")
            else:
                a(f"v_add_u32 v{ad[pi][0]}, {c*KSTR}, v14\nv_add_u32 v{ad[pi][1]}, {c*USTR}, v15")
        for t in reads(0): a(t)
        for r in range(4*len(tiles)): a(f"v_mov_b32 v{YA+r}, 0")
        a(f"s_mov_b32 s64, 4\n{name}:")
        for fs in (0, 1):
            a("s_waitcnt lgkmcnt(0)")
            fill = reads(1-fs); ms = mfmas(fs)
            n = len(ms) - 4; done = 0
            for i, m in enumerate(ms):
                a(m)
                want = min(len(fill), -(-len(fill)*(i+1)//n))
                while done < want: a(fill[done]); done += 1
        a(f"""s_sub_u32 s64, s64, 1
        s_cmp_lg_u32 s64, 0
        s_cbranch_scc1 {name}
        s_waitcnt lgkmcnt(0)
        s_barrier""")
        for pi, (c, J) in enumerate(parts):
            if isinstance(c, str): a(f"s_lshl_b32 s70, {c}, 12\nv_add_u32 v{ad[pi][0]}, s70, v19")
            for j in J:
                r = acc[(pi, j)]
                off = 512*j + (0 if isinstance(c, str) else 4096*c)
                adr = ad[pi][0] if isinstance(c, str) else 19
                a(f"""v_cvt_pk_bf16_f32 v{r}, v{r}, v{r+1}
                v_cvt_pk_bf16_f32 v{r+2}, v{r+2}, v{r+3}
                ds_write_b32 v{adr}, v{r} offset:{off}
                ds_write_b32 v{adr}, v{r+2} offset:{off+16}""")
    a(f"""s_lshr_b32 s62, {sW}, 1
    s_cmp_eq_u32 {sW}, 1
    s_cbranch_scc1 Lcv_w1
    s_cmp_eq_u32 {sW}, 3
    s_cbranch_scc1 Lcv_w3""")
    loop("Lcv_l0", [("s62", [7, 6, 5, 1])])
    a("s_branch Lcv_bar2\nLcv_w1:")
    loop("Lcv_l1", [(0, [4, 3, 2, 0]), (1, [4, 3])])
    a("s_branch Lcv_bar2\nLcv_w3:\ns_cmp_eq_u32 s57, 1\ns_cbranch_scc1 Lcv_w3b")
    loop("Lcv_l3a", [(1, [2, 0]), (2, [7, 5, 2, 0])])
    a("s_branch Lcv_bar2\nLcv_w3b:")
    loop("Lcv_l3b", [(1, [2, 0]), (2, [6, 4, 3, 1])])
    a(f"""Lcv_bar2:
    s_waitcnt lgkmcnt(0)
    s_barrier""")
    stamp(a, 'conv done', True)
    for c in range(3): a.ds(f"ds_read_b128 {v(32+4*c,4)}, v224 offset:{c*4096}", ('y', c))
    a(f"""s_lshr_b32 s70, {sW}, 1
    s_xor_b32 s70, s70, s57
    s_cmp_eq_u32 s70, 0
    s_cselect_b32 s66, -1, 0
    s_cselect_b32 s67, 0, -1""")
    for c, sch in enumerate(("s58", "s59", "s61")):
        a.wait(lg=[('y', c)])
        y = 32 + 4*c; t = 48 + 8*c; ud = UD + 8*c
        for k in range(4): a(unp(t+2*k, y+k))
        for k in range(4): a(f"v_pk_add_f32 {v(t+2*k,2)}, {v(t+2*k,2)}, {v(ud+2*k,2)}")
        for k in range(4): a(f"v_cvt_pk_bf16_f32 v{y+k}, v{t+2*k}, v{t+2*k+1}")
        a(f"""s_lshl_b32 s70, {sch}, 12
        s_add_u32 s70, s70, {AT}""")
        if c == 2: a("s_mov_b64 exec, s[66:67]")
        a(f"buffer_store_dwordx4 {v(y,4)}, v224, {SWS}, s70 offen sc1")
        if c == 2: a("s_mov_b64 exec, -1")
    a("s_waitcnt vmcnt(0)")
    stamp(a, 'y stored'); stamp_flush(a, 50)
    a(f"""s_barrier
    s_cmp_eq_u32 {sW}, 1
    s_cbranch_scc1 Lcv_ep
    s_cmp_lg_u32 {sW}, 0
    s_cbranch_scc1 Lend
    s_lshl_b32 s70, {sI}, 7
    s_add_u32 s70, s70, {FL_Y}""")
    flag_store(a, "s70", 4, 5)
    a(f"""s_endpgm
    Lcv_ep:
    s_cmp_lg_u32 {sI}, 0
    s_cbranch_scc1 Lend""")
    if EXP != "nogemm": poll256(a, FL_ACT, 384, slp=8)
    poll256(a, FL_Y, 128, slp=8)
    flag_store(a, "0", 4, 5)
    a("s_endpgm")

HEADER = open(os.path.join(os.path.dirname(os.path.abspath(__file__)), "..", "cdna_kernels",
              "parallel_sum__ssm_conv_s4__dense_activation_mish__prompt.s.ref")).read().split("; Override")[0]

def build():
    a = Asm()
    prologue(a)
    gemm(a)
    a.vm.clear(); a.lg.clear()
    ssm(a)
    a("Lend:\ns_endpgm")
    body = a.finalize()
    return f"""{HEADER}; @launch grid=(512,1,1) block=(256,1,1) lds=81920
.amdgcn_target "amdgcn-amd-amdhsa--gfx950"
.text
.globl {KN}
.p2align 8
.type {KN},@function
{KN}:
{body}.section .rodata,"a"
.p2align 6
.amdhsa_kernel {KN}
  .amdhsa_next_free_vgpr 256
  .amdhsa_next_free_sgpr 102
  .amdhsa_accum_offset 256
  .amdhsa_group_segment_fixed_size 0
  .amdhsa_kernarg_size 128
  .amdhsa_user_sgpr_count 2
  .amdhsa_user_sgpr_kernarg_segment_ptr 1
  .amdhsa_system_sgpr_workgroup_id_x 1
.end_amdhsa_kernel
"""

if __name__ == "__main__":
    out = sys.argv[1] if len(sys.argv) > 1 else "k.s"
    open(out, "w").write(build())
    print("wrote", out)
```

```python
import sys, os
sys.path.insert(0, os.path.dirname(os.path.abspath(__file__)))
from asmlib import Asm

KN = "parallel_sum__ssm_conv_s4__dense_activation_mish__prompt_kernel"

FL_S   = 0x0000 + 0x8000
FL_Y   = 0x10000
FL_ACT = 0x18000
STATS  = 0x30000
CSUM   = 0x34000
FL_C   = 0x70000
FL_AUX = 0x48000 + 0x20000
GO     = 0x1000
XNT    = 0x100000
AT     = 0x400000
W2P    = 0x700000
ACT    = 0xA00000
WS_SIZE= 0x1000000
LOG2E = 0x3FB8AA3B
SPIN_MAX = int(os.environ.get('SPIN_MAX', '20000'))
ACT_DELAY = int(os.environ.get('ACT_DELAY', '4'))
DIAG = int(os.environ.get("DIAG", "0"))
EXP = os.environ.get("EXP", "")
STAMP = 0x40000
W2AUX = int(os.environ.get('W2AUX', '1'))
W2LATE = int(os.environ.get('W2LATE', '1'))
DIRW2 = int(os.environ.get('DIRW2', '0'))
ROT = int(os.environ.get('ROT', '0'))
TOUCHW1 = int(os.environ.get('TOUCHW1', '0'))
TOUCHW2 = int(os.environ.get('TOUCHW2', '0'))
TLB = int(os.environ.get('TLB', '0'))
S1 = int(os.environ.get('S1', '4'))
C0 = int(os.environ.get('C0', '4'))
C1 = int(os.environ.get('C1', '2'))
C2 = int(os.environ.get('C2', '10'))
TOUCH = int(os.environ.get('TOUCH', '1'))
GAP = int(os.environ.get('GAP', '2'))

P = dict(x=16, Are=18, Aim=20, Bre=22, Bim=24, Cre=26, Cim=28, ldt=30, D=32, w1=36, b1=38, w2=40, out=42, dbg=44, ws=46)
def sp(n): return f"s[{P[n]}:{P[n]+1}]"
SX, SW1, SWS, S4 = "s[4:7]", "s[8:11]", "s[12:15]", "s[48:51]"
sW, sTAG = "s3", "s52"

_st = {"n": 0}
def stamp(a, name=None, wait=False):
    if not DIAG: return
    k = _st["n"]; _st["n"] += 1
    assert k < 10, k
    a(f"{'s_memtime' if os.environ.get('CYC') else 's_memrealtime'} s[{82+2*k}:{83+2*k}]")
    if wait: a("s_waitcnt lgkmcnt(0)")
def stamp_reset(n=0): _st["n"] = n
def stamp_flush(a, tmp):
    if not DIAG: return
    a("s_waitcnt lgkmcnt(0)")
    a(f"s_lshl_b32 s80, s2, 2\ns_add_u32 s80, s80, {sW}\ns_lshl_b32 s80, s80, 6\ns_add_u32 s80, s80, {STAMP}\nv_mov_b32 v{tmp+1}, 0\ns_mov_b64 exec, 1")
    for k in range(10):
        a(f"v_mov_b32 v{tmp}, s{82+2*k}\nbuffer_store_dword v{tmp}, v{tmp+1}, {SWS}, s80 offen offset:{4*k}\ns_nop 1")
    a("s_mov_b64 exec, -1")

def v(i, n=1): return f"v{i}" if n == 1 else f"v[{i}:{i+n-1}]"

def srd(a, base, ptr, size):
    a(f"""s_mov_b32 s{base}, s{P[ptr]}
    s_mov_b32 s{base+1}, s{P[ptr]+1}
    s_mov_b32 s{base+2}, {size}
    s_mov_b32 s{base+3}, 0x20000""")

def spin(a, load, cmp, scnt="s60", slp=4):
    L = a.label("Lspin"); Lok = a.label("Lok")
    a(cmp)
    a(f"s_cbranch_scc1 {Lok}")
    a(f"s_mov_b32 {scnt}, {SPIN_MAX}")
    a(f"{L}:")
    a(f"s_sleep {slp}")
    a(load)
    a("s_waitcnt vmcnt(0)")
    a(cmp)
    a(f"s_cbranch_scc1 {Lok}")
    a(f"s_sub_u32 {scnt}, {scnt}, 1")
    a(f"s_cmp_lg_u32 {scnt}, 0")
    a(f"s_cbranch_scc1 {L}")
    a(f"{Lok}:")

def cmpn(regs):
    dst = ["vcc", "s[62:63]", "s[64:65]", "s[66:67]"][:len(regs)]
    t = "\n".join(f"v_cmp_ne_u32 {d}, {sTAG}, v{r}" for d, r in reversed(list(zip(dst, regs))))
    for d in dst[1:]: t += f"\ns_or_b64 vcc, vcc, {d}"
    return t + "\ns_cmp_eq_u64 vcc, 0"

def poll256_issue(a, base, stride, r=4, s0=72):
    a(f"v_mul_u32_u24 v{r+4}, {stride}, v0")
    for n in range(4): a(f"s_mov_b32 s{s0+n}, {base + 64*stride*n}")
    ld = "\n".join(f"buffer_load_dword v{r+n}, v{r+4}, {SWS}, s{s0+n} offen sc1" for n in range(4))
    a(ld)
    return ld
def poll256(a, base, stride, slp=4, r=4):
    ld = poll256_issue(a, base, stride, r)
    a("s_waitcnt vmcnt(0)")
    spin(a, ld, cmpn([r, r+1, r+2, r+3]), slp=slp)

def go_issue(a, r, s="s75"):
    a(f"""v_mov_b32 v{r+1}, 0
    s_and_b32 {s}, s2, 7
    s_lshl_b32 {s}, {s}, 7
    s_add_u32 {s}, {s}, {GO}""")
    return f"buffer_load_dword v{r}, v{r+1}, {SWS}, {s} offen sc1"
def go_wait(a, r):
    ld = go_issue(a, r)
    a(ld); a("s_waitcnt vmcnt(0)")
    spin(a, ld, cmpn([r]), slp=3)

def flag_store(a, soff, t0, t1, track=None):
    a(f"""v_mov_b32 v{t0}, {sTAG}
    v_mov_b32 v{t1}, 0
    s_mov_b64 exec, 1""")
    txt = f"buffer_store_dword v{t0}, v{t1}, {SWS}, {soff} offen sc1"
    if track is not None: a.vmem(txt, track)
    else: a(txt)
    a("s_mov_b64 exec, -1")

def prologue(a):
    a(f"""s_cmp_ge_u32 s2, 512
    s_cbranch_scc1 Lend
    s_load_dwordx16 s[16:31], s[0:1], 0
    s_load_dwordx16 s[32:47], s[0:1], 64""")
    if DIAG:
        for k in range(82, 102): a(f"s_mov_b32 s{k}, 0")
    stamp(a, "start")
    a(f"""v_lshrrev_b32 v1, 6, v0
    v_and_b32 v0, 63, v0
    v_readfirstlane_b32 {sW}, v1
    s_waitcnt lgkmcnt(0)
    s_load_dword s53, {sp('ws')}, 0""")
    srd(a, 4, 'x', 2621440)
    srd(a, 8, 'w1', 1966080)
    srd(a, 12, 'ws', WS_SIZE)
    a("""s_cmp_lt_u32 s2, 256
    s_cbranch_scc1 Lssm""")

def make_tag(a):
    a(f"""s_waitcnt lgkmcnt(0)
    s_mul_i32 {sTAG}, s53, 0x9E3779B1
    s_add_u32 {sTAG}, {sTAG}, 0x7F4A7C15""")

def gemm(a):
    vX0, vX1, vW0, vW1 = 1, 2, 3, 4
    xr = [5, 6, 7, 8]
    wrl, wrh = 9, 10
    vAS = 11
    c1, c2, c3 = 12, 13, 14
    vT = 15
    EXT = 16
    T = [22, 23, 24, 25]
    OUT = 26
    EQ = 34
    A0, A1 = 38, 39
    SUMA = 22
    def accof(s): return ACC + 16*((s+1) % 2)
    WF = 40
    ACC = 64
    XF = 96
    sRB, sFP, sTH, sFH = "s54", "s55", "s56", "s57"
    sM, sSO, sAS, sT0 = "s58", "s59", "s61", "s68"
    if EXP == "nogemm": a("s_endpgm")
    a(f"""s_setprio {os.environ.get('PG0','2')}
    s_and_b32 s68, s2, 7
    s_lshr_b32 s69, s2, 3
    s_and_b32 s69, s69, 31
    s_lshr_b32 {sRB}, s68, 1
    s_lshl_b32 {sRB}, {sRB}, 3
    s_and_b32 s70, s69, 7
    s_add_u32 {sRB}, {sRB}, s70
    s_and_b32 {sFP}, s68, 1
    s_lshl_b32 {sFP}, {sFP}, 2
    s_lshr_b32 s70, s69, 3
    s_add_u32 {sFP}, {sFP}, s70
    s_lshl_b32 {sM}, {sW}, 11
    v_lshrrev_b32 v22, 3, v0
    s_lshl_b32 s70, {sW}, 4
    v_add_u32 v22, s70, v22
    v_lshrrev_b32 v23, 4, v0
    v_and_b32 v24, 7, v0
    v_xor_b32 v25, v24, v23
    s_lshl_b32 s71, {sRB}, 6
    v_add_u32 v26, s71, v22
    v_mul_u32_u24 v26, 0x500, v26
    v_lshl_add_u32 v{vX0}, v25, 4, v26
    v_xor_b32 v25, 4, v25
    v_lshl_add_u32 v{vX1}, v25, 4, v26
    v_add_u32 v{vX1}, {8*1280-1024}, v{vX1}
    v_and_b32 v23, 1, v23
    v_lshlrev_b32 v23, 2, v23
    v_xor_b32 v25, v24, v23
    v_mul_u32_u24 v26, 0xc00, v22
    v_lshl_add_u32 v{vW0}, v25, 4, v26
    s_mul_i32 s70, {sFP}, 384
    v_add_u32 v{vW0}, s70, v{vW0}
    v_add_u32 v{vW1}, {8*3072-1024}, v{vW0}""")

    if ROT:
        a(f"""s_and_b32 s70, {sRB}, 7
        s_and_b32 s71, {sFP}, 3
        s_mul_i32 s71, s71, {3*ROT}
        s_mul_i32 s70, s70, {ROT}
        s_add_u32 s70, s70, s71
        s_cmp_ge_u32 s70, 10
        s_cselect_b32 s71, 10, 0
        s_sub_u32 s70, s70, s71""")
        for kc in range(10):
            a(f"""s_lshl_b32 s{16+kc}, s70, 7
            s_mul_i32 s{26+kc}, s70, 196608""")
            if kc < 9: a("s_add_u32 s70, s70, 1\ns_cmp_eq_u32 s70, 10\ns_cselect_b32 s70, 0, s70")
    else:
        for kc in range(5): a(f"s_movk_i32 s{16+kc}, {128*kc}\ns_mov_b32 s{26+kc}, {196608*kc}")

    def chunk_info(c):
        if c < 20:
            return ('X', 0, c//2) if c % 2 == 0 else ('W', 0, c//2)
        return ('W', 1 + (c-20)//10, (c-20) % 10)
    def dma_half(c, h):
        kind, s, kc = chunk_info(c)
        slot = c % 10
        if h == 0:
            a(f"s_add_u32 m0, {sM}, {slot*8192}")
            if kind == 'W' and s > 0 and kc == 0: a(f"v_add_u32 v{vW0}, 128, v{vW0}\nv_add_u32 v{vW1}, 128, v{vW1}")
        r, sr, so = ((vX0, vX1)[h], SX, 16+kc) if kind == 'X' else ((vW0, vW1)[h], SW1, 26+kc)
        a.vmem(f"buffer_load_dwordx4 v{r}, {sr}, s{so} offen {'offset:1024 ' if h else ''}lds", ('c', c))
    for c in range(10): dma_half(c, 0); dma_half(c, 1)
    if not ROT:
        for kc in range(5, 10): a(f"s_movk_i32 s{16+kc}, {128*kc}\ns_mov_b32 s{26+kc}, {196608*kc}")

    srd(a, 48, 'out', 2621440)
    a(f"""s_and_b32 {sTH}, {sW}, 1
    s_lshr_b32 {sFH}, {sW}, 1
    v_and_b32 v22, 31, v0
    v_lshrrev_b32 v23, 5, v0
    v_lshrrev_b32 v24, 1, v22
    v_and_b32 v24, 7, v24
    s_lshl_b32 s70, {sTH}, 12
    v_lshl_add_u32 v25, v22, 7, s70""")
    for j in range(4):
        a(f"""v_add_u32 v26, {2*j}, v23
        v_xor_b32 v26, v26, v24
        v_lshl_add_u32 v{xr[j]}, v26, 4, v25""")
    a(f"""v_lshrrev_b32 v26, 4, v22
    s_lshl_b32 s70, {sTH}, 1
    v_add_u32 v26, s70, v26
    v_mul_u32_u24 v26, 0xc000, v26
    v_lshl_add_u32 v26, v23, 8, v26
    v_and_b32 v27, 15, v0
    v_lshl_add_u32 v{vAS}, v27, 4, v26
    v_lshrrev_b32 v24, 2, v27
    v_and_b32 v25, 3, v0
    v_lshrrev_b32 v26, 4, v0
    v_and_b32 v26, 1, v26
    v_lshlrev_b32 v26, 1, v26
    v_lshrrev_b32 v28, 1, v25
    v_add_u32 v26, v26, v28
    s_lshl_b32 s70, {sFH}, 2
    v_add_u32 v26, s70, v26
    v_lshrrev_b32 v28, 1, v24
    v_lshlrev_b32 v28, 2, v28
    v_xor_b32 v26, v26, v28
    v_lshl_add_u32 v28, v23, 3, v24
    v_lshlrev_b32 v28, 7, v28
    v_lshl_add_u32 v28, v26, 4, v28
    v_and_b32 v25, 1, v25
    v_lshl_add_u32 v{wrl}, v25, 3, v28
    v_add_u32 v{wrh}, 0x10000, v{wrl}
    v_add_u32 v{vT}, -1, v23
    s_mul_i32 {sAS}, {sRB}, 192
    s_mul_i32 s70, {sFP}, 6
    s_add_u32 {sAS}, {sAS}, s70
    s_add_u32 {sAS}, {sAS}, {sFH}
    s_lshl_b32 {sAS}, {sAS}, 10
    s_add_u32 {sAS}, {sAS}, {ACT}
    s_mul_i32 s81, {sRB}, 3072
    s_lshl_b32 s71, {sFP}, 7
    s_add_u32 s81, s81, s71
    s_add_u32 s81, s81, {FL_ACT}""")
    a(f"""v_mov_b32 v{EXT}, 0
    v_mov_b32 v{EXT+1}, 0
    v_and_b32 v24, 7, v0
    v_lshrrev_b32 v25, 2, v24
    v_and_b32 v24, 3, v24
    s_and_b32 s70, {sFP}, 3
    s_mul_i32 s70, s70, 3
    s_add_u32 s70, s70, 1
    v_add_u32 v25, s70, v25
    v_lshlrev_b32 v25, 3, v25
    v_lshl_add_u32 v25, v24, 1, v25
    s_lshr_b32 s70, {sFP}, 2
    v_add_u32 v25, s70, v25
    v_lshlrev_b32 v{EQ}, 7, v25
    s_mul_i32 s70, {sFP}, 192
    s_lshl_b32 s71, {sFH}, 5
    s_add_u32 s70, s70, s71
    v_add_u32 v24, s70, v22
    v_lshlrev_b32 v{EQ+1}, 2, v24
    v_lshlrev_b32 v24, 1, v24
    v_mul_u32_u24 v25, 6144, v23
    v_add_u32 v{EQ+1}, v{EQ+1}, v25
    v_lshl_add_u32 v{EQ+2}, v23, 7, v24
    v_mov_b32 v{EXT+3}, 0
    s_mov_b32 s69, 0x3f803f80""")
    a.vmem(f"global_load_short_d16_hi v{EXT+3}, v24, {sp('b1')}", 'b10')
    for r in range(22, 34): a(f"v_mov_b32 v{r}, 0")
    make_tag(a)

    wf_next = [0]
    def wfrag_alloc():
        r = WF + 4*(wf_next[0] % 6); wf_next[0] += 1; return r
    def read_w(c, j):
        slot = c % 10
        r = wfrag_alloc()
        base, off = (wrl, slot*8192) if slot < 8 else (wrh, (slot-8)*8192)
        a.ds(f"ds_read_b64_tr_b16 {v(r,2)}, v{base} offset:{off + 128*16*j}", ('w', c, j))
        a.ds(f"ds_read_b64_tr_b16 {v(r+2,2)}, v{base} offset:{off + 128*(16*j+4)}", ('w', c, j))
        return r
    def mfma1(acc, wfr, xfr, first):
        a(f"v_mfma_f32_32x32x16_bf16 {v(acc,16)}, {v(wfr,4)}, {v(xfr,4)}, {'0' if first else v(acc,16)}")

    side = []
    def run_side(n):
        for _ in range(n):
            if side: side.pop(0)()

    def mish_items(s):
        acc = accof(s)
        items = []
        for qd in range(4):
            R = [acc + 4*qd + k for k in range(4)]
            def f1(R=R):
                for k in range(4): a(f"v_mul_f32 v{T[k]}, v{c1}, v{R[k]}")
                for k in range(4): a(f"v_exp_f32 v{T[k]}, v{T[k]}")
                for k in range(4): a(f"v_add_f32 v{T[k]}, 1.0, v{T[k]}")
                for k in range(4): a(f"v_fma_f32 v{T[k]}, v{T[k]}, v{T[k]}, 1.0")
            def f2(R=R, qd=qd):
                for k in range(4): a(f"v_rcp_f32 v{T[k]}, v{T[k]}")
                for k in range(4): a(f"v_fma_f32 v{T[k]}, v{T[k]}, v{c2}, v{c3}")
                for k in range(4): a(f"v_mul_f32 v{T[k]}, v{T[k]}, v{R[k]}")
                a(f"v_cvt_pk_bf16_f32 v{OUT+2*qd}, v{T[0]}, v{T[1]}\nv_cvt_pk_bf16_f32 v{OUT+2*qd+1}, v{T[2]}, v{T[3]}")
                if qd % 2 == 1:
                    gp = qd // 2
                    a(f"s_add_u32 {sT0}, {sAS}, {2048*s}")
                    a.vmem(f"buffer_store_dwordx4 {v(OUT+4*gp,4)}, v{vAS}, {SWS}, {sT0} offen offset:{512*gp} sc1", ('act', s))
            items += [f1, f2]
        return items

    SPLIT = ("v_and_b32 v{q1}, 0xffff0000, v{q}", "v_sub_f32 v{q}, v{q}, v{q1}", "v_and_b32 v{q2}, 0xffff0000, v{q}",
             "v_sub_f32 v{q}, v{q}, v{q2}", "v_lshrrev_b32 v{q1}, 16, v{q1}", "v_lshrrev_b32 v{q}, 16, v{q}",
             "v_or_b32 v{q1}, v{q1}, v{q2}", "v_or_b32 v{q}, v{q}, v{b}", "v_and_b32 v{d0}, v{m}, v{q1}", "v_and_b32 v{d1}, v{m}, v{q}")
    SUM4 = ("v_add_f32 v{q}, v{q}, v{q1}", "v_add_f32 v{q2}, v{q2}, v{q3}", "v_add_f32 v{q}, v{q}, v{q2}")
    def local_stats():
        a.wait(vm=['b10'])
        for tmpl in SUM4 + ("v_mov_b32 v{q1}, v{q}", "v_permlane32_swap_b32 v{q}, v{q1}", "v_add_f32 v{q}, v{q}, v{q1}"):
            for q in (22, 26, 30): a(tmpl.format(q=q, q1=q+1, q2=q+2, q3=q+3))
        INV640 = 0x3ACCCCCD
        L = a.label("Lvar")
        a(f"""v_mul_f32 v22, {INV640}, v22
        v_mul_f32 v26, {INV640}, v26
        v_mul_f32 v23, v22, v22
        v_sub_f32 v26, v26, v23
        v_mul_f32 v24, 0x41800000, v26
        v_sub_f32 v22, 0, v22
        v_cmp_nle_f32 vcc, v23, v24
        s_cbranch_vccz {L}
        v_mov_b32 v26, 0
        v_mov_b32 v27, 0""")
        for r in range(XF, XF+160):
            a(f"""v_lshlrev_b32 v24, 16, v{r}
            v_and_b32 v25, 0xffff0000, v{r}
            v_add_f32 v24, v24, v22
            v_add_f32 v25, v25, v22
            v_fmac_f32 v26, v24, v24
            v_fmac_f32 v27, v25, v25""")
        a(f"""v_add_f32 v26, v26, v27
        v_mov_b32 v27, v26
        v_permlane32_swap_b32 v26, v27
        v_add_f32 v26, v26, v27
        v_mul_f32 v26, {INV640}, v26
        {L}:
        v_cvt_pk_bf16_f32 v27, v26, v26
        v_cvt_pk_bf16_f32 v{EXT+4}, v22, v22
        v_and_b32 v27, 0xffff0000, v27
        v_add_f32 v27, 0x3727C5AC, v27
        v_cvt_pk_bf16_f32 v27, v27, v27
        v_and_b32 v27, 0xffff0000, v27
        v_sqrt_f32 v27, v27
        v_cvt_pk_bf16_f32 v{EXT+5}, v22, v27
        v_and_b32 v{c3}, 0xffff0000, v{EXT+5}
        v_rcp_f32 v{c3}, v{c3}""")
        for tmpl in SPLIT: a(tmpl.format(q=30, q1=31, q2=32, b=EXT+3, d0=EXT+2, d1=EXT+3, m=vT))
        a(f"""v_mul_f32 v{c1}, {LOG2E}, v{c3}
        v_mul_f32 v{c2}, -2.0, v{c3}""")
    def ext_items():
        def l0():
            a(f"v_mov_b32 v26, 0\ns_mov_b32 s70, {CSUM}\ns_mov_b32 s71, {CSUM+12288}")
            for s in (1, 2):
                a.vmem(f"buffer_load_dword v{20+2*s}, v{EQ+1}, {SWS}, s70 offen offset:{256*s} sc1", 'ext')
                a.vmem(f"buffer_load_dword v{21+2*s}, v{EQ+1}, {SWS}, s71 offen offset:{256*s} sc1", 'ext')
            a.vmem(f"global_load_short_d16_hi v26, v{EQ+2}, {sp('b1')} offset:128", 'ext')
        return [l0]
    def ext_build():
        a.wait(vm=['ext'])
        a(f"v_and_b32 v27, v{vT}, v26\nv_xor_b32 v28, v27, v26")
        for tmpl in ("v_add_f32 v{q}, v{q}, v{q1}", "v_and_b32 v{q1}, 0xffff0000, v{q}", "v_sub_f32 v{q}, v{q}, v{q1}", "v_and_b32 v{d0}, 0xffff0000, v{q}",
                     "v_sub_f32 v{q}, v{q}, v{d0}", "v_lshrrev_b32 v{q1}, 16, v{q1}", "v_lshrrev_b32 v{q}, 16, v{q}",
                     "v_or_b32 v{d0}, v{q1}, v{d0}", "v_or_b32 v{d1}, v{q}, v{b}"):
            for s in (1, 2):
                q = 20 + 2*s
                a(tmpl.format(q=q, q1=q+1, b=26+s, d0=EQ+2*s-2, d1=EQ+2*s-1))
    def ext_mfma(s):
        acc = accof(s)
        if s: a(f"v_mov_b32 v{EXT+2}, v{EQ+2*s-2}\nv_mov_b32 v{EXT+3}, v{EQ+2*s-1}")
        a(f"v_mfma_f32_32x32x16_bf16 {v(acc,16)}, {v(EXT,4)}, {v(EXT+2,4)}, {v(acc,16)}")

    G2A = XF; NA = 12
    G2W = XF + 96
    G2ACC = WF
    G2X = XF + 136
    G2M = XF + 146
    vA0, vA1, vD2, w2l, w2h, vO = vX0, vX1, xr[0], xr[1], xr[2], xr[3]
    sA2, sW2, sM2 = "s72", "s73", "s74"
    def g2_setup_a():
        a(f"""v_lshlrev_b32 v{vA0}, 4, v0
        s_lshl_b32 s70, {sTH}, 1
        s_add_u32 s71, s70, {sFH}
        s_mul_i32 s71, s71, 49152
        s_xor_b32 s76, {sFH}, 1
        s_add_u32 s70, s70, s76
        s_mul_i32 s70, s70, 49152
        s_lshl_b32 s76, {sFH}, 10
        s_add_u32 s70, s70, s76
        s_add_u32 s71, s71, s76
        s_mul_i32 {sM2}, {sW}, 2560
        v_add_u32 v{vD2}, {sM2}, v{vA0}
        v_add_u32 v{vA1}, s70, v{vA0}
        v_add_u32 v{vA0}, s71, v{vA0}
        s_mul_i32 {sA2}, {sRB}, {192*1024}
        s_add_u32 {sA2}, {sA2}, {ACT}
        s_mul_i32 {sW2}, {sFP}, 245760
        s_add_u32 {sW2}, {sW2}, {W2P}""")
    def g2_setup_b():
        t0, t1 = A0, A1
        a(f"""v_lshrrev_b32 v{t0}, 5, v0
        v_lshlrev_b32 v{t0}, 4, v{t0}
        v_lshrrev_b32 v{t1}, 2, v0
        v_and_b32 v{t1}, 7, v{t1}
        v_add_u32 v{t0}, v{t0}, v{t1}
        s_lshl_b32 s70, {sFH}, 5
        v_add_u32 v{t0}, s70, v{t0}
        v_mul_u32_u24 v{t0}, 160, v{t0}
        v_and_b32 v{t1}, 3, v0
        v_lshl_add_u32 v{w2l}, v{t1}, 3, v{t0}
        v_add_u32 v{w2h}, 71680, v{w2l}
        s_lshl_b32 s70, {sTH}, 1
        s_add_u32 s70, s70, {sFH}
        s_lshl_b32 s70, s70, 4
        s_lshl_b32 s71, {sRB}, 6
        s_add_u32 s70, s70, s71
        v_and_b32 v{t0}, 15, v0
        v_add_u32 v{t0}, s70, v{t0}
        v_mul_u32_u24 v{t0}, 0x500, v{t0}
        v_lshrrev_b32 v{t1}, 4, v0
        v_lshl_add_u32 v{t0}, v{t1}, 3, v{t0}
        s_mul_i32 s70, {sFP}, 160
        v_add_u32 v{vO}, s70, v{t0}""")
    def g2_setup_c():
        a(f"""s_and_b32 s70, {sFP}, 3
        s_lshl_b32 s70, s70, 1
        s_add_u32 s70, s70, {sRB}
        s_mul_i32 s70, s70, {ROT}""")
        for p in range(8):
            a(f"""s_and_b32 s70, s70, 7
            s_mul_i32 s71, s70, 6144
            s_add_u32 s{16+p}, s71, {sA2}
            s_mul_i32 s71, s70, {192*1280 if DIRW2 else 30720}
            s_add_u32 s{26+p}, s71, {'0' if DIRW2 else sW2}
            s_add_u32 s70, s70, 1""")
    def g2_setup_d():
        a(f"""s_mov_b32 s8, s{P['w2']}
        s_mov_b32 s9, s{P['w2']+1}
        s_mul_i32 s70, {sW}, 160
        s_mul_i32 s71, {sFP}, 160""")
        for h, r in enumerate((vD2, vW0, vW1)):
            a(f"""v_add_u32 v{A0}, s70, v0
            v_add_u32 v{A0}, {64*h}, v{A0}
            v_mul_u32_u24 v{A1}, 6554, v{A0}
            v_lshrrev_b32 v{A1}, 16, v{A1}
            v_mul_u32_u24 v{r}, 10, v{A1}
            v_sub_u32 v{A0}, v{A0}, v{r}
            v_mul_u32_u24 v{A1}, 0x500, v{A1}
            v_lshl_add_u32 v{r}, v{A0}, 4, v{A1}
            v_add_u32 v{r}, s71, v{r}""")
            if h: a(f"v_add_u32 v{r}, {-1024*h}, v{r}")
    def st_sp(sg): return sg // 8, sg % 8
    def dma_w2_piece(sg, h):
        s2, p = st_sp(sg)
        if h == 0:
            a(f"s_add_u32 m0, {sM2}, {(sg % 8)*10240}")
            if s2 > 0 and p == 0:
                if DIRW2:
                    for r in (vD2, vW0, vW1): a(f"v_add_u32 v{r}, {64*1280}, v{r}")
                else: a(f"v_add_u32 v{vD2}, 10240, v{vD2}")
        if h == 2: a("s_mov_b64 exec, 0xffffffff")
        if DIRW2: a.vmem(f"buffer_load_dwordx4 v{(vD2, vW0, vW1)[h]}, {SW1}, s{26+p} offen offset:{1024*h} lds", ('d2', sg))
        else: a.vmem(f"buffer_load_dwordx4 v{vD2}, {SWS}, s{26+p} offen offset:{1024*h} sc1 lds", ('d2', sg))
        if h == 2: a("s_mov_b64 exec, -1")
    def load_act(sg):
        s2, p = st_sp(sg)
        r = G2A + 8*(sg % NA)
        if s2 > 0 and p == 0: a(f"v_add_u32 v{vA0}, 2048, v{vA0}\nv_add_u32 v{vA1}, 2048, v{vA1}")
        a.vmem(f"buffer_load_dwordx4 {v(r,4)}, v{vA0}, {SWS}, s{16+p} offen {os.environ.get('ASC','sc1')}", ('a2', sg))
        a.vmem(f"buffer_load_dwordx4 {v(r+4,4)}, v{vA1}, {SWS}, s{16+p} offen {os.environ.get('ASC','sc1')}", ('a2', sg))
    def pregs(s2): return [(XF, XF+1), (XF+94, XF+95), (G2M+4, G2M+5)][s2]
    def pa_ld(s2):
        pv, pa = pregs(s2)
        return f"buffer_load_dword v{pv}, v{pa}, {SWS}, s{78+s2} offen sc1"
    def poll_act_issue(s2):
        pv, pa = pregs(s2)
        a(f"""v_and_b32 v{pa}, 7, v0
        v_lshlrev_b32 v{pa}, 7, v{pa}
        s_mul_i32 s{78+s2}, {sRB}, 3072
        s_add_u32 s{78+s2}, s{78+s2}, {FL_ACT + 1024*s2}""")
        w0_issue(pa_ld(s2), ('pa', s2))
    def poll_act_check(s2):
        w0_check(pa_ld(s2), [pregs(s2)[0]], ('pa', s2))
    def w0_issue(ld, tag):
        L = a.label("Lw0")
        a(f"s_cmp_lg_u32 {sW}, 0\ns_cbranch_scc1 {L}")
        a(ld)
        a(f"{L}:")
        a.vm.append(('VIRT', tag))
    def w0_check(ld, regs, tag):
        L = a.label("Lw0")
        a(f"s_cmp_lg_u32 {sW}, 0\ns_cbranch_scc1 {L}")
        q = list(a.vm); d = dict(a.done)
        a.wait(vm=[('VIRT', tag)])
        a.vm[:] = [t for t in q if t != ('VIRT', tag)]; a.done.clear(); a.done.update(d)
        spin(a, ld, cmpn(regs))
        a(f"{L}:")
    flagged = set(); act_age = {}
    def pre_barrier(tags, lg="all"):
        tags = list(tags)
        for ss in range(3):
            if ss in flagged: continue
            if a.vm.count(('act', ss)) + a.done.get(('act', ss), 0) == 2:
                act_age[ss] = act_age.get(ss, 0) + 1
                if act_age[ss] >= ACT_DELAY: tags.append(('act', ss))
        a.wait(vm=tags, lg=lg)
        a("s_barrier")
        for ss in range(3):
            if ss not in flagged and a.done.get(('act', ss), 0) == 2:
                a(f"s_add_u32 s70, s81, {1024*ss}")
                flag_store(a, "s70", A0, A1, ('fl', ss)); flagged.add(ss)

    steps = [(s, kc) for s in range(3) for kc in range(10)]
    next_dma = 10; w2_issued = 0; act_issued = 0
    pend = []
    for si, (s, kc) in enumerate(steps):
        cw = 2*kc + 1 if s == 0 else 10 + 10*s + kc
        pre_barrier([('c', cw)], lg=())
        if (DIAG == 1 and (s, kc) in ((0, 0), (1, 0), (1, 4), (2, 0))) or (DIAG == 2 and s == 1 and kc < 9) or (DIAG == 3 and s == 2 and kc != 0) or (DIAG == 5 and s == 0 and kc < 9): stamp(a, f'g1 {s},{kc}', True)
        dq = []
        if si >= 2:
            nrel = 2 if (s == 0 or (s == 1 and kc <= 1)) else 1
            for _ in range(nrel):
                if next_dma < 40:
                    dq += [(dma_half, next_dma, 0), (dma_half, next_dma, 1)]; next_dma += 1
        if s == 2 and kc >= 4:
            while w2_issued < 8 and -(-10240*(w2_issued+1)//8192) <= kc - 1:
                dq += [(dma_w2_piece, w2_issued, h) for h in range(3)]; w2_issued += 1
        def dma_some(n):
            for _ in range(n):
                if dq:
                    f, x1, x2 = dq.pop(0); f(x1, x2)
        prev = pend; pend = []
        acc = accof(s)
        xf = XF + 16*kc
        hi = (s == 0 and (2*kc) % 10 == 8)
        if hi:
            for j in range(4): a(f"v_add_u32 v{xr[j]}, 0x10000, v{xr[j]}")
        def rd(j):
            r = read_w(cw, j)
            if s == 0:
                slot = (2*kc) % 10
                off = slot*8192 if slot < 8 else (slot-8)*8192
                a.ds(f"ds_read_b128 {v(xf+4*j,4)}, v{xr[j]} offset:{off}", ('w', cw, j))
            pend.append((acc, r, xf + 4*j, kc == 0 and j == 0, ('w', cw, j)))
        def mf():
            if prev:
                m = prev.pop(0); a.wait(lg=[m[4]]); mfma1(*m[:4])
        per = -(-len(dq)//4)
        rd(0); rd(1)
        mf(); dma_some(per)
        mf(); rd(2); rd(3); dma_some(per)
        if hi:
            for j in range(4): a(f"v_add_u32 v{xr[j]}, 0xffff0000, v{xr[j]}")
        run_side(1)
        mf(); dma_some(per)
        run_side(2)
        mf(); dma_some(per)
        lds_ = f"buffer_load_dword v{A0}, v{EQ}, {SWS}, s75 offen sc1"
        ldw2 = "\n".join(f"s_mov_b32 s76, {FL_AUX + 8192*n}\nbuffer_load_dword v{XF+3+n}, v{XF+2}, {SWS}, s76 offen sc1" for n in range(2 if W2AUX else 4))
        if (s, kc) == (1, 7): g2_setup_a()
        if (s, kc) == (1, 8): g2_setup_b()
        if (s, kc) == (int(os.environ.get('PGS', '1')), 0): a(f"s_setprio {os.environ.get('PG','2')}")
        if s == 0:
            a.wait(lg="all")
            for m in pend:
                for k in range(4): a(f"v_dot2_f32_bf16 v{22+k}, v{m[2]+k}, s69, v{22+k}")
                for k in range(4): a(f"v_dot2_f32_bf16 v{26+k}, v{m[2]+k}, v{m[2]+k}, v{26+k}")
                for k in range(4): a(f"v_dot2_f32_bf16 v{30+k}, v{m[1]+k}, s69, v{30+k}")
        if (s, kc) == (0, 9): local_stats()
        if (s, kc) == (1, 0):
            ext_mfma(0); side.extend(mish_items(0))
        if (s, kc) == (1, 3):
            a(f"s_mov_b32 s75, {FL_S}")
            w0_issue(lds_, 'ps')
        if (s, kc) == (1, 5): w0_check(lds_, [A0], 'ps')
        if (s, kc) == (1, 6): run_side(100); side.extend(ext_items())
        if (s, kc) == (1, 9): ext_build()
        if (s, kc) == (2, 0):
            run_side(100); ext_mfma(1); side.extend(mish_items(1))
        if (s, kc) == (2, 1) and not DIRW2:
            a(f"v_lshlrev_b32 v{XF+2}, 7, v0")
            w0_issue(ldw2, 'pw')
        if (s, kc) == (2, 2):
            g2_setup_c()
            if DIRW2: g2_setup_d()
        if (s, kc) == (2, 3) and not DIRW2: w0_check(ldw2, [XF+3, XF+4] if W2AUX else [XF+3, XF+4, XF+5, XF+6], 'pw')
        if (s, kc) == (2, C0-2): poll_act_issue(0)
        if (s, kc) == (2, C0): poll_act_check(0)
        if s == 2 and kc > C0:
            n = min(8, 3*(kc-C0))
            while act_issued < n: load_act(act_issued); act_issued += 1

    a2pend = []
    XA = G2M + 8 - 10 + 10
    for sg in range(24):
        if DIAG == 6 and sg in (3, 4, 5): stamp(a, 'prewait')
        if DIAG == 6 and sg in (3, 4, 5):
            q = list(a.vm); d = dict(a.done)
            a.wait(vm=[('d2', sg), ('a2', sg)]); stamp(a, 'postwait')
            a.vm[:] = q; a.done.clear(); a.done.update(d)
        if DIAG == 7 and sg in (11, 12, 13): stamp(a, 'prewait')
        if DIAG == 7 and sg in (11, 12, 13):
            q = list(a.vm); d = dict(a.done)
            a.wait(vm=[('d2', sg), ('a2', sg)]); stamp(a, 'postwait')
            a.vm[:] = q; a.done.clear(); a.done.update(d)
        pre_barrier([('d2', sg), ('a2', sg)])
        if (DIAG == 6 and sg in (3, 4, 5)) or (DIAG == 7 and sg in (11, 12, 13)): stamp(a, 'postbar')
        if (DIAG == 1 and sg in (0, 8, 16, 23)) or (DIAG == 4 and sg < 9): stamp(a, f'g2 {sg}')
        if os.environ.get('PG2') and sg == 3: a(f"s_setprio {os.environ.get('PG2')}")
        dq = []
        if sg == 0:
            while w2_issued < 8:
                dq += [(w2_issued, h) for h in range(3)]; w2_issued += 1
        elif w2_issued < 24:
            dq += [(w2_issued, h) for h in range(3)]; w2_issued += 1
        wb = G2W + 20*(sg % 2)
        slot = sg % 8
        base, off = (w2l, slot*10240) if slot < 7 else (w2h, 0)
        prev = a2pend; a2pend = []
        if sg == 0:
            run_side(100)
            for m in pend:
                mfma1(*m[:4])
                if dq: dma_w2_piece(*dq.pop(0))
            pend = []
            ext_mfma(2)
            side.extend(mish_items(2))
        for dt in range(5):
            a.ds(f"ds_read_b64_tr_b16 {v(wb+4*dt,2)}, v{base} offset:{off + 32*dt}", ('w2', sg))
            a.ds(f"ds_read_b64_tr_b16 {v(wb+4*dt+2,2)}, v{base} offset:{off + 32*dt + 1280}", ('w2', sg))
            for _ in range(2):
                if prev: a(prev.pop(0))
            if dq: dma_w2_piece(*dq.pop(0))
            if dt in (0, 1, 2, 3): run_side(1)
        while dq: dma_w2_piece(*dq.pop(0))
        for dt in range(5):
            for tau in range(2):
                accr = G2ACC + 20*tau + 4*dt
                a2pend.append(f"v_mfma_f32_16x16x32_bf16 {v(accr,4)}, {v(wb+4*dt,4)}, {v(G2A+8*(sg%NA)+4*tau,4)}, {'0' if sg == 0 else v(accr,4)}")
        if sg >= 1:
            lim = min(sg + NA, 8 if sg <= C1 else 16 if sg <= C2 else 24, act_issued + 2)
            while act_issued < lim: load_act(act_issued); act_issued += 1
        if sg == C1 - 2: poll_act_issue(1)
        if sg == C1: poll_act_check(1)
        if sg == C2 - 2: poll_act_issue(2)
        if sg == C2: poll_act_check(2)
        if sg == 4:
            for dt in range(5):
                a.vmem(f"buffer_load_dwordx2 {v(G2X+2*dt,2)}, v{vO}, {SX}, 0 offen offset:{32*dt}", 'xfin')
        PV = G2M + 6
        ypoll = f"buffer_load_dword v{PV}, v{PV+1}, {SWS}, s75 offen sc1"
        if sg == 17:
            a(f"""v_and_b32 v{PV+1}, 31, v0
            v_lshlrev_b32 v{PV+1}, 7, v{PV+1}
            s_lshl_b32 s75, {sFP}, 12
            s_add_u32 s75, s75, {FL_Y}
            s_mul_i32 s70, {sW}, 160
            v_add_u32 v22, s70, v0
            v_lshrrev_b32 v23, 3, v22
            s_mul_i32 s70, {sFP}, 80
            v_add_u32 v23, s70, v23
            v_lshlrev_b32 v23, 12, v23
            v_and_b32 v22, 7, v22
            v_lshl_add_u32 v22, v22, 4, v23
            v_add_u32 v23, {32768-1024}, v22
            v_add_u32 v24, {65536-2048}, v22
            s_lshl_b32 s76, {sRB}, 7
            s_add_u32 s76, s76, {AT}
            v_lshrrev_b32 v25, 2, v0
            v_lshlrev_b32 v25, 7, v25
            v_and_b32 v26, 3, v0
            v_lshl_add_u32 v25, v26, 3, v25
            s_lshl_b32 s70, {sTH}, 1
            s_add_u32 s70, s70, {sFH}
            s_lshl_b32 s70, s70, 5
            v_add_u32 v25, s70, v25
            s_mul_i32 s70, {sW}, 5120
            s_xor_b32 s71, {sW}, 2
            s_mul_i32 s71, s71, 5120
            v_lshlrev_b32 v26, 4, v0
            v_add_u32 v27, s71, v26
            v_add_u32 v26, s70, v26""")
        if sg == 19: a.vmem(ypoll, 'py')
        def dma_at(tagit=True):
            f = a.vmem if tagit else (lambda t, g: a(t))
            a(f"s_mov_b32 m0, {sM2}")
            f(f"buffer_load_dwordx4 v22, {SWS}, s76 offen sc1 lds", 'at')
            f(f"buffer_load_dwordx4 v23, {SWS}, s76 offen offset:1024 sc1 lds", 'at')
            a("s_mov_b64 exec, 0xffffffff")
            f(f"buffer_load_dwordx4 v24, {SWS}, s76 offen offset:2048 sc1 lds", 'at')
            a("s_mov_b64 exec, -1")
        if sg == 21:
            a.wait(vm=['py'])
            a(cmpn([PV]))
            a("s_cselect_b32 s77, 1, 0")
            dma_at()
    a.wait(lg="all")
    for m in [m for i, m in enumerate(a2pend) if i % 2 == 1]: a(m)
    for m in [m for i, m in enumerate(a2pend) if i % 2 == 0]: a(m)
    for dt in range(5): a(f"ds_write_b128 v26, {v(G2ACC+20+4*dt,4)} offset:{10240+1024*dt}")
    L = a.label("Lyok")
    a(f"""s_cmp_eq_u32 s77, 1
    s_cbranch_scc1 {L}
    s_waitcnt vmcnt(0)
    v_not_b32 v{PV}, {sTAG}""")
    spin(a, ypoll, cmpn([PV]))
    dma_at(False)
    a(f"{L}:")
    a("s_waitcnt vmcnt(0) lgkmcnt(0)")
    a.vm.clear(); a.lg.clear()
    a("s_barrier")
    RX = G2A; AV = G2A + 20; TT = G2W
    for dt in range(5): a.ds(f"ds_read_b64_tr_b16 {v(AV+2*dt,2)}, v25 offset:{2048*dt}", ('av', dt))
    for dt in range(5): a.ds(f"ds_read_b128 {v(RX+4*dt,4)}, v27 offset:{10240+1024*dt}", ('rx', dt))
    def unp(d, s): return f"v_lshlrev_b32 v{d}, 16, v{s}\nv_and_b32 v{d+1}, 0xffff0000, v{s}"
    for dt in range(5):
        t = TT + 8*dt
        a(unp(t, G2X+2*dt)); a(unp(t+2, G2X+2*dt+1))
    for dt in range(5):
        t = TT + 8*dt; av = AV + 2*dt
        a.wait(lg=[('av', dt)])
        a(unp(t+4, av)); a(unp(t+6, av+1))
        a(f"""v_pk_add_f32 {v(t,2)}, {v(t,2)}, {v(t+4,2)}
        v_pk_add_f32 {v(t+2,2)}, {v(t+2,2)}, {v(t+6,2)}
        v_cvt_pk_bf16_f32 v{t+4}, v{t}, v{t+1}
        v_cvt_pk_bf16_f32 v{t+5}, v{t+2}, v{t+3}""")
        a(unp(t, t+4)); a(unp(t+2, t+5))
    for dt in range(5):
        t = TT + 8*dt; k = G2ACC + 4*dt; r = RX + 4*dt
        a.wait(lg=[('rx', dt)])
        a(f"""v_pk_add_f32 {v(k,2)}, {v(k,2)}, {v(r,2)}
        v_pk_add_f32 {v(k+2,2)}, {v(k+2,2)}, {v(r+2,2)}
        v_cvt_pk_bf16_f32 v{r}, v{k}, v{k+1}
        v_cvt_pk_bf16_f32 v{r+1}, v{k+2}, v{k+3}""")
        a(unp(k, r)); a(unp(k+2, r+1))
        a(f"""v_pk_add_f32 {v(t,2)}, {v(t,2)}, {v(k,2)}
        v_pk_add_f32 {v(t+2,2)}, {v(t+2,2)}, {v(k+2,2)}
        v_cvt_pk_bf16_f32 v{t+4}, v{t}, v{t+1}
        v_cvt_pk_bf16_f32 v{t+5}, v{t+2}, v{t+3}
        buffer_store_dwordx2 {v(t+4,2)}, v{vO}, {S4}, 0 offen offset:{32*dt}""")
    if DIAG: a("s_waitcnt vmcnt(0)")
    if DIAG == 1: stamp(a, 'end')
    stamp_flush(a, 22)
    a("s_endpgm")

UPAD = 448
UCS  = 4640
USTR = 4*UCS
KB0  = 3*USTR
K1OFF = 4224
KSTR = 2*K1OFF
CVOFF = 16
UIN = 200
def u_issue(a):
    a(f"""v_lshlrev_b32 v224, 4, v0
    s_lshl_b32 s70, {sW}, 10
    v_add_u32 v224, s70, v224
    v_lshlrev_b32 v225, 1, v224
    s_mov_b32 s70, {STATS}
    buffer_load_dwordx4 {v(UIN,4)}, v225, {SWS}, s70 offen sc1
    buffer_load_dwordx4 {v(UIN+4,4)}, v225, {SWS}, s70 offen offset:16 sc1""")
    for c, sch in enumerate(("s58", "s59", "s61")):
        a(f"""s_lshl_b32 s70, {sch}, 12
        s_add_u32 s70, s70, {XNT}
        buffer_load_dwordx4 {v(UIN+8+4*c,4)}, v224, {SWS}, s70 offen sc1""")

def ssm(a):
    sI = "s54"
    a(f"""Lssm:
    s_setprio 3
    s_mov_b32 {sI}, s2
    s_lshr_b32 s56, {sI}, 1
    s_mul_i32 s56, s56, 5
    s_and_b32 s57, {sI}, 1
    s_mul_i32 s58, s57, 3
    s_add_u32 s58, s58, s56
    s_add_u32 s59, s58, 1
    s_add_u32 s61, s56, 2""")
    for c, sch in enumerate(("s58", "s59", "s61")):
        a(f"s_lshl_b32 s70, {sch}, 1\ns_and_b32 s70, s70, -4\ns_load_dword s{34+c+(c>1)*6}, {sp('D')}, s70")
    a(f"""s_cmp_eq_u32 {sW}, 3
    s_cbranch_scc1 Laux""")
    kgen(a)
    a("s_branch Lconv")
    aux(a)
    conv(a)

def kgen(a):
    sCH, sKB = "s55", "s68"
    a(f"""s_cmp_eq_u32 {sW}, 0
    s_cselect_b32 {sCH}, s58, s59
    s_cmp_eq_u32 {sW}, 2
    s_cselect_b32 {sCH}, s61, {sCH}
    s_mul_i32 {sKB}, {sW}, {USTR}
    s_mul_i32 s70, {sCH}, 384
    v_mul_u32_u24 v1, 6, v0
    v_and_b32 v1, -4, v1
    v_add_u32 v1, s70, v1""")
    PR = 8
    names = ['Are', 'Aim', 'Bre', 'Bim', 'Cre', 'Cim']
    for k, n in enumerate(names):
        a.vmem(f"global_load_dwordx2 {v(30+2*k,2)}, v1, {sp(n)}", 'par')
    a(f"""s_lshl_b32 s70, {sCH}, 1
    s_and_b32 s70, s70, -4
    s_load_dword s69, {sp('ldt')}, s70
    v_and_b32 v2, 1, v0
    v_lshlrev_b32 v2, 4, v2""")
    a(f"""    s_mov_b32 m0, {sKB}
    v_and_b32 v6, 15, v0
    v_mul_u32_u24 v7, 288, v6
    v_lshrrev_b32 v4, 4, v0
    v_lshl_add_u32 v7, v4, 4, v7
    v_add_u32 v7, {sKB}, v7""")
    if TLB:
        a(f"""v_and_b32 v26, 7, v0
        v_lshlrev_b32 v26, 21, v26
        v_mov_b32 v27, 0
        s_mov_b64 exec, 0xff""")
        a.vmem(f"buffer_load_dword v106, v26, {SWS}, 0 offen offset:512", 'touch')
        a("s_mov_b64 exec, 1")
        for n in ('w2', 'out', 'b1'): a.vmem(f"global_load_dword v107, v27, {sp(n)}", 'touch')
        a("s_mov_b64 exec, -1")
    if TOUCHW1:
        a(f"""s_mul_i32 s70, {sW}, 80
        v_add_u32 v26, s70, v0
        v_add_u32 v27, 64, v26
        s_add_u32 s70, s70, 79
        v_min_u32 v27, s70, v27
        s_lshr_b32 s71, s2, 3
        s_mul_i32 s71, s71, {20*3072}
        s_and_b32 s70, s2, 1
        s_mul_i32 s70, s70, 1536
        s_add_u32 s71, s71, s70""")
        for r in (26, 27):
            a(f"""v_mul_u32_u24 v28, 5462, v{r}
            v_lshrrev_b32 v28, 16, v28
            v_mul_u32_u24 v29, 12, v28
            v_sub_u32 v29, v{r}, v29
            v_mul_u32_u24 v28, 0xc00, v28
            v_lshl_add_u32 v28, v29, 7, v28""")
            a.vmem(f"buffer_load_dword v{r}, v28, {SW1}, s71 offen", 'touch')
    RP = 192
    srd(a, 48, 'w2', 1966080)
    a(f"""s_mul_i32 s78, s2, {6*160}
    s_add_u32 s78, s78, {W2P}
    v_lshlrev_b32 v190, 4, v0
    v_mov_b32 v188, 0
    s_mov_b32 s79, 0
    s_cmp_lg_u32 {sW}, {7 if DIRW2 or W2AUX else 0}
    s_cbranch_scc1 Lkg_now2
    v_mul_u32_u24 v188, 6554, v0
    v_lshrrev_b32 v188, 16, v188
    v_mul_u32_u24 v189, 10, v188
    v_sub_u32 v189, v0, v189
    v_mul_u32_u24 v188, 0x500, v188
    v_lshl_add_u32 v188, v189, 4, v188
    s_mul_i32 s71, s2, {6*1280}
    s_mov_b32 exec_hi, 0x0fffffff""")
    a("s_mov_b32 s79, s71")
    def w2loads():
        for c in range(8):
            a(f"buffer_load_dwordx4 {v(RP+4*c,4)}, v188, {S4}, s79 offen offset:{160*c}")
    if not W2LATE: w2loads()
    a("s_mov_b32 exec_hi, -1\nLkg_now2:")
    W2X = 0 if DIRW2 or W2LATE or W2AUX else 8
    def kwait(tag):
        q = list(a.vm); idx = max(k for k, t in enumerate(q) if t == tag); n = len(q) - 1 - idx
        L = a.label("Lkw")
        a(f"s_waitcnt vmcnt({n+W2X})\ns_cmp_eq_u32 {sW}, 0\ns_cbranch_scc1 {L}\ns_waitcnt vmcnt({n})\n{L}:")
    a(f"s_setprio {os.environ.get('PS','1')}")
    def W2T():
        a(f"""s_mul_i32 s70, {sW}, 80
        v_add_u32 v250, s70, v0
        v_add_u32 v251, 64, v250
        s_add_u32 s70, s70, 79
        v_min_u32 v251, s70, v251
        s_lshr_b32 s71, s2, 3
        s_mul_i32 s71, s71, {48*1280}
        s_and_b32 s70, s2, 1
        s_mul_i32 s70, s70, 640
        s_add_u32 s71, s71, s70""")
        for r in (250, 251):
            a(f"""v_mul_u32_u24 v252, 13108, v{r}
            v_lshrrev_b32 v252, 16, v252
            v_mul_u32_u24 v253, 5, v252
            v_sub_u32 v253, v{r}, v253
            v_mul_u32_u24 v252, 0x500, v252
            v_lshl_add_u32 v252, v253, 7, v252
            buffer_load_dword v{r}, v252, {S4}, s71 offen""")
    make_tag(a)
    stamp_reset(1)
    a(f"""s_bitcmp1_b32 {sCH}, 0
    s_cselect_b32 s70, 0, 16
    s_lshl_b32 s69, s69, s70
    s_and_b32 s69, s69, 0xffff0000
    v_mov_b32 v3, s69
    v_mul_f32 v4, {LOG2E}, v3
    s_mov_b32 s70, {LOG2E}
    v_fma_f32 v5, v3, s70, -v4
    v_fmac_f32 v5, 0x32A57060, v3
    v_exp_f32 v4, v4
    v_mul_f32 v5, 0x3F317218, v5
    v_fmac_f32 v4, v4, v5
    v_cvt_pk_bf16_f32 v4, v4, v4
    v_and_b32 v3, 0xffff0000, v4""")
    R = {r: 30 + 2*(r-1) for r in range(1, 8)}
    V = {b: 44 + 2*(b-1) for b in range(1, 16)}
    Wr, Pa, Pb = 74, 76, 78
    U = [80 + 2*i for i in range(8)]
    CVT = [96 + i for i in range(8)]
    zr, th = 104, 105
    FR = 112
    KACC = 176
    cv = [0]
    def p2(r): return f"v[{r}:{r+1}]"
    def cmuls(lst):
        if os.environ.get('NOPK'):
            for D, X, Y in lst: a(f"v_mul_f32 v{D}, v{X}, v{Y}\nv_mul_f32 v{D+1}, v{X}, v{Y+1}")
            for D, X, Y in lst: a(f"v_fma_f32 v{D}, -v{X+1}, v{Y+1}, v{D}\nv_fmac_f32 v{D+1}, v{X+1}, v{Y}")
            return
        for D, X, Y in lst:
            a(f"v_pk_mul_f32 {p2(D)}, {p2(X)}, {p2(Y)} op_sel:[0,0] op_sel_hi:[0,1]")
        for D, X, Y in lst:
            a(f"v_pk_fma_f32 {p2(D)}, {p2(X)}, {p2(Y)}, {p2(D)} op_sel:[1,1,0] op_sel_hi:[1,0,1] neg_lo:[1,0,0]")
    def emit(rows_regs, neg=False):
        ts = []
        for row, r in rows_regs:
            t = CVT[cv[0] % 8]; cv[0] += 1; ts.append((row, t))
            a(f"v_cvt_pk_bf16_f32 v{t}, v{r}, {'-' if neg else ''}v{r+1}")
        for row, t in ts:
            a(f"ds_write_addtid_b32 v{t} offset:{288*row}")
    for r in range(12): a(f"v_mov_b32 v{KACC+r}, 0")
    kwait('par')
    stamp(a, 'par', True)
    for k in range(6):
        lo, hi = 30+2*k, 31+2*k
        a(f"""v_alignbit_b32 v{lo}, v{hi}, v{lo}, v2
        v_lshrrev_b32 v{hi}, v2, v{hi}
        v_lshlrev_b32 v{PR+k}, 16, v{lo}
        v_and_b32 v{PR+6+k}, 0xffff0000, v{lo}
        v_lshlrev_b32 v{PR+12+k}, 16, v{hi}""")
    if TOUCHW2 == 2: W2T()
    a("s_mov_b32 s69, 3\nLkg:")
    a.vm.clear()
    q = PR
    a(f"""v_mul_f32 v{zr}, v3, v{q}
    v_mul_f32 v{th}, v3, v{q+1}
    v_mul_f32 v{q+2}, v3, v{q+2}
    v_mul_f32 v{q+3}, v3, v{q+3}
    v_mul_f32 v{zr}, {LOG2E}, v{zr}
    v_mul_f32 v{th}, 0.15915494, v{th}""")
    dst = [(R[1], None), (V[1], 0x41000000), (Wr, 0x43000000)]
    for k, (d, mulc) in enumerate(dst):
        e, ph = U[k], U[k]+1
        if mulc is None:
            a(f"v_exp_f32 v{e}, v{zr}\nv_fract_f32 v{ph}, v{th}")
        else:
            a(f"v_mul_f32 v{e}, {mulc}, v{zr}\nv_mul_f32 v{ph}, {mulc}, v{th}\nv_exp_f32 v{e}, v{e}\nv_fract_f32 v{ph}, v{ph}")
    for k, (d, mulc) in enumerate(dst):
        a(f"v_cos_f32 v{d}, v{U[k]+1}\nv_sin_f32 v{d+1}, v{U[k]+1}")
    cmuls([(Pa, q+4, q+2)])
    for k, (d, mulc) in enumerate(dst):
        a(f"v_mul_f32 v{d}, v{d}, v{U[k]}\nv_mul_f32 v{d+1}, v{d+1}, v{U[k]}")
    for k in range(0, 12, 2): a(f"v_pk_mul_f32 {p2(q+k)}, {p2(q+6+k)}, 1.0 op_sel_hi:[1,0]")
    a(f"v_mov_b32 v{CVT[7]}, 0x3f80")
    a(f"ds_write_addtid_b32 v{CVT[7]} offset:{288*41}")
    cmuls([(R[2], R[1], R[1]), (V[2], V[1], V[1]), (Pb, Pa, Wr)])
    emit([(0, Pa), (8, Pb)]); emit([(42, V[1]), (43, V[2])], neg=True)
    cmuls([(R[3], R[2], R[1]), (R[4], R[2], R[2]), (V[3], V[2], V[1]), (V[4], V[2], V[2]),
           (U[0], Pa, R[1]), (U[1], Pa, R[2]), (U[2], Pb, R[1]), (U[3], Pb, R[2])])
    emit([(1, U[0]), (2, U[1]), (9, U[2]), (10, U[3])]); emit([(44, V[3]), (45, V[4])], neg=True)
    cmuls([(R[5], R[4], R[1]), (R[6], R[4], R[2]), (R[7], R[4], R[3]),
           (V[5], V[4], V[1]), (V[6], V[4], V[2]), (V[7], V[4], V[3]), (V[8], V[4], V[4]),
           (U[0], Pa, R[3]), (U[1], Pa, R[4]), (U[2], Pb, R[3]), (U[3], Pb, R[4])])
    emit([(3, U[0]), (4, U[1]), (11, U[2]), (12, U[3])]); emit([(41+b, V[b]) for b in (5, 6, 7, 8)], neg=True)
    cmuls([(U[0], Pa, R[5]), (U[1], Pa, R[6]), (U[2], Pa, R[7]), (U[3], Pb, R[5]), (U[4], Pb, R[6]), (U[5], Pb, R[7])]
          + [(V[8+b], V[8], V[b]) for b in range(1, 8)] + [(U[6], Wr, Wr), (U[7], Pb, Wr)])
    W2, P2 = U[6], U[7]
    emit([(5, U[0]), (6, U[1]), (7, U[2]), (13, U[3]), (14, U[4]), (15, U[5])])
    cmuls([(Pa, Pb, W2), (U[0], P2, R[2]), (U[1], P2, R[4]), (U[2], P2, R[6])])
    cmuls([(Pb, P2, W2)])
    emit([(41+8+b, V[8+b]) for b in range(1, 8)], neg=True)
    emit([(16, P2), (17, U[0]), (18, U[1]), (19, U[2])])
    Pc, Pd = V[9], V[10]
    cmuls([(Pc, Pa, W2), (Pd, Pb, W2), (U[0], Pa, R[2]), (U[1], Pa, R[4]), (U[2], Pa, R[6]), (U[3], Pb, R[4])])
    emit([(20, Pa), (21, U[0]), (22, U[1]), (23, U[2]), (24, Pb), (25, U[3])])
    cmuls([(Pa, Pc, W2), (Pb, Pd, W2), (U[0], Pc, R[4]), (U[1], Pd, R[4])])
    emit([(26, Pc), (27, U[0]), (28, Pd), (29, U[1])])
    cmuls([(Pc, Pa, W2), (Pd, Pb, W2), (U[0], Pa, R[4]), (V[11], W2, W2)])
    emit([(30, Pa), (31, U[0]), (32, Pb)])
    W4 = V[11]
    cmuls([(Pa, Pc, W2), (U[0], Pb, W4), (U[1], Pc, W4), (U[2], Pd, W4)])
    emit([(33, Pc), (34, Pd)])
    cmuls([(U[3], Pa, W4), (U[4], U[0], W4)])
    emit([(35, Pa), (36, U[0]), (37, U[1]), (38, U[2])])
    emit([(39, U[3]), (40, U[4])])
    a("s_waitcnt lgkmcnt(0)")
    for ks in range(4):
        a.ds(f"ds_read_b128 {v(FR+16*ks+12,4)}, v7 offset:{288*41 + 64*ks}", ('fr', ks))
        for m in range(3):
            a.ds(f"ds_read_b128 {v(FR+16*ks+4*m,4)}, v7 offset:{288*16*m + 64*ks}", ('fr', ks))
    for ks in range(4):
        a.wait(lg=[('fr', ks)])
        for m in range(3):
            a(f"v_mfma_f32_16x16x32_bf16 {v(KACC+4*m,4)}, {v(FR+16*ks+4*m,4)}, {v(FR+16*ks+12,4)}, {v(KACC+4*m,4)}")
    a(f"""s_sub_u32 s69, s69, 1
    s_cmp_lg_u32 {sW}, {7 if DIRW2 or W2AUX else 0}
    s_cbranch_scc1 Lkg_n
    s_cmp_eq_u32 s69, {2-W2LATE}
    s_cbranch_scc0 Lkg_f
    s_waitcnt vmcnt(0)
    s_mov_b32 exec_hi, 0x0fffffff""")
    for c in range(8):
        a(f"buffer_store_dwordx4 {v(RP+4*c,4)}, v190, {SWS}, s78 offen sc1")
        if c < 7: a("s_add_u32 s78, s78, 245760")
    a(f"""s_mov_b32 exec_hi, -1
    s_branch Lkg
    Lkg_f:""")
    if W2LATE:
        a("s_cmp_eq_u32 s69, 2\ns_cbranch_scc0 Lkg_g\ns_mov_b32 exec_hi, 0x0fffffff")
        w2loads()
        a("s_mov_b32 exec_hi, -1\ns_branch Lkg\nLkg_g:")
    a(f"""s_cmp_eq_u32 s69, {1-W2LATE}
    s_cbranch_scc0 Lkg_n
    s_lshl_b32 s70, s2, 7
    s_add_u32 s70, s70, {FL_AUX}
    s_waitcnt vmcnt(0)""")
    flag_store(a, "s70", 190, 191)
    a("""Lkg_n:
    s_cmp_lg_u32 s69, 0
    s_cbranch_scc1 Lkg""")
    stamp(a, 'tables', True)
    if TOUCHW2 == 1:
        W2T()
    go_wait(a, 20)
    u_issue(a)
    stamp(a, 'aux seen', True)
    a(f"""v_lshrrev_b32 v4, 4, v0
    v_lshrrev_b32 v8, 1, v4
    v_and_b32 v9, 1, v4
    v_lshlrev_b32 v10, 8, v8
    v_lshl_add_u32 v10, v6, 4, v10
    v_lshl_add_u32 v10, v9, 3, v10
    v_add_u32 v10, {sKB}, v10
    v_lshlrev_b32 v11, 7, v4
    v_add_u32 v11, 512, v11
    v_sub_u32 v12, 3, v8
    v_lshlrev_b32 v12, v12, v6
    v_add_u32 v11, v11, v12
    v_add_u32 v11, {sKB}, v11
    v_mul_u32_u24 v12, 60, v8
    v_add_u32 v12, 4, v12
    v_add_u32 v12, v11, v12
    v_lshlrev_b32 v13, 7, v4
    v_lshl_add_u32 v13, v6, 1, v13
    v_add_u32 v13, {sKB}, v13
    v_mov_b32 v14, 0
    v_mov_b32 v15, {sKB}""")
    for i in range(6): a(f"v_cvt_pk_bf16_f32 v{16+i}, v{KACC+2*i}, v{KACC+2*i+1}")
    a(f"""ds_write_b64 v10, v[16:17] offset:{CVOFF}
    ds_write_b32 v11, v18 offset:{CVOFF}
    ds_write_b32 v12, v19 offset:{CVOFF}
    ds_write_b16 v13, v20 offset:{CVOFF+1024}
    ds_write_b16_d16_hi v13, v20 offset:{CVOFF+1024+32}
    ds_write_b16 v13, v21 offset:{CVOFF+1024+64}
    ds_write_b16_d16_hi v13, v21 offset:{CVOFF+1024+96}
    ds_write_b32 v15, v14 offset:{CVOFF-4}
    v_and_b32 v8, 31, v0
    v_lshl_add_u32 v9, v8, 4, {sKB}
    v_lshl_add_u32 v10, v8, 3, {sKB}
    v_min_u32 v11, 1, v8
    v_lshl_add_u32 v11, v11, 1, v10
    v_lshl_add_u32 v12, v0, 2, {sKB}
    v_lshl_add_u32 v13, v0, 1, {sKB}
    s_mul_i32 s69, {sW}, {KSTR}
    s_add_u32 s69, s69, {KB0}
    v_lshl_add_u32 v14, v0, 4, s69
    v_mov_b32 v40, 0
    v_mov_b32 v41, 0
    v_mov_b32 v42, 0
    v_mov_b32 v43, 0
    s_waitcnt lgkmcnt(0)
    ds_read_b128 v[16:19], v9 offset:{CVOFF}
    ds_read_b32 v20, v9 offset:{CVOFF-4}
    ds_read_b64 v[22:23], v10 offset:{CVOFF+512}
    ds_read_b32 v24, v10 offset:{CVOFF+512+8}
    ds_read_u16 v25, v11 offset:{CVOFF+512-2}
    ds_read_b32 v26, v12 offset:{CVOFF+768}
    ds_read_b32 v27, v12 offset:{CVOFF+768+4}
    ds_read_u16 v28, v13 offset:{CVOFF+1024}
    ds_read_u16 v60, v13 offset:{CVOFF+1024+2}
    ds_read_u16 v29, v13 offset:{CVOFF+1024+128}
    ds_read_u16 v61, v13 offset:{CVOFF+1024+130}
    s_mov_b32 s70, 0xffff
    s_mov_b32 s71, 0x01000100
    s_mov_b32 s72, 0x03020302
    s_mov_b32 s75, 0x05040100
    v_and_b32 v30, 1, v0
    v_mul_u32_u24 v31, 0x0404, v30
    v_lshlrev_b32 v30, 16, v31
    v_add_u32 v30, 0x01000504, v30
    v_add_u32 v31, 0x01000100, v31
    s_mov_b64 exec, 0xff
    ds_write_b128 v14, v[40:43]
    ds_write_b128 v14, v[40:43] offset:{K1OFF}
    s_mov_b64 exec, 0xffffffff
    s_waitcnt lgkmcnt(2)
    v_alignbit_b32 v32, v19, v19, 16
    v_alignbit_b32 v33, v18, v18, 16
    v_alignbit_b32 v34, v17, v17, 16
    v_alignbit_b32 v35, v16, v16, 16
    v_bfi_b32 v36, s70, v19, v18
    v_bfi_b32 v37, s70, v18, v17
    v_bfi_b32 v38, s70, v17, v16
    v_bfi_b32 v39, s70, v16, v20
    ds_write_b128 v14, v[32:35] offset:{K1OFF+128}
    ds_write_b128 v14, v[36:39] offset:128
    v_bfi_b32 v44, s70, v24, v23
    v_perm_b32 v45, v23, v23, s71
    v_bfi_b32 v46, s70, v23, v22
    v_perm_b32 v47, v22, v22, s71
    v_alignbit_b32 v48, v23, v23, 16
    v_mov_b32 v49, v45
    v_alignbit_b32 v50, v22, v22, 16
    v_perm_b32 v51, v25, v22, s75
    ds_write_b128 v14, v[44:47] offset:{K1OFF+128+512}
    ds_write_b128 v14, v[48:51] offset:{128+512}
    s_mov_b64 exec, -1
    v_perm_b32 v64, v27, v27, s71
    v_perm_b32 v65, v26, v26, s72
    v_alignbit_b32 v66, v26, v26, 16
    v_perm_b32 v67, v26, v26, s71
    v_bfi_b32 v68, s70, v27, v26
    v_mov_b32 v69, v65
    v_mov_b32 v70, v67
    v_mov_b32 v71, v67
    ds_write_b128 v14, v[64:67] offset:{K1OFF+128+1024}
    ds_write_b128 v14, v[68:71] offset:{128+1024}""")
    for k, src in enumerate((28, 29)):
        b = 72 + 8*k; s1 = 60 + k
        a(f"""v_perm_b32 v{b}, v{s1}, v{s1}, s71
        v_perm_b32 v{b+1}, v{s1}, v{src}, v30
        v_perm_b32 v{b+2}, v{src}, v{src}, s71
        v_perm_b32 v{b+5}, v{s1}, v{src}, v31
        v_mov_b32 v{b+3}, v{b+2}
        v_mov_b32 v{b+4}, v{b}
        v_mov_b32 v{b+6}, v{b+2}
        v_mov_b32 v{b+7}, v{b+2}
        ds_write_b128 v14, {v(b,4)} offset:{K1OFF+128+2048+1024*k}
        ds_write_b128 v14, {v(b+4,4)} offset:{128+2048+1024*k}""")
    a.vm.clear(); a.lg.clear()

def aux(a):
    sI = "s54"
    sX8, sJ = "s55", "s56"
    a("Laux:")
    X = 16
    TB = 56
    TB2 = 212
    TM = 96
    CS = 116
    TP = 244
    def blk_addr(sidx, sld, sst):
        a(f"""s_mul_i32 s70, {sidx}, 6554
        s_lshr_b32 s70, s70, 16
        s_mul_i32 s71, s70, 10
        s_sub_u32 s71, {sidx}, s71
        s_lshr_b32 s72, {sX8}, 1
        s_lshl_b32 s72, s72, 3
        s_add_u32 s70, s70, s72
        s_mul_i32 {sld}, s70, {64*1280}
        s_lshl_b32 s72, s71, 7
        s_add_u32 {sld}, {sld}, s72
        s_lshl_b32 {sst}, s71, 18
        s_lshl_b32 s72, s70, 7
        s_add_u32 {sst}, {sst}, s72
        s_add_u32 {sst}, {sst}, {XNT}""")
    def blk_load(base, sld):
        for r in range(8):
            a(f"buffer_load_dwordx4 {v(base+4*r,4)}, v{(2,3,6)[r//3]}, {SX}, {sld} offen offset:{(r%3)*1280}")
    def blk_store(base, sst):
        for c in range(8):
            o = TP + 4*(c % 2)
            for k in range(4):
                a(f"v_perm_b32 v{o+k}, v{base+4*(2*k+1)+c//2}, v{base+4*(2*k)+c//2}, {'s75' if c % 2 else 's74'}")
            a(f"buffer_store_dwordx4 {v(o,4)}, v7, {SWS}, {sst} offen sc1")
            if c < 7: a(f"s_add_u32 {sst}, {sst}, 4096")
    a(f"""s_and_b32 {sX8}, {sI}, 7
    s_lshr_b32 {sJ}, {sI}, 3
    s_setprio {os.environ.get('PA','0')}
    s_lshr_b32 s81, 0xdb6, {sJ}
    s_and_b32 s81, s81, 1
    v_lshrrev_b32 v4, 3, v0
    v_and_b32 v5, 7, v0""")
    a(f"""s_cmp_eq_u32 s81, 0
    s_cbranch_scc1 Laux_nocs
    s_lshr_b32 s77, {sX8}, 1
    s_and_b32 s78, {sX8}, 1
    s_mul_i32 s78, s78, 12
    s_add_u32 s78, s78, {sJ}
    v_mul_u32_u24 v8, 0xc00, v4
    v_lshl_add_u32 v8, v5, 4, v8
    s_mul_i32 s72, s77, {160*3072}
    s_lshl_b32 s73, s78, 7
    s_add_u32 s72, s72, s73""")
    for n in range(20):
        a(f"buffer_load_dwordx4 {v(CS+4*n,4)}, v8, {SW1}, s72 offen")
        if n < 19: a(f"s_add_u32 s72, s72, 24576")
    a(f"""Laux_nocs:
    s_lshl_b32 s68, {sX8}, 8
    s_lshl_b32 s70, {sJ}, 3
    s_add_u32 s68, s68, s70
    s_mul_i32 s70, s68, 1280
    v_mul_u32_u24 v1, 0x500, v4
    v_lshl_add_u32 v1, v5, 4, v1""")
    for n in range(10):
        a(f"buffer_load_dwordx4 {v(X+4*n,4)}, v1, {SX}, s70 offen offset:{128*n}")
    a(f"""s_and_b32 s69, {sX8}, 1
    s_mul_i32 s69, s69, 40
    s_add_u32 s69, s69, {sJ}
    v_mul_u32_u24 v2, {8*1280}, v5
    v_lshl_add_u32 v2, v4, 4, v2
    v_add_u32 v3, {3*1280}, v2
    v_add_u32 v6, {6*1280}, v2
    v_lshlrev_b32 v7, 15, v4
    v_lshl_add_u32 v7, v5, 4, v7""")
    blk_addr("s69", "s73", "s79")
    blk_load(TB, "s73")
    a(f"""s_cmp_lt_u32 {sJ}, 24
    s_cbranch_scc1 Laux_b1
    s_add_u32 s69, s69, 8""")
    blk_addr("s69", "s73", "s80")
    blk_load(TB2, "s73")
    a("Laux_b1:")
    if TOUCH:
        a(f"""s_getpc_b64 s[62:63]
        Lpc:
        s_sub_u32 s62, s62, Lpc-{KN}
        s_subb_u32 s63, s63, 0
        v_min_u32 v8, 9, v0
        s_mul_i32 s70, {sJ}, 10
        v_add_u32 v8, s70, v8
        v_lshlrev_b32 v8, 7, v8
        v_min_u32 v8, Lend-{KN}, v8
        s_mov_b64 exec, 0x3ff
        global_load_dword v252, v8, s[62:63]
        s_mov_b64 exec, -1""")
    a(f"s_setprio {os.environ.get('PA2','3')}")
    make_tag(a)
    a(f"""s_mov_b32 s74, 0x05040100
    s_mov_b32 s75, 0x07060302
    s_mov_b32 s70, 0x3f803f80
    v_and_b32 v8, 15, v0
    v_lshrrev_b32 v9, 1, v8
    v_and_b32 v10, 1, v8
    v_lshlrev_b32 v10, 4, v10
    v_mov_b32 v11, 0x3f80
    v_lshlrev_b32 v11, v10, v11""")
    for k in range(4):
        a(f"v_cmp_eq_u32 vcc, {k}, v9\nv_cndmask_b32 v{88+k}, 0, v11, vcc")
    a(f"""s_lshl_b32 s76, {sI}, 7
    s_cmp_eq_u32 s81, 0
    s_cbranch_scc1 Laux_nocs1
    s_waitcnt vmcnt({18+TOUCH})""")
    for n in range(20):
        a(f"v_mfma_f32_16x16x32_bf16 v[112:115], v[88:91], {v(CS+4*n,4)}, {'0' if n == 0 else 'v[112:115]'}")
    for k in range(4):
        a(f"v_add_f32_dpp v{112+k}, v{112+k}, v{112+k} row_ror:8 row_mask:0xf bank_mask:0xf")
    a(f"""v_lshrrev_b32 v9, 4, v0
    v_lshlrev_b32 v8, 5, v5
    v_lshl_add_u32 v8, v9, 4, v8
    s_lshl_b32 s72, s78, 8
    s_mul_i32 s73, s77, 6144
    s_add_u32 s72, s72, s73
    s_add_u32 s72, s72, {CSUM}
    s_mov_b64 exec, 0x00ff00ff
    buffer_store_dwordx4 v[112:115], v8, {SWS}, s72 offen sc1
    s_mov_b64 exec, -1
    s_waitcnt vmcnt({9+TOUCH})
    s_branch Laux_w
    Laux_nocs1:
    s_waitcnt vmcnt({16+TOUCH})
    s_cmp_ge_u32 {sJ}, 24
    s_cbranch_scc1 Laux_w
    s_waitcnt vmcnt({8+TOUCH})
    Laux_w:""")
    stamp_reset(1); stamp(a, 'aux loads')
    for k in range(4): a(f"v_dot2_f32_bf16 v{8+k}, v{X+k}, s70, 0")
    for k in range(4): a(f"v_dot2_f32_bf16 v{12+k}, v{X+k}, v{X+k}, 0")
    for n in range(1, 10):
        for k in range(4): a(f"v_dot2_f32_bf16 v{8+k}, v{X+4*n+k}, s70, v{8+k}")
        for k in range(4): a(f"v_dot2_f32_bf16 v{12+k}, v{X+4*n+k}, v{X+4*n+k}, v{12+k}")
    INV640 = 0x3ACCCCCD
    def red8(rs):
        for t in ("v_add_f32 v{r}, v{r}, v{r1}", "v_add_f32 v{r2}, v{r2}, v{r3}", "v_add_f32 v{r}, v{r}, v{r2}",
                  "v_add_f32_dpp v{r}, v{r}, v{r} quad_perm:[1,0,3,2] row_mask:0xf bank_mask:0xf",
                  "v_add_f32_dpp v{r}, v{r}, v{r} quad_perm:[2,3,0,1] row_mask:0xf bank_mask:0xf",
                  "v_add_f32_dpp v{r}, v{r}, v{r} row_half_mirror row_mask:0xf bank_mask:0xf",
                  "v_mul_f32 v{r}, %d, v{r}" % INV640):
            for r in rs: a(t.format(r=r, r1=r+1, r2=r+2, r3=r+3))
    red8([8, 12])
    a("""v_mul_f32 v9, v8, v8
    v_sub_f32 v12, v12, v9
    v_mul_f32 v10, 0x41800000, v12
    v_sub_f32 v8, 0, v8
    v_cmp_nle_f32 vcc, v9, v10
    s_cbranch_vccz Laux_var
    v_mov_b32 v9, v8""")
    for n in range(10):
        t = TM + 8*(n % 2)
        for k in range(4):
            a(f"v_lshlrev_b32 v{t+2*k}, 16, v{X+4*n+k}\nv_and_b32 v{t+2*k+1}, 0xffff0000, v{X+4*n+k}")
        for k in range(4): a(f"v_pk_add_f32 {v(t+2*k,2)}, {v(t+2*k,2)}, v[8:9]")
        for k in range(4):
            if n == 0 and k < 2: a(f"v_pk_mul_f32 {v(12+2*k,2)}, {v(t+2*k,2)}, {v(t+2*k,2)}")
            else: a(f"v_pk_fma_f32 {v(12+2*(k%2),2)}, {v(t+2*k,2)}, {v(t+2*k,2)}, {v(12+2*(k%2),2)}")
    red8([12])
    a(f"""Laux_var:
    v_cvt_pk_bf16_f32 v9, v12, v12
    v_and_b32 v9, 0xffff0000, v9
    v_add_f32 v9, 0x3727C5AC, v9
    v_cvt_pk_bf16_f32 v9, v9, v9
    v_and_b32 v9, 0xffff0000, v9
    v_sqrt_f32 v9, v9
    v_cvt_pk_bf16_f32 v9, v8, v9
    v_lshlrev_b32 v12, 2, v4
    s_lshl_b32 s70, s68, 2
    s_add_u32 s70, s70, {STATS}
    s_mov_b32 exec_lo, 0x01010101
    s_mov_b32 exec_hi, 0x01010101
    buffer_store_dword v9, v12, {SWS}, s70 offen sc1
    s_mov_b64 exec, -1
    s_waitcnt vmcnt(1)
    s_cmp_eq_u32 s81, 0
    s_cbranch_scc1 Laux_w2
    s_waitcnt vmcnt(2)
    Laux_w2:""".replace("s_waitcnt vmcnt(1)\n    s_cmp_eq_u32 s81, 0\n    s_cbranch_scc1 Laux_w2\n    s_waitcnt vmcnt(2)\n    Laux_w2:", "s_waitcnt vmcnt(1)"))
    TQ = 116
    for c in range(8):
        for k in range(4):
            a(f"v_perm_b32 v{TQ+4*c+k}, v{TB+4*(2*k+1)+c//2}, v{TB+4*(2*k)+c//2}, {'s75' if c % 2 else 's74'}")
    a(f"""s_add_u32 s70, s76, {FL_S}
    s_waitcnt vmcnt(0)""")
    flag_store(a, "s70", 8, 9)
    if W2AUX:
        RP = 148
        srd(a, 48, 'w2', 1966080)
        a(f"""s_add_u32 s70, {sJ}, -12
    s_cmp_ge_u32 s70, 16
    s_cbranch_scc1 Laux_now1
    s_lshl_b32 s71, {sX8}, 4
    s_add_u32 s70, s70, s71
    s_mul_i32 s71, s70, {12*1280}
    s_mul_i32 s77, s70, {12*160}
    s_add_u32 s77, s77, {W2P}
    s_lshl_b32 s78, s70, 7
    s_add_u32 s78, s78, {FL_AUX}
    v_mul_u32_u24 v10, 6554, v0
    v_lshrrev_b32 v10, 16, v10
    v_mul_u32_u24 v11, 10, v10
    v_sub_u32 v11, v0, v11
    v_mul_u32_u24 v10, 0x500, v10
    v_lshl_add_u32 v10, v11, 4, v10
    v_add_u32 v12, 64, v0
    v_mul_u32_u24 v13, 6554, v12
    v_lshrrev_b32 v13, 16, v13
    v_mul_u32_u24 v11, 10, v13
    v_sub_u32 v11, v12, v11
    v_mul_u32_u24 v13, 0x500, v13
    v_lshl_add_u32 v11, v11, 4, v13
""")
        for c in range(8):
            a(f"buffer_load_dwordx4 {v(RP+8*c,4)}, v10, {S4}, s71 offen offset:{160*c}")
        a("s_mov_b32 exec_hi, 0x00ffffff")
        for c in range(8):
            a(f"buffer_load_dwordx4 {v(RP+8*c+4,4)}, v11, {S4}, s71 offen offset:{160*c}")
        a("s_mov_b64 exec, -1\nLaux_now1:")
    for c in range(8):
        a(f"buffer_store_dwordx4 {v(TQ+4*c,4)}, v7, {SWS}, s79 offen sc1")
        if c < 7: a(f"s_add_u32 s79, s79, 4096")
    a(f"""s_cmp_lt_u32 {sJ}, 24
    s_cbranch_scc1 Laux_b2""")
    blk_store(TB2, "s80")
    a(f"""Laux_b2:
    s_add_u32 s70, s76, {FL_C}
    s_waitcnt vmcnt(0)""")
    flag_store(a, "s70", 8, 9)
    stamp(a, 'stats flag')
    if W2AUX:
        a(f"""s_add_u32 s70, {sJ}, -12
    s_cmp_ge_u32 s70, 16
    s_cbranch_scc1 Laux_now2
    v_lshlrev_b32 v8, 4, v0""")
        for c in range(8):
            a(f"buffer_store_dwordx4 {v(RP+8*c,4)}, v8, {SWS}, s77 offen sc1")
            a("s_mov_b32 exec_hi, 0x00ffffff")
            a(f"buffer_store_dwordx4 {v(RP+8*c+4,4)}, v8, {SWS}, s77 offen offset:1024 sc1")
            a("s_mov_b32 exec_hi, -1")
            if c < 7: a("s_add_u32 s77, s77, 245760")
        a("s_waitcnt vmcnt(0)")
        flag_store(a, "s78", 8, 9)
        a("Laux_now2:")
    a(f"""s_cmp_lg_u32 {sJ}, 31
    s_cbranch_scc1 Laux_go""")
    poll256(a, FL_C, 128, r=20, slp=1)
    a(f"""s_lshl_b32 s70, {sX8}, 7
    s_add_u32 s70, s70, {GO}""")
    flag_store(a, "s70", 8, 9)
    a(f"Laux_go:\ns_setprio {os.environ.get('PS','1')}")
    go_wait(a, 20)
    u_issue(a)

def conv(a):
    sI = "s54"
    a("Lconv:")
    stamp_reset(4); stamp(a, 'Lconv', True)
    a(f"""v_and_b32 v10, 15, v0
    v_lshrrev_b32 v11, 4, v0
    v_and_b32 v12, 1, v0
    v_lshrrev_b32 v13, 1, v10
    v_mul_u32_u24 v14, {K1OFF}, v12
    v_sub_u32 v15, v13, v11
    v_lshl_add_u32 v14, v15, 4, v14
    v_add_u32 v14, {KB0+64}, v14
    v_and_b32 v12, 3, v0
    v_mul_u32_u24 v15, {UCS}, v12
    v_lshrrev_b32 v13, 2, v10
    v_lshl_add_u32 v15, v13, 7, v15
    v_lshl_add_u32 v15, v11, 4, v15
    v_add_u32 v15, {UPAD+48}, v15
    v_lshlrev_b32 v19, 7, v13
    v_lshl_add_u32 v19, v11, 5, v19
    v_lshl_add_u32 v19, v12, 2, v19
    v_mov_b32 v4, 0
    v_mov_b32 v5, 0
    v_lshlrev_b32 v6, 3, v0
    s_mul_i32 s70, {sW}, {UCS}
    v_add_u32 v6, s70, v6
    s_waitcnt lgkmcnt(0)
    s_barrier""")
    a("s_mov_b32 exec_hi, 0x00ffffff")
    for c in range(3): a(f"ds_write_b64 v6, v[4:5] offset:{c*USTR}")
    a("s_mov_b32 exec_hi, -1")
    NM, RS, UD = 44, 52, 226
    def unp(d, s): return f"v_lshlrev_b32 v{d}, 16, v{s}\nv_and_b32 v{d+1}, 0xffff0000, v{s}"
    a("s_waitcnt vmcnt(0)")
    for k in range(8): a(f"v_and_b32 v{RS+k}, 0xffff0000, v{UIN+k}")
    for k in range(8): a(f"v_rcp_f32 v{RS+k}, v{RS+k}\nv_lshlrev_b32 v{NM+k}, 16, v{UIN+k}")
    a("s_waitcnt lgkmcnt(0)\ns_barrier")
    for c in range(3):
        x = UIN + 8 + 4*c; t = 60; ud = UD + 8*c; o = c*USTR + UPAD
        for k in range(4): a(unp(t+2*k, x+k))
        for k in range(4): a(f"v_pk_add_f32 {v(t+2*k,2)}, {v(t+2*k,2)}, {v(NM+2*k,2)}")
        for k in range(4): a(f"v_cvt_pk_bf16_f32 v{x+k}, v{t+2*k}, v{t+2*k+1}")
        for k in range(4): a(unp(t+2*k, x+k))
        for k in range(4): a(f"v_pk_mul_f32 {v(t+2*k,2)}, {v(t+2*k,2)}, {v(RS+2*k,2)}")
        for k in range(4): a(f"v_cvt_pk_bf16_f32 v{x+k}, v{t+2*k}, v{t+2*k+1}")
        a(f"""v_cvt_pk_bf16_f32 v{68+2*c}, v{t+2}, v{t+3}
        v_cvt_pk_bf16_f32 v{69+2*c}, v{t+4}, v{t+5}
        ds_write_b128 v224, {v(x,4)} offset:{o+3*UCS-16}
        ds_write_b64 v224, {v(x,2)} offset:{o+UCS-8}
        ds_write_b64 v224, {v(x+2,2)} offset:{o+UCS}
        ds_write_b32 v224, v{x} offset:{o-4}
        ds_write_b64 v224, {v(68+2*c,2)} offset:{o}
        ds_write_b32 v224, v{x+3} offset:{o+8}
        ds_write_b32 v224, v{x} offset:{o+2*UCS-12}
        ds_write_b64 v224, {v(68+2*c,2)} offset:{o+2*UCS-8}
        ds_write_b32 v224, v{x+3} offset:{o+2*UCS}""")
    for c in range(3):
        x = UIN + 8 + 4*c; t = 60; ud = UD + 8*c
        for k in range(4): a(unp(t+2*k, x+k))
        sd = f"s{34+c+(c>1)*6}"
        a(f"s_bitcmp1_b32 {('s58','s59','s61')[c]}, 0\ns_cselect_b32 s70, 0, 16\ns_lshl_b32 {sd}, {sd}, s70\ns_and_b32 {sd}, {sd}, 0xffff0000")
        for k in range(8): a(f"v_mul_f32 v{t+k}, {sd}, v{t+k}")
        for k in range(4): a(f"v_cvt_pk_bf16_f32 v{76+k}, v{t+2*k}, v{t+2*k+1}")
        for k in range(4): a(unp(ud+2*k, 76+k))
    a("""s_waitcnt lgkmcnt(0)
    s_barrier""")
    stamp(a, 'u ready', True)
    YA = 20
    FS = [44, 132]
    def loop(name, parts):
        ad = [(16, 17), (8, 9)]
        tiles = [(pi, j) for pi, (c, J) in enumerate(parts) for j in J]
        acc = {t: YA + 4*k for k, t in enumerate(tiles)}
        base = []; n = 0
        for c, J in parts:
            base.append(n); n += 2*(max(J)+1)
        def reads(fs):
            out = []
            for pi, (c, J) in enumerate(parts):
                for k in range(max(J)+1):
                    out.append(f"ds_read_b128 {v(FS[fs]+4*(base[pi]+2*k),4)}, v{ad[pi][0]} offset:{512*k}")
                    out.append(f"ds_read_b128 {v(FS[fs]+4*(base[pi]+2*k+1),4)}, v{ad[pi][1]} offset:{512*k}")
                out.append(f"v_add_u32 v{ad[pi][0]}, 64, v{ad[pi][0]}")
                out.append(f"v_add_u32 v{ad[pi][1]}, -64, v{ad[pi][1]}")
            return out
        def mfmas(fs):
            rem = {t: list(range(t[1]+1)) for t in tiles}
            todo = []; last = []
            while any(rem.values()):
                cand = [t for t in tiles if rem[t] and t not in last[-GAP:]] or [t for t in tiles if rem[t] and t not in last[-1:]] or [t for t in tiles if rem[t]]
                t = max(cand, key=lambda t: len(rem[t]))
                todo.append((t, rem[t].pop(0))); last.append(t)
            return [f"v_mfma_f32_16x16x32_bf16 {v(acc[t],4)}, {v(FS[fs]+4*(base[t[0]]+2*p),4)}, {v(FS[fs]+4*(base[t[0]]+2*(t[1]-p)+1),4)}, {v(acc[t],4)}" for t, p in todo]
        for pi, (c, J) in enumerate(parts):
            if isinstance(c, str):
                a(f"s_mul_i32 s70, {c}, {KSTR}\ns_mul_i32 s71, {c}, {USTR}\nv_add_u32 v{ad[pi][0]}, s70, v14\nv_add_u32 v{ad[pi][1]}, s71, v15")
            else:
                a(f"v_add_u32 v{ad[pi][0]}, {c*KSTR}, v14\nv_add_u32 v{ad[pi][1]}, {c*USTR}, v15")
        for t in reads(0): a(t)
        for r in range(4*len(tiles)): a(f"v_mov_b32 v{YA+r}, 0")
        a(f"s_mov_b32 s64, 4\n{name}:")
        for fs in (0, 1):
            a("s_waitcnt lgkmcnt(0)")
            fill = reads(1-fs); ms = mfmas(fs)
            n = len(ms) - 4; done = 0
            for i, m in enumerate(ms):
                a(m)
                want = min(len(fill), -(-len(fill)*(i+1)//n))
                while done < want: a(fill[done]); done += 1
        a(f"""s_sub_u32 s64, s64, 1
        s_cmp_lg_u32 s64, 0
        s_cbranch_scc1 {name}
        s_waitcnt lgkmcnt(0)
        s_barrier""")
        for pi, (c, J) in enumerate(parts):
            if isinstance(c, str): a(f"s_lshl_b32 s70, {c}, 12\nv_add_u32 v{ad[pi][0]}, s70, v19")
            for j in J:
                r = acc[(pi, j)]
                off = 512*j + (0 if isinstance(c, str) else 4096*c)
                adr = ad[pi][0] if isinstance(c, str) else 19
                a(f"""v_cvt_pk_bf16_f32 v{r}, v{r}, v{r+1}
                v_cvt_pk_bf16_f32 v{r+2}, v{r+2}, v{r+3}
                ds_write_b32 v{adr}, v{r} offset:{off}
                ds_write_b32 v{adr}, v{r+2} offset:{off+16}""")
    a(f"""s_lshr_b32 s62, {sW}, 1
    s_cmp_eq_u32 {sW}, 1
    s_cbranch_scc1 Lcv_w1
    s_cmp_eq_u32 {sW}, 3
    s_cbranch_scc1 Lcv_w3""")
    loop("Lcv_l0", [("s62", [7, 6, 5, 1])])
    a("s_branch Lcv_bar2\nLcv_w1:")
    loop("Lcv_l1", [(0, [4, 3, 2, 0]), (1, [4, 3])])
    a("s_branch Lcv_bar2\nLcv_w3:\ns_cmp_eq_u32 s57, 1\ns_cbranch_scc1 Lcv_w3b")
    loop("Lcv_l3a", [(1, [2, 0]), (2, [7, 5, 2, 0])])
    a("s_branch Lcv_bar2\nLcv_w3b:")
    loop("Lcv_l3b", [(1, [2, 0]), (2, [6, 4, 3, 1])])
    a(f"""Lcv_bar2:
    s_waitcnt lgkmcnt(0)
    s_barrier""")
    stamp(a, 'conv done', True)
    for c in range(3): a.ds(f"ds_read_b128 {v(32+4*c,4)}, v224 offset:{c*4096}", ('y', c))
    a(f"""s_lshr_b32 s70, {sW}, 1
    s_xor_b32 s70, s70, s57
    s_cmp_eq_u32 s70, 0
    s_cselect_b32 s66, -1, 0
    s_cselect_b32 s67, 0, -1""")
    for c, sch in enumerate(("s58", "s59", "s61")):
        a.wait(lg=[('y', c)])
        y = 32 + 4*c; t = 48 + 8*c; ud = UD + 8*c
        for k in range(4): a(unp(t+2*k, y+k))
        for k in range(4): a(f"v_pk_add_f32 {v(t+2*k,2)}, {v(t+2*k,2)}, {v(ud+2*k,2)}")
        for k in range(4): a(f"v_cvt_pk_bf16_f32 v{y+k}, v{t+2*k}, v{t+2*k+1}")
        a(f"""s_lshl_b32 s70, {sch}, 12
        s_add_u32 s70, s70, {AT}""")
        if c == 2: a("s_mov_b64 exec, s[66:67]")
        a(f"buffer_store_dwordx4 {v(y,4)}, v224, {SWS}, s70 offen sc1")
        if c == 2: a("s_mov_b64 exec, -1")
    a("s_waitcnt vmcnt(0)")
    stamp(a, 'y stored'); stamp_flush(a, 50)
    a(f"""s_barrier
    s_cmp_eq_u32 {sW}, 1
    s_cbranch_scc1 Lcv_ep
    s_cmp_lg_u32 {sW}, 0
    s_cbranch_scc1 Lend
    s_lshl_b32 s70, {sI}, 7
    s_add_u32 s70, s70, {FL_Y}""")
    flag_store(a, "s70", 4, 5)
    a(f"""s_endpgm
    Lcv_ep:
    s_cmp_lg_u32 {sI}, 0
    s_cbranch_scc1 Lend""")
    if EXP != "nogemm": poll256(a, FL_ACT, 384, slp=8)
    poll256(a, FL_Y, 128, slp=8)
    flag_store(a, "0", 4, 5)
    a("s_endpgm")

HEADER = open(os.path.join(os.path.dirname(os.path.abspath(__file__)), "..", "cdna_kernels",
              "parallel_sum__ssm_conv_s4__dense_activation_mish__prompt.s.ref")).read().split("; Override")[0]

def build():
    a = Asm()
    prologue(a)
    gemm(a)
    a.vm.clear(); a.lg.clear()
    ssm(a)
    a("Lend:\ns_endpgm")
    body = a.finalize()
    return f"""{HEADER}; @launch grid=(512,1,1) block=(256,1,1) lds=81920
.amdgcn_target "amdgcn-amd-amdhsa--gfx950"
.text
.globl {KN}
.p2align 8
.type {KN},@function
{KN}:
{body}.section .rodata,"a"
.p2align 6
.amdhsa_kernel {KN}
  .amdhsa_next_free_vgpr 256
  .amdhsa_next_free_sgpr 102
  .amdhsa_accum_offset 256
  .amdhsa_group_segment_fixed_size 0
  .amdhsa_kernarg_size 128
  .amdhsa_user_sgpr_count 2
  .amdhsa_user_sgpr_kernarg_segment_ptr 1
  .amdhsa_system_sgpr_workgroup_id_x 1
.end_amdhsa_kernel
"""

if __name__ == "__main__":
    out = sys.argv[1] if len(sys.argv) > 1 else "k.s"
    open(out, "w").write(build())
    print("wrote", out)
```

```python
import sys, os
sys.path.insert(0, os.path.dirname(os.path.abspath(__file__)))
from asmlib import Asm

KN = "parallel_sum__ssm_conv_s4__dense_activation_mish__prompt_kernel"

FL_S   = 0x0000 + 0x8000
FL_Y   = 0x10000
FL_ACT = 0x1000000
STATS  = 0x30000
CSUM   = 0x34000
FL_C   = 0x70000
FL_AUX = 0x48000 + 0x20000
GO     = 0x1000
XNT    = 0x100000
AT     = 0x400000
W2P    = 0x700000
ACT    = 0xA00000
WS_SIZE= 0x1080000
LOG2E = 0x3FB8AA3B
SPIN_MAX = int(os.environ.get('SPIN_MAX', '20000'))
ACT_DELAY = int(os.environ.get('ACT_DELAY', '4'))
DIAG = int(os.environ.get("DIAG", "0"))
EXP = os.environ.get("EXP", "")
STAMP = 0x40000
W2AUX = 1
W2LATE = 1
DIRW2 = int(os.environ.get('DIRW2', '0'))
ROT = int(os.environ.get('ROT', '0'))
TOUCHW1 = int(os.environ.get('TOUCHW1', '0'))
TOUCHW2 = int(os.environ.get('TOUCHW2', '0'))
TLB = int(os.environ.get('TLB', '0'))
S1 = int(os.environ.get('S1', '4'))
C0 = int(os.environ.get('C0', '6'))
C1 = int(os.environ.get('C1', '0'))
C2 = int(os.environ.get('C2', '5'))
TOUCH = int(os.environ.get('TOUCH', '1'))
GAP = int(os.environ.get('GAP', '2'))

P = dict(x=16, Are=18, Aim=20, Bre=22, Bim=24, Cre=26, Cim=28, ldt=30, D=32, w1=36, b1=38, w2=40, out=42, dbg=44, ws=46)
def sp(n): return f"s[{P[n]}:{P[n]+1}]"
SX, SW1, SWS, S4 = "s[4:7]", "s[8:11]", "s[12:15]", "s[48:51]"
sW, sTAG = "s3", "s52"

_st = {"n": 0}
def stamp(a, name=None, wait=False):
    if not DIAG: return
    k = _st["n"]; _st["n"] += 1
    assert k < 10, k
    a(f"{'s_memtime' if os.environ.get('CYC') else 's_memrealtime'} s[{82+2*k}:{83+2*k}]")
    if wait: a("s_waitcnt lgkmcnt(0)")
def stamp_reset(n=0): _st["n"] = n
def stamp_flush(a, tmp):
    if not DIAG: return
    a("s_waitcnt lgkmcnt(0)")
    a(f"s_lshl_b32 s80, s2, 2\ns_add_u32 s80, s80, {sW}\ns_lshl_b32 s80, s80, 6\ns_add_u32 s80, s80, {STAMP}\nv_mov_b32 v{tmp+1}, 0\ns_mov_b64 exec, 1")
    for k in range(10):
        a(f"v_mov_b32 v{tmp}, s{82+2*k}\nbuffer_store_dword v{tmp}, v{tmp+1}, {SWS}, s80 offen offset:{4*k}\ns_nop 1")
    a("s_mov_b64 exec, -1")

def v(i, n=1): return f"v{i}" if n == 1 else f"v[{i}:{i+n-1}]"

def srd(a, base, ptr, size):
    a(f"""s_mov_b32 s{base}, s{P[ptr]}
    s_mov_b32 s{base+1}, s{P[ptr]+1}
    s_mov_b32 s{base+2}, {size}
    s_mov_b32 s{base+3}, 0x20000""")

def spin(a, load, cmp, scnt="s60", slp=4):
    L = a.label("Lspin"); Lok = a.label("Lok")
    a(cmp)
    a(f"s_cbranch_scc1 {Lok}")
    a(f"s_mov_b32 {scnt}, {SPIN_MAX}")
    a(f"{L}:")
    a(f"s_sleep {slp}")
    a(load)
    a("s_waitcnt vmcnt(0)")
    a(cmp)
    a(f"s_cbranch_scc1 {Lok}")
    a(f"s_sub_u32 {scnt}, {scnt}, 1")
    a(f"s_cmp_lg_u32 {scnt}, 0")
    a(f"s_cbranch_scc1 {L}")
    a(f"{Lok}:")

def cmpn(regs):
    dst = ["vcc", "s[62:63]", "s[64:65]", "s[66:67]"][:len(regs)]
    t = "\n".join(f"v_cmp_ne_u32 {d}, {sTAG}, v{r}" for d, r in reversed(list(zip(dst, regs))))
    for d in dst[1:]: t += f"\ns_or_b64 vcc, vcc, {d}"
    return t + "\ns_cmp_eq_u64 vcc, 0"

def poll256_issue(a, base, stride, r=4, s0=72, grp=False):
    if grp:
        a(f"v_lshrrev_b32 v{r+4}, 3, v0\nv_mul_u32_u24 v{r+4}, 12288, v{r+4}\nv_and_b32 v{r}, 7, v0\nv_lshl_add_u32 v{r+4}, v{r}, 9, v{r+4}")
        for n in range(4): a(f"s_mov_b32 s{s0+n}, {base + 8*12288*n}")
    else:
        a(f"v_mul_u32_u24 v{r+4}, {stride}, v0")
        for n in range(4): a(f"s_mov_b32 s{s0+n}, {base + 64*stride*n}")
    ld = "\n".join(f"buffer_load_dword v{r+n}, v{r+4}, {SWS}, s{s0+n} offen sc1" for n in range(4))
    a(ld)
    return ld
def poll256(a, base, stride, slp=4, r=4, grp=False):
    ld = poll256_issue(a, base, stride, r, grp=grp)
    a("s_waitcnt vmcnt(0)")
    spin(a, ld, cmpn([r, r+1, r+2, r+3]), slp=slp)

def go_issue(a, r, s="s75"):
    a(f"""v_mov_b32 v{r+1}, 0
    s_and_b32 {s}, s2, 7
    s_lshl_b32 {s}, {s}, 7
    s_add_u32 {s}, {s}, {GO}""")
    return f"buffer_load_dword v{r}, v{r+1}, {SWS}, {s} offen sc1"
def go_wait(a, r):
    ld = go_issue(a, r)
    a(ld); a("s_waitcnt vmcnt(0)")
    spin(a, ld, cmpn([r]), slp=3)

def flag_store(a, soff, t0, t1, track=None):
    a(f"""v_mov_b32 v{t0}, {sTAG}
    v_mov_b32 v{t1}, 0
    s_mov_b64 exec, 1""")
    txt = f"buffer_store_dword v{t0}, v{t1}, {SWS}, {soff} offen sc1"
    if track is not None: a.vmem(txt, track)
    else: a(txt)
    a("s_mov_b64 exec, -1")

def prologue(a):
    a(f"""s_cmp_ge_u32 s2, 512
    s_cbranch_scc1 Lend
    s_load_dwordx16 s[16:31], s[0:1], 0
    s_load_dwordx16 s[32:47], s[0:1], 64""")
    if DIAG:
        for k in range(82, 102): a(f"s_mov_b32 s{k}, 0")
    stamp(a, "start")
    a(f"""v_lshrrev_b32 v1, 6, v0
    v_and_b32 v0, 63, v0
    v_readfirstlane_b32 {sW}, v1
    s_waitcnt lgkmcnt(0)
    s_load_dword s53, {sp('ws')}, 0""")
    srd(a, 4, 'x', 2621440)
    srd(a, 8, 'w1', 1966080)
    srd(a, 12, 'ws', WS_SIZE)
    a("""s_cmp_lt_u32 s2, 256
    s_cbranch_scc1 Lssm""")

def make_tag(a):
    a(f"""s_waitcnt lgkmcnt(0)
    s_mul_i32 {sTAG}, s53, 0x9E3779B1
    s_add_u32 {sTAG}, {sTAG}, 0x7F4A7C15""")

def gemm(a):
    vX0, vX1, vW0, vW1 = 1, 2, 3, 4
    xr = [5, 6, 7, 8]
    wrl, wrh = 9, 10
    vAS = 11
    c1, c2, c3 = 12, 13, 14
    vT = 15
    EXT = 16
    T = [22, 23, 24, 25]
    OUT = 26
    EQ = 34
    A0, A1 = 38, 39
    SUMA = 22
    def accof(s): return ACC + 16*((s+1) % 2)
    WF = 40
    ACC = 64
    XF = 96
    sRB, sFP, sTH, sFH = "s54", "s55", "s56", "s57"
    sM, sSO, sAS, sT0 = "s58", "s59", "s61", "s68"
    if EXP == "nogemm": a("s_endpgm")
    a(f"""s_setprio {os.environ.get('PG0','2')}
    s_and_b32 s68, s2, 7
    s_lshr_b32 s69, s2, 3
    s_and_b32 s69, s69, 31
    s_lshr_b32 {sRB}, s68, 1
    s_lshl_b32 {sRB}, {sRB}, 3
    s_and_b32 s70, s69, 7
    s_add_u32 {sRB}, {sRB}, s70
    s_and_b32 {sFP}, s68, 1
    s_lshl_b32 {sFP}, {sFP}, 2
    s_lshr_b32 s70, s69, 3
    s_add_u32 {sFP}, {sFP}, s70
    s_lshl_b32 {sM}, {sW}, 11
    v_lshrrev_b32 v22, 3, v0
    s_lshl_b32 s70, {sW}, 4
    v_add_u32 v22, s70, v22
    v_lshrrev_b32 v23, 4, v0
    v_and_b32 v24, 7, v0
    v_xor_b32 v25, v24, v23
    s_lshl_b32 s71, {sRB}, 6
    v_add_u32 v26, s71, v22
    v_mul_u32_u24 v26, 0x500, v26
    v_lshl_add_u32 v{vX0}, v25, 4, v26
    v_xor_b32 v25, 4, v25
    v_lshl_add_u32 v{vX1}, v25, 4, v26
    v_add_u32 v{vX1}, {8*1280-1024}, v{vX1}
    v_and_b32 v23, 1, v23
    v_lshlrev_b32 v23, 2, v23
    v_xor_b32 v25, v24, v23
    v_mul_u32_u24 v26, 0xc00, v22
    v_lshl_add_u32 v{vW0}, v25, 4, v26
    s_mul_i32 s70, {sFP}, 384
    v_add_u32 v{vW0}, s70, v{vW0}
    v_add_u32 v{vW1}, {8*3072-1024}, v{vW0}""")

    a(f"""s_and_b32 s70, {sRB}, 7
    s_and_b32 s71, {sFP}, 3
    s_mul_i32 s71, s71, {3*ROT}
    s_mul_i32 s70, s70, {ROT}
    s_add_u32 s70, s70, s71
    s_cmp_ge_u32 s70, 10
    s_cselect_b32 s71, 10, 0
    s_sub_u32 s70, s70, s71""")
    for kc in range(10):
        a(f"""s_lshl_b32 s{16+kc}, s70, 7
        s_mul_i32 s{26+kc}, s70, 196608""")
        if kc < 9: a("s_add_u32 s70, s70, 1\ns_cmp_eq_u32 s70, 10\ns_cselect_b32 s70, 0, s70")

    def chunk_info(c):
        if c < 20:
            return ('X', 0, c//2) if c % 2 == 0 else ('W', 0, c//2)
        return ('W', 1 + (c-20)//10, (c-20) % 10)
    def dma_half(c, h):
        kind, s, kc = chunk_info(c)
        slot = c % 10
        if h == 0:
            a(f"s_add_u32 m0, {sM}, {slot*8192}")
            if kind == 'W' and s > 0 and kc == 0: a(f"v_add_u32 v{vW0}, 128, v{vW0}\nv_add_u32 v{vW1}, 128, v{vW1}")
        r, sr, so = ((vX0, vX1)[h], SX, 16+kc) if kind == 'X' else ((vW0, vW1)[h], SW1, 26+kc)
        a.vmem(f"buffer_load_dwordx4 v{r}, {sr}, s{so} offen {'offset:1024 ' if h else ''}lds", ('c', c))
    for c in range(10): dma_half(c, 0); dma_half(c, 1)

    srd(a, 48, 'out', 2621440)
    a(f"""s_and_b32 {sTH}, {sW}, 1
    s_lshr_b32 {sFH}, {sW}, 1
    v_and_b32 v22, 31, v0
    v_lshrrev_b32 v23, 5, v0
    v_lshrrev_b32 v24, 1, v22
    v_and_b32 v24, 7, v24
    s_lshl_b32 s70, {sTH}, 12
    v_lshl_add_u32 v25, v22, 7, s70""")
    for j in range(4):
        a(f"""v_add_u32 v26, {2*j}, v23
        v_xor_b32 v26, v26, v24
        v_lshl_add_u32 v{xr[j]}, v26, 4, v25""")
    a(f"""v_lshrrev_b32 v26, 4, v22
    s_lshl_b32 s70, {sTH}, 1
    v_add_u32 v26, s70, v26
    v_mul_u32_u24 v26, 0xc000, v26
    v_lshl_add_u32 v26, v23, 8, v26
    v_and_b32 v27, 15, v0
    v_lshl_add_u32 v{vAS}, v27, 4, v26
    v_lshrrev_b32 v24, 2, v27
    v_and_b32 v25, 3, v0
    v_lshrrev_b32 v26, 4, v0
    v_and_b32 v26, 1, v26
    v_lshlrev_b32 v26, 1, v26
    v_lshrrev_b32 v28, 1, v25
    v_add_u32 v26, v26, v28
    s_lshl_b32 s70, {sFH}, 2
    v_add_u32 v26, s70, v26
    v_lshrrev_b32 v28, 1, v24
    v_lshlrev_b32 v28, 2, v28
    v_xor_b32 v26, v26, v28
    v_lshl_add_u32 v28, v23, 3, v24
    v_lshlrev_b32 v28, 7, v28
    v_lshl_add_u32 v28, v26, 4, v28
    v_and_b32 v25, 1, v25
    v_lshl_add_u32 v{wrl}, v25, 3, v28
    v_add_u32 v{wrh}, 0x10000, v{wrl}
    v_add_u32 v{vT}, -1, v23
    s_mul_i32 {sAS}, {sRB}, 192
    s_mul_i32 s70, {sFP}, 6
    s_add_u32 {sAS}, {sAS}, s70
    s_add_u32 {sAS}, {sAS}, {sFH}
    s_lshl_b32 {sAS}, {sAS}, 10
    s_add_u32 {sAS}, {sAS}, {ACT}
    s_mul_i32 s81, {sRB}, 12288
    s_lshl_b32 s71, {sFP}, 9
    s_add_u32 s81, s81, s71
    s_lshl_b32 s71, {sW}, 7
    s_add_u32 s81, s81, s71
    s_add_u32 s81, s81, {FL_ACT}""")
    a(f"""v_mov_b32 v{EXT}, 0
    v_mov_b32 v{EXT+1}, 0
    v_add_u32 v24, -8, v0
    v_lshrrev_b32 v25, 2, v24
    v_and_b32 v24, 3, v24
    s_and_b32 s70, {sFP}, 3
    s_mul_i32 s70, s70, 3
    v_add_u32 v25, s70, v25
    v_lshlrev_b32 v25, 3, v25
    v_lshl_add_u32 v25, v24, 1, v25
    s_lshr_b32 s70, {sFP}, 2
    v_add_u32 v25, s70, v25
    v_and_b32 v24, 7, v0
    s_and_b32 s70, {sRB}, 3
    s_lshl_b32 s70, s70, 6
    s_lshr_b32 s71, {sRB}, 2
    s_add_u32 s70, s70, s71
    v_lshl_add_u32 v24, v24, 3, s70
    v_add_u32 v26, -8, v0
    v_cmp_gt_u32 vcc, 12, v26
    v_cndmask_b32 v24, v24, v25, vcc
    v_lshlrev_b32 v{EQ}, 7, v24
    s_mul_i32 s70, {sFP}, 192
    s_lshl_b32 s71, {sFH}, 5
    s_add_u32 s70, s70, s71
    v_add_u32 v24, s70, v22
    v_lshlrev_b32 v{EQ+1}, 2, v24
    v_lshlrev_b32 v{A1}, 1, v24
    v_mul_u32_u24 v25, 6144, v23
    v_add_u32 v{EQ+1}, v{EQ+1}, v25
    v_lshl_add_u32 v{EQ+2}, v23, 7, v{A1}
    s_lshl_b32 s70, {sRB}, 6
    s_lshl_b32 s71, {sTH}, 5
    s_add_u32 s70, s70, s71
    v_add_u32 v24, s70, v22
    v_lshlrev_b32 v{EQ+3}, 2, v24""")
    make_tag(a)

    wf_next = [0]
    def wfrag_alloc():
        r = WF + 4*(wf_next[0] % 6); wf_next[0] += 1; return r
    def read_w(c, j):
        slot = c % 10
        r = wfrag_alloc()
        base, off = (wrl, slot*8192) if slot < 8 else (wrh, (slot-8)*8192)
        a.ds(f"ds_read_b64_tr_b16 {v(r,2)}, v{base} offset:{off + 128*16*j}", ('w', c, j))
        a.ds(f"ds_read_b64_tr_b16 {v(r+2,2)}, v{base} offset:{off + 128*(16*j+4)}", ('w', c, j))
        return r
    def mfma1(acc, wfr, xfr, first):
        a(f"v_mfma_f32_32x32x16_bf16 {v(acc,16)}, {v(wfr,4)}, {v(xfr,4)}, {'0' if first else v(acc,16)}")

    side = []
    def run_side(n):
        for _ in range(n):
            if side: side.pop(0)()

    def mish_items(s):
        acc = accof(s)
        items = []
        for qd in range(4):
            R = [acc + 4*qd + k for k in range(4)]
            def f1(R=R):
                for k in range(4): a(f"v_mul_f32 v{T[k]}, v{c1}, v{R[k]}")
                for k in range(4): a(f"v_exp_f32 v{T[k]}, v{T[k]}")
                for k in range(4): a(f"v_add_f32 v{T[k]}, 1.0, v{T[k]}")
                for k in range(4): a(f"v_fma_f32 v{T[k]}, v{T[k]}, v{T[k]}, 1.0")
            def f2(R=R, qd=qd):
                for k in range(4): a(f"v_rcp_f32 v{T[k]}, v{T[k]}")
                for k in range(4): a(f"v_fma_f32 v{T[k]}, v{T[k]}, v{c2}, v{c3}")
                for k in range(4): a(f"v_mul_f32 v{T[k]}, v{T[k]}, v{R[k]}")
                a(f"v_cvt_pk_bf16_f32 v{OUT+2*qd}, v{T[0]}, v{T[1]}\nv_cvt_pk_bf16_f32 v{OUT+2*qd+1}, v{T[2]}, v{T[3]}")
                if qd % 2 == 1:
                    gp = qd // 2
                    a(f"s_add_u32 {sT0}, {sAS}, {2048*s}")
                    a.vmem(f"buffer_store_dwordx4 {v(OUT+4*gp,4)}, v{vAS}, {SWS}, {sT0} offen offset:{512*gp} sc1", ('act', s))
            items += [f1, f2]
        return items

    SPLIT = ("v_and_b32 v{q1}, 0xffff0000, v{q}", "v_sub_f32 v{q}, v{q}, v{q1}", "v_and_b32 v{q2}, 0xffff0000, v{q}",
             "v_sub_f32 v{q}, v{q}, v{q2}", "v_lshrrev_b32 v{q1}, 16, v{q1}", "v_lshrrev_b32 v{q}, 16, v{q}",
             "v_or_b32 v{q1}, v{q1}, v{q2}", "v_or_b32 v{q}, v{q}, v{b}", "v_and_b32 v{d0}, v{m}, v{q1}", "v_and_b32 v{d1}, v{m}, v{q}")
    SUM4 = ("v_add_f32 v{q}, v{q}, v{q1}", "v_add_f32 v{q2}, v{q2}, v{q3}", "v_add_f32 v{q}, v{q}, v{q2}")
    def ext_items():
        def l0():
            a(f"v_mov_b32 v28, 0\nv_mov_b32 v29, 0\ns_mov_b32 s70, {STATS}\ns_mov_b32 s71, {CSUM}")
            a.vmem(f"buffer_load_dword v{EXT+5}, v{EQ+3}, {SWS}, s70 offen sc1", 'ext')
            for s in range(3): a.vmem(f"buffer_load_dword v{22+2*s}, v{EQ+1}, {SWS}, s71 offen offset:{256*s} sc1", 'ext')
        def l1():
            a(f"s_mov_b32 s71, {CSUM+12288}")
            for s in range(3): a.vmem(f"buffer_load_dword v{23+2*s}, v{EQ+1}, {SWS}, s71 offen offset:{256*s} sc1", 'ext')
            a.vmem(f"global_load_short_d16_hi v28, v{EQ+2}, {sp('b1')}", 'ext')
            a.vmem(f"global_load_short_d16_hi v29, v{A1}, {sp('b1')} offset:256", 'ext')
        return [l0, l1]
    def ext_build():
        a.wait(vm=['ext'])
        D = [(EXT+2, EXT+3), (EQ, EQ+1), (EQ+2, EQ+3)]
        a(f"""v_and_b32 v30, v{vT}, v28
        v_xor_b32 v31, v30, v28
        v_and_b32 v29, v{vT}, v29""")
        B = [30, 31, 29]
        for tmpl in ("v_add_f32 v{q}, v{q}, v{q1}", "v_and_b32 v{q1}, 0xffff0000, v{q}", "v_sub_f32 v{q}, v{q}, v{q1}", "v_and_b32 v{d0}, 0xffff0000, v{q}",
                     "v_sub_f32 v{q}, v{q}, v{d0}", "v_lshrrev_b32 v{q1}, 16, v{q1}", "v_lshrrev_b32 v{q}, 16, v{q}",
                     "v_or_b32 v{d0}, v{q1}, v{d0}", "v_or_b32 v{d1}, v{q}, v{b}"):
            for s in range(3):
                q = 22 + 2*s
                a(tmpl.format(q=q, q1=q+1, b=B[s], d0=D[s][0], d1=D[s][1]))
        a(f"""v_and_b32 v{c3}, 0xffff0000, v{EXT+5}
        s_mov_b32 s70, 0x01000100
        v_perm_b32 v{EXT+4}, v{EXT+5}, v{EXT+5}, s70
        v_rcp_f32 v{c3}, v{c3}
        v_mul_f32 v{c1}, {LOG2E}, v{c3}
        v_mul_f32 v{c2}, -2.0, v{c3}""")
    def ext_mfma(s):
        acc = accof(s)
        if s: a(f"v_mov_b32 v{EXT+2}, v{EQ+2*s-2}\nv_mov_b32 v{EXT+3}, v{EQ+2*s-1}")
        a(f"v_mfma_f32_32x32x16_bf16 {v(acc,16)}, {v(EXT,4)}, {v(EXT+2,4)}, {v(acc,16)}")

    G2A = XF; NA = 5
    def acc2(lam, dt): return (WF + 20*lam if lam < 2 else XF + 80 + 20*(lam-2)) + 4*dt
    G2W = XF + 120
    vA = [vX0, vX1, xr[0], xr[1]]
    vD2, w2l, vO = xr[2], xr[3], vW0
    sM2 = "s74"
    def g2_setup_a():
        a(f"v_lshlrev_b32 v{vD2}, 4, v0")
        for lam in range(4):
            a(f"""s_add_u32 s70, {sW}, {lam}
            s_and_b32 s70, s70, 3
            s_mul_i32 s70, s70, 49152
            v_add_u32 v{vA[lam]}, s70, v{vD2}""")
        a(f"""s_mul_i32 {sM2}, {sW}, 5120
        v_lshrrev_b32 v{A0}, 5, v0
        v_lshlrev_b32 v{A0}, 4, v{A0}
        v_lshrrev_b32 v{A1}, 2, v0
        v_and_b32 v{A1}, 7, v{A1}
        v_add_u32 v{A0}, v{A0}, v{A1}
        v_mul_u32_u24 v{A0}, 160, v{A0}
        v_and_b32 v{A1}, 3, v0
        v_lshl_add_u32 v{w2l}, v{A1}, 3, v{A0}
        v_add_u32 v{w2l}, {sM2}, v{w2l}""")
    def g2_setup_c():
        a(f"""s_and_b32 s70, {sFP}, 3
        s_lshl_b32 s70, s70, 1
        s_add_u32 s70, s70, {sRB}
        s_mul_i32 s70, s70, {ROT}
        s_add_u32 s70, s70, {sFH}
        s_mul_i32 s72, {sRB}, 192
        s_add_u32 s72, s72, {sTH}
        s_lshl_b32 s72, s72, 10
        s_add_u32 s72, s72, {ACT}
        s_mul_i32 s73, {sFP}, 245760
        s_mul_i32 s71, {sTH}, 5120
        s_add_u32 s73, s73, s71
        s_add_u32 s73, s73, {W2P}""")
        for q in range(4):
            a(f"""s_and_b32 s70, s70, 7
            s_mul_i32 s71, s70, 6144
            s_add_u32 s{16+q}, s71, s72
            s_mul_i32 s71, s70, 30720
            s_add_u32 s{26+q}, s71, s73
            s_add_u32 s70, s70, 2""")
        a(f"""s_lshl_b32 s70, {sW}, 4
        s_lshl_b32 s71, {sRB}, 6
        s_add_u32 s70, s70, s71
        v_and_b32 v{A0}, 15, v0
        v_add_u32 v{A0}, s70, v{A0}
        v_mul_u32_u24 v{A0}, 0x500, v{A0}
        v_lshrrev_b32 v{A1}, 4, v0
        v_lshl_add_u32 v{A0}, v{A1}, 3, v{A0}
        s_mul_i32 s70, {sFP}, 160
        v_add_u32 v{vO}, s70, v{A0}
        v_and_b32 v{vW1}, 31, v0
        v_lshlrev_b32 v{vW1}, 7, v{vW1}
        s_mul_i32 s78, {sRB}, 12288
        s_add_u32 s78, s78, {FL_ACT}
        s_add_u32 s79, s78, 4096
        s_add_u32 s80, s78, 8192""")
    def dma_w2_piece(n, h):
        s2, q = n // 4, n % 4
        if h == 0:
            a(f"s_add_u32 m0, {sM2}, {q*20480}")
            if s2 > 0 and q == 0: a(f"v_add_u32 v{vD2}, 10240, v{vD2}")
        if h == 4: a(f"s_add_u32 m0, {sM2}, {q*20480 + 4096}\ns_add_u32 s70, s{26+q}, 4096")
        a.vmem(f"buffer_load_dwordx4 v{vD2}, {SWS}, {'s70' if h == 4 else 's%d' % (26+q)} offen offset:{1024*(h%4)} sc1 lds", ('d2', n))
    def load_act(n, lams=range(4)):
        s2, q = n // 4, n % 4
        r = G2A + 16*(n % NA)
        for lam in lams:
            if s2 > 0 and q == 0: a(f"v_add_u32 v{vA[lam]}, 2048, v{vA[lam]}")
            a.vmem(f"buffer_load_dwordx4 {v(r+4*lam,4)}, v{vA[lam]}, {SWS}, s{16+q} offen sc1", ('a2', n))
    PVR = A0
    def pa_ld(s2): return f"buffer_load_dword v{EQ+s2}, v{vW1}, {SWS}, s{78+s2} offen sc1"
    def poll_act_issue(s2): a.vmem(pa_ld(s2).replace(f"v{EQ+s2},", f"v{pdst(s2)},"), ('pa', s2))
    def pdst(s2): return (XF+47, EXT, EXT+1)[s2] if s2 == 0 else (0, wrl, wrh)[s2]
    def poll_act_check(s2):
        a.wait(vm=[('pa', s2)])
        spin(a, pa_ld(s2).replace(f"v{EQ+s2},", f"v{pdst(s2)},"), cmpn([pdst(s2)]))
    def w0_issue(ld, tag):
        L = a.label("Lw0")
        a(f"s_cmp_lg_u32 {sW}, 0\ns_cbranch_scc1 {L}")
        a(ld)
        a(f"{L}:")
        a.vm.append(('VIRT', tag))
    def w0_check(ld, regs, tag):
        L = a.label("Lw0")
        a(f"s_cmp_lg_u32 {sW}, 0\ns_cbranch_scc1 {L}")
        q = list(a.vm); d = dict(a.done)
        a.wait(vm=[('VIRT', tag)])
        a.vm[:] = [t for t in q if t != ('VIRT', tag)]; a.done.clear(); a.done.update(d)
        spin(a, ld, cmpn(regs))
        a(f"{L}:")
    flagged = set(); act_age = {}
    def pre_barrier(tags, lg="all", bar=True):
        tags = list(tags)
        for ss in range(3):
            if ss in flagged: continue
            if a.vm.count(('act', ss)) + a.done.get(('act', ss), 0) == 2:
                act_age[ss] = act_age.get(ss, 0) + 1
                if act_age[ss] >= (ACT_DELAY if bar else 2): tags.append(('act', ss))
        a.wait(vm=tags, lg=lg)
        if bar: a("s_barrier")
        for ss in range(3):
            if ss not in flagged and a.done.get(('act', ss), 0) == 2:
                a(f"s_add_u32 s70, s81, {4096*ss}")
                flag_store(a, "s70", A0, A1, ('fl', ss)); flagged.add(ss)

    steps = [(s, kc) for s in range(3) for kc in range(10)]
    next_dma = 10; w2_issued = 0; act_issued = 0
    pend = []
    for si, (s, kc) in enumerate(steps):
        cw = 2*kc + 1 if s == 0 else 10 + 10*s + kc
        pre_barrier([('c', cw)], lg=())
        if (DIAG == 1 and (s, kc) in ((0, 0), (1, 0), (1, 4), (2, 0))) or (DIAG == 2 and s == 1 and kc < 9) or (DIAG == 3 and s == 2 and kc != 0) or (DIAG == 5 and s == 0 and kc < 9): stamp(a, f'g1 {s},{kc}', True)
        dq = []
        if si >= 2:
            nrel = 2 if (s == 0 or (s == 1 and kc <= 1)) else 1
            for _ in range(nrel):
                if next_dma < 40:
                    dq += [(dma_half, next_dma, 0), (dma_half, next_dma, 1)]; next_dma += 1
        if s == 2 and kc in (4, 6, 9):
            dq += [(dma_w2_piece, w2_issued, h) for h in range(5)]; w2_issued += 1
        def dma_some(n):
            for _ in range(n):
                if dq:
                    f, x1, x2 = dq.pop(0); f(x1, x2)
        prev = pend; pend = []
        acc = accof(s)
        xf = XF + 16*kc
        hi = (s == 0 and (2*kc) % 10 == 8)
        if hi:
            for j in range(4): a(f"v_add_u32 v{xr[j]}, 0x10000, v{xr[j]}")
        def rd(j):
            r = read_w(cw, j)
            if s == 0:
                slot = (2*kc) % 10
                off = slot*8192 if slot < 8 else (slot-8)*8192
                a.ds(f"ds_read_b128 {v(xf+4*j,4)}, v{xr[j]} offset:{off}", ('w', cw, j))
            pend.append((acc, r, xf + 4*j, kc == 0 and j == 0, ('w', cw, j)))
        def mf():
            if prev:
                m = prev.pop(0); a.wait(lg=[x[4] for x in prev] + [m[4]]); mfma1(*m[:4])
        per = -(-len(dq)//4)
        rd(0); rd(1)
        mf(); dma_some(per)
        mf(); rd(2); rd(3); dma_some(per)
        if hi:
            for j in range(4): a(f"v_add_u32 v{xr[j]}, 0xffff0000, v{xr[j]}")
        run_side(1)
        mf(); dma_some(per)
        run_side(2)
        mf(); dma_some(per)
        lds_ = f"buffer_load_dword v{A0}, v{EQ}, {SWS}, s75 offen sc1"
        ldw2 = "\n".join(f"s_mov_b32 s76, {FL_AUX + 8192*n}\nbuffer_load_dword v{XF+3+n}, v{XF+2}, {SWS}, s76 offen sc1" for n in range(2))
        if (s, kc) == (1, S1+2): g2_setup_a()
        if (s, kc) == (int(os.environ.get('PGS', '1')), 0): a(f"s_setprio {os.environ.get('PG','2')}")
        if (s, kc) == (1, S1-2):
            a(f"s_mov_b32 s75, {FL_S}")
            w0_issue(lds_, 'ps')
        if (s, kc) == (1, S1): w0_check(lds_, [A0], 'ps')
        if (s, kc) == (1, S1): side.extend(ext_items())
        if (s, kc) == (1, S1+3):
            ext_build(); ext_mfma(0); side.extend(mish_items(0))
        if (s, kc) == (2, 0):
            run_side(100); ext_mfma(1); side.extend(mish_items(1))
        if (s, kc) == (2, 1) and not DIRW2:
            a(f"v_lshlrev_b32 v{XF+2}, 7, v0")
            w0_issue(ldw2, 'pw')
        if (s, kc) == (2, 2):
            g2_setup_c()
            if DIRW2: g2_setup_d()
        if (s, kc) == (2, 3) and not DIRW2: w0_check(ldw2, [XF+3, XF+4], 'pw')
        if (s, kc) == (2, C0-2): poll_act_issue(0)
        if (s, kc) == (2, C0) and C0 < 10: poll_act_check(0)
        if s == 2 and kc > C0:
            for _ in range(2 if C0 >= 7 else 1):
                if act_issued < 4: load_act(act_issued); act_issued += 1

    pre_barrier([], lg="all")
    run_side(100)
    for m in pend: mfma1(*m[:4])
    for h in range(5): dma_w2_piece(3, h)
    w2_issued = 4
    ext_mfma(2)
    side.extend(mish_items(2))
    if C0 >= 10:
        run_side(2)
        poll_act_check(0)
        for k in range(4):
            load_act(k); run_side(1)
        act_issued = 4
        run_side(100)
    poll_act_issue(1)
    a2pend = []
    PG2 = os.environ.get('PG2')
    G2X = 22
    for n in range(12):
        pre_barrier([('d2', n), ('a2', n)], bar=False)
        if DIAG == 1 and n in (0, 4, 8, 11): stamp(a, f'g2 {n}', True)
        if PG2 and n == 2: a(f's_setprio {PG2}')
        dq = []
        if n >= 1 and w2_issued < 12:
            dq += [lambda h=h, k=w2_issued: dma_w2_piece(k, h) for h in range(5)]; w2_issued += 1
        lim = min(n + NA - 1, 4 if n <= C1 else 8 if n <= C2 else 12)
        if act_issued < lim:
            k = act_issued; act_issued += 1
            dq += [lambda k=k: load_act(k, (0, 1)), lambda k=k: load_act(k, (2, 3))]
            if act_issued < lim:
                k = act_issued; act_issued += 1
                dq += [lambda k=k: load_act(k, (0, 1)), lambda k=k: load_act(k, (2, 3))]
        wb = G2W + 20*(n % 2)
        prev = a2pend; a2pend = []
        for dt in range(5):
            a.ds(f"ds_read_b64_tr_b16 {v(wb+4*dt,2)}, v{w2l} offset:{(n%4)*20480 + 32*dt}", ('w2', n))
            a.ds(f"ds_read_b64_tr_b16 {v(wb+4*dt+2,2)}, v{w2l} offset:{(n%4)*20480 + 32*dt + 1280}", ('w2', n))
            for _ in range(2):
                for _ in range(2):
                    if prev: a(prev.pop(0))
                if dq: dq.pop(0)()
            if dt < 4: run_side(1)
        while dq: dq.pop(0)()
        for dt in range(5):
            for lam in (1, 2, 3, 0):
                r = acc2(lam, dt)
                a2pend.append((lam, f"v_mfma_f32_16x16x32_bf16 {v(r,4)}, {v(wb+4*dt,4)}, {v(G2A+16*(n%NA)+4*lam,4)}, {'0' if n == 0 else v(r,4)}"))
        if n < 11: a2pend = [m for _, m in a2pend]
        if n == C1: poll_act_check(1)
        if n == C2 - 1: poll_act_issue(2)
        if n == C2: poll_act_check(2)
        ypoll = f"buffer_load_dword v32, v{vW1}, {SWS}, s75 offen sc1"
        if n == 3:
            for dt in range(5):
                a.vmem(f"buffer_load_dwordx2 {v(G2X+2*dt,2)}, v{vO}, {SX}, 0 offen offset:{32*dt}", 'xfin')
        if n == 7:
            a(f"""s_lshl_b32 s75, {sFP}, 12
            s_add_u32 s75, s75, {FL_Y}
            s_mul_i32 s70, {sW}, 20
            s_mul_i32 s71, {sFP}, 80
            s_add_u32 s70, s70, s71
            v_lshrrev_b32 v33, 3, v0
            v_add_u32 v33, s70, v33
            v_lshlrev_b32 v33, 12, v33
            v_and_b32 v34, 7, v0
            v_lshl_add_u32 v33, v34, 4, v33
            v_add_u32 v34, {32768-1024}, v33
            v_add_u32 v35, {65536-2048}, v33
            s_lshl_b32 s76, {sRB}, 7
            s_add_u32 s76, s76, {AT}
            v_lshrrev_b32 v36, 2, v0
            v_and_b32 v37, 3, v0
            v_lshlrev_b32 v37, 3, v37
            s_lshl_b32 s70, {sW}, 5
            v_add_u32 v37, s70, v37""")
            for dt in range(5):
                a(f"""v_add_u32 v{A0}, {16*dt}, v36
                v_mul_u32_u24 v{A1}, 3277, v{A0}
                v_lshrrev_b32 v{A1}, 16, v{A1}
                v_mul_u32_u24 v{80+dt}, {5120-2560}, v{A1}
                v_lshl_add_u32 v{80+dt}, v{A0}, 7, v{80+dt}
                v_add_u32 v{80+dt}, v{80+dt}, v37""")
            a(f"v_lshlrev_b32 v36, 4, v0\nv_add_u32 v36, 4096, v36\nv_add_u32 v37, {sM2}, v36")
            for lam in (1, 2, 3):
                a(f"s_sub_u32 s70, {sW}, {lam}\ns_and_b32 s70, s70, 3\ns_mul_i32 s70, s70, 5120\nv_add_u32 v{84+lam}, s70, v36")
        if n == 8: a.vmem(ypoll, 'py')
        def dma_at(tagit=True):
            f = a.vmem if tagit else (lambda t, g: a(t))
            a(f"s_mov_b32 m0, {sM2}")
            f(f"buffer_load_dwordx4 v33, {SWS}, s76 offen sc1 lds", 'at')
            f(f"buffer_load_dwordx4 v34, {SWS}, s76 offen offset:1024 sc1 lds", 'at')
            a("s_mov_b64 exec, 0xffffffff")
            f(f"buffer_load_dwordx4 v35, {SWS}, s76 offen offset:2048 sc1 lds", 'at')
            a("s_mov_b64 exec, -1")
        if n == 10:
            a.wait(vm=['py'])
            a(cmpn([32]))
            a("s_cselect_b32 s77, 1, 0")
            dma_at()
    a.wait(lg="all")
    for lam in (1, 2, 3, 0):
        for l2, m in a2pend:
            if l2 == lam: a(m)
        if lam in (2, 3, 0):
            lp = {2: 1, 3: 2, 0: 3}[lam]
            for dt in range(5): a(f"ds_write_b128 v37, {v(acc2(lp, dt),4)} offset:{20480*lp + 1024*dt - 4096}")
    L = a.label("Lyok")
    a(f"""s_cmp_eq_u32 s77, 1
    s_cbranch_scc1 {L}
    s_waitcnt vmcnt(0)
    v_not_b32 v32, {sTAG}""")
    spin(a, ypoll, cmpn([32]))
    dma_at(False)
    a(f"{L}:")
    RX = G2A; AV = XF + 60; TT = XF + 80
    def unp(d, s): return f"v_lshlrev_b32 v{d}, 16, v{s}\nv_and_b32 v{d+1}, 0xffff0000, v{s}"
    a("s_waitcnt vmcnt(0) lgkmcnt(0)")
    a.vm.clear(); a.lg.clear()
    a("s_barrier")
    for dt in range(5): a.ds(f"ds_read_b64_tr_b16 {v(AV+2*dt,2)}, v{80+dt}", ('av', dt))
    for dt in range(5):
        for lam in (1, 2, 3): a.ds(f"ds_read_b128 {v(RX+12*dt+4*(lam-1),4)}, v{84+lam} offset:{20480*lam+1024*dt-4096}", ('rx', dt))
        t = TT + 8*dt
        a(unp(t, G2X+2*dt)); a(unp(t+2, G2X+2*dt+1))
    for dt in range(5):
        t = TT + 8*dt; av = AV + 2*dt
        a.wait(lg=[('av', dt)])
        a(unp(t+4, av)); a(unp(t+6, av+1))
        a(f"""v_pk_add_f32 {v(t,2)}, {v(t,2)}, {v(t+4,2)}
        v_pk_add_f32 {v(t+2,2)}, {v(t+2,2)}, {v(t+6,2)}
        v_cvt_pk_bf16_f32 v{t+4}, v{t}, v{t+1}
        v_cvt_pk_bf16_f32 v{t+5}, v{t+2}, v{t+3}""")
        a(unp(t, t+4)); a(unp(t+2, t+5))
    for dt in range(5):
        t = TT + 8*dt; k = acc2(0, dt); r = RX + 12*dt
        a.wait(lg=[('rx', dt)])
        a(f"""v_pk_add_f32 {v(k,2)}, {v(k,2)}, {v(r,2)}
        v_pk_add_f32 {v(k+2,2)}, {v(k+2,2)}, {v(r+2,2)}
        v_pk_add_f32 {v(r+4,2)}, {v(r+4,2)}, {v(r+8,2)}
        v_pk_add_f32 {v(r+6,2)}, {v(r+6,2)}, {v(r+10,2)}
        v_pk_add_f32 {v(k,2)}, {v(k,2)}, {v(r+4,2)}
        v_pk_add_f32 {v(k+2,2)}, {v(k+2,2)}, {v(r+6,2)}
        v_cvt_pk_bf16_f32 v{r}, v{k}, v{k+1}
        v_cvt_pk_bf16_f32 v{r+1}, v{k+2}, v{k+3}""")
        a(unp(k, r)); a(unp(k+2, r+1))
        a(f"""v_pk_add_f32 {v(t,2)}, {v(t,2)}, {v(k,2)}
        v_pk_add_f32 {v(t+2,2)}, {v(t+2,2)}, {v(k+2,2)}
        v_cvt_pk_bf16_f32 v{t+4}, v{t}, v{t+1}
        v_cvt_pk_bf16_f32 v{t+5}, v{t+2}, v{t+3}
        buffer_store_dwordx2 {v(t+4,2)}, v{vO}, {S4}, 0 offen offset:{32*dt}""")
    if DIAG: a("s_waitcnt vmcnt(0)")
    if DIAG == 1: stamp(a, 'end')
    stamp_flush(a, 22)
    a("s_endpgm")

UPAD = 448
UCS  = 4640
USTR = 4*UCS
KB0  = 3*USTR
K1OFF = 4224
KSTR = 2*K1OFF
CVOFF = 16
UIN = 200
def u_issue(a):
    a(f"""v_lshlrev_b32 v224, 4, v0
    s_lshl_b32 s70, {sW}, 10
    v_add_u32 v224, s70, v224
    v_lshlrev_b32 v225, 1, v224
    s_mov_b32 s70, {STATS}
    buffer_load_dwordx4 {v(UIN,4)}, v225, {SWS}, s70 offen sc1
    buffer_load_dwordx4 {v(UIN+4,4)}, v225, {SWS}, s70 offen offset:16 sc1""")
    for c, sch in enumerate(("s58", "s59", "s61")):
        a(f"""s_lshl_b32 s70, {sch}, 12
        s_add_u32 s70, s70, {XNT}
        buffer_load_dwordx4 {v(UIN+8+4*c,4)}, v224, {SWS}, s70 offen sc1""")

def ssm(a):
    sI = "s54"
    a(f"""Lssm:
    s_setprio 3
    s_mov_b32 {sI}, s2
    s_lshr_b32 s56, {sI}, 1
    s_mul_i32 s56, s56, 5
    s_and_b32 s57, {sI}, 1
    s_mul_i32 s58, s57, 3
    s_add_u32 s58, s58, s56
    s_add_u32 s59, s58, 1
    s_add_u32 s61, s56, 2""")
    for c, sch in enumerate(("s58", "s59", "s61")):
        a(f"s_lshl_b32 s70, {sch}, 1\ns_and_b32 s70, s70, -4\ns_load_dword s{34+c+(c>1)*6}, {sp('D')}, s70")
    a(f"""s_cmp_eq_u32 {sW}, 3
    s_cbranch_scc1 Laux""")
    kgen(a)
    a("s_branch Lconv")
    aux(a)
    conv(a)

def kgen(a):
    sCH, sKB = "s55", "s68"
    a(f"""s_cmp_eq_u32 {sW}, 0
    s_cselect_b32 {sCH}, s58, s59
    s_cmp_eq_u32 {sW}, 2
    s_cselect_b32 {sCH}, s61, {sCH}
    s_mul_i32 {sKB}, {sW}, {USTR}
    s_mul_i32 s70, {sCH}, 384
    v_mul_u32_u24 v1, 6, v0
    v_and_b32 v1, -4, v1
    v_add_u32 v1, s70, v1""")
    PR = 8
    names = ['Are', 'Aim', 'Bre', 'Bim', 'Cre', 'Cim']
    for k, n in enumerate(names):
        a.vmem(f"global_load_dwordx2 {v(30+2*k,2)}, v1, {sp(n)}", 'par')
    a(f"""s_lshl_b32 s70, {sCH}, 1
    s_and_b32 s70, s70, -4
    s_load_dword s69, {sp('ldt')}, s70
    v_and_b32 v2, 1, v0
    v_lshlrev_b32 v2, 4, v2""")
    a(f"""    s_mov_b32 m0, {sKB}
    v_and_b32 v6, 15, v0
    v_mul_u32_u24 v7, 288, v6
    v_lshrrev_b32 v4, 4, v0
    v_lshl_add_u32 v7, v4, 4, v7
    v_add_u32 v7, {sKB}, v7""")
    if TLB:
        a(f"""v_and_b32 v26, 7, v0
        v_lshlrev_b32 v26, 21, v26
        v_mov_b32 v27, 0
        s_mov_b64 exec, 0xff""")
        a.vmem(f"buffer_load_dword v106, v26, {SWS}, 0 offen offset:512", 'touch')
        a("s_mov_b64 exec, 1")
        for n in ('w2', 'out', 'b1'): a.vmem(f"global_load_dword v107, v27, {sp(n)}", 'touch')
        a("s_mov_b64 exec, -1")
    if TOUCHW1:
        a(f"""s_mul_i32 s70, {sW}, 80
        v_add_u32 v26, s70, v0
        v_add_u32 v27, 64, v26
        s_add_u32 s70, s70, 79
        v_min_u32 v27, s70, v27
        s_lshr_b32 s71, s2, 3
        s_mul_i32 s71, s71, {20*3072}
        s_and_b32 s70, s2, 1
        s_mul_i32 s70, s70, 1536
        s_add_u32 s71, s71, s70""")
        for r in (26, 27):
            a(f"""v_mul_u32_u24 v28, 5462, v{r}
            v_lshrrev_b32 v28, 16, v28
            v_mul_u32_u24 v29, 12, v28
            v_sub_u32 v29, v{r}, v29
            v_mul_u32_u24 v28, 0xc00, v28
            v_lshl_add_u32 v28, v29, 7, v28""")
            a.vmem(f"buffer_load_dword v{r}, v28, {SW1}, s71 offen", 'touch')
    RP = 192
    srd(a, 48, 'w2', 1966080)
    a(f"""s_mul_i32 s78, s2, {6*160}
    s_add_u32 s78, s78, {W2P}
    v_lshlrev_b32 v190, 4, v0
    v_mov_b32 v188, 0
    s_mov_b32 s79, 0
    s_cmp_lg_u32 {sW}, {7 if DIRW2 or W2AUX else 0}
    s_cbranch_scc1 Lkg_now2
    v_mul_u32_u24 v188, 6554, v0
    v_lshrrev_b32 v188, 16, v188
    v_mul_u32_u24 v189, 10, v188
    v_sub_u32 v189, v0, v189
    v_mul_u32_u24 v188, 0x500, v188
    v_lshl_add_u32 v188, v189, 4, v188
    s_mul_i32 s71, s2, {6*1280}
    s_mov_b32 exec_hi, 0x0fffffff""")
    a("s_mov_b32 s79, s71")
    def w2loads():
        for c in range(8):
            a(f"buffer_load_dwordx4 {v(RP+4*c,4)}, v188, {S4}, s79 offen offset:{160*c}")
    if not W2LATE: w2loads()
    a("s_mov_b32 exec_hi, -1\nLkg_now2:")
    W2X = 0 if DIRW2 or W2LATE or W2AUX else 8
    def kwait(tag):
        q = list(a.vm); idx = max(k for k, t in enumerate(q) if t == tag); n = len(q) - 1 - idx
        L = a.label("Lkw")
        a(f"s_waitcnt vmcnt({n+W2X})\ns_cmp_eq_u32 {sW}, 0\ns_cbranch_scc1 {L}\ns_waitcnt vmcnt({n})\n{L}:")
    a(f"s_setprio {os.environ.get('PS','1')}")
    def W2T():
        a(f"""s_mul_i32 s70, {sW}, 80
        v_add_u32 v250, s70, v0
        v_add_u32 v251, 64, v250
        s_add_u32 s70, s70, 79
        v_min_u32 v251, s70, v251
        s_lshr_b32 s71, s2, 3
        s_mul_i32 s71, s71, {48*1280}
        s_and_b32 s70, s2, 1
        s_mul_i32 s70, s70, 640
        s_add_u32 s71, s71, s70""")
        for r in (250, 251):
            a(f"""v_mul_u32_u24 v252, 13108, v{r}
            v_lshrrev_b32 v252, 16, v252
            v_mul_u32_u24 v253, 5, v252
            v_sub_u32 v253, v{r}, v253
            v_mul_u32_u24 v252, 0x500, v252
            v_lshl_add_u32 v252, v253, 7, v252
            buffer_load_dword v{r}, v252, {S4}, s71 offen""")
    make_tag(a)
    stamp_reset(1)
    a(f"""s_bitcmp1_b32 {sCH}, 0
    s_cselect_b32 s70, 0, 16
    s_lshl_b32 s69, s69, s70
    s_and_b32 s69, s69, 0xffff0000
    v_mov_b32 v3, s69
    v_mul_f32 v4, {LOG2E}, v3
    s_mov_b32 s70, {LOG2E}
    v_fma_f32 v5, v3, s70, -v4
    v_fmac_f32 v5, 0x32A57060, v3
    v_exp_f32 v4, v4
    v_mul_f32 v5, 0x3F317218, v5
    v_fmac_f32 v4, v4, v5
    v_cvt_pk_bf16_f32 v4, v4, v4
    v_and_b32 v3, 0xffff0000, v4""")
    R = {r: 30 + 2*(r-1) for r in range(1, 8)}
    V = {b: 44 + 2*(b-1) for b in range(1, 16)}
    Wr, Pa, Pb = 74, 76, 78
    U = [80 + 2*i for i in range(8)]
    CVT = [96 + i for i in range(8)]
    zr, th = 104, 105
    FR = 112
    KACC = 176
    cv = [0]
    def p2(r): return f"v[{r}:{r+1}]"
    def cmuls(lst):
        if os.environ.get('NOPK'):
            for D, X, Y in lst: a(f"v_mul_f32 v{D}, v{X}, v{Y}\nv_mul_f32 v{D+1}, v{X}, v{Y+1}")
            for D, X, Y in lst: a(f"v_fma_f32 v{D}, -v{X+1}, v{Y+1}, v{D}\nv_fmac_f32 v{D+1}, v{X+1}, v{Y}")
            return
        for D, X, Y in lst:
            a(f"v_pk_mul_f32 {p2(D)}, {p2(X)}, {p2(Y)} op_sel:[0,0] op_sel_hi:[0,1]")
        for D, X, Y in lst:
            a(f"v_pk_fma_f32 {p2(D)}, {p2(X)}, {p2(Y)}, {p2(D)} op_sel:[1,1,0] op_sel_hi:[1,0,1] neg_lo:[1,0,0]")
    def emit(rows_regs, neg=False):
        ts = []
        for row, r in rows_regs:
            t = CVT[cv[0] % 8]; cv[0] += 1; ts.append((row, t))
            a(f"v_cvt_pk_bf16_f32 v{t}, v{r}, {'-' if neg else ''}v{r+1}")
        for row, t in ts:
            a(f"ds_write_addtid_b32 v{t} offset:{288*row}")
    for r in range(12): a(f"v_mov_b32 v{KACC+r}, 0")
    kwait('par')
    stamp(a, 'par', True)
    for k in range(6):
        lo, hi = 30+2*k, 31+2*k
        a(f"""v_alignbit_b32 v{lo}, v{hi}, v{lo}, v2
        v_lshrrev_b32 v{hi}, v2, v{hi}
        v_lshlrev_b32 v{PR+k}, 16, v{lo}
        v_and_b32 v{PR+6+k}, 0xffff0000, v{lo}
        v_lshlrev_b32 v{PR+12+k}, 16, v{hi}""")
    if TOUCHW2 == 2: W2T()
    a("s_mov_b32 s69, 3\nLkg:")
    a.vm.clear()
    q = PR
    a(f"""v_mul_f32 v{zr}, v3, v{q}
    v_mul_f32 v{th}, v3, v{q+1}
    v_mul_f32 v{q+2}, v3, v{q+2}
    v_mul_f32 v{q+3}, v3, v{q+3}
    v_mul_f32 v{zr}, {LOG2E}, v{zr}
    v_mul_f32 v{th}, 0.15915494, v{th}""")
    dst = [(R[1], None), (V[1], 0x41000000), (Wr, 0x43000000)]
    for k, (d, mulc) in enumerate(dst):
        e, ph = U[k], U[k]+1
        if mulc is None:
            a(f"v_exp_f32 v{e}, v{zr}\nv_fract_f32 v{ph}, v{th}")
        else:
            a(f"v_mul_f32 v{e}, {mulc}, v{zr}\nv_mul_f32 v{ph}, {mulc}, v{th}\nv_exp_f32 v{e}, v{e}\nv_fract_f32 v{ph}, v{ph}")
    for k, (d, mulc) in enumerate(dst):
        a(f"v_cos_f32 v{d}, v{U[k]+1}\nv_sin_f32 v{d+1}, v{U[k]+1}")
    cmuls([(Pa, q+4, q+2)])
    for k, (d, mulc) in enumerate(dst):
        a(f"v_mul_f32 v{d}, v{d}, v{U[k]}\nv_mul_f32 v{d+1}, v{d+1}, v{U[k]}")
    for k in range(0, 12, 2): a(f"v_pk_mul_f32 {p2(q+k)}, {p2(q+6+k)}, 1.0 op_sel_hi:[1,0]")
    a(f"v_mov_b32 v{CVT[7]}, 0x3f80")
    a(f"ds_write_addtid_b32 v{CVT[7]} offset:{288*41}")
    cmuls([(R[2], R[1], R[1]), (V[2], V[1], V[1]), (Pb, Pa, Wr)])
    emit([(0, Pa), (8, Pb)]); emit([(42, V[1]), (43, V[2])], neg=True)
    cmuls([(R[3], R[2], R[1]), (R[4], R[2], R[2]), (V[3], V[2], V[1]), (V[4], V[2], V[2]),
           (U[0], Pa, R[1]), (U[1], Pa, R[2]), (U[2], Pb, R[1]), (U[3], Pb, R[2])])
    emit([(1, U[0]), (2, U[1]), (9, U[2]), (10, U[3])]); emit([(44, V[3]), (45, V[4])], neg=True)
    cmuls([(R[5], R[4], R[1]), (R[6], R[4], R[2]), (R[7], R[4], R[3]),
           (V[5], V[4], V[1]), (V[6], V[4], V[2]), (V[7], V[4], V[3]), (V[8], V[4], V[4]),
           (U[0], Pa, R[3]), (U[1], Pa, R[4]), (U[2], Pb, R[3]), (U[3], Pb, R[4])])
    emit([(3, U[0]), (4, U[1]), (11, U[2]), (12, U[3])]); emit([(41+b, V[b]) for b in (5, 6, 7, 8)], neg=True)
    cmuls([(U[0], Pa, R[5]), (U[1], Pa, R[6]), (U[2], Pa, R[7]), (U[3], Pb, R[5]), (U[4], Pb, R[6]), (U[5], Pb, R[7])]
          + [(V[8+b], V[8], V[b]) for b in range(1, 8)] + [(U[6], Wr, Wr), (U[7], Pb, Wr)])
    W2, P2 = U[6], U[7]
    emit([(5, U[0]), (6, U[1]), (7, U[2]), (13, U[3]), (14, U[4]), (15, U[5])])
    cmuls([(Pa, Pb, W2), (U[0], P2, R[2]), (U[1], P2, R[4]), (U[2], P2, R[6])])
    cmuls([(Pb, P2, W2)])
    emit([(41+8+b, V[8+b]) for b in range(1, 8)], neg=True)
    emit([(16, P2), (17, U[0]), (18, U[1]), (19, U[2])])
    Pc, Pd = V[9], V[10]
    cmuls([(Pc, Pa, W2), (Pd, Pb, W2), (U[0], Pa, R[2]), (U[1], Pa, R[4]), (U[2], Pa, R[6]), (U[3], Pb, R[4])])
    emit([(20, Pa), (21, U[0]), (22, U[1]), (23, U[2]), (24, Pb), (25, U[3])])
    cmuls([(Pa, Pc, W2), (Pb, Pd, W2), (U[0], Pc, R[4]), (U[1], Pd, R[4])])
    emit([(26, Pc), (27, U[0]), (28, Pd), (29, U[1])])
    cmuls([(Pc, Pa, W2), (Pd, Pb, W2), (U[0], Pa, R[4]), (V[11], W2, W2)])
    emit([(30, Pa), (31, U[0]), (32, Pb)])
    W4 = V[11]
    cmuls([(Pa, Pc, W2), (U[0], Pb, W4), (U[1], Pc, W4), (U[2], Pd, W4)])
    emit([(33, Pc), (34, Pd)])
    cmuls([(U[3], Pa, W4), (U[4], U[0], W4)])
    emit([(35, Pa), (36, U[0]), (37, U[1]), (38, U[2])])
    emit([(39, U[3]), (40, U[4])])
    a("s_waitcnt lgkmcnt(0)")
    for ks in range(4):
        a.ds(f"ds_read_b128 {v(FR+16*ks+12,4)}, v7 offset:{288*41 + 64*ks}", ('fr', ks))
        for m in range(3):
            a.ds(f"ds_read_b128 {v(FR+16*ks+4*m,4)}, v7 offset:{288*16*m + 64*ks}", ('fr', ks))
    for ks in range(4):
        a.wait(lg=[('fr', ks)])
        for m in range(3):
            a(f"v_mfma_f32_16x16x32_bf16 {v(KACC+4*m,4)}, {v(FR+16*ks+4*m,4)}, {v(FR+16*ks+12,4)}, {v(KACC+4*m,4)}")
    a(f"""s_sub_u32 s69, s69, 1
    s_cmp_lg_u32 {sW}, {7 if DIRW2 or W2AUX else 0}
    s_cbranch_scc1 Lkg_n
    s_cmp_eq_u32 s69, {2-W2LATE}
    s_cbranch_scc0 Lkg_f
    s_waitcnt vmcnt(0)
    s_mov_b32 exec_hi, 0x0fffffff""")
    for c in range(8):
        a(f"buffer_store_dwordx4 {v(RP+4*c,4)}, v190, {SWS}, s78 offen sc1")
        if c < 7: a("s_add_u32 s78, s78, 245760")
    a(f"""s_mov_b32 exec_hi, -1
    s_branch Lkg
    Lkg_f:""")
    if W2LATE:
        a("s_cmp_eq_u32 s69, 2\ns_cbranch_scc0 Lkg_g\ns_mov_b32 exec_hi, 0x0fffffff")
        w2loads()
        a("s_mov_b32 exec_hi, -1\ns_branch Lkg\nLkg_g:")
    a(f"""s_cmp_eq_u32 s69, {1-W2LATE}
    s_cbranch_scc0 Lkg_n
    s_lshl_b32 s70, s2, 7
    s_add_u32 s70, s70, {FL_AUX}
    s_waitcnt vmcnt(0)""")
    flag_store(a, "s70", 190, 191)
    a("""Lkg_n:
    s_cmp_lg_u32 s69, 0
    s_cbranch_scc1 Lkg""")
    stamp(a, 'tables', True)
    if TOUCHW2 == 1:
        W2T()
    go_wait(a, 20)
    u_issue(a)
    stamp(a, 'aux seen', True)
    a(f"""v_lshrrev_b32 v4, 4, v0
    v_lshrrev_b32 v8, 1, v4
    v_and_b32 v9, 1, v4
    v_lshlrev_b32 v10, 8, v8
    v_lshl_add_u32 v10, v6, 4, v10
    v_lshl_add_u32 v10, v9, 3, v10
    v_add_u32 v10, {sKB}, v10
    v_lshlrev_b32 v11, 7, v4
    v_add_u32 v11, 512, v11
    v_sub_u32 v12, 3, v8
    v_lshlrev_b32 v12, v12, v6
    v_add_u32 v11, v11, v12
    v_add_u32 v11, {sKB}, v11
    v_mul_u32_u24 v12, 60, v8
    v_add_u32 v12, 4, v12
    v_add_u32 v12, v11, v12
    v_lshlrev_b32 v13, 7, v4
    v_lshl_add_u32 v13, v6, 1, v13
    v_add_u32 v13, {sKB}, v13
    v_mov_b32 v14, 0
    v_mov_b32 v15, {sKB}""")
    for i in range(6): a(f"v_cvt_pk_bf16_f32 v{16+i}, v{KACC+2*i}, v{KACC+2*i+1}")
    a(f"""ds_write_b64 v10, v[16:17] offset:{CVOFF}
    ds_write_b32 v11, v18 offset:{CVOFF}
    ds_write_b32 v12, v19 offset:{CVOFF}
    ds_write_b16 v13, v20 offset:{CVOFF+1024}
    ds_write_b16_d16_hi v13, v20 offset:{CVOFF+1024+32}
    ds_write_b16 v13, v21 offset:{CVOFF+1024+64}
    ds_write_b16_d16_hi v13, v21 offset:{CVOFF+1024+96}
    ds_write_b32 v15, v14 offset:{CVOFF-4}
    v_and_b32 v8, 31, v0
    v_lshl_add_u32 v9, v8, 4, {sKB}
    v_lshl_add_u32 v10, v8, 3, {sKB}
    v_min_u32 v11, 1, v8
    v_lshl_add_u32 v11, v11, 1, v10
    v_lshl_add_u32 v12, v0, 2, {sKB}
    v_lshl_add_u32 v13, v0, 1, {sKB}
    s_mul_i32 s69, {sW}, {KSTR}
    s_add_u32 s69, s69, {KB0}
    v_lshl_add_u32 v14, v0, 4, s69
    v_mov_b32 v40, 0
    v_mov_b32 v41, 0
    v_mov_b32 v42, 0
    v_mov_b32 v43, 0
    s_waitcnt lgkmcnt(0)
    ds_read_b128 v[16:19], v9 offset:{CVOFF}
    ds_read_b32 v20, v9 offset:{CVOFF-4}
    ds_read_b64 v[22:23], v10 offset:{CVOFF+512}
    ds_read_b32 v24, v10 offset:{CVOFF+512+8}
    ds_read_u16 v25, v11 offset:{CVOFF+512-2}
    ds_read_b32 v26, v12 offset:{CVOFF+768}
    ds_read_b32 v27, v12 offset:{CVOFF+768+4}
    ds_read_u16 v28, v13 offset:{CVOFF+1024}
    ds_read_u16 v60, v13 offset:{CVOFF+1024+2}
    ds_read_u16 v29, v13 offset:{CVOFF+1024+128}
    ds_read_u16 v61, v13 offset:{CVOFF+1024+130}
    s_mov_b32 s70, 0xffff
    s_mov_b32 s71, 0x01000100
    s_mov_b32 s72, 0x03020302
    s_mov_b32 s75, 0x05040100
    v_and_b32 v30, 1, v0
    v_mul_u32_u24 v31, 0x0404, v30
    v_lshlrev_b32 v30, 16, v31
    v_add_u32 v30, 0x01000504, v30
    v_add_u32 v31, 0x01000100, v31
    s_mov_b64 exec, 0xff
    ds_write_b128 v14, v[40:43]
    ds_write_b128 v14, v[40:43] offset:{K1OFF}
    s_mov_b64 exec, 0xffffffff
    s_waitcnt lgkmcnt(2)
    v_alignbit_b32 v32, v19, v19, 16
    v_alignbit_b32 v33, v18, v18, 16
    v_alignbit_b32 v34, v17, v17, 16
    v_alignbit_b32 v35, v16, v16, 16
    v_bfi_b32 v36, s70, v19, v18
    v_bfi_b32 v37, s70, v18, v17
    v_bfi_b32 v38, s70, v17, v16
    v_bfi_b32 v39, s70, v16, v20
    ds_write_b128 v14, v[32:35] offset:{K1OFF+128}
    ds_write_b128 v14, v[36:39] offset:128
    v_bfi_b32 v44, s70, v24, v23
    v_perm_b32 v45, v23, v23, s71
    v_bfi_b32 v46, s70, v23, v22
    v_perm_b32 v47, v22, v22, s71
    v_alignbit_b32 v48, v23, v23, 16
    v_mov_b32 v49, v45
    v_alignbit_b32 v50, v22, v22, 16
    v_perm_b32 v51, v25, v22, s75
    ds_write_b128 v14, v[44:47] offset:{K1OFF+128+512}
    ds_write_b128 v14, v[48:51] offset:{128+512}
    s_mov_b64 exec, -1
    v_perm_b32 v64, v27, v27, s71
    v_perm_b32 v65, v26, v26, s72
    v_alignbit_b32 v66, v26, v26, 16
    v_perm_b32 v67, v26, v26, s71
    v_bfi_b32 v68, s70, v27, v26
    v_mov_b32 v69, v65
    v_mov_b32 v70, v67
    v_mov_b32 v71, v67
    ds_write_b128 v14, v[64:67] offset:{K1OFF+128+1024}
    ds_write_b128 v14, v[68:71] offset:{128+1024}""")
    for k, src in enumerate((28, 29)):
        b = 72 + 8*k; s1 = 60 + k
        a(f"""v_perm_b32 v{b}, v{s1}, v{s1}, s71
        v_perm_b32 v{b+1}, v{s1}, v{src}, v30
        v_perm_b32 v{b+2}, v{src}, v{src}, s71
        v_perm_b32 v{b+5}, v{s1}, v{src}, v31
        v_mov_b32 v{b+3}, v{b+2}
        v_mov_b32 v{b+4}, v{b}
        v_mov_b32 v{b+6}, v{b+2}
        v_mov_b32 v{b+7}, v{b+2}
        ds_write_b128 v14, {v(b,4)} offset:{K1OFF+128+2048+1024*k}
        ds_write_b128 v14, {v(b+4,4)} offset:{128+2048+1024*k}""")
    a.vm.clear(); a.lg.clear()

def aux(a):
    sI = "s54"
    sX8, sJ = "s55", "s56"
    a("Laux:")
    X = 16
    TB = 56
    TB2 = 212
    TM = 96
    CS = 116
    TP = 244
    def blk_addr(sidx, sld, sst):
        a(f"""s_mul_i32 s70, {sidx}, 6554
        s_lshr_b32 s70, s70, 16
        s_mul_i32 s71, s70, 10
        s_sub_u32 s71, {sidx}, s71
        s_lshr_b32 s72, {sX8}, 1
        s_lshl_b32 s72, s72, 3
        s_add_u32 s70, s70, s72
        s_mul_i32 {sld}, s70, {64*1280}
        s_lshl_b32 s72, s71, 7
        s_add_u32 {sld}, {sld}, s72
        s_lshl_b32 {sst}, s71, 18
        s_lshl_b32 s72, s70, 7
        s_add_u32 {sst}, {sst}, s72
        s_add_u32 {sst}, {sst}, {XNT}""")
    def blk_load(base, sld):
        for r in range(8):
            a(f"buffer_load_dwordx4 {v(base+4*r,4)}, v{(2,3,6)[r//3]}, {SX}, {sld} offen offset:{(r%3)*1280}")
    def blk_store(base, sst):
        for c in range(8):
            o = TP + 4*(c % 2)
            for k in range(4):
                a(f"v_perm_b32 v{o+k}, v{base+4*(2*k+1)+c//2}, v{base+4*(2*k)+c//2}, {'s75' if c % 2 else 's74'}")
            a(f"buffer_store_dwordx4 {v(o,4)}, v7, {SWS}, {sst} offen sc1")
            if c < 7: a(f"s_add_u32 {sst}, {sst}, 4096")
    a(f"""s_and_b32 {sX8}, {sI}, 7
    s_lshr_b32 {sJ}, {sI}, 3
    s_setprio {os.environ.get('PA','0')}
    s_lshr_b32 s81, 0xfff, {sJ}
    s_and_b32 s81, s81, 1
    v_lshrrev_b32 v4, 3, v0
    v_and_b32 v5, 7, v0""")
    a(f"""s_cmp_eq_u32 s81, 0
    s_cbranch_scc1 Laux_nocs
    s_lshr_b32 s77, {sX8}, 1
    s_and_b32 s78, {sX8}, 1
    s_mul_i32 s78, s78, 12
    s_add_u32 s78, s78, {sJ}
    v_mul_u32_u24 v8, 0xc00, v4
    v_lshl_add_u32 v8, v5, 4, v8
    s_mul_i32 s72, s77, {160*3072}
    s_lshl_b32 s73, s78, 7
    s_add_u32 s72, s72, s73""")
    for n in range(20):
        a(f"buffer_load_dwordx4 {v(CS+4*n,4)}, v8, {SW1}, s72 offen")
        if n < 19: a(f"s_add_u32 s72, s72, 24576")
    a(f"""Laux_nocs:
    s_lshl_b32 s68, {sX8}, 8
    s_lshl_b32 s70, {sJ}, 3
    s_add_u32 s68, s68, s70
    s_mul_i32 s70, s68, 1280
    v_mul_u32_u24 v1, 0x500, v4
    v_lshl_add_u32 v1, v5, 4, v1""")
    for n in range(10):
        a(f"buffer_load_dwordx4 {v(X+4*n,4)}, v1, {SX}, s70 offen offset:{128*n}")
    a(f"""s_and_b32 s69, {sX8}, 1
    s_mul_i32 s69, s69, 40
    s_add_u32 s69, s69, {sJ}
    v_mul_u32_u24 v2, {8*1280}, v5
    v_lshl_add_u32 v2, v4, 4, v2
    v_add_u32 v3, {3*1280}, v2
    v_add_u32 v6, {6*1280}, v2
    v_lshlrev_b32 v7, 15, v4
    v_lshl_add_u32 v7, v5, 4, v7""")
    blk_addr("s69", "s73", "s79")
    blk_load(TB, "s73")
    a(f"""s_cmp_lt_u32 {sJ}, 24
    s_cbranch_scc1 Laux_b1
    s_add_u32 s69, s69, 8""")
    blk_addr("s69", "s73", "s80")
    blk_load(TB2, "s73")
    a("Laux_b1:")
    if TOUCH:
        a(f"""s_getpc_b64 s[62:63]
        Lpc:
        s_sub_u32 s62, s62, Lpc-{KN}
        s_subb_u32 s63, s63, 0
        v_min_u32 v8, 9, v0
        s_mul_i32 s70, {sJ}, 10
        v_add_u32 v8, s70, v8
        v_lshlrev_b32 v8, 7, v8
        v_min_u32 v8, Lend-{KN}, v8
        s_mov_b64 exec, 0x3ff
        global_load_dword v252, v8, s[62:63]
        s_mov_b64 exec, -1""")
    a(f"s_setprio {os.environ.get('PA2','3')}")
    make_tag(a)
    a(f"""s_mov_b32 s74, 0x05040100
    s_mov_b32 s75, 0x07060302
    s_mov_b32 s70, 0x3f803f80
    v_and_b32 v8, 15, v0
    v_lshrrev_b32 v9, 1, v8
    v_and_b32 v10, 1, v8
    v_lshlrev_b32 v10, 4, v10
    v_mov_b32 v11, 0x3f80
    v_lshlrev_b32 v11, v10, v11""")
    for k in range(4):
        a(f"v_cmp_eq_u32 vcc, {k}, v9\nv_cndmask_b32 v{88+k}, 0, v11, vcc")
    a(f"""s_lshl_b32 s76, {sI}, 7
    s_cmp_eq_u32 s81, 0
    s_cbranch_scc1 Laux_nocs1
    s_waitcnt vmcnt({18+TOUCH})""")
    for n in range(20):
        a(f"v_mfma_f32_16x16x32_bf16 v[112:115], v[88:91], {v(CS+4*n,4)}, {'0' if n == 0 else 'v[112:115]'}")
    for k in range(4):
        a(f"v_add_f32_dpp v{112+k}, v{112+k}, v{112+k} row_ror:8 row_mask:0xf bank_mask:0xf")
    a(f"""v_lshrrev_b32 v9, 4, v0
    v_lshlrev_b32 v8, 5, v5
    v_lshl_add_u32 v8, v9, 4, v8
    s_lshl_b32 s72, s78, 8
    s_mul_i32 s73, s77, 6144
    s_add_u32 s72, s72, s73
    s_add_u32 s72, s72, {CSUM}
    s_mov_b64 exec, 0x00ff00ff
    buffer_store_dwordx4 v[112:115], v8, {SWS}, s72 offen sc1
    s_mov_b64 exec, -1
    s_waitcnt vmcnt({9+TOUCH})
    s_branch Laux_w
    Laux_nocs1:
    s_waitcnt vmcnt({16+TOUCH})
    s_cmp_ge_u32 {sJ}, 24
    s_cbranch_scc1 Laux_w
    s_waitcnt vmcnt({8+TOUCH})
    Laux_w:""")
    stamp_reset(1); stamp(a, 'aux loads')
    for k in range(4): a(f"v_dot2_f32_bf16 v{8+k}, v{X+k}, s70, 0")
    for k in range(4): a(f"v_dot2_f32_bf16 v{12+k}, v{X+k}, v{X+k}, 0")
    for n in range(1, 10):
        for k in range(4): a(f"v_dot2_f32_bf16 v{8+k}, v{X+4*n+k}, s70, v{8+k}")
        for k in range(4): a(f"v_dot2_f32_bf16 v{12+k}, v{X+4*n+k}, v{X+4*n+k}, v{12+k}")
    INV640 = 0x3ACCCCCD
    def red8(rs):
        for t in ("v_add_f32 v{r}, v{r}, v{r1}", "v_add_f32 v{r2}, v{r2}, v{r3}", "v_add_f32 v{r}, v{r}, v{r2}",
                  "v_add_f32_dpp v{r}, v{r}, v{r} quad_perm:[1,0,3,2] row_mask:0xf bank_mask:0xf",
                  "v_add_f32_dpp v{r}, v{r}, v{r} quad_perm:[2,3,0,1] row_mask:0xf bank_mask:0xf",
                  "v_add_f32_dpp v{r}, v{r}, v{r} row_half_mirror row_mask:0xf bank_mask:0xf",
                  "v_mul_f32 v{r}, %d, v{r}" % INV640):
            for r in rs: a(t.format(r=r, r1=r+1, r2=r+2, r3=r+3))
    red8([8, 12])
    a("""v_mul_f32 v9, v8, v8
    v_sub_f32 v12, v12, v9
    v_mul_f32 v10, 0x41800000, v12
    v_sub_f32 v8, 0, v8
    v_cmp_nle_f32 vcc, v9, v10
    s_cbranch_vccz Laux_var
    v_mov_b32 v9, v8""")
    for n in range(10):
        t = TM + 8*(n % 2)
        for k in range(4):
            a(f"v_lshlrev_b32 v{t+2*k}, 16, v{X+4*n+k}\nv_and_b32 v{t+2*k+1}, 0xffff0000, v{X+4*n+k}")
        for k in range(4): a(f"v_pk_add_f32 {v(t+2*k,2)}, {v(t+2*k,2)}, v[8:9]")
        for k in range(4):
            if n == 0 and k < 2: a(f"v_pk_mul_f32 {v(12+2*k,2)}, {v(t+2*k,2)}, {v(t+2*k,2)}")
            else: a(f"v_pk_fma_f32 {v(12+2*(k%2),2)}, {v(t+2*k,2)}, {v(t+2*k,2)}, {v(12+2*(k%2),2)}")
    red8([12])
    a(f"""Laux_var:
    v_cvt_pk_bf16_f32 v9, v12, v12
    v_and_b32 v9, 0xffff0000, v9
    v_add_f32 v9, 0x3727C5AC, v9
    v_cvt_pk_bf16_f32 v9, v9, v9
    v_and_b32 v9, 0xffff0000, v9
    v_sqrt_f32 v9, v9
    v_cvt_pk_bf16_f32 v9, v8, v9
    v_lshlrev_b32 v12, 2, v4
    s_lshl_b32 s70, s68, 2
    s_add_u32 s70, s70, {STATS}
    s_mov_b32 exec_lo, 0x01010101
    s_mov_b32 exec_hi, 0x01010101
    buffer_store_dword v9, v12, {SWS}, s70 offen sc1
    s_mov_b64 exec, -1
    s_waitcnt vmcnt(1)
    s_cmp_eq_u32 s81, 0
    s_cbranch_scc1 Laux_w2
    s_waitcnt vmcnt(2)
    Laux_w2:""".replace("s_waitcnt vmcnt(1)\n    s_cmp_eq_u32 s81, 0\n    s_cbranch_scc1 Laux_w2\n    s_waitcnt vmcnt(2)\n    Laux_w2:", "s_waitcnt vmcnt(1)"))
    TQ = 116
    for c in range(8):
        for k in range(4):
            a(f"v_perm_b32 v{TQ+4*c+k}, v{TB+4*(2*k+1)+c//2}, v{TB+4*(2*k)+c//2}, {'s75' if c % 2 else 's74'}")
    a(f"""s_add_u32 s70, s76, {FL_S}
    s_waitcnt vmcnt(0)""")
    flag_store(a, "s70", 8, 9)
    if W2AUX:
        RP = 148
        srd(a, 48, 'w2', 1966080)
        a(f"""s_add_u32 s70, {sJ}, -12
    s_cmp_ge_u32 s70, 16
    s_cbranch_scc1 Laux_now1
    s_lshl_b32 s71, {sX8}, 4
    s_add_u32 s70, s70, s71
    s_mul_i32 s71, s70, {12*1280}
    s_mul_i32 s77, s70, {12*160}
    s_add_u32 s77, s77, {W2P}
    s_lshl_b32 s78, s70, 7
    s_add_u32 s78, s78, {FL_AUX}
    v_mul_u32_u24 v10, 6554, v0
    v_lshrrev_b32 v10, 16, v10
    v_mul_u32_u24 v11, 10, v10
    v_sub_u32 v11, v0, v11
    v_mul_u32_u24 v10, 0x500, v10
    v_lshl_add_u32 v10, v11, 4, v10
    v_add_u32 v12, 64, v0
    v_mul_u32_u24 v13, 6554, v12
    v_lshrrev_b32 v13, 16, v13
    v_mul_u32_u24 v11, 10, v13
    v_sub_u32 v11, v12, v11
    v_mul_u32_u24 v13, 0x500, v13
    v_lshl_add_u32 v11, v11, 4, v13
""")
        for c in range(8):
            a(f"buffer_load_dwordx4 {v(RP+8*c,4)}, v10, {S4}, s71 offen offset:{160*c}")
        a("s_mov_b32 exec_hi, 0x00ffffff")
        for c in range(8):
            a(f"buffer_load_dwordx4 {v(RP+8*c+4,4)}, v11, {S4}, s71 offen offset:{160*c}")
        a("s_mov_b64 exec, -1\nLaux_now1:")
    for c in range(8):
        a(f"buffer_store_dwordx4 {v(TQ+4*c,4)}, v7, {SWS}, s79 offen sc1")
        if c < 7: a(f"s_add_u32 s79, s79, 4096")
    a(f"""s_cmp_lt_u32 {sJ}, 24
    s_cbranch_scc1 Laux_b2""")
    blk_store(TB2, "s80")
    a(f"""Laux_b2:
    s_add_u32 s70, s76, {FL_C}
    s_waitcnt vmcnt(0)""")
    flag_store(a, "s70", 8, 9)
    stamp(a, 'stats flag')
    if W2AUX:
        a(f"""s_add_u32 s70, {sJ}, -12
    s_cmp_ge_u32 s70, 16
    s_cbranch_scc1 Laux_now2
    v_lshlrev_b32 v8, 4, v0""")
        for c in range(8):
            a(f"buffer_store_dwordx4 {v(RP+8*c,4)}, v8, {SWS}, s77 offen sc1")
            a("s_mov_b32 exec_hi, 0x00ffffff")
            a(f"buffer_store_dwordx4 {v(RP+8*c+4,4)}, v8, {SWS}, s77 offen offset:1024 sc1")
            a("s_mov_b32 exec_hi, -1")
            if c < 7: a("s_add_u32 s77, s77, 245760")
        a("s_waitcnt vmcnt(0)")
        flag_store(a, "s78", 8, 9)
        a("Laux_now2:")
    a(f"""s_cmp_lg_u32 {sJ}, 31
    s_cbranch_scc1 Laux_go""")
    poll256(a, FL_C, 128, r=20, slp=1)
    a(f"""s_lshl_b32 s70, {sX8}, 7
    s_add_u32 s70, s70, {GO}""")
    flag_store(a, "s70", 8, 9)
    a(f"Laux_go:\ns_setprio {os.environ.get('PS','1')}")
    go_wait(a, 20)
    u_issue(a)

def conv(a):
    sI = "s54"
    a("Lconv:")
    if os.environ.get('PSC'): a(f"s_setprio {os.environ.get('PSC')}")
    stamp_reset(4); stamp(a, 'Lconv', True)
    a(f"""v_and_b32 v10, 15, v0
    v_lshrrev_b32 v11, 4, v0
    v_and_b32 v12, 1, v0
    v_lshrrev_b32 v13, 1, v10
    v_mul_u32_u24 v14, {K1OFF}, v12
    v_sub_u32 v15, v13, v11
    v_lshl_add_u32 v14, v15, 4, v14
    v_add_u32 v14, {KB0+64}, v14
    v_and_b32 v12, 3, v0
    v_mul_u32_u24 v15, {UCS}, v12
    v_lshrrev_b32 v13, 2, v10
    v_lshl_add_u32 v15, v13, 7, v15
    v_lshl_add_u32 v15, v11, 4, v15
    v_add_u32 v15, {UPAD+48}, v15
    v_lshlrev_b32 v19, 7, v13
    v_lshl_add_u32 v19, v11, 5, v19
    v_lshl_add_u32 v19, v12, 2, v19
    v_mov_b32 v4, 0
    v_mov_b32 v5, 0
    v_lshlrev_b32 v6, 3, v0
    s_mul_i32 s70, {sW}, {UCS}
    v_add_u32 v6, s70, v6
    s_waitcnt lgkmcnt(0)
    s_barrier""")
    a("s_mov_b32 exec_hi, 0x00ffffff")
    for c in range(3): a(f"ds_write_b64 v6, v[4:5] offset:{c*USTR}")
    a("s_mov_b32 exec_hi, -1")
    NM, RS, UD = 44, 52, 226
    def unp(d, s): return f"v_lshlrev_b32 v{d}, 16, v{s}\nv_and_b32 v{d+1}, 0xffff0000, v{s}"
    a("s_waitcnt vmcnt(0)")
    for k in range(8): a(f"v_and_b32 v{RS+k}, 0xffff0000, v{UIN+k}")
    for k in range(8): a(f"v_rcp_f32 v{RS+k}, v{RS+k}\nv_lshlrev_b32 v{NM+k}, 16, v{UIN+k}")
    a("s_waitcnt lgkmcnt(0)\ns_barrier")
    for c in range(3):
        x = UIN + 8 + 4*c; t = 60; ud = UD + 8*c; o = c*USTR + UPAD
        for k in range(4): a(unp(t+2*k, x+k))
        for k in range(4): a(f"v_pk_add_f32 {v(t+2*k,2)}, {v(t+2*k,2)}, {v(NM+2*k,2)}")
        for k in range(4): a(f"v_cvt_pk_bf16_f32 v{x+k}, v{t+2*k}, v{t+2*k+1}")
        for k in range(4): a(unp(t+2*k, x+k))
        for k in range(4): a(f"v_pk_mul_f32 {v(t+2*k,2)}, {v(t+2*k,2)}, {v(RS+2*k,2)}")
        for k in range(4): a(f"v_cvt_pk_bf16_f32 v{x+k}, v{t+2*k}, v{t+2*k+1}")
        a(f"""v_cvt_pk_bf16_f32 v{68+2*c}, v{t+2}, v{t+3}
        v_cvt_pk_bf16_f32 v{69+2*c}, v{t+4}, v{t+5}
        ds_write_b128 v224, {v(x,4)} offset:{o+3*UCS-16}
        ds_write_b64 v224, {v(x,2)} offset:{o+UCS-8}
        ds_write_b64 v224, {v(x+2,2)} offset:{o+UCS}
        ds_write_b32 v224, v{x} offset:{o-4}
        ds_write_b64 v224, {v(68+2*c,2)} offset:{o}
        ds_write_b32 v224, v{x+3} offset:{o+8}
        ds_write_b32 v224, v{x} offset:{o+2*UCS-12}
        ds_write_b64 v224, {v(68+2*c,2)} offset:{o+2*UCS-8}
        ds_write_b32 v224, v{x+3} offset:{o+2*UCS}""")
    for c in range(3):
        x = UIN + 8 + 4*c; t = 60; ud = UD + 8*c
        for k in range(4): a(unp(t+2*k, x+k))
        sd = f"s{34+c+(c>1)*6}"
        a(f"s_bitcmp1_b32 {('s58','s59','s61')[c]}, 0\ns_cselect_b32 s70, 0, 16\ns_lshl_b32 {sd}, {sd}, s70\ns_and_b32 {sd}, {sd}, 0xffff0000")
        for k in range(8): a(f"v_mul_f32 v{t+k}, {sd}, v{t+k}")
        for k in range(4): a(f"v_cvt_pk_bf16_f32 v{76+k}, v{t+2*k}, v{t+2*k+1}")
        for k in range(4): a(unp(ud+2*k, 76+k))
    a("""s_waitcnt lgkmcnt(0)
    s_barrier""")
    stamp(a, 'u ready', True)
    YA = 20
    FS = [44, 132]
    def loop(name, parts):
        ad = [(16, 17), (8, 9)]
        tiles = [(pi, j) for pi, (c, J) in enumerate(parts) for j in J]
        acc = {t: YA + 4*k for k, t in enumerate(tiles)}
        base = []; n = 0
        for c, J in parts:
            base.append(n); n += 2*(max(J)+1)
        def reads(fs):
            out = []
            for pi, (c, J) in enumerate(parts):
                for k in range(max(J)+1):
                    out.append(f"ds_read_b128 {v(FS[fs]+4*(base[pi]+2*k),4)}, v{ad[pi][0]} offset:{512*k}")
                    out.append(f"ds_read_b128 {v(FS[fs]+4*(base[pi]+2*k+1),4)}, v{ad[pi][1]} offset:{512*k}")
                out.append(f"v_add_u32 v{ad[pi][0]}, 64, v{ad[pi][0]}")
                out.append(f"v_add_u32 v{ad[pi][1]}, -64, v{ad[pi][1]}")
            return out
        def mfmas(fs):
            rem = {t: list(range(t[1]+1)) for t in tiles}
            todo = []; last = []
            while any(rem.values()):
                cand = [t for t in tiles if rem[t] and t not in last[-GAP:]] or [t for t in tiles if rem[t] and t not in last[-1:]] or [t for t in tiles if rem[t]]
                t = max(cand, key=lambda t: len(rem[t]))
                todo.append((t, rem[t].pop(0))); last.append(t)
            return [f"v_mfma_f32_16x16x32_bf16 {v(acc[t],4)}, {v(FS[fs]+4*(base[t[0]]+2*p),4)}, {v(FS[fs]+4*(base[t[0]]+2*(t[1]-p)+1),4)}, {v(acc[t],4)}" for t, p in todo]
        for pi, (c, J) in enumerate(parts):
            if isinstance(c, str):
                a(f"s_mul_i32 s70, {c}, {KSTR}\ns_mul_i32 s71, {c}, {USTR}\nv_add_u32 v{ad[pi][0]}, s70, v14\nv_add_u32 v{ad[pi][1]}, s71, v15")
            else:
                a(f"v_add_u32 v{ad[pi][0]}, {c*KSTR}, v14\nv_add_u32 v{ad[pi][1]}, {c*USTR}, v15")
        for t in reads(0): a(t)
        for r in range(4*len(tiles)): a(f"v_mov_b32 v{YA+r}, 0")
        a(f"s_mov_b32 s64, 4\n{name}:")
        for fs in (0, 1):
            a("s_waitcnt lgkmcnt(0)")
            fill = reads(1-fs); ms = mfmas(fs)
            n = len(ms) - 4; done = 0
            for i, m in enumerate(ms):
                a(m)
                want = min(len(fill), -(-len(fill)*(i+1)//n))
                while done < want: a(fill[done]); done += 1
        a(f"""s_sub_u32 s64, s64, 1
        s_cmp_lg_u32 s64, 0
        s_cbranch_scc1 {name}
        s_waitcnt lgkmcnt(0)
        s_barrier""")
        for pi, (c, J) in enumerate(parts):
            if isinstance(c, str): a(f"s_lshl_b32 s70, {c}, 12\nv_add_u32 v{ad[pi][0]}, s70, v19")
            for j in J:
                r = acc[(pi, j)]
                off = 512*j + (0 if isinstance(c, str) else 4096*c)
                adr = ad[pi][0] if isinstance(c, str) else 19
                a(f"""v_cvt_pk_bf16_f32 v{r}, v{r}, v{r+1}
                v_cvt_pk_bf16_f32 v{r+2}, v{r+2}, v{r+3}
                ds_write_b32 v{adr}, v{r} offset:{off}
                ds_write_b32 v{adr}, v{r+2} offset:{off+16}""")
    a(f"""s_lshr_b32 s62, {sW}, 1
    s_cmp_eq_u32 {sW}, 1
    s_cbranch_scc1 Lcv_w1
    s_cmp_eq_u32 {sW}, 3
    s_cbranch_scc1 Lcv_w3""")
    loop("Lcv_l0", [("s62", [7, 6, 5, 1])])
    a("s_branch Lcv_bar2\nLcv_w1:")
    loop("Lcv_l1", [(0, [4, 3, 2, 0]), (1, [4, 3])])
    a("s_branch Lcv_bar2\nLcv_w3:\ns_cmp_eq_u32 s57, 1\ns_cbranch_scc1 Lcv_w3b")
    loop("Lcv_l3a", [(1, [2, 0]), (2, [7, 5, 2, 0])])
    a("s_branch Lcv_bar2\nLcv_w3b:")
    loop("Lcv_l3b", [(1, [2, 0]), (2, [6, 4, 3, 1])])
    a(f"""Lcv_bar2:
    s_waitcnt lgkmcnt(0)
    s_barrier""")
    stamp(a, 'conv done', True)
    for c in range(3): a.ds(f"ds_read_b128 {v(32+4*c,4)}, v224 offset:{c*4096}", ('y', c))
    a(f"""s_lshr_b32 s70, {sW}, 1
    s_xor_b32 s70, s70, s57
    s_cmp_eq_u32 s70, 0
    s_cselect_b32 s66, -1, 0
    s_cselect_b32 s67, 0, -1""")
    for c, sch in enumerate(("s58", "s59", "s61")):
        a.wait(lg=[('y', c)])
        y = 32 + 4*c; t = 48 + 8*c; ud = UD + 8*c
        for k in range(4): a(unp(t+2*k, y+k))
        for k in range(4): a(f"v_pk_add_f32 {v(t+2*k,2)}, {v(t+2*k,2)}, {v(ud+2*k,2)}")
        for k in range(4): a(f"v_cvt_pk_bf16_f32 v{y+k}, v{t+2*k}, v{t+2*k+1}")
        a(f"""s_lshl_b32 s70, {sch}, 12
        s_add_u32 s70, s70, {AT}""")
        if c == 2: a("s_mov_b64 exec, s[66:67]")
        a(f"buffer_store_dwordx4 {v(y,4)}, v224, {SWS}, s70 offen sc1")
        if c == 2: a("s_mov_b64 exec, -1")
    a("s_waitcnt vmcnt(0)")
    stamp(a, 'y stored'); stamp_flush(a, 50)
    a(f"""s_barrier
    s_cmp_eq_u32 {sW}, 1
    s_cbranch_scc1 Lcv_ep
    s_cmp_lg_u32 {sW}, 0
    s_cbranch_scc1 Lend
    s_lshl_b32 s70, {sI}, 7
    s_add_u32 s70, s70, {FL_Y}""")
    flag_store(a, "s70", 4, 5)
    a(f"""s_endpgm
    Lcv_ep:
    s_cmp_lg_u32 {sI}, 0
    s_cbranch_scc1 Lend""")
    if EXP != "nogemm": poll256(a, FL_ACT + 4096, 512, slp=8, grp=True)
    poll256(a, FL_Y, 128, slp=8)
    flag_store(a, "0", 4, 5)
    a("s_endpgm")

HEADER = open(os.path.join(os.path.dirname(os.path.abspath(__file__)), "..", "cdna_kernels",
              "parallel_sum__ssm_conv_s4__dense_activation_mish__prompt.s.ref")).read().split("; Override")[0]

def build():
    a = Asm()
    prologue(a)
    gemm(a)
    a.vm.clear(); a.lg.clear()
    ssm(a)
    a("Lend:\ns_endpgm")
    body = a.finalize()
    return f"""{HEADER}; @launch grid=(512,1,1) block=(256,1,1) lds=81920
.amdgcn_target "amdgcn-amd-amdhsa--gfx950"
.text
.globl {KN}
.p2align 8
.type {KN},@function
{KN}:
{body}.section .rodata,"a"
.p2align 6
.amdhsa_kernel {KN}
  .amdhsa_next_free_vgpr 256
  .amdhsa_next_free_sgpr 102
  .amdhsa_accum_offset 256
  .amdhsa_group_segment_fixed_size 0
  .amdhsa_kernarg_size 128
  .amdhsa_user_sgpr_count 2
  .amdhsa_user_sgpr_kernarg_segment_ptr 1
  .amdhsa_system_sgpr_workgroup_id_x 1
.end_amdhsa_kernel
"""

if __name__ == "__main__":
    out = sys.argv[1] if len(sys.argv) > 1 else "k.s"
    open(out, "w").write(build())
    print("wrote", out)
```

```python
import sys, os
sys.path.insert(0, os.path.dirname(os.path.abspath(__file__)))
from asmlib import Asm

KN = "parallel_sum__ssm_conv_s4__dense_activation_mish__prompt_kernel"

FL_S   = 0x0000 + 0x8000
FL_Y   = 0x10000
FL_ACT = 0x1000000
STATS  = 0x30000
CSUM   = 0x34000
FL_C   = 0x70000
FL_AUX = 0x48000 + 0x20000
GO     = 0x1000
XNT    = 0x100000
AT     = 0x400000
W2P    = 0x700000
ACT    = 0xA00000
WS_SIZE= 0x1080000
LOG2E = 0x3FB8AA3B
SPIN_MAX = int(os.environ.get('SPIN_MAX', '20000'))
ACT_DELAY = int(os.environ.get('ACT_DELAY', '3'))
DIAG = int(os.environ.get("DIAG", "0"))
EXP = os.environ.get("EXP", "")
STAMP = 0x40000
W2AUX = 1
W2LATE = 1
DIRW2 = int(os.environ.get('DIRW2', '0'))
ROT = int(os.environ.get('ROT', '0'))
TOUCHW1 = int(os.environ.get('TOUCHW1', '0'))
TOUCHW2 = int(os.environ.get('TOUCHW2', '0'))
TLB = int(os.environ.get('TLB', '0'))
S1 = int(os.environ.get('S1', '3'))
C0 = int(os.environ.get('C0', '10'))
C1 = int(os.environ.get('C1', '0'))
C2 = int(os.environ.get('C2', '5'))
TOUCH = int(os.environ.get('TOUCH', '1'))
GAP = int(os.environ.get('GAP', '2'))

P = dict(x=16, Are=18, Aim=20, Bre=22, Bim=24, Cre=26, Cim=28, ldt=30, D=32, w1=36, b1=38, w2=40, out=42, dbg=44, ws=46)
def sp(n): return f"s[{P[n]}:{P[n]+1}]"
SX, SW1, SWS, S4 = "s[4:7]", "s[8:11]", "s[12:15]", "s[48:51]"
sW, sTAG = "s3", "s52"

_st = {"n": 0}
def stamp(a, name=None, wait=False):
    if not DIAG: return
    k = _st["n"]; _st["n"] += 1
    assert k < 10, k
    a(f"{'s_memtime' if os.environ.get('CYC') else 's_memrealtime'} s[{82+2*k}:{83+2*k}]")
    if wait: a("s_waitcnt lgkmcnt(0)")
def stamp_reset(n=0): _st["n"] = n
def stamp_flush(a, tmp):
    if not DIAG: return
    a("s_waitcnt lgkmcnt(0)")
    a(f"s_lshl_b32 s80, s2, 2\ns_add_u32 s80, s80, {sW}\ns_lshl_b32 s80, s80, 6\ns_add_u32 s80, s80, {STAMP}\nv_mov_b32 v{tmp+1}, 0\ns_mov_b64 exec, 1")
    for k in range(10):
        a(f"v_mov_b32 v{tmp}, s{82+2*k}\nbuffer_store_dword v{tmp}, v{tmp+1}, {SWS}, s80 offen offset:{4*k}\ns_nop 1")
    a("s_mov_b64 exec, -1")

def v(i, n=1): return f"v{i}" if n == 1 else f"v[{i}:{i+n-1}]"

def srd(a, base, ptr, size):
    a(f"""s_mov_b32 s{base}, s{P[ptr]}
    s_mov_b32 s{base+1}, s{P[ptr]+1}
    s_mov_b32 s{base+2}, {size}
    s_mov_b32 s{base+3}, 0x20000""")

def spin(a, load, cmp, scnt="s60", slp=4):
    L = a.label("Lspin"); Lok = a.label("Lok")
    a(cmp)
    a(f"s_cbranch_scc1 {Lok}")
    a(f"s_mov_b32 {scnt}, {SPIN_MAX}")
    a(f"{L}:")
    a(f"s_sleep {slp}")
    a(load)
    a("s_waitcnt vmcnt(0)")
    a(cmp)
    a(f"s_cbranch_scc1 {Lok}")
    a(f"s_sub_u32 {scnt}, {scnt}, 1")
    a(f"s_cmp_lg_u32 {scnt}, 0")
    a(f"s_cbranch_scc1 {L}")
    a(f"{Lok}:")

def cmpn(regs):
    dst = ["vcc", "s[62:63]", "s[64:65]", "s[66:67]"][:len(regs)]
    t = "\n".join(f"v_cmp_ne_u32 {d}, {sTAG}, v{r}" for d, r in reversed(list(zip(dst, regs))))
    for d in dst[1:]: t += f"\ns_or_b64 vcc, vcc, {d}"
    return t + "\ns_cmp_eq_u64 vcc, 0"

def poll256_issue(a, base, stride, r=4, s0=72, grp=False):
    if grp:
        a(f"v_lshrrev_b32 v{r+4}, 3, v0\nv_mul_u32_u24 v{r+4}, 12288, v{r+4}\nv_and_b32 v{r}, 7, v0\nv_lshl_add_u32 v{r+4}, v{r}, 9, v{r+4}")
        for n in range(4): a(f"s_mov_b32 s{s0+n}, {base + 8*12288*n}")
    else:
        a(f"v_mul_u32_u24 v{r+4}, {stride}, v0")
        for n in range(4): a(f"s_mov_b32 s{s0+n}, {base + 64*stride*n}")
    ld = "\n".join(f"buffer_load_dword v{r+n}, v{r+4}, {SWS}, s{s0+n} offen sc1" for n in range(4))
    a(ld)
    return ld
def poll256(a, base, stride, slp=4, r=4, grp=False):
    ld = poll256_issue(a, base, stride, r, grp=grp)
    a("s_waitcnt vmcnt(0)")
    spin(a, ld, cmpn([r, r+1, r+2, r+3]), slp=slp)

def go_issue(a, r, s="s75"):
    a(f"""v_mov_b32 v{r+1}, 0
    s_and_b32 {s}, s2, 7
    s_lshl_b32 {s}, {s}, 7
    s_add_u32 {s}, {s}, {GO}""")
    return f"buffer_load_dword v{r}, v{r+1}, {SWS}, {s} offen sc1"
def go_wait(a, r):
    ld = go_issue(a, r)
    a(ld); a("s_waitcnt vmcnt(0)")
    spin(a, ld, cmpn([r]), slp=3)

def flag_store(a, soff, t0, t1, track=None):
    a(f"""v_mov_b32 v{t0}, {sTAG}
    v_mov_b32 v{t1}, 0
    s_mov_b64 exec, 1""")
    txt = f"buffer_store_dword v{t0}, v{t1}, {SWS}, {soff} offen sc1"
    if track is not None: a.vmem(txt, track)
    else: a(txt)
    a("s_mov_b64 exec, -1")

def prologue(a):
    a(f"""s_cmp_ge_u32 s2, 512
    s_cbranch_scc1 Lend
    s_load_dwordx16 s[16:31], s[0:1], 0
    s_load_dwordx16 s[32:47], s[0:1], 64""")
    if DIAG:
        for k in range(82, 102): a(f"s_mov_b32 s{k}, 0")
    stamp(a, "start")
    a(f"""v_lshrrev_b32 v1, 6, v0
    v_and_b32 v0, 63, v0
    v_readfirstlane_b32 {sW}, v1
    s_waitcnt lgkmcnt(0)
    s_load_dword s53, {sp('ws')}, 0""")
    srd(a, 4, 'x', 2621440)
    srd(a, 8, 'w1', 1966080)
    srd(a, 12, 'ws', WS_SIZE)
    a("""s_cmp_lt_u32 s2, 256
    s_cbranch_scc1 Lssm""")

def make_tag(a):
    a(f"""s_waitcnt lgkmcnt(0)
    s_mul_i32 {sTAG}, s53, 0x9E3779B1
    s_add_u32 {sTAG}, {sTAG}, 0x7F4A7C15""")

def gemm(a):
    vX0, vX1, vW0, vW1 = 1, 2, 3, 4
    xr = [5, 6, 7, 8]
    wrl, wrh = 9, 10
    vAS = 11
    c1, c2, c3 = 12, 13, 14
    vT = 15
    EXT = 16
    T = [22, 23, 24, 25]
    OUT = 26
    EQ = 34
    A0, A1 = 38, 39
    SUMA = 22
    def accof(s): return ACC + 16*((s+1) % 2)
    WF = 40
    ACC = 64
    XF = 96
    sRB, sFP, sTH, sFH = "s54", "s55", "s56", "s57"
    sM, sSO, sAS, sT0 = "s58", "s59", "s61", "s68"
    if EXP == "nogemm": a("s_endpgm")
    a(f"""s_setprio {os.environ.get('PG0','2')}
    s_and_b32 s68, s2, 7
    s_lshr_b32 s69, s2, 3
    s_and_b32 s69, s69, 31
    s_lshr_b32 {sRB}, s68, 1
    s_lshl_b32 {sRB}, {sRB}, 3
    s_and_b32 s70, s69, 7
    s_add_u32 {sRB}, {sRB}, s70
    s_and_b32 {sFP}, s68, 1
    s_lshl_b32 {sFP}, {sFP}, 2
    s_lshr_b32 s70, s69, 3
    s_add_u32 {sFP}, {sFP}, s70
    s_lshl_b32 {sM}, {sW}, 11
    v_lshrrev_b32 v22, 3, v0
    s_lshl_b32 s70, {sW}, 4
    v_add_u32 v22, s70, v22
    v_lshrrev_b32 v23, 4, v0
    v_and_b32 v24, 7, v0
    v_xor_b32 v25, v24, v23
    s_lshl_b32 s71, {sRB}, 6
    v_add_u32 v26, s71, v22
    v_mul_u32_u24 v26, 0x500, v26
    v_lshl_add_u32 v{vX0}, v25, 4, v26
    v_xor_b32 v25, 4, v25
    v_lshl_add_u32 v{vX1}, v25, 4, v26
    v_add_u32 v{vX1}, {8*1280-1024}, v{vX1}
    v_and_b32 v23, 1, v23
    v_lshlrev_b32 v23, 2, v23
    v_xor_b32 v25, v24, v23
    v_mul_u32_u24 v26, 0xc00, v22
    v_lshl_add_u32 v{vW0}, v25, 4, v26
    s_mul_i32 s70, {sFP}, 384
    v_add_u32 v{vW0}, s70, v{vW0}
    v_add_u32 v{vW1}, {8*3072-1024}, v{vW0}""")

    a(f"""s_and_b32 s70, {sRB}, 7
    s_and_b32 s71, {sFP}, 3
    s_mul_i32 s71, s71, {3*ROT}
    s_mul_i32 s70, s70, {ROT}
    s_add_u32 s70, s70, s71
    s_cmp_ge_u32 s70, 10
    s_cselect_b32 s71, 10, 0
    s_sub_u32 s70, s70, s71""")
    for kc in range(10):
        a(f"""s_lshl_b32 s{16+kc}, s70, 7
        s_mul_i32 s{26+kc}, s70, 196608""")
        if kc < 9: a("s_add_u32 s70, s70, 1\ns_cmp_eq_u32 s70, 10\ns_cselect_b32 s70, 0, s70")

    def chunk_info(c):
        if c < 20:
            return ('X', 0, c//2) if c % 2 == 0 else ('W', 0, c//2)
        return ('W', 1 + (c-20)//10, (c-20) % 10)
    def dma_half(c, h):
        kind, s, kc = chunk_info(c)
        slot = c % 10
        if h == 0:
            a(f"s_add_u32 m0, {sM}, {slot*8192}")
            if kind == 'W' and s > 0 and kc == 0: a(f"v_add_u32 v{vW0}, 128, v{vW0}\nv_add_u32 v{vW1}, 128, v{vW1}")
        r, sr, so = ((vX0, vX1)[h], SX, 16+kc) if kind == 'X' else ((vW0, vW1)[h], SW1, 26+kc)
        a.vmem(f"buffer_load_dwordx4 v{r}, {sr}, s{so} offen {'offset:1024 ' if h else ''}lds", ('c', c))
    for c in range(10): dma_half(c, 0); dma_half(c, 1)

    srd(a, 48, 'out', 2621440)
    a(f"""s_and_b32 {sTH}, {sW}, 1
    s_lshr_b32 {sFH}, {sW}, 1
    v_and_b32 v22, 31, v0
    v_lshrrev_b32 v23, 5, v0
    v_lshrrev_b32 v24, 1, v22
    v_and_b32 v24, 7, v24
    s_lshl_b32 s70, {sTH}, 12
    v_lshl_add_u32 v25, v22, 7, s70""")
    for j in range(4):
        a(f"""v_add_u32 v26, {2*j}, v23
        v_xor_b32 v26, v26, v24
        v_lshl_add_u32 v{xr[j]}, v26, 4, v25""")
    a(f"""v_lshrrev_b32 v26, 4, v22
    s_lshl_b32 s70, {sTH}, 1
    v_add_u32 v26, s70, v26
    v_mul_u32_u24 v26, 0xc000, v26
    v_lshl_add_u32 v26, v23, 8, v26
    v_and_b32 v27, 15, v0
    v_lshl_add_u32 v{vAS}, v27, 4, v26
    v_lshrrev_b32 v24, 2, v27
    v_and_b32 v25, 3, v0
    v_lshrrev_b32 v26, 4, v0
    v_and_b32 v26, 1, v26
    v_lshlrev_b32 v26, 1, v26
    v_lshrrev_b32 v28, 1, v25
    v_add_u32 v26, v26, v28
    s_lshl_b32 s70, {sFH}, 2
    v_add_u32 v26, s70, v26
    v_lshrrev_b32 v28, 1, v24
    v_lshlrev_b32 v28, 2, v28
    v_xor_b32 v26, v26, v28
    v_lshl_add_u32 v28, v23, 3, v24
    v_lshlrev_b32 v28, 7, v28
    v_lshl_add_u32 v28, v26, 4, v28
    v_and_b32 v25, 1, v25
    v_lshl_add_u32 v{wrl}, v25, 3, v28
    v_add_u32 v{wrh}, 0x10000, v{wrl}
    v_add_u32 v{vT}, -1, v23
    s_mul_i32 {sAS}, {sRB}, 192
    s_mul_i32 s70, {sFP}, 6
    s_add_u32 {sAS}, {sAS}, s70
    s_add_u32 {sAS}, {sAS}, {sFH}
    s_lshl_b32 {sAS}, {sAS}, 10
    s_add_u32 {sAS}, {sAS}, {ACT}
    s_mul_i32 s81, {sRB}, 12288
    s_lshl_b32 s71, {sFP}, 9
    s_add_u32 s81, s81, s71
    s_lshl_b32 s71, {sW}, 7
    s_add_u32 s81, s81, s71
    s_add_u32 s81, s81, {FL_ACT}""")
    a(f"""v_mov_b32 v{EXT}, 0
    v_mov_b32 v{EXT+1}, 0
    v_add_u32 v24, -8, v0
    v_lshrrev_b32 v25, 2, v24
    v_and_b32 v24, 3, v24
    s_and_b32 s70, {sFP}, 3
    s_mul_i32 s70, s70, 3
    v_add_u32 v25, s70, v25
    v_lshlrev_b32 v25, 3, v25
    v_lshl_add_u32 v25, v24, 1, v25
    s_lshr_b32 s70, {sFP}, 2
    v_add_u32 v25, s70, v25
    v_and_b32 v24, 7, v0
    s_and_b32 s70, {sRB}, 3
    s_lshl_b32 s70, s70, 6
    s_lshr_b32 s71, {sRB}, 2
    s_add_u32 s70, s70, s71
    v_lshl_add_u32 v24, v24, 3, s70
    v_add_u32 v26, -8, v0
    v_cmp_gt_u32 vcc, 12, v26
    v_cndmask_b32 v24, v24, v25, vcc
    v_lshlrev_b32 v{EQ}, 7, v24
    s_mul_i32 s70, {sFP}, 192
    s_lshl_b32 s71, {sFH}, 5
    s_add_u32 s70, s70, s71
    v_add_u32 v24, s70, v22
    v_lshlrev_b32 v{EQ+1}, 2, v24
    v_lshlrev_b32 v{A1}, 1, v24
    v_mul_u32_u24 v25, 6144, v23
    v_add_u32 v{EQ+1}, v{EQ+1}, v25
    v_lshl_add_u32 v{EQ+2}, v23, 7, v{A1}
    s_lshl_b32 s70, {sRB}, 6
    s_lshl_b32 s71, {sTH}, 5
    s_add_u32 s70, s70, s71
    v_add_u32 v24, s70, v22
    v_lshlrev_b32 v{EQ+3}, 2, v24""")
    make_tag(a)

    wf_next = [0]
    def wfrag_alloc():
        r = WF + 4*(wf_next[0] % 6); wf_next[0] += 1; return r
    def read_w(c, j):
        slot = c % 10
        r = wfrag_alloc()
        base, off = (wrl, slot*8192) if slot < 8 else (wrh, (slot-8)*8192)
        a.ds(f"ds_read_b64_tr_b16 {v(r,2)}, v{base} offset:{off + 128*16*j}", ('w', c, j))
        a.ds(f"ds_read_b64_tr_b16 {v(r+2,2)}, v{base} offset:{off + 128*(16*j+4)}", ('w', c, j))
        return r
    def mfma1(acc, wfr, xfr, first):
        a(f"v_mfma_f32_32x32x16_bf16 {v(acc,16)}, {v(wfr,4)}, {v(xfr,4)}, {'0' if first else v(acc,16)}")

    side = []
    def run_side(n):
        for _ in range(n):
            if side: side.pop(0)()

    def mish_items(s):
        acc = accof(s)
        items = []
        for qd in range(4):
            R = [acc + 4*qd + k for k in range(4)]
            def f1(R=R):
                for k in range(4): a(f"v_mul_f32 v{T[k]}, v{c1}, v{R[k]}")
                for k in range(4): a(f"v_exp_f32 v{T[k]}, v{T[k]}")
                for k in range(4): a(f"v_add_f32 v{T[k]}, 1.0, v{T[k]}")
                for k in range(4): a(f"v_fma_f32 v{T[k]}, v{T[k]}, v{T[k]}, 1.0")
            def f2(R=R, qd=qd):
                for k in range(4): a(f"v_rcp_f32 v{T[k]}, v{T[k]}")
                for k in range(4): a(f"v_fma_f32 v{T[k]}, v{T[k]}, v{c2}, v{c3}")
                for k in range(4): a(f"v_mul_f32 v{T[k]}, v{T[k]}, v{R[k]}")
                a(f"v_cvt_pk_bf16_f32 v{OUT+2*qd}, v{T[0]}, v{T[1]}\nv_cvt_pk_bf16_f32 v{OUT+2*qd+1}, v{T[2]}, v{T[3]}")
                if qd % 2 == 1:
                    gp = qd // 2
                    a(f"s_add_u32 {sT0}, {sAS}, {2048*s}")
                    a.vmem(f"buffer_store_dwordx4 {v(OUT+4*gp,4)}, v{vAS}, {SWS}, {sT0} offen offset:{512*gp} sc1", ('act', s))
            items += [f1, f2]
        return items

    SPLIT = ("v_and_b32 v{q1}, 0xffff0000, v{q}", "v_sub_f32 v{q}, v{q}, v{q1}", "v_and_b32 v{q2}, 0xffff0000, v{q}",
             "v_sub_f32 v{q}, v{q}, v{q2}", "v_lshrrev_b32 v{q1}, 16, v{q1}", "v_lshrrev_b32 v{q}, 16, v{q}",
             "v_or_b32 v{q1}, v{q1}, v{q2}", "v_or_b32 v{q}, v{q}, v{b}", "v_and_b32 v{d0}, v{m}, v{q1}", "v_and_b32 v{d1}, v{m}, v{q}")
    SUM4 = ("v_add_f32 v{q}, v{q}, v{q1}", "v_add_f32 v{q2}, v{q2}, v{q3}", "v_add_f32 v{q}, v{q}, v{q2}")
    def ext_items():
        def l0():
            a(f"v_mov_b32 v28, 0\nv_mov_b32 v29, 0\ns_mov_b32 s70, {STATS}\ns_mov_b32 s71, {CSUM}")
            a.vmem(f"buffer_load_dword v{EXT+5}, v{EQ+3}, {SWS}, s70 offen sc1", 'ext')
            for s in range(3): a.vmem(f"buffer_load_dword v{22+2*s}, v{EQ+1}, {SWS}, s71 offen offset:{256*s} sc1", 'ext')
        def l1():
            a(f"s_mov_b32 s71, {CSUM+12288}")
            for s in range(3): a.vmem(f"buffer_load_dword v{23+2*s}, v{EQ+1}, {SWS}, s71 offen offset:{256*s} sc1", 'ext')
            a.vmem(f"global_load_short_d16_hi v28, v{EQ+2}, {sp('b1')}", 'ext')
            a.vmem(f"global_load_short_d16_hi v29, v{A1}, {sp('b1')} offset:256", 'ext')
        return [l0, l1]
    def ext_build():
        a.wait(vm=['ext'])
        D = [(EXT+2, EXT+3), (EQ, EQ+1), (EQ+2, EQ+3)]
        a(f"""v_and_b32 v30, v{vT}, v28
        v_xor_b32 v31, v30, v28
        v_and_b32 v29, v{vT}, v29""")
        B = [30, 31, 29]
        for tmpl in ("v_add_f32 v{q}, v{q}, v{q1}", "v_and_b32 v{q1}, 0xffff0000, v{q}", "v_sub_f32 v{q}, v{q}, v{q1}", "v_and_b32 v{d0}, 0xffff0000, v{q}",
                     "v_sub_f32 v{q}, v{q}, v{d0}", "v_lshrrev_b32 v{q1}, 16, v{q1}", "v_lshrrev_b32 v{q}, 16, v{q}",
                     "v_or_b32 v{d0}, v{q1}, v{d0}", "v_or_b32 v{d1}, v{q}, v{b}"):
            for s in range(3):
                q = 22 + 2*s
                a(tmpl.format(q=q, q1=q+1, b=B[s], d0=D[s][0], d1=D[s][1]))
        a(f"""v_and_b32 v{c3}, 0xffff0000, v{EXT+5}
        s_mov_b32 s70, 0x01000100
        v_perm_b32 v{EXT+4}, v{EXT+5}, v{EXT+5}, s70
        v_rcp_f32 v{c3}, v{c3}
        v_mul_f32 v{c1}, {LOG2E}, v{c3}
        v_mul_f32 v{c2}, -2.0, v{c3}""")
    def ext_mfma(s):
        acc = accof(s)
        if s: a(f"v_mov_b32 v{EXT+2}, v{EQ+2*s-2}\nv_mov_b32 v{EXT+3}, v{EQ+2*s-1}")
        a(f"v_mfma_f32_32x32x16_bf16 {v(acc,16)}, {v(EXT,4)}, {v(EXT+2,4)}, {v(acc,16)}")

    G2A = XF; NA = 5
    def acc2(lam, dt): return (WF + 20*lam if lam < 2 else XF + 80 + 20*(lam-2)) + 4*dt
    G2W = XF + 120
    vA = [vX0, vX1, xr[0], xr[1]]
    vD2, w2l, vO = xr[2], xr[3], vW0
    sM2 = "s74"
    def g2_setup_a():
        a(f"v_lshlrev_b32 v{vD2}, 4, v0")
        for lam in range(4):
            a(f"""s_add_u32 s70, {sW}, {lam}
            s_and_b32 s70, s70, 3
            s_mul_i32 s70, s70, 49152
            v_add_u32 v{vA[lam]}, s70, v{vD2}""")
        a(f"""s_mul_i32 {sM2}, {sW}, 5120
        v_lshrrev_b32 v{A0}, 5, v0
        v_lshlrev_b32 v{A0}, 4, v{A0}
        v_lshrrev_b32 v{A1}, 2, v0
        v_and_b32 v{A1}, 7, v{A1}
        v_add_u32 v{A0}, v{A0}, v{A1}
        v_mul_u32_u24 v{A0}, 160, v{A0}
        v_and_b32 v{A1}, 3, v0
        v_lshl_add_u32 v{w2l}, v{A1}, 3, v{A0}
        v_add_u32 v{w2l}, {sM2}, v{w2l}""")
    def g2_setup_c():
        a(f"""s_and_b32 s70, {sFP}, 3
        s_lshl_b32 s70, s70, 1
        s_add_u32 s70, s70, {sRB}
        s_mul_i32 s70, s70, {ROT}
        s_add_u32 s70, s70, {sFH}
        s_mul_i32 s72, {sRB}, 192
        s_add_u32 s72, s72, {sTH}
        s_lshl_b32 s72, s72, 10
        s_add_u32 s72, s72, {ACT}
        s_mul_i32 s73, {sFP}, 245760
        s_mul_i32 s71, {sTH}, 5120
        s_add_u32 s73, s73, s71
        s_add_u32 s73, s73, {W2P}""")
        for q in range(4):
            a(f"""s_and_b32 s70, s70, 7
            s_mul_i32 s71, s70, 6144
            s_add_u32 s{16+q}, s71, s72
            s_mul_i32 s71, s70, 30720
            s_add_u32 s{26+q}, s71, s73
            s_add_u32 s70, s70, 2""")
        a(f"""s_lshl_b32 s70, {sW}, 4
        s_lshl_b32 s71, {sRB}, 6
        s_add_u32 s70, s70, s71
        v_and_b32 v{A0}, 15, v0
        v_add_u32 v{A0}, s70, v{A0}
        v_mul_u32_u24 v{A0}, 0x500, v{A0}
        v_lshrrev_b32 v{A1}, 4, v0
        v_lshl_add_u32 v{A0}, v{A1}, 3, v{A0}
        s_mul_i32 s70, {sFP}, 160
        v_add_u32 v{vO}, s70, v{A0}
        v_and_b32 v{vW1}, 31, v0
        v_lshlrev_b32 v{vW1}, 7, v{vW1}
        s_mul_i32 s78, {sRB}, 12288
        s_add_u32 s78, s78, {FL_ACT}
        s_add_u32 s79, s78, 4096
        s_add_u32 s80, s78, 8192""")
    def dma_w2_piece(n, h):
        s2, q = n // 4, n % 4
        if h == 0:
            a(f"s_add_u32 m0, {sM2}, {q*20480}")
            if s2 > 0 and q == 0: a(f"v_add_u32 v{vD2}, 10240, v{vD2}")
        if h == 4: a(f"s_add_u32 m0, {sM2}, {q*20480 + 4096}\ns_add_u32 s70, s{26+q}, 4096")
        a.vmem(f"buffer_load_dwordx4 v{vD2}, {SWS}, {'s70' if h == 4 else 's%d' % (26+q)} offen offset:{1024*(h%4)} sc1 lds", ('d2', n))
    def load_act(n, lams=range(4)):
        s2, q = n // 4, n % 4
        r = G2A + 16*(n % NA)
        for lam in lams:
            if s2 > 0 and q == 0: a(f"v_add_u32 v{vA[lam]}, 2048, v{vA[lam]}")
            a.vmem(f"buffer_load_dwordx4 {v(r+4*lam,4)}, v{vA[lam]}, {SWS}, s{16+q} offen sc1", ('a2', n))
    PVR = A0
    def pa_ld(s2): return f"buffer_load_dword v{EQ+s2}, v{vW1}, {SWS}, s{78+s2} offen sc1"
    def poll_act_issue(s2): a.vmem(pa_ld(s2).replace(f"v{EQ+s2},", f"v{pdst(s2)},"), ('pa', s2))
    def pdst(s2): return (XF+47, EXT, EXT+1)[s2] if s2 == 0 else (0, wrl, wrh)[s2]
    def poll_act_check(s2):
        a.wait(vm=[('pa', s2)])
        spin(a, pa_ld(s2).replace(f"v{EQ+s2},", f"v{pdst(s2)},"), cmpn([pdst(s2)]))
    def w0_issue(ld, tag):
        L = a.label("Lw0")
        a(f"s_cmp_lg_u32 {sW}, 0\ns_cbranch_scc1 {L}")
        a(ld)
        a(f"{L}:")
        a.vm.append(('VIRT', tag))
    def w0_check(ld, regs, tag):
        L = a.label("Lw0")
        a(f"s_cmp_lg_u32 {sW}, 0\ns_cbranch_scc1 {L}")
        q = list(a.vm); d = dict(a.done)
        a.wait(vm=[('VIRT', tag)])
        a.vm[:] = [t for t in q if t != ('VIRT', tag)]; a.done.clear(); a.done.update(d)
        spin(a, ld, cmpn(regs))
        a(f"{L}:")
    flagged = set(); act_age = {}
    def pre_barrier(tags, lg="all", bar=True):
        tags = list(tags)
        for ss in range(3):
            if ss in flagged: continue
            if a.vm.count(('act', ss)) + a.done.get(('act', ss), 0) == 2:
                act_age[ss] = act_age.get(ss, 0) + 1
                if act_age[ss] >= (ACT_DELAY if bar else 2): tags.append(('act', ss))
        a.wait(vm=tags, lg=lg)
        if bar: a("s_barrier")
        for ss in range(3):
            if ss not in flagged and a.done.get(('act', ss), 0) == 2:
                a(f"s_add_u32 s70, s81, {4096*ss}")
                flag_store(a, "s70", A0, A1, ('fl', ss)); flagged.add(ss)

    steps = [(s, kc) for s in range(3) for kc in range(10)]
    next_dma = 10; w2_issued = 0; act_issued = 0
    pend = []
    for si, (s, kc) in enumerate(steps):
        cw = 2*kc + 1 if s == 0 else 10 + 10*s + kc
        pre_barrier([('c', cw)], lg=())
        if (DIAG == 1 and (s, kc) in ((0, 0), (1, 0), (1, 4), (2, 0))) or (DIAG == 2 and s == 1 and kc < 9) or (DIAG == 3 and s == 2 and kc > 1) or (DIAG == 5 and s == 0 and kc < 9): stamp(a, f'g1 {s},{kc}', True)
        dq = []
        if si >= 2:
            nrel = 2 if (s == 0 or (s == 1 and kc <= 1)) else 1
            for _ in range(nrel):
                if next_dma < 40:
                    dq += [(dma_half, next_dma, 0), (dma_half, next_dma, 1)]; next_dma += 1
        if s == 2 and kc in (4, 6, 9):
            dq += [(dma_w2_piece, w2_issued, h) for h in range(5)]; w2_issued += 1
        def dma_some(n):
            for _ in range(n):
                if dq:
                    f, x1, x2 = dq.pop(0); f(x1, x2)
        prev = pend; pend = []
        acc = accof(s)
        xf = XF + 16*kc
        hi = (s == 0 and (2*kc) % 10 == 8)
        if hi:
            for j in range(4): a(f"v_add_u32 v{xr[j]}, 0x10000, v{xr[j]}")
        def rd(j):
            r = read_w(cw, j)
            if s == 0:
                slot = (2*kc) % 10
                off = slot*8192 if slot < 8 else (slot-8)*8192
                a.ds(f"ds_read_b128 {v(xf+4*j,4)}, v{xr[j]} offset:{off}", ('w', cw, j))
            pend.append((acc, r, xf + 4*j, kc == 0 and j == 0, ('w', cw, j)))
        def mf():
            if prev:
                m = prev.pop(0); a.wait(lg=[x[4] for x in prev] + [m[4]]); mfma1(*m[:4])
        per = -(-len(dq)//4)
        rd(0); rd(1)
        mf(); dma_some(per)
        mf(); rd(2); rd(3); dma_some(per)
        if hi:
            for j in range(4): a(f"v_add_u32 v{xr[j]}, 0xffff0000, v{xr[j]}")
        run_side(1)
        mf(); dma_some(per)
        run_side(2)
        mf(); dma_some(per)
        lds_ = f"buffer_load_dword v{A0}, v{EQ}, {SWS}, s75 offen sc1"
        ldw2 = "\n".join(f"s_mov_b32 s76, {FL_AUX + 8192*n}\nbuffer_load_dword v{XF+3+n}, v{XF+2}, {SWS}, s76 offen sc1" for n in range(2))
        if (s, kc) == (1, S1+2): g2_setup_a()
        if (s, kc) == (int(os.environ.get('PGS', '1')), 0): a(f"s_setprio {os.environ.get('PG','2')}")
        if (s, kc) == (1, S1-2):
            a(f"s_mov_b32 s75, {FL_S}")
            w0_issue(lds_, 'ps')
        if (s, kc) == (1, S1): w0_check(lds_, [A0], 'ps')
        if (s, kc) == (1, S1): side.extend(ext_items())
        if (s, kc) == (1, S1+3):
            ext_build(); ext_mfma(0); side.extend(mish_items(0))
        if (s, kc) == (2, 0):
            run_side(100); ext_mfma(1); side.extend(mish_items(1))
        if (s, kc) == (2, 1) and not DIRW2:
            a(f"v_lshlrev_b32 v{XF+2}, 7, v0")
            w0_issue(ldw2, 'pw')
        if (s, kc) == (2, 2):
            g2_setup_c()
            if DIRW2: g2_setup_d()
        if (s, kc) == (2, 3) and not DIRW2: w0_check(ldw2, [XF+3, XF+4], 'pw')
        if (s, kc) == (2, C0-2): poll_act_issue(0)
        if (s, kc) == (2, C0) and C0 < 10: poll_act_check(0)
        if s == 2 and kc > C0:
            for _ in range(2 if C0 >= 7 else 1):
                if act_issued < 4: load_act(act_issued); act_issued += 1

    pre_barrier([], lg="all")
    run_side(100)
    for m in pend: mfma1(*m[:4])
    for h in range(5): dma_w2_piece(3, h)
    w2_issued = 4
    ext_mfma(2)
    side.extend(mish_items(2))
    if C0 >= 10:
        run_side(2)
        poll_act_check(0)
        for k in range(4):
            load_act(k); run_side(1)
        act_issued = 4
        run_side(100)
    poll_act_issue(1)
    a2pend = []
    PG2 = os.environ.get('PG2', '0')
    G2X = 22
    for n in range(12):
        pre_barrier([('d2', n), ('a2', n)], bar=False)
        if (DIAG == 1 and n in (0, 4, 8, 11)) or (DIAG == 4 and n < 9) or (DIAG == 3 and n == 0): stamp(a, f'g2 {n}', True)
        if PG2 and n == 2: a(f's_setprio {PG2}')
        dq = []
        if n >= 1 and w2_issued < 12:
            dq += [lambda h=h, k=w2_issued: dma_w2_piece(k, h) for h in range(5)]; w2_issued += 1
        lim = min(n + NA - 1, 4 if n <= C1 else 8 if n <= C2 else 12)
        if act_issued < lim:
            k = act_issued; act_issued += 1
            dq += [lambda k=k: load_act(k, (0, 1)), lambda k=k: load_act(k, (2, 3))]
            if act_issued < lim:
                k = act_issued; act_issued += 1
                dq += [lambda k=k: load_act(k, (0, 1)), lambda k=k: load_act(k, (2, 3))]
        wb = G2W + 20*(n % 2)
        prev = a2pend; a2pend = []
        for dt in range(5):
            a.ds(f"ds_read_b64_tr_b16 {v(wb+4*dt,2)}, v{w2l} offset:{(n%4)*20480 + 32*dt}", ('w2', n))
            a.ds(f"ds_read_b64_tr_b16 {v(wb+4*dt+2,2)}, v{w2l} offset:{(n%4)*20480 + 32*dt + 1280}", ('w2', n))
            for _ in range(2):
                for _ in range(2):
                    if prev: a(prev.pop(0))
                if dq: dq.pop(0)()
            if dt < 4: run_side(1)
        while dq: dq.pop(0)()
        for dt in range(5):
            for lam in (1, 2, 3, 0):
                r = acc2(lam, dt)
                a2pend.append((lam, f"v_mfma_f32_16x16x32_bf16 {v(r,4)}, {v(wb+4*dt,4)}, {v(G2A+16*(n%NA)+4*lam,4)}, {'0' if n == 0 else v(r,4)}"))
        if n < 11: a2pend = [m for _, m in a2pend]
        if n == C1: poll_act_check(1)
        if n == C2 - 1: poll_act_issue(2)
        if n == C2: poll_act_check(2)
        ypoll = f"buffer_load_dword v32, v{vW1}, {SWS}, s75 offen sc1"
        if n == 3:
            for dt in range(5):
                a.vmem(f"buffer_load_dwordx2 {v(G2X+2*dt,2)}, v{vO}, {SX}, 0 offen offset:{32*dt}", 'xfin')
        if n == 7:
            a(f"""s_lshl_b32 s75, {sFP}, 12
            s_add_u32 s75, s75, {FL_Y}
            s_mul_i32 s70, {sFP}, 80
            v_lshrrev_b32 v33, 1, v0
            v_add_u32 v33, s70, v33
            v_lshlrev_b32 v33, 12, v33
            v_and_b32 v34, 1, v0
            v_lshl_add_u32 v33, v34, 4, v33
            v_add_u32 v34, {32*4096-1024}, v33
            v_add_u32 v35, {64*4096-2048}, v33
            s_lshl_b32 s76, {sRB}, 7
            s_lshl_b32 s70, {sW}, 5
            s_add_u32 s76, s76, s70
            s_add_u32 s76, s76, {AT}
            v_lshlrev_b32 v80, 3, v0
            v_add_u32 v80, {sM2}, v80""")
            a(f"v_lshlrev_b32 v36, 4, v0\nv_add_u32 v36, 4096, v36\nv_add_u32 v37, {sM2}, v36")
            for lam in (1, 2, 3):
                a(f"s_sub_u32 s70, {sW}, {lam}\ns_and_b32 s70, s70, 3\ns_mul_i32 s70, s70, 5120\nv_add_u32 v{84+lam}, s70, v36")
        if n == 8: a.vmem(ypoll, 'py')
        def dma_at(tagit=True):
            f = a.vmem if tagit else (lambda t, g: a(t))
            a(f"s_mov_b32 m0, {sM2}")
            f(f"buffer_load_dwordx4 v33, {SWS}, s76 offen sc1 lds", 'at')
            f(f"buffer_load_dwordx4 v34, {SWS}, s76 offen offset:1024 sc1 lds", 'at')
            a("s_mov_b64 exec, 0xffffffff")
            f(f"buffer_load_dwordx4 v35, {SWS}, s76 offen offset:2048 sc1 lds", 'at')
            a("s_mov_b64 exec, -1")
        if n == 10:
            a.wait(vm=['py'])
            a(cmpn([32]))
            a("s_cselect_b32 s77, 1, 0")
            dma_at()
    a.wait(lg="all")
    for lam in (1, 2, 3, 0):
        for l2, m in a2pend:
            if l2 == lam: a(m)
        if lam in (2, 3, 0):
            lp = {2: 1, 3: 2, 0: 3}[lam]
            for dt in range(5): a(f"ds_write_b128 v37, {v(acc2(lp, dt),4)} offset:{20480*lp + 1024*dt - 4096}")
    L = a.label("Lyok")
    a(f"""s_cmp_eq_u32 s77, 1
    s_cbranch_scc1 {L}
    s_waitcnt vmcnt(0)
    v_not_b32 v32, {sTAG}""")
    spin(a, ypoll, cmpn([32]))
    dma_at(False)
    a(f"{L}:")
    RX = G2A; AV = XF + 60; TT = G2W
    def unp(d, s): return f"v_lshlrev_b32 v{d}, 16, v{s}\nv_and_b32 v{d+1}, 0xffff0000, v{s}"
    a("s_waitcnt vmcnt(0)")
    a.vm.clear(); a.lg.clear()
    for dt in range(5): a.ds(f"ds_read_b64_tr_b16 {v(AV+2*dt,2)}, v80 offset:{512*dt}", ('av', dt))
    for dt in range(5):
        t = TT + 8*dt
        a(unp(t, G2X+2*dt)); a(unp(t+2, G2X+2*dt+1))
    a.wait(lg="all")
    a("s_barrier")
    for dt in range(5):
        for lam in (1, 2, 3): a.ds(f"ds_read_b128 {v(RX+12*dt+4*(lam-1),4)}, v{84+lam} offset:{20480*lam+1024*dt-4096}", ('rx', dt))
    for dt in range(5):
        t = TT + 8*dt; av = AV + 2*dt
        a(unp(t+4, av)); a(unp(t+6, av+1))
        a(f"""v_pk_add_f32 {v(t,2)}, {v(t,2)}, {v(t+4,2)}
        v_pk_add_f32 {v(t+2,2)}, {v(t+2,2)}, {v(t+6,2)}
        v_cvt_pk_bf16_f32 v{t+4}, v{t}, v{t+1}
        v_cvt_pk_bf16_f32 v{t+5}, v{t+2}, v{t+3}""")
        a(unp(t, t+4)); a(unp(t+2, t+5))
    for dt in range(5):
        t = TT + 8*dt; k = acc2(0, dt); r = RX + 12*dt
        a.wait(lg=[('rx', dt)])
        a(f"""v_pk_add_f32 {v(k,2)}, {v(k,2)}, {v(r,2)}
        v_pk_add_f32 {v(k+2,2)}, {v(k+2,2)}, {v(r+2,2)}
        v_pk_add_f32 {v(r+4,2)}, {v(r+4,2)}, {v(r+8,2)}
        v_pk_add_f32 {v(r+6,2)}, {v(r+6,2)}, {v(r+10,2)}
        v_pk_add_f32 {v(k,2)}, {v(k,2)}, {v(r+4,2)}
        v_pk_add_f32 {v(k+2,2)}, {v(k+2,2)}, {v(r+6,2)}
        v_cvt_pk_bf16_f32 v{r}, v{k}, v{k+1}
        v_cvt_pk_bf16_f32 v{r+1}, v{k+2}, v{k+3}""")
        a(unp(k, r)); a(unp(k+2, r+1))
        a(f"""v_pk_add_f32 {v(t,2)}, {v(t,2)}, {v(k,2)}
        v_pk_add_f32 {v(t+2,2)}, {v(t+2,2)}, {v(k+2,2)}
        v_cvt_pk_bf16_f32 v{t+4}, v{t}, v{t+1}
        v_cvt_pk_bf16_f32 v{t+5}, v{t+2}, v{t+3}
        buffer_store_dwordx2 {v(t+4,2)}, v{vO}, {S4}, 0 offen offset:{32*dt}""")
    if DIAG: a("s_waitcnt vmcnt(0)")
    if DIAG == 1: stamp(a, 'end')
    stamp_flush(a, 22)
    a("s_endpgm")

UPAD = 448
UCS  = 4640
USTR = 4*UCS
KB0  = 3*USTR
K1OFF = 4224
KSTR = 2*K1OFF
CVOFF = 16
UIN = 200
def u_issue(a):
    a(f"""v_lshlrev_b32 v224, 4, v0
    s_lshl_b32 s70, {sW}, 10
    v_add_u32 v224, s70, v224
    v_lshlrev_b32 v225, 1, v224
    s_mov_b32 s70, {STATS}
    buffer_load_dwordx4 {v(UIN,4)}, v225, {SWS}, s70 offen sc1
    buffer_load_dwordx4 {v(UIN+4,4)}, v225, {SWS}, s70 offen offset:16 sc1""")
    for c, sch in enumerate(("s58", "s59", "s61")):
        a(f"""s_lshl_b32 s70, {sch}, 12
        s_add_u32 s70, s70, {XNT}
        buffer_load_dwordx4 {v(UIN+8+4*c,4)}, v224, {SWS}, s70 offen sc1""")

def ssm(a):
    sI = "s54"
    a(f"""Lssm:
    s_setprio 3
    s_mov_b32 {sI}, s2
    s_lshr_b32 s56, {sI}, 1
    s_mul_i32 s56, s56, 5
    s_and_b32 s57, {sI}, 1
    s_mul_i32 s58, s57, 3
    s_add_u32 s58, s58, s56
    s_add_u32 s59, s58, 1
    s_add_u32 s61, s56, 2""")
    for c, sch in enumerate(("s58", "s59", "s61")):
        a(f"s_lshl_b32 s70, {sch}, 1\ns_and_b32 s70, s70, -4\ns_load_dword s{34+c+(c>1)*6}, {sp('D')}, s70")
    a(f"""s_cmp_eq_u32 {sW}, 3
    s_cbranch_scc1 Laux""")
    kgen(a)
    a("s_branch Lconv")
    aux(a)
    conv(a)

def kgen(a):
    sCH, sKB = "s55", "s68"
    a(f"""s_cmp_eq_u32 {sW}, 0
    s_cselect_b32 {sCH}, s58, s59
    s_cmp_eq_u32 {sW}, 2
    s_cselect_b32 {sCH}, s61, {sCH}
    s_mul_i32 {sKB}, {sW}, {USTR}
    s_mul_i32 s70, {sCH}, 384
    v_mul_u32_u24 v1, 6, v0
    v_and_b32 v1, -4, v1
    v_add_u32 v1, s70, v1""")
    PR = 8
    names = ['Are', 'Aim', 'Bre', 'Bim', 'Cre', 'Cim']
    for k, n in enumerate(names):
        a.vmem(f"global_load_dwordx2 {v(30+2*k,2)}, v1, {sp(n)}", 'par')
    a(f"""s_lshl_b32 s70, {sCH}, 1
    s_and_b32 s70, s70, -4
    s_load_dword s69, {sp('ldt')}, s70
    v_and_b32 v2, 1, v0
    v_lshlrev_b32 v2, 4, v2""")
    a(f"""    s_mov_b32 m0, {sKB}
    v_and_b32 v6, 15, v0
    v_mul_u32_u24 v7, 288, v6
    v_lshrrev_b32 v4, 4, v0
    v_lshl_add_u32 v7, v4, 4, v7
    v_add_u32 v7, {sKB}, v7""")
    if TLB:
        a(f"""v_and_b32 v26, 7, v0
        v_lshlrev_b32 v26, 21, v26
        v_mov_b32 v27, 0
        s_mov_b64 exec, 0xff""")
        a.vmem(f"buffer_load_dword v106, v26, {SWS}, 0 offen offset:512", 'touch')
        a("s_mov_b64 exec, 1")
        for n in ('w2', 'out', 'b1'): a.vmem(f"global_load_dword v107, v27, {sp(n)}", 'touch')
        a("s_mov_b64 exec, -1")
    if TOUCHW1:
        a(f"""s_mul_i32 s70, {sW}, 80
        v_add_u32 v26, s70, v0
        v_add_u32 v27, 64, v26
        s_add_u32 s70, s70, 79
        v_min_u32 v27, s70, v27
        s_lshr_b32 s71, s2, 3
        s_mul_i32 s71, s71, {20*3072}
        s_and_b32 s70, s2, 1
        s_mul_i32 s70, s70, 1536
        s_add_u32 s71, s71, s70""")
        for r in (26, 27):
            a(f"""v_mul_u32_u24 v28, 5462, v{r}
            v_lshrrev_b32 v28, 16, v28
            v_mul_u32_u24 v29, 12, v28
            v_sub_u32 v29, v{r}, v29
            v_mul_u32_u24 v28, 0xc00, v28
            v_lshl_add_u32 v28, v29, 7, v28""")
            a.vmem(f"buffer_load_dword v{r}, v28, {SW1}, s71 offen", 'touch')
    RP = 192
    srd(a, 48, 'w2', 1966080)
    a(f"""s_mul_i32 s78, s2, {6*160}
    s_add_u32 s78, s78, {W2P}
    v_lshlrev_b32 v190, 4, v0
    v_mov_b32 v188, 0
    s_mov_b32 s79, 0
    s_cmp_lg_u32 {sW}, {7 if DIRW2 or W2AUX else 0}
    s_cbranch_scc1 Lkg_now2
    v_mul_u32_u24 v188, 6554, v0
    v_lshrrev_b32 v188, 16, v188
    v_mul_u32_u24 v189, 10, v188
    v_sub_u32 v189, v0, v189
    v_mul_u32_u24 v188, 0x500, v188
    v_lshl_add_u32 v188, v189, 4, v188
    s_mul_i32 s71, s2, {6*1280}
    s_mov_b32 exec_hi, 0x0fffffff""")
    a("s_mov_b32 s79, s71")
    def w2loads():
        for c in range(8):
            a(f"buffer_load_dwordx4 {v(RP+4*c,4)}, v188, {S4}, s79 offen offset:{160*c}")
    if not W2LATE: w2loads()
    a("s_mov_b32 exec_hi, -1\nLkg_now2:")
    W2X = 0 if DIRW2 or W2LATE or W2AUX else 8
    def kwait(tag):
        q = list(a.vm); idx = max(k for k, t in enumerate(q) if t == tag); n = len(q) - 1 - idx
        L = a.label("Lkw")
        a(f"s_waitcnt vmcnt({n+W2X})\ns_cmp_eq_u32 {sW}, 0\ns_cbranch_scc1 {L}\ns_waitcnt vmcnt({n})\n{L}:")
    a(f"s_setprio {os.environ.get('PS','1')}")
    def W2T():
        a(f"""s_mul_i32 s70, {sW}, 80
        v_add_u32 v250, s70, v0
        v_add_u32 v251, 64, v250
        s_add_u32 s70, s70, 79
        v_min_u32 v251, s70, v251
        s_lshr_b32 s71, s2, 3
        s_mul_i32 s71, s71, {48*1280}
        s_and_b32 s70, s2, 1
        s_mul_i32 s70, s70, 640
        s_add_u32 s71, s71, s70""")
        for r in (250, 251):
            a(f"""v_mul_u32_u24 v252, 13108, v{r}
            v_lshrrev_b32 v252, 16, v252
            v_mul_u32_u24 v253, 5, v252
            v_sub_u32 v253, v{r}, v253
            v_mul_u32_u24 v252, 0x500, v252
            v_lshl_add_u32 v252, v253, 7, v252
            buffer_load_dword v{r}, v252, {S4}, s71 offen""")
    make_tag(a)
    stamp_reset(1)
    a(f"""s_bitcmp1_b32 {sCH}, 0
    s_cselect_b32 s70, 0, 16
    s_lshl_b32 s69, s69, s70
    s_and_b32 s69, s69, 0xffff0000
    v_mov_b32 v3, s69
    v_mul_f32 v4, {LOG2E}, v3
    s_mov_b32 s70, {LOG2E}
    v_fma_f32 v5, v3, s70, -v4
    v_fmac_f32 v5, 0x32A57060, v3
    v_exp_f32 v4, v4
    v_mul_f32 v5, 0x3F317218, v5
    v_fmac_f32 v4, v4, v5
    v_cvt_pk_bf16_f32 v4, v4, v4
    v_and_b32 v3, 0xffff0000, v4""")
    R = {r: 30 + 2*(r-1) for r in range(1, 8)}
    V = {b: 44 + 2*(b-1) for b in range(1, 16)}
    Wr, Pa, Pb = 74, 76, 78
    U = [80 + 2*i for i in range(8)]
    CVT = [96 + i for i in range(8)]
    zr, th = 104, 105
    FR = 112
    KACC = 176
    cv = [0]
    def p2(r): return f"v[{r}:{r+1}]"
    def cmuls(lst):
        if os.environ.get('NOPK'):
            for D, X, Y in lst: a(f"v_mul_f32 v{D}, v{X}, v{Y}\nv_mul_f32 v{D+1}, v{X}, v{Y+1}")
            for D, X, Y in lst: a(f"v_fma_f32 v{D}, -v{X+1}, v{Y+1}, v{D}\nv_fmac_f32 v{D+1}, v{X+1}, v{Y}")
            return
        for D, X, Y in lst:
            a(f"v_pk_mul_f32 {p2(D)}, {p2(X)}, {p2(Y)} op_sel:[0,0] op_sel_hi:[0,1]")
        for D, X, Y in lst:
            a(f"v_pk_fma_f32 {p2(D)}, {p2(X)}, {p2(Y)}, {p2(D)} op_sel:[1,1,0] op_sel_hi:[1,0,1] neg_lo:[1,0,0]")
    def emit(rows_regs, neg=False):
        ts = []
        for row, r in rows_regs:
            t = CVT[cv[0] % 8]; cv[0] += 1; ts.append((row, t))
            a(f"v_cvt_pk_bf16_f32 v{t}, v{r}, {'-' if neg else ''}v{r+1}")
        for row, t in ts:
            a(f"ds_write_addtid_b32 v{t} offset:{288*row}")
    for r in range(12): a(f"v_mov_b32 v{KACC+r}, 0")
    kwait('par')
    stamp(a, 'par', True)
    for k in range(6):
        lo, hi = 30+2*k, 31+2*k
        a(f"""v_alignbit_b32 v{lo}, v{hi}, v{lo}, v2
        v_lshrrev_b32 v{hi}, v2, v{hi}
        v_lshlrev_b32 v{PR+k}, 16, v{lo}
        v_and_b32 v{PR+6+k}, 0xffff0000, v{lo}
        v_lshlrev_b32 v{PR+12+k}, 16, v{hi}""")
    if TOUCHW2 == 2: W2T()
    a("s_mov_b32 s69, 3\nLkg:")
    a.vm.clear()
    q = PR
    a(f"""v_mul_f32 v{zr}, v3, v{q}
    v_mul_f32 v{th}, v3, v{q+1}
    v_mul_f32 v{q+2}, v3, v{q+2}
    v_mul_f32 v{q+3}, v3, v{q+3}
    v_mul_f32 v{zr}, {LOG2E}, v{zr}
    v_mul_f32 v{th}, 0.15915494, v{th}""")
    dst = [(R[1], None), (V[1], 0x41000000), (Wr, 0x43000000)]
    for k, (d, mulc) in enumerate(dst):
        e, ph = U[k], U[k]+1
        if mulc is None:
            a(f"v_exp_f32 v{e}, v{zr}\nv_fract_f32 v{ph}, v{th}")
        else:
            a(f"v_mul_f32 v{e}, {mulc}, v{zr}\nv_mul_f32 v{ph}, {mulc}, v{th}\nv_exp_f32 v{e}, v{e}\nv_fract_f32 v{ph}, v{ph}")
    for k, (d, mulc) in enumerate(dst):
        a(f"v_cos_f32 v{d}, v{U[k]+1}\nv_sin_f32 v{d+1}, v{U[k]+1}")
    cmuls([(Pa, q+4, q+2)])
    for k, (d, mulc) in enumerate(dst):
        a(f"v_mul_f32 v{d}, v{d}, v{U[k]}\nv_mul_f32 v{d+1}, v{d+1}, v{U[k]}")
    for k in range(0, 12, 2): a(f"v_pk_mul_f32 {p2(q+k)}, {p2(q+6+k)}, 1.0 op_sel_hi:[1,0]")
    a(f"v_mov_b32 v{CVT[7]}, 0x3f80")
    a(f"ds_write_addtid_b32 v{CVT[7]} offset:{288*41}")
    cmuls([(R[2], R[1], R[1]), (V[2], V[1], V[1]), (Pb, Pa, Wr)])
    emit([(0, Pa), (8, Pb)]); emit([(42, V[1]), (43, V[2])], neg=True)
    cmuls([(R[3], R[2], R[1]), (R[4], R[2], R[2]), (V[3], V[2], V[1]), (V[4], V[2], V[2]),
           (U[0], Pa, R[1]), (U[1], Pa, R[2]), (U[2], Pb, R[1]), (U[3], Pb, R[2])])
    emit([(1, U[0]), (2, U[1]), (9, U[2]), (10, U[3])]); emit([(44, V[3]), (45, V[4])], neg=True)
    cmuls([(R[5], R[4], R[1]), (R[6], R[4], R[2]), (R[7], R[4], R[3]),
           (V[5], V[4], V[1]), (V[6], V[4], V[2]), (V[7], V[4], V[3]), (V[8], V[4], V[4]),
           (U[0], Pa, R[3]), (U[1], Pa, R[4]), (U[2], Pb, R[3]), (U[3], Pb, R[4])])
    emit([(3, U[0]), (4, U[1]), (11, U[2]), (12, U[3])]); emit([(41+b, V[b]) for b in (5, 6, 7, 8)], neg=True)
    cmuls([(U[0], Pa, R[5]), (U[1], Pa, R[6]), (U[2], Pa, R[7]), (U[3], Pb, R[5]), (U[4], Pb, R[6]), (U[5], Pb, R[7])]
          + [(V[8+b], V[8], V[b]) for b in range(1, 8)] + [(U[6], Wr, Wr), (U[7], Pb, Wr)])
    W2, P2 = U[6], U[7]
    emit([(5, U[0]), (6, U[1]), (7, U[2]), (13, U[3]), (14, U[4]), (15, U[5])])
    cmuls([(Pa, Pb, W2), (U[0], P2, R[2]), (U[1], P2, R[4]), (U[2], P2, R[6])])
    cmuls([(Pb, P2, W2)])
    emit([(41+8+b, V[8+b]) for b in range(1, 8)], neg=True)
    emit([(16, P2), (17, U[0]), (18, U[1]), (19, U[2])])
    Pc, Pd = V[9], V[10]
    cmuls([(Pc, Pa, W2), (Pd, Pb, W2), (U[0], Pa, R[2]), (U[1], Pa, R[4]), (U[2], Pa, R[6]), (U[3], Pb, R[4])])
    emit([(20, Pa), (21, U[0]), (22, U[1]), (23, U[2]), (24, Pb), (25, U[3])])
    cmuls([(Pa, Pc, W2), (Pb, Pd, W2), (U[0], Pc, R[4]), (U[1], Pd, R[4])])
    emit([(26, Pc), (27, U[0]), (28, Pd), (29, U[1])])
    cmuls([(Pc, Pa, W2), (Pd, Pb, W2), (U[0], Pa, R[4]), (V[11], W2, W2)])
    emit([(30, Pa), (31, U[0]), (32, Pb)])
    W4 = V[11]
    cmuls([(Pa, Pc, W2), (U[0], Pb, W4), (U[1], Pc, W4), (U[2], Pd, W4)])
    emit([(33, Pc), (34, Pd)])
    cmuls([(U[3], Pa, W4), (U[4], U[0], W4)])
    emit([(35, Pa), (36, U[0]), (37, U[1]), (38, U[2])])
    emit([(39, U[3]), (40, U[4])])
    a("s_waitcnt lgkmcnt(0)")
    for ks in range(4):
        a.ds(f"ds_read_b128 {v(FR+16*ks+12,4)}, v7 offset:{288*41 + 64*ks}", ('fr', ks))
        for m in range(3):
            a.ds(f"ds_read_b128 {v(FR+16*ks+4*m,4)}, v7 offset:{288*16*m + 64*ks}", ('fr', ks))
    for ks in range(4):
        a.wait(lg=[('fr', ks)])
        for m in range(3):
            a(f"v_mfma_f32_16x16x32_bf16 {v(KACC+4*m,4)}, {v(FR+16*ks+4*m,4)}, {v(FR+16*ks+12,4)}, {v(KACC+4*m,4)}")
    a(f"""s_sub_u32 s69, s69, 1
    s_cmp_lg_u32 {sW}, {7 if DIRW2 or W2AUX else 0}
    s_cbranch_scc1 Lkg_n
    s_cmp_eq_u32 s69, {2-W2LATE}
    s_cbranch_scc0 Lkg_f
    s_waitcnt vmcnt(0)
    s_mov_b32 exec_hi, 0x0fffffff""")
    for c in range(8):
        a(f"buffer_store_dwordx4 {v(RP+4*c,4)}, v190, {SWS}, s78 offen sc1")
        if c < 7: a("s_add_u32 s78, s78, 245760")
    a(f"""s_mov_b32 exec_hi, -1
    s_branch Lkg
    Lkg_f:""")
    if W2LATE:
        a("s_cmp_eq_u32 s69, 2\ns_cbranch_scc0 Lkg_g\ns_mov_b32 exec_hi, 0x0fffffff")
        w2loads()
        a("s_mov_b32 exec_hi, -1\ns_branch Lkg\nLkg_g:")
    a(f"""s_cmp_eq_u32 s69, {1-W2LATE}
    s_cbranch_scc0 Lkg_n
    s_lshl_b32 s70, s2, 7
    s_add_u32 s70, s70, {FL_AUX}
    s_waitcnt vmcnt(0)""")
    flag_store(a, "s70", 190, 191)
    a("""Lkg_n:
    s_cmp_lg_u32 s69, 0
    s_cbranch_scc1 Lkg""")
    stamp(a, 'tables', True)
    if TOUCHW2 == 1:
        W2T()
    go_wait(a, 20)
    u_issue(a)
    stamp(a, 'aux seen', True)
    a(f"""v_lshrrev_b32 v4, 4, v0
    v_lshrrev_b32 v8, 1, v4
    v_and_b32 v9, 1, v4
    v_lshlrev_b32 v10, 8, v8
    v_lshl_add_u32 v10, v6, 4, v10
    v_lshl_add_u32 v10, v9, 3, v10
    v_add_u32 v10, {sKB}, v10
    v_lshlrev_b32 v11, 7, v4
    v_add_u32 v11, 512, v11
    v_sub_u32 v12, 3, v8
    v_lshlrev_b32 v12, v12, v6
    v_add_u32 v11, v11, v12
    v_add_u32 v11, {sKB}, v11
    v_mul_u32_u24 v12, 60, v8
    v_add_u32 v12, 4, v12
    v_add_u32 v12, v11, v12
    v_lshlrev_b32 v13, 7, v4
    v_lshl_add_u32 v13, v6, 1, v13
    v_add_u32 v13, {sKB}, v13
    v_mov_b32 v14, 0
    v_mov_b32 v15, {sKB}""")
    for i in range(6): a(f"v_cvt_pk_bf16_f32 v{16+i}, v{KACC+2*i}, v{KACC+2*i+1}")
    a(f"""ds_write_b64 v10, v[16:17] offset:{CVOFF}
    ds_write_b32 v11, v18 offset:{CVOFF}
    ds_write_b32 v12, v19 offset:{CVOFF}
    ds_write_b16 v13, v20 offset:{CVOFF+1024}
    ds_write_b16_d16_hi v13, v20 offset:{CVOFF+1024+32}
    ds_write_b16 v13, v21 offset:{CVOFF+1024+64}
    ds_write_b16_d16_hi v13, v21 offset:{CVOFF+1024+96}
    ds_write_b32 v15, v14 offset:{CVOFF-4}
    v_and_b32 v8, 31, v0
    v_lshl_add_u32 v9, v8, 4, {sKB}
    v_lshl_add_u32 v10, v8, 3, {sKB}
    v_min_u32 v11, 1, v8
    v_lshl_add_u32 v11, v11, 1, v10
    v_lshl_add_u32 v12, v0, 2, {sKB}
    v_lshl_add_u32 v13, v0, 1, {sKB}
    s_mul_i32 s69, {sW}, {KSTR}
    s_add_u32 s69, s69, {KB0}
    v_lshl_add_u32 v14, v0, 4, s69
    v_mov_b32 v40, 0
    v_mov_b32 v41, 0
    v_mov_b32 v42, 0
    v_mov_b32 v43, 0
    s_waitcnt lgkmcnt(0)
    ds_read_b128 v[16:19], v9 offset:{CVOFF}
    ds_read_b32 v20, v9 offset:{CVOFF-4}
    ds_read_b64 v[22:23], v10 offset:{CVOFF+512}
    ds_read_b32 v24, v10 offset:{CVOFF+512+8}
    ds_read_u16 v25, v11 offset:{CVOFF+512-2}
    ds_read_b32 v26, v12 offset:{CVOFF+768}
    ds_read_b32 v27, v12 offset:{CVOFF+768+4}
    ds_read_u16 v28, v13 offset:{CVOFF+1024}
    ds_read_u16 v60, v13 offset:{CVOFF+1024+2}
    ds_read_u16 v29, v13 offset:{CVOFF+1024+128}
    ds_read_u16 v61, v13 offset:{CVOFF+1024+130}
    s_mov_b32 s70, 0xffff
    s_mov_b32 s71, 0x01000100
    s_mov_b32 s72, 0x03020302
    s_mov_b32 s75, 0x05040100
    v_and_b32 v30, 1, v0
    v_mul_u32_u24 v31, 0x0404, v30
    v_lshlrev_b32 v30, 16, v31
    v_add_u32 v30, 0x01000504, v30
    v_add_u32 v31, 0x01000100, v31
    s_mov_b64 exec, 0xff
    ds_write_b128 v14, v[40:43]
    ds_write_b128 v14, v[40:43] offset:{K1OFF}
    s_mov_b64 exec, 0xffffffff
    s_waitcnt lgkmcnt(2)
    v_alignbit_b32 v32, v19, v19, 16
    v_alignbit_b32 v33, v18, v18, 16
    v_alignbit_b32 v34, v17, v17, 16
    v_alignbit_b32 v35, v16, v16, 16
    v_bfi_b32 v36, s70, v19, v18
    v_bfi_b32 v37, s70, v18, v17
    v_bfi_b32 v38, s70, v17, v16
    v_bfi_b32 v39, s70, v16, v20
    ds_write_b128 v14, v[32:35] offset:{K1OFF+128}
    ds_write_b128 v14, v[36:39] offset:128
    v_bfi_b32 v44, s70, v24, v23
    v_perm_b32 v45, v23, v23, s71
    v_bfi_b32 v46, s70, v23, v22
    v_perm_b32 v47, v22, v22, s71
    v_alignbit_b32 v48, v23, v23, 16
    v_mov_b32 v49, v45
    v_alignbit_b32 v50, v22, v22, 16
    v_perm_b32 v51, v25, v22, s75
    ds_write_b128 v14, v[44:47] offset:{K1OFF+128+512}
    ds_write_b128 v14, v[48:51] offset:{128+512}
    s_mov_b64 exec, -1
    v_perm_b32 v64, v27, v27, s71
    v_perm_b32 v65, v26, v26, s72
    v_alignbit_b32 v66, v26, v26, 16
    v_perm_b32 v67, v26, v26, s71
    v_bfi_b32 v68, s70, v27, v26
    v_mov_b32 v69, v65
    v_mov_b32 v70, v67
    v_mov_b32 v71, v67
    ds_write_b128 v14, v[64:67] offset:{K1OFF+128+1024}
    ds_write_b128 v14, v[68:71] offset:{128+1024}""")
    for k, src in enumerate((28, 29)):
        b = 72 + 8*k; s1 = 60 + k
        a(f"""v_perm_b32 v{b}, v{s1}, v{s1}, s71
        v_perm_b32 v{b+1}, v{s1}, v{src}, v30
        v_perm_b32 v{b+2}, v{src}, v{src}, s71
        v_perm_b32 v{b+5}, v{s1}, v{src}, v31
        v_mov_b32 v{b+3}, v{b+2}
        v_mov_b32 v{b+4}, v{b}
        v_mov_b32 v{b+6}, v{b+2}
        v_mov_b32 v{b+7}, v{b+2}
        ds_write_b128 v14, {v(b,4)} offset:{K1OFF+128+2048+1024*k}
        ds_write_b128 v14, {v(b+4,4)} offset:{128+2048+1024*k}""")
    a.vm.clear(); a.lg.clear()

def aux(a):
    sI = "s54"
    sX8, sJ = "s55", "s56"
    a("Laux:")
    X = 16
    TB = 56
    TB2 = 212
    TM = 96
    CS = 116
    TP = 244
    def blk_addr(sidx, sld, sst):
        a(f"""s_mul_i32 s70, {sidx}, 6554
        s_lshr_b32 s70, s70, 16
        s_mul_i32 s71, s70, 10
        s_sub_u32 s71, {sidx}, s71
        s_lshr_b32 s72, {sX8}, 1
        s_lshl_b32 s72, s72, 3
        s_add_u32 s70, s70, s72
        s_mul_i32 {sld}, s70, {64*1280}
        s_lshl_b32 s72, s71, 7
        s_add_u32 {sld}, {sld}, s72
        s_lshl_b32 {sst}, s71, 18
        s_lshl_b32 s72, s70, 7
        s_add_u32 {sst}, {sst}, s72
        s_add_u32 {sst}, {sst}, {XNT}""")
    def blk_load(base, sld):
        for r in range(8):
            a(f"buffer_load_dwordx4 {v(base+4*r,4)}, v{(2,3,6)[r//3]}, {SX}, {sld} offen offset:{(r%3)*1280}")
    def blk_store(base, sst):
        for c in range(8):
            o = TP + 4*(c % 2)
            for k in range(4):
                a(f"v_perm_b32 v{o+k}, v{base+4*(2*k+1)+c//2}, v{base+4*(2*k)+c//2}, {'s75' if c % 2 else 's74'}")
            a(f"buffer_store_dwordx4 {v(o,4)}, v7, {SWS}, {sst} offen sc1")
            if c < 7: a(f"s_add_u32 {sst}, {sst}, 4096")
    a(f"""s_and_b32 {sX8}, {sI}, 7
    s_lshr_b32 {sJ}, {sI}, 3
    s_setprio {os.environ.get('PA','1')}
    s_lshr_b32 s81, 0xfff, {sJ}
    s_and_b32 s81, s81, 1
    v_lshrrev_b32 v4, 3, v0
    v_and_b32 v5, 7, v0""")
    a(f"""s_cmp_eq_u32 s81, 0
    s_cbranch_scc1 Laux_nocs
    s_lshr_b32 s77, {sX8}, 1
    s_and_b32 s78, {sX8}, 1
    s_mul_i32 s78, s78, 12
    s_add_u32 s78, s78, {sJ}
    v_mul_u32_u24 v8, 0xc00, v4
    v_lshl_add_u32 v8, v5, 4, v8
    s_mul_i32 s72, s77, {160*3072}
    s_lshl_b32 s73, s78, 7
    s_add_u32 s72, s72, s73""")
    for n in range(20):
        a(f"buffer_load_dwordx4 {v(CS+4*n,4)}, v8, {SW1}, s72 offen")
        if n < 19: a(f"s_add_u32 s72, s72, 24576")
    a(f"""Laux_nocs:
    s_lshl_b32 s68, {sX8}, 8
    s_lshl_b32 s70, {sJ}, 3
    s_add_u32 s68, s68, s70
    s_mul_i32 s70, s68, 1280
    v_mul_u32_u24 v1, 0x500, v4
    v_lshl_add_u32 v1, v5, 4, v1""")
    for n in range(10):
        a(f"buffer_load_dwordx4 {v(X+4*n,4)}, v1, {SX}, s70 offen offset:{128*n}")
    a(f"""s_and_b32 s69, {sX8}, 1
    s_mul_i32 s69, s69, 40
    s_add_u32 s69, s69, {sJ}
    v_mul_u32_u24 v2, {8*1280}, v5
    v_lshl_add_u32 v2, v4, 4, v2
    v_add_u32 v3, {3*1280}, v2
    v_add_u32 v6, {6*1280}, v2
    v_lshlrev_b32 v7, 15, v4
    v_lshl_add_u32 v7, v5, 4, v7""")
    blk_addr("s69", "s73", "s79")
    blk_load(TB, "s73")
    a(f"""s_cmp_lt_u32 {sJ}, 24
    s_cbranch_scc1 Laux_b1
    s_add_u32 s69, s69, 8""")
    blk_addr("s69", "s73", "s80")
    blk_load(TB2, "s73")
    a("Laux_b1:")
    if TOUCH:
        a(f"""s_getpc_b64 s[62:63]
        Lpc:
        s_sub_u32 s62, s62, Lpc-{KN}
        s_subb_u32 s63, s63, 0
        v_min_u32 v8, 9, v0
        s_mul_i32 s70, {sJ}, 10
        v_add_u32 v8, s70, v8
        v_lshlrev_b32 v8, 7, v8
        v_min_u32 v8, Lend-{KN}, v8
        s_mov_b64 exec, 0x3ff
        global_load_dword v252, v8, s[62:63]
        s_mov_b64 exec, -1""")
    a(f"s_setprio {os.environ.get('PA2','3')}")
    make_tag(a)
    a(f"""s_mov_b32 s74, 0x05040100
    s_mov_b32 s75, 0x07060302
    s_mov_b32 s70, 0x3f803f80
    v_and_b32 v8, 15, v0
    v_lshrrev_b32 v9, 1, v8
    v_and_b32 v10, 1, v8
    v_lshlrev_b32 v10, 4, v10
    v_mov_b32 v11, 0x3f80
    v_lshlrev_b32 v11, v10, v11""")
    for k in range(4):
        a(f"v_cmp_eq_u32 vcc, {k}, v9\nv_cndmask_b32 v{88+k}, 0, v11, vcc")
    a(f"""s_lshl_b32 s76, {sI}, 7
    s_cmp_eq_u32 s81, 0
    s_cbranch_scc1 Laux_nocs1
    s_waitcnt vmcnt({18+TOUCH})""")
    for n in range(20):
        a(f"v_mfma_f32_16x16x32_bf16 v[112:115], v[88:91], {v(CS+4*n,4)}, {'0' if n == 0 else 'v[112:115]'}")
    for k in range(4):
        a(f"v_add_f32_dpp v{112+k}, v{112+k}, v{112+k} row_ror:8 row_mask:0xf bank_mask:0xf")
    a(f"""v_lshrrev_b32 v9, 4, v0
    v_lshlrev_b32 v8, 5, v5
    v_lshl_add_u32 v8, v9, 4, v8
    s_lshl_b32 s72, s78, 8
    s_mul_i32 s73, s77, 6144
    s_add_u32 s72, s72, s73
    s_add_u32 s72, s72, {CSUM}
    s_mov_b64 exec, 0x00ff00ff
    buffer_store_dwordx4 v[112:115], v8, {SWS}, s72 offen sc1
    s_mov_b64 exec, -1
    s_waitcnt vmcnt({9+TOUCH})
    s_branch Laux_w
    Laux_nocs1:
    s_waitcnt vmcnt({16+TOUCH})
    s_cmp_ge_u32 {sJ}, 24
    s_cbranch_scc1 Laux_w
    s_waitcnt vmcnt({8+TOUCH})
    Laux_w:""")
    stamp_reset(1); stamp(a, 'aux loads')
    for k in range(4): a(f"v_dot2_f32_bf16 v{8+k}, v{X+k}, s70, 0")
    for k in range(4): a(f"v_dot2_f32_bf16 v{12+k}, v{X+k}, v{X+k}, 0")
    for n in range(1, 10):
        for k in range(4): a(f"v_dot2_f32_bf16 v{8+k}, v{X+4*n+k}, s70, v{8+k}")
        for k in range(4): a(f"v_dot2_f32_bf16 v{12+k}, v{X+4*n+k}, v{X+4*n+k}, v{12+k}")
    INV640 = 0x3ACCCCCD
    def red8(rs):
        for t in ("v_add_f32 v{r}, v{r}, v{r1}", "v_add_f32 v{r2}, v{r2}, v{r3}", "v_add_f32 v{r}, v{r}, v{r2}",
                  "v_add_f32_dpp v{r}, v{r}, v{r} quad_perm:[1,0,3,2] row_mask:0xf bank_mask:0xf",
                  "v_add_f32_dpp v{r}, v{r}, v{r} quad_perm:[2,3,0,1] row_mask:0xf bank_mask:0xf",
                  "v_add_f32_dpp v{r}, v{r}, v{r} row_half_mirror row_mask:0xf bank_mask:0xf",
                  "v_mul_f32 v{r}, %d, v{r}" % INV640):
            for r in rs: a(t.format(r=r, r1=r+1, r2=r+2, r3=r+3))
    red8([8, 12])
    a("""v_mul_f32 v9, v8, v8
    v_sub_f32 v12, v12, v9
    v_mul_f32 v10, 0x41800000, v12
    v_sub_f32 v8, 0, v8
    v_cmp_nle_f32 vcc, v9, v10
    s_cbranch_vccz Laux_var
    v_mov_b32 v9, v8""")
    for n in range(10):
        t = TM + 8*(n % 2)
        for k in range(4):
            a(f"v_lshlrev_b32 v{t+2*k}, 16, v{X+4*n+k}\nv_and_b32 v{t+2*k+1}, 0xffff0000, v{X+4*n+k}")
        for k in range(4): a(f"v_pk_add_f32 {v(t+2*k,2)}, {v(t+2*k,2)}, v[8:9]")
        for k in range(4):
            if n == 0 and k < 2: a(f"v_pk_mul_f32 {v(12+2*k,2)}, {v(t+2*k,2)}, {v(t+2*k,2)}")
            else: a(f"v_pk_fma_f32 {v(12+2*(k%2),2)}, {v(t+2*k,2)}, {v(t+2*k,2)}, {v(12+2*(k%2),2)}")
    red8([12])
    a(f"""Laux_var:
    v_cvt_pk_bf16_f32 v9, v12, v12
    v_and_b32 v9, 0xffff0000, v9
    v_add_f32 v9, 0x3727C5AC, v9
    v_cvt_pk_bf16_f32 v9, v9, v9
    v_and_b32 v9, 0xffff0000, v9
    v_sqrt_f32 v9, v9
    v_cvt_pk_bf16_f32 v9, v8, v9
    v_lshlrev_b32 v12, 2, v4
    s_lshl_b32 s70, s68, 2
    s_add_u32 s70, s70, {STATS}
    s_mov_b32 exec_lo, 0x01010101
    s_mov_b32 exec_hi, 0x01010101
    buffer_store_dword v9, v12, {SWS}, s70 offen sc1
    s_mov_b64 exec, -1
    s_waitcnt vmcnt(1)
    s_cmp_eq_u32 s81, 0
    s_cbranch_scc1 Laux_w2
    s_waitcnt vmcnt(2)
    Laux_w2:""".replace("s_waitcnt vmcnt(1)\n    s_cmp_eq_u32 s81, 0\n    s_cbranch_scc1 Laux_w2\n    s_waitcnt vmcnt(2)\n    Laux_w2:", "s_waitcnt vmcnt(1)"))
    TQ = 116
    for c in range(8):
        for k in range(4):
            a(f"v_perm_b32 v{TQ+4*c+k}, v{TB+4*(2*k+1)+c//2}, v{TB+4*(2*k)+c//2}, {'s75' if c % 2 else 's74'}")
    a(f"""s_add_u32 s70, s76, {FL_S}
    s_waitcnt vmcnt(0)""")
    flag_store(a, "s70", 8, 9)
    if W2AUX:
        RP = 148
        srd(a, 48, 'w2', 1966080)
        a(f"""s_add_u32 s70, {sJ}, -12
    s_cmp_ge_u32 s70, 16
    s_cbranch_scc1 Laux_now1
    s_lshl_b32 s71, {sX8}, 4
    s_add_u32 s70, s70, s71
    s_mul_i32 s71, s70, {12*1280}
    s_mul_i32 s77, s70, {12*160}
    s_add_u32 s77, s77, {W2P}
    s_lshl_b32 s78, s70, 7
    s_add_u32 s78, s78, {FL_AUX}
    v_mul_u32_u24 v10, 6554, v0
    v_lshrrev_b32 v10, 16, v10
    v_mul_u32_u24 v11, 10, v10
    v_sub_u32 v11, v0, v11
    v_mul_u32_u24 v10, 0x500, v10
    v_lshl_add_u32 v10, v11, 4, v10
    v_add_u32 v12, 64, v0
    v_mul_u32_u24 v13, 6554, v12
    v_lshrrev_b32 v13, 16, v13
    v_mul_u32_u24 v11, 10, v13
    v_sub_u32 v11, v12, v11
    v_mul_u32_u24 v13, 0x500, v13
    v_lshl_add_u32 v11, v11, 4, v13
""")
        for c in range(8):
            a(f"buffer_load_dwordx4 {v(RP+8*c,4)}, v10, {S4}, s71 offen offset:{160*c}")
        a("s_mov_b32 exec_hi, 0x00ffffff")
        for c in range(8):
            a(f"buffer_load_dwordx4 {v(RP+8*c+4,4)}, v11, {S4}, s71 offen offset:{160*c}")
        a("s_mov_b64 exec, -1\nLaux_now1:")
    for c in range(8):
        a(f"buffer_store_dwordx4 {v(TQ+4*c,4)}, v7, {SWS}, s79 offen sc1")
        if c < 7: a(f"s_add_u32 s79, s79, 4096")
    a(f"""s_cmp_lt_u32 {sJ}, 24
    s_cbranch_scc1 Laux_b2""")
    blk_store(TB2, "s80")
    a(f"""Laux_b2:
    s_add_u32 s70, s76, {FL_C}
    s_waitcnt vmcnt(0)""")
    flag_store(a, "s70", 8, 9)
    stamp(a, 'stats flag')
    if W2AUX:
        a(f"""s_add_u32 s70, {sJ}, -12
    s_cmp_ge_u32 s70, 16
    s_cbranch_scc1 Laux_now2
    v_lshlrev_b32 v8, 4, v0""")
        for c in range(8):
            a(f"buffer_store_dwordx4 {v(RP+8*c,4)}, v8, {SWS}, s77 offen sc1")
            a("s_mov_b32 exec_hi, 0x00ffffff")
            a(f"buffer_store_dwordx4 {v(RP+8*c+4,4)}, v8, {SWS}, s77 offen offset:1024 sc1")
            a("s_mov_b32 exec_hi, -1")
            if c < 7: a("s_add_u32 s77, s77, 245760")
        a("s_waitcnt vmcnt(0)")
        flag_store(a, "s78", 8, 9)
        a("Laux_now2:")
    a(f"""s_cmp_lg_u32 {sJ}, 31
    s_cbranch_scc1 Laux_go""")
    poll256(a, FL_C, 128, r=20, slp=1)
    a(f"""s_lshl_b32 s70, {sX8}, 7
    s_add_u32 s70, s70, {GO}""")
    flag_store(a, "s70", 8, 9)
    a(f"Laux_go:\ns_setprio {os.environ.get('PS','1')}")
    go_wait(a, 20)
    u_issue(a)

def conv(a):
    sI = "s54"
    a("Lconv:")
    if os.environ.get('PSC'): a(f"s_setprio {os.environ.get('PSC')}")
    stamp_reset(4); stamp(a, 'Lconv', True)
    a(f"""v_and_b32 v10, 15, v0
    v_lshrrev_b32 v11, 4, v0
    v_and_b32 v12, 1, v0
    v_lshrrev_b32 v13, 1, v10
    v_mul_u32_u24 v14, {K1OFF}, v12
    v_sub_u32 v15, v13, v11
    v_lshl_add_u32 v14, v15, 4, v14
    v_add_u32 v14, {KB0+64}, v14
    v_and_b32 v12, 3, v0
    v_mul_u32_u24 v15, {UCS}, v12
    v_lshrrev_b32 v13, 2, v10
    v_lshl_add_u32 v15, v13, 7, v15
    v_lshl_add_u32 v15, v11, 4, v15
    v_add_u32 v15, {UPAD+48}, v15
    v_lshlrev_b32 v19, 7, v13
    v_lshl_add_u32 v19, v11, 5, v19
    v_lshl_add_u32 v19, v12, 2, v19
    v_mov_b32 v4, 0
    v_mov_b32 v5, 0
    v_lshlrev_b32 v6, 3, v0
    s_mul_i32 s70, {sW}, {UCS}
    v_add_u32 v6, s70, v6
    s_waitcnt lgkmcnt(0)
    s_barrier""")
    a("s_mov_b32 exec_hi, 0x00ffffff")
    for c in range(3): a(f"ds_write_b64 v6, v[4:5] offset:{c*USTR}")
    a("s_mov_b32 exec_hi, -1")
    NM, RS, UD = 44, 52, 226
    def unp(d, s): return f"v_lshlrev_b32 v{d}, 16, v{s}\nv_and_b32 v{d+1}, 0xffff0000, v{s}"
    a("s_waitcnt vmcnt(0)")
    for k in range(8): a(f"v_and_b32 v{RS+k}, 0xffff0000, v{UIN+k}")
    for k in range(8): a(f"v_rcp_f32 v{RS+k}, v{RS+k}\nv_lshlrev_b32 v{NM+k}, 16, v{UIN+k}")
    a("s_waitcnt lgkmcnt(0)\ns_barrier")
    for c in range(3):
        x = UIN + 8 + 4*c; t = 60; ud = UD + 8*c; o = c*USTR + UPAD
        for k in range(4): a(unp(t+2*k, x+k))
        for k in range(4): a(f"v_pk_add_f32 {v(t+2*k,2)}, {v(t+2*k,2)}, {v(NM+2*k,2)}")
        for k in range(4): a(f"v_cvt_pk_bf16_f32 v{x+k}, v{t+2*k}, v{t+2*k+1}")
        for k in range(4): a(unp(t+2*k, x+k))
        for k in range(4): a(f"v_pk_mul_f32 {v(t+2*k,2)}, {v(t+2*k,2)}, {v(RS+2*k,2)}")
        for k in range(4): a(f"v_cvt_pk_bf16_f32 v{x+k}, v{t+2*k}, v{t+2*k+1}")
        a(f"""v_cvt_pk_bf16_f32 v{68+2*c}, v{t+2}, v{t+3}
        v_cvt_pk_bf16_f32 v{69+2*c}, v{t+4}, v{t+5}
        ds_write_b128 v224, {v(x,4)} offset:{o+3*UCS-16}
        ds_write_b64 v224, {v(x,2)} offset:{o+UCS-8}
        ds_write_b64 v224, {v(x+2,2)} offset:{o+UCS}
        ds_write_b32 v224, v{x} offset:{o-4}
        ds_write_b64 v224, {v(68+2*c,2)} offset:{o}
        ds_write_b32 v224, v{x+3} offset:{o+8}
        ds_write_b32 v224, v{x} offset:{o+2*UCS-12}
        ds_write_b64 v224, {v(68+2*c,2)} offset:{o+2*UCS-8}
        ds_write_b32 v224, v{x+3} offset:{o+2*UCS}""")
    for c in range(3):
        x = UIN + 8 + 4*c; t = 60; ud = UD + 8*c
        for k in range(4): a(unp(t+2*k, x+k))
        sd = f"s{34+c+(c>1)*6}"
        a(f"s_bitcmp1_b32 {('s58','s59','s61')[c]}, 0\ns_cselect_b32 s70, 0, 16\ns_lshl_b32 {sd}, {sd}, s70\ns_and_b32 {sd}, {sd}, 0xffff0000")
        for k in range(8): a(f"v_mul_f32 v{t+k}, {sd}, v{t+k}")
        for k in range(4): a(f"v_cvt_pk_bf16_f32 v{76+k}, v{t+2*k}, v{t+2*k+1}")
        for k in range(4): a(unp(ud+2*k, 76+k))
    a("""s_waitcnt lgkmcnt(0)
    s_barrier""")
    stamp(a, 'u ready', True)
    YA = 20
    FS = [44, 132]
    def loop(name, parts):
        ad = [(16, 17), (8, 9)]
        tiles = [(pi, j) for pi, (c, J) in enumerate(parts) for j in J]
        acc = {t: YA + 4*k for k, t in enumerate(tiles)}
        base = []; n = 0
        for c, J in parts:
            base.append(n); n += 2*(max(J)+1)
        def reads(fs):
            out = []
            for pi, (c, J) in enumerate(parts):
                for k in range(max(J)+1):
                    out.append(f"ds_read_b128 {v(FS[fs]+4*(base[pi]+2*k),4)}, v{ad[pi][0]} offset:{512*k}")
                    out.append(f"ds_read_b128 {v(FS[fs]+4*(base[pi]+2*k+1),4)}, v{ad[pi][1]} offset:{512*k}")
                out.append(f"v_add_u32 v{ad[pi][0]}, 64, v{ad[pi][0]}")
                out.append(f"v_add_u32 v{ad[pi][1]}, -64, v{ad[pi][1]}")
            return out
        def mfmas(fs):
            rem = {t: list(range(t[1]+1)) for t in tiles}
            todo = []; last = []
            while any(rem.values()):
                cand = [t for t in tiles if rem[t] and t not in last[-GAP:]] or [t for t in tiles if rem[t] and t not in last[-1:]] or [t for t in tiles if rem[t]]
                t = max(cand, key=lambda t: len(rem[t]))
                todo.append((t, rem[t].pop(0))); last.append(t)
            return [f"v_mfma_f32_16x16x32_bf16 {v(acc[t],4)}, {v(FS[fs]+4*(base[t[0]]+2*p),4)}, {v(FS[fs]+4*(base[t[0]]+2*(t[1]-p)+1),4)}, {v(acc[t],4)}" for t, p in todo]
        for pi, (c, J) in enumerate(parts):
            if isinstance(c, str):
                a(f"s_mul_i32 s70, {c}, {KSTR}\ns_mul_i32 s71, {c}, {USTR}\nv_add_u32 v{ad[pi][0]}, s70, v14\nv_add_u32 v{ad[pi][1]}, s71, v15")
            else:
                a(f"v_add_u32 v{ad[pi][0]}, {c*KSTR}, v14\nv_add_u32 v{ad[pi][1]}, {c*USTR}, v15")
        for t in reads(0): a(t)
        for r in range(4*len(tiles)): a(f"v_mov_b32 v{YA+r}, 0")
        a(f"s_mov_b32 s64, 4\n{name}:")
        for fs in (0, 1):
            a("s_waitcnt lgkmcnt(0)")
            fill = reads(1-fs); ms = mfmas(fs)
            n = len(ms) - 4; done = 0
            for i, m in enumerate(ms):
                a(m)
                want = min(len(fill), -(-len(fill)*(i+1)//n))
                while done < want: a(fill[done]); done += 1
        a(f"""s_sub_u32 s64, s64, 1
        s_cmp_lg_u32 s64, 0
        s_cbranch_scc1 {name}
        s_waitcnt lgkmcnt(0)
        s_barrier""")
        for pi, (c, J) in enumerate(parts):
            if isinstance(c, str): a(f"s_lshl_b32 s70, {c}, 12\nv_add_u32 v{ad[pi][0]}, s70, v19")
            for j in J:
                r = acc[(pi, j)]
                off = 512*j + (0 if isinstance(c, str) else 4096*c)
                adr = ad[pi][0] if isinstance(c, str) else 19
                a(f"""v_cvt_pk_bf16_f32 v{r}, v{r}, v{r+1}
                v_cvt_pk_bf16_f32 v{r+2}, v{r+2}, v{r+3}
                ds_write_b32 v{adr}, v{r} offset:{off}
                ds_write_b32 v{adr}, v{r+2} offset:{off+16}""")
    a(f"""s_lshr_b32 s62, {sW}, 1
    s_cmp_eq_u32 {sW}, 1
    s_cbranch_scc1 Lcv_w1
    s_cmp_eq_u32 {sW}, 3
    s_cbranch_scc1 Lcv_w3""")
    loop("Lcv_l0", [("s62", [7, 6, 5, 1])])
    a("s_branch Lcv_bar2\nLcv_w1:")
    loop("Lcv_l1", [(0, [4, 3, 2, 0]), (1, [4, 3])])
    a("s_branch Lcv_bar2\nLcv_w3:\ns_cmp_eq_u32 s57, 1\ns_cbranch_scc1 Lcv_w3b")
    loop("Lcv_l3a", [(1, [2, 0]), (2, [7, 5, 2, 0])])
    a("s_branch Lcv_bar2\nLcv_w3b:")
    loop("Lcv_l3b", [(1, [2, 0]), (2, [6, 4, 3, 1])])
    a(f"""Lcv_bar2:
    s_waitcnt lgkmcnt(0)
    s_barrier""")
    stamp(a, 'conv done', True)
    for c in range(3): a.ds(f"ds_read_b128 {v(32+4*c,4)}, v224 offset:{c*4096}", ('y', c))
    a(f"""s_lshr_b32 s70, {sW}, 1
    s_xor_b32 s70, s70, s57
    s_cmp_eq_u32 s70, 0
    s_cselect_b32 s66, -1, 0
    s_cselect_b32 s67, 0, -1""")
    for c, sch in enumerate(("s58", "s59", "s61")):
        a.wait(lg=[('y', c)])
        y = 32 + 4*c; t = 48 + 8*c; ud = UD + 8*c
        for k in range(4): a(unp(t+2*k, y+k))
        for k in range(4): a(f"v_pk_add_f32 {v(t+2*k,2)}, {v(t+2*k,2)}, {v(ud+2*k,2)}")
        for k in range(4): a(f"v_cvt_pk_bf16_f32 v{y+k}, v{t+2*k}, v{t+2*k+1}")
        a(f"""s_lshl_b32 s70, {sch}, 12
        s_add_u32 s70, s70, {AT}""")
        if c == 2: a("s_mov_b64 exec, s[66:67]")
        a(f"buffer_store_dwordx4 {v(y,4)}, v224, {SWS}, s70 offen sc1")
        if c == 2: a("s_mov_b64 exec, -1")
    a("s_waitcnt vmcnt(0)")
    stamp(a, 'y stored'); stamp_flush(a, 50)
    a(f"""s_barrier
    s_cmp_eq_u32 {sW}, 1
    s_cbranch_scc1 Lcv_ep
    s_cmp_lg_u32 {sW}, 0
    s_cbranch_scc1 Lend
    s_lshl_b32 s70, {sI}, 7
    s_add_u32 s70, s70, {FL_Y}""")
    flag_store(a, "s70", 4, 5)
    a(f"""s_endpgm
    Lcv_ep:
    s_cmp_lg_u32 {sI}, 0
    s_cbranch_scc1 Lend""")
    if EXP != "nogemm": poll256(a, FL_ACT + 4096, 512, slp=8, grp=True)
    poll256(a, FL_Y, 128, slp=8)
    flag_store(a, "0", 4, 5)
    a("s_endpgm")

HEADER = open(os.path.join(os.path.dirname(os.path.abspath(__file__)), "..", "cdna_kernels",
              "parallel_sum__ssm_conv_s4__dense_activation_mish__prompt.s.ref")).read().split("; Override")[0]

def build():
    a = Asm()
    prologue(a)
    gemm(a)
    a.vm.clear(); a.lg.clear()
    ssm(a)
    a("Lend:\ns_endpgm")
    body = a.finalize()
    return f"""{HEADER}; @launch grid=(512,1,1) block=(256,1,1) lds=81920
.amdgcn_target "amdgcn-amd-amdhsa--gfx950"
.text
.globl {KN}
.p2align 8
.type {KN},@function
{KN}:
{body}.section .rodata,"a"
.p2align 6
.amdhsa_kernel {KN}
  .amdhsa_next_free_vgpr 256
  .amdhsa_next_free_sgpr 102
  .amdhsa_accum_offset 256
  .amdhsa_group_segment_fixed_size 0
  .amdhsa_kernarg_size 128
  .amdhsa_user_sgpr_count 2
  .amdhsa_user_sgpr_kernarg_segment_ptr 1
  .amdhsa_system_sgpr_workgroup_id_x 1
.end_amdhsa_kernel
"""

if __name__ == "__main__":
    out = sys.argv[1] if len(sys.argv) > 1 else "k.s"
    open(out, "w").write(build())
    print("wrote", out)
```
